```python
import torch

def _softmax(x, axis=-1):
    return torch.softmax(x, dim=axis)

def _gelu(x):
    return torch.nn.functional.gelu(x, approximate='tanh')

def _silu(x):
    return torch.nn.functional.silu(x)

def _sigmoid(x):
    return torch.sigmoid(x)

def _layernorm(x, axis=-1, eps=1e-05):
    m = x.mean(dim=axis, keepdim=True)
    v = x.var(dim=axis, keepdim=True, unbiased=False)
    return (x - m) / torch.sqrt(v + eps)

def _scatter_add(tgt, idx, src, axis=0):
    return tgt.clone().index_add_(axis, idx, src)

def _segment_sum(src, seg, n):
    out = torch.zeros((n,) + src.shape[1:], dtype=src.dtype)
    return out.index_add_(0, seg, src)

def _pad(x, pw):
    flat = tuple((v for pair in reversed(pw) for v in pair))
    return torch.nn.functional.pad(x, flat)
kernel_name = 'adaLN_cond__ssm_conv_s4__mixer_s_mlp__prompt'

def setup_inputs():

    _w = lambda a: (lambda t: t.to(torch.bfloat16) if t.is_floating_point() else t)(torch.as_tensor(a))

    def _A_setup():
        B, L, D, N = (1, 2048, 512, 128)
        A_re = -(lambda _x: torch.exp(torch.as_tensor(_x)))((lambda *s: torch.randn(*s, dtype=torch.bfloat16) * 3.2)(D, N))
        A_im = torch.pi * (lambda *s: torch.randn(*s, dtype=torch.bfloat16) * 0.1)(D, N)
        B_re = (lambda *s: torch.randn(*s, dtype=torch.bfloat16) * 0.2)(D, N)
        B_im = (lambda *s: torch.randn(*s, dtype=torch.bfloat16) * 0.2)(D, N)
        C_re = (lambda *s: torch.randn(*s, dtype=torch.bfloat16) * 0.2)(D, N)
        C_im = (lambda *s: torch.randn(*s, dtype=torch.bfloat16) * 0.2)(D, N)
        log_dt = (lambda *s: torch.randn(*s, dtype=torch.bfloat16) * 0.1)(D) * 0.5 - 4.0
        Dskip = (lambda *s: torch.randn(*s, dtype=torch.bfloat16) * 0.1)(D)
        return {'u': _w((lambda *s: torch.randn(*s, dtype=torch.bfloat16) * 0.05)(B, L, D)), 'A_re': _w(A_re), 'A_im': _w(A_im), 'B_re': _w(B_re), 'B_im': _w(B_im), 'C_re': _w(C_re), 'C_im': _w(C_im), 'log_dt': _w(log_dt), 'Dskip': _w(Dskip)}
    _A_in = _A_setup()

    def _B_setup():
        B, S, D, F = (1, 2048, 512, 1376)
        return {'x': _w((lambda *s: torch.randn(*s, dtype=torch.bfloat16) * 0.05)(B, S, D)), 'w1': _w((lambda *s: torch.randn(*s, dtype=torch.bfloat16) * 3.2)(D, D) * D ** (-0.5)), 'w2': _w((lambda *s: torch.randn(*s, dtype=torch.bfloat16) * 3.2)(D, D) * D ** (-0.5)), 'w3': _w((lambda *s: torch.randn(*s, dtype=torch.bfloat16) * 3.2)(D, F) * D ** (-0.5)), 'w4': _w((lambda *s: torch.randn(*s, dtype=torch.bfloat16) * 1.6)(F, D) * F ** (-0.5))}
    _B_in = _B_setup()
    return {'A_u': _A_in['u'], 'A_A_re': _A_in['A_re'], 'A_A_im': _A_in['A_im'], 'A_B_re': _A_in['B_re'], 'A_B_im': _A_in['B_im'], 'A_C_re': _A_in['C_re'], 'A_C_im': _A_in['C_im'], 'A_log_dt': _A_in['log_dt'], 'A_Dskip': _A_in['Dskip'], 'B_x': _B_in['x'], 'B_w1': _B_in['w1'], 'B_w2': _B_in['w2'], 'B_w3': _B_in['w3'], 'B_w4': _B_in['w4'], 'c': _w((lambda *s: torch.randn(*s, dtype=torch.bfloat16) * 0.1)(1, 512) * 8.0), 'w_mod': _w((lambda *s: torch.randn(*s, dtype=torch.bfloat16) * 0.1)(512, 6 * 512) * 512 ** (-0.5) * 8.0)}

def reference(A_u, A_A_re, A_A_im, A_B_re, A_B_im, A_C_re, A_C_im, A_log_dt, A_Dskip, B_x, B_w1, B_w2, B_w3, B_w4, c, w_mod):

    def _A_ref(u, A_re, A_im, B_re, B_im, C_re, C_im, log_dt, Dskip):
        Bsz, L, D = u.shape
        dt = torch.exp(log_dt)[:, None]
        A = A_re + 1j * A_im
        Bc = B_re + 1j * B_im
        Cc = C_re + 1j * C_im
        logdA = dt * A
        dB = dt * Bc
        l = (lambda x, dt: x.to(dt))(torch.arange(L), A_re.dtype)
        P = torch.exp(logdA[:, :, None] * l[None, None, :])
        K = torch.einsum('dn,dnl,dn->dl', Cc, P, dB).real
        L2 = 2 * L
        Kp = _pad(K, ((0, 0), (0, L)))
        up = (lambda x, *d: x.permute(*d))(u, 0, 2, 1)
        up = _pad(up, ((0, 0), (0, 0), (0, L)))
        Kf = (lambda x, axes=(-2, -1): torch.fft.rfft2(x.float(), dim=axes))(Kp[:, None, :], axes=(-2, -1))
        Uf = (lambda x, axes=(-2, -1): torch.fft.rfft2(x.float(), dim=axes))(up[:, :, None, :], axes=(-2, -1))
        Yf = Uf * Kf[None, :, :, :]
        y = (lambda x, s, axes=(-2, -1): torch.fft.irfft2(x, s=s, dim=axes).to(torch.bfloat16))(Yf, (1, L2), axes=(-2, -1))[:, :, 0, :L]
        y = (lambda x, *d: x.permute(*d))(y, 0, 2, 1) + u * Dskip[None, None, :]
        return y

    def _B_ref(x, w1, w2, w3, w4):
        B, S, D = x.shape
        h = _gelu(_layernorm(x, axis=-1) @ w1)
        c = D // 4
        g0 = _pad(h[:, :, 0 * c:1 * c], ((0, 0), (1, 0), (0, 0)))[:, :S, :]
        g1 = _pad(h[:, :, 1 * c:2 * c], ((0, 0), (0, 1), (0, 0)))[:, 1:, :]
        g2 = _pad(h[:, :, 2 * c:3 * c], ((0, 0), (2, 0), (0, 0)))[:, :S, :]
        g3 = _pad(h[:, :, 3 * c:], ((0, 0), (0, 2), (0, 0)))[:, 2:, :]
        hs = torch.concatenate([g0, g1, g2, g3], axis=-1) @ w2
        x1 = x + hs
        h2 = _gelu(_layernorm(x1, axis=-1) @ w3) @ w4
        return x1 + h2
    x = A_u
    mod = (_silu(c) @ w_mod).reshape(c.shape[0], 6, 1, -1)
    sa, ca, ga, sb, cb, gb = (mod[:, 0].clone(), mod[:, 1].clone(), mod[:, 2].clone(), mod[:, 3].clone(), mod[:, 4].clone(), mod[:, 5].clone())
    h = _layernorm(x, axis=-1) * (1 + ca) + sa
    x = x + ga * _A_ref(h, A_A_re, A_A_im, A_B_re, A_B_im, A_C_re, A_C_im, A_log_dt, A_Dskip)
    h = _layernorm(x, axis=-1) * (1 + cb) + sb
    x = x + gb * _B_ref(h, B_w1, B_w2, B_w3, B_w4)
    return x
```

```python
import re

def v(i, n=1): return f"v{i}" if n == 1 else f"v[{i}:{i+n-1}]"
def a(i, n=1): return f"a{i}" if n == 1 else f"a[{i}:{i+n-1}]"
def s(i, n=1): return f"s{i}" if n == 1 else f"s[{i}:{i+n-1}]"

_REG = re.compile(r'^(-|\|)?(v|a|s)(\d+)\|?$')
_RNG = re.compile(r'^(-)?(v|a|s)\[(\d+):(\d+)\]$')

def regs_of(tok):
    tok = tok.strip()
    if tok.startswith('abs(') and tok.endswith(')'): tok = tok[4:-1]
    if tok.startswith('-abs(') and tok.endswith(')'): tok = tok[5:-1]
    m = _REG.match(tok)
    if m: return {(m.group(2), int(m.group(3)))}
    m = _RNG.match(tok)
    if m: return {(m.group(2), i) for i in range(int(m.group(3)), int(m.group(4)) + 1)}
    if tok == 'vcc': return {('s', 'vcc')}
    if tok == 'exec': return {('s', 'exec')}
    if tok == 'm0': return {('s', 'm0')}
    return set()

TRANS = ('v_exp_f32', 'v_log_f32', 'v_rcp_f32', 'v_rsq_f32', 'v_sqrt_f32', 'v_sin_f32', 'v_cos_f32', 'v_rcp_iflag_f32')

class Ins:
    __slots__ = ('text', 'mn', 'ops', 'mods', 'kind', 'dst', 'src', 'srcC', 'passes', 'raw')
    def __init__(self, text):
        self.text = text
        self.raw = False
        t = text.strip()
        parts = t.split(None, 1)
        self.mn = parts[0]
        rest = parts[1] if len(parts) > 1 else ''
        ops, depth, cur = [], 0, ''
        for ch in rest:
            if ch == '[': depth += 1
            if ch == ']': depth -= 1
            if ch == ',' and depth == 0:
                ops.append(cur.strip()); cur = ''
            else: cur += ch
        if cur.strip(): ops.append(cur.strip())
        mods = ''
        if ops:
            last = ops[-1].split(None, 1)
            ops[-1] = last[0]
            mods = last[1] if len(last) > 1 else ''
        self.ops, self.mods = ops, mods
        self.dst, self.src, self.srcC, self.passes = set(), set(), set(), 0
        mn = self.mn
        R = [regs_of(o) for o in ops]
        if mn.startswith('v_mfma'):
            self.kind = 'mfma'
            self.dst = R[0]; self.src = R[1] | R[2]; self.srcC = R[3]
            self.passes = 8 if '32x32' in mn else 4
        elif mn.startswith('v_'):
            self.kind = 'valu'
            if mn.startswith('v_cmp'):
                self.dst = R[0]; self.src = set().union(*R[1:])
            elif mn.startswith(('v_add_co', 'v_sub_co', 'v_addc_co', 'v_subb_co')):
                self.dst = R[0] | R[1]; self.src = set().union(*R[2:])
            elif mn.startswith('v_permlane'):
                self.dst = R[0] | R[1]; self.src = R[0] | R[1]
            elif mn.startswith(('v_fmac', 'v_dot2c', 'v_pk_fmac', 'v_writelane')):
                self.dst = R[0]; self.src = set().union(*R)
            else:
                self.dst = R[0]; self.src = set().union(*R[1:]) if len(R) > 1 else set()
                if 'dpp' in mn or 'd16' in mn: self.src |= R[0]
            if mn.startswith('v_cndmask') and len(ops) == 3: self.src |= {('s', 'vcc')}
        elif mn.startswith('ds_'):
            self.kind = 'ds'
            if mn.startswith(('ds_read', 'ds_bpermute', 'ds_permute', 'ds_swizzle')):
                self.dst = R[0]; self.src = set().union(*R[1:])
                if 'd16' in mn: self.src |= R[0]
            else:
                self.src = set().union(*R)
        elif mn.startswith(('buffer_', 'global_')):
            self.kind = 'vmem'
            if mn.startswith(('buffer_wbl2', 'buffer_inv')): pass
            elif mn.startswith('buffer_load'):
                if re.search(r'\blds\b', mods): self.src = set().union(*R) | {('s', 'm0')}
                else:
                    self.dst = R[0]; self.src = set().union(*R[1:])
                    if 'd16' in mn: self.src |= R[0]
            elif mn.startswith('buffer_store'): self.src = set().union(*R)
            elif mn.startswith('buffer_atomic'):
                self.src = set().union(*R)
                if 'sc0' in mods: self.dst = R[0]
            elif mn.startswith('global_load'): self.dst = R[0]; self.src = set().union(*R[1:])
            elif mn.startswith('global_store'): self.src = set().union(*R)
            else: raise ValueError(text)
        elif mn.startswith('s_'):
            self.kind = 'salu'
            if mn.startswith(('s_cmp', 's_cbranch', 's_branch', 's_waitcnt', 's_nop', 's_barrier', 's_endpgm', 's_sleep', 's_setprio', 's_bitcmp')):
                self.src = set().union(*R) if R else set()
            else:
                self.dst = R[0] if R else set(); self.src = set().union(*R[1:]) if len(R) > 1 else set()
                if 'saveexec' in mn: self.dst = self.dst | {('s', 'exec')}
        else:
            raise ValueError("unknown instruction: " + text)

    def states(self):
        if self.mn == 's_nop': return int(self.ops[0], 0) + 1
        return 1

def wide_store_data(i):
    if i.kind == 'vmem' and re.match(r'(buffer|global)_store_dwordx[34]', i.mn):
        return regs_of(i.ops[0] if i.mn.startswith('buffer') else i.ops[1])
    return set()

def need_states(p, c):
    n = 0
    vg = lambda S: {r for r in S if r[0] in 'va'}
    sg = lambda S: {r for r in S if r[0] == 's'}
    if p.kind == 'valu':
        pv, ps = vg(p.dst), sg(p.dst)
        if c.kind == 'mfma' and pv & (c.src | c.srcC): n = max(n, 2)
        if c.kind == 'valu':
            if p.mn.replace('_e32', '').replace('_e64', '') in TRANS and pv & c.src and c.mn.replace('_e32','').replace('_e64','') not in TRANS: n = max(n, 1)
            if p.mn.split('_e')[0] in TRANS and pv & c.src: n = max(n, 1)
            if ('dpp' in c.mn or 'quad_perm' in c.mods or 'row_' in c.mods) and pv & c.src: n = max(n, 2)
            if c.mn.startswith('v_permlane') and pv & c.src: n = max(n, 2)
            if c.mn.startswith(('v_readlane', 'v_readfirstlane')) and pv & c.src: n = max(n, 1)
            if ps & c.src:
                n = max(n, 4 if c.mn.startswith(('v_readlane', 'v_writelane')) else 2)
        if p.mn.startswith('v_dot') and pv & (c.src | c.dst | c.srcC):
            same = c.mn == p.mn and len(c.ops) >= 3 and not (pv & (regs_of(c.ops[1]) | regs_of(c.ops[2])))
            if not same: n = max(n, 3)
        if c.kind == 'vmem' and ps & c.src: n = max(n, 5)
        if c.kind == 'salu' and ps & c.src: n = max(n, 1)
        if ('s', 'exec') in p.dst: n = max(n, 5)
    if p.kind == 'mfma':
        big = 12 if p.passes == 8 else 8
        if c.kind == 'mfma':
            if p.dst & c.src: n = max(n, big)
            if p.dst & c.srcC and not (p.dst == c.srcC and p.passes == c.passes): n = max(n, big - 2)
            if p.dst & c.dst and not (p.dst == c.dst and p.passes == c.passes and p.dst == c.srcC):
                if not (p.dst & c.srcC): n = max(n, big)
        elif c.kind in ('valu', 'ds', 'vmem'):
            if p.dst & (c.src | c.dst): n = max(n, big)
            if c.kind == 'valu' and p.srcC & c.dst: n = max(n, 7 if p.passes == 8 else 3)
    if p.kind == 'salu':
        if ('s', 'm0') in p.dst and ('s', 'm0') in c.src and c.kind == 'vmem': n = max(n, 1)
    if p.kind == 'vmem':
        w = wide_store_data(p)
        if w and (w & c.dst): n = max(n, 2 if c.kind == 'valu' else 1)
    return n

class Tok:
    __slots__ = ('idx', 'cls')
    def __init__(self, idx, cls): self.idx, self.cls = idx, cls

class Kern:
    def __init__(self, name):
        self.name = name
        self.items = []
        self.vm_issued = 0; self.vm_done = 0
        self.lg_issued = 0; self.lg_done = 0
        self.nlab = 0
        self.maxv = 0; self.maxa = -1; self.maxs = 0
    def e(self, text):
        for line in text.split('\n'):
            line = line.strip()
            if not line: continue
            if line.startswith(';'): self.items.append('    ' + line); continue
            ins = Ins(line)
            self._hazard(ins)
            self.items.append(ins)
            for (c, i) in ins.dst | ins.src | ins.srcC:
                if isinstance(i, int):
                    if c == 'v': self.maxv = max(self.maxv, i)
                    elif c == 'a': self.maxa = max(self.maxa, i)
                    else: self.maxs = max(self.maxs, i)
            if ins.kind == 'vmem' and not ins.mn.startswith(('buffer_wbl2', 'buffer_inv')): self.vm_issued += 1
            if ins.kind == 'ds': self.lg_issued += 1
            if ins.mn.startswith('s_waitcnt'):
                m = re.search(r'vmcnt\((\d+)\)', line)
                if m: self.vm_done = max(self.vm_done, self.vm_issued - int(m.group(1)))
                m = re.search(r'lgkmcnt\((\d+)\)', line)
                if m: self.lg_done = max(self.lg_done, self.lg_issued - int(m.group(1)))
        return self
    def _hazard(self, c):
        dist, need = 0, 0
        for p in reversed(self.items):
            if isinstance(p, str):
                continue
            n = need_states(p, c)
            if n > dist: need = max(need, n - dist)
            dist += p.states()
            if dist >= 20: break
        while need > 0:
            k = min(need, 16)
            self.items.append(Ins(f's_nop {k-1}'))
            need -= k
    def c(self, text): self.items.append('    ; ' + text)
    def label(self, name):
        self.items.append(name + ':')
    def newlabel(self, base):
        self.nlab += 1
        return f".L{self.name[:6]}_{base}_{self.nlab}"
    def flush_hazards(self, n=12):
        self.e(f's_nop {n-1}')
    def vm(self, text):
        self.e(text); return Tok(self.vm_issued, 'vm')
    def ds(self, text):
        self.e(text); return Tok(self.lg_issued, 'lg')
    def wait(self, *toks):
        vm = max([t.idx for t in toks if t.cls == 'vm'], default=0)
        lg = max([t.idx for t in toks if t.cls == 'lg'], default=0)
        parts = []
        if vm > self.vm_done: parts.append(f'vmcnt({min(63, self.vm_issued - vm)})')
        if lg > self.lg_done: parts.append(f'lgkmcnt({min(15, self.lg_issued - lg)})')
        if parts: self.e('s_waitcnt ' + ' '.join(parts))
    def wait_vm0(self): self.e('s_waitcnt vmcnt(0)')
    def wait_lg0(self): self.e('s_waitcnt lgkmcnt(0)')
    def barrier(self, lg=True):
        if lg and self.lg_done < self.lg_issued: self.e('s_waitcnt lgkmcnt(0)')
        self.e('s_barrier')
    def unknown_counters(self):
        self.vm_done = -10**9; self.lg_done = -10**9
    def text(self):
        out = []
        for it in self.items:
            out.append(it if isinstance(it, str) else '    ' + it.text)
        return '\n'.join(out)
    def header(self):
        return f".globl {self.name}\n.p2align 8\n.type {self.name},@function\n{self.name}:"
    def descriptor(self, nv=None, na=None, ns=None):
        nv = nv or self.maxv + 1
        na = (self.maxa + 1) if na is None else na
        acc = max(4, (nv + 3) // 4 * 4)
        tot = acc + na if na else nv
        ns = ns or min(102, self.maxs + 1)
        return f""".amdhsa_kernel {self.name}
  .amdhsa_next_free_vgpr {tot}
  .amdhsa_next_free_sgpr {ns}
  .amdhsa_accum_offset {acc}
  .amdhsa_group_segment_fixed_size 0
  .amdhsa_kernarg_size 152
  .amdhsa_user_sgpr_count 2
  .amdhsa_user_sgpr_kernarg_segment_ptr 1
  .amdhsa_system_sgpr_workgroup_id_x 1
  .amdhsa_float_denorm_mode_32 3
  .amdhsa_float_denorm_mode_16_64 3
  .amdhsa_ieee_mode 0
  .amdhsa_dx10_clamp 0
.end_amdhsa_kernel"""

class Alloc:
    def __init__(self, lo, hi):
        self.free = [True] * (hi + 1)
        for i in range(lo): self.free[i] = False
        self.hi = hi
    def get(self, n=1, align=None):
        align = align or (1 if n == 1 else 2)
        i = 0
        while i + n - 1 <= self.hi:
            if i % align == 0 and all(self.free[i:i + n]):
                for k in range(i, i + n): self.free[k] = False
                return i
            i += 1
        raise RuntimeError(f"out of registers (n={n})")
    def put(self, i, n=1):
        for k in range(i, i + n):
            assert not self.free[k], f"double free {k}"
            self.free[k] = True

def lds_cycles(kind, addrs):
    groups = {
        'read_b32': ([list(range(0, 32)), list(range(32, 64))], 4, 32),
        'read_b64': ([list(range(0, 32)), list(range(32, 64))], 8, 64),
        'read_b128': ([[0,1,2,3,12,13,14,15,20,21,22,23,24,25,26,27], [4,5,6,7,8,9,10,11,16,17,18,19,28,29,30,31],
                       [32,33,34,35,44,45,46,47,52,53,54,55,56,57,58,59], [36,37,38,39,40,41,42,43,48,49,50,51,60,61,62,63]], 16, 64),
        'write_b32': ([list(range(0, 32)), list(range(32, 64))], 4, 32),
        'write_b64': ([list(range(16*i, 16*i+16)) for i in range(4)], 8, 32),
        'write_b128': ([list(range(8*i, 8*i+8)) for i in range(8)], 16, 32),
    }[kind]
    gs, nbytes, nb = groups
    tot = 0
    for g in gs:
        banks = {}
        for l in g:
            if addrs[l] is None: continue
            for b in range(0, nbytes, 4):
                ad = addrs[l] + b
                banks.setdefault((ad // 4) % nb, set()).add(ad // 4)
        tot += max([len(x) for x in banks.values()], default=1)
    return tot, len(gs)
```

```python
from asmlib import *

L = 2048; D = 512; F = 1376; NM = 128
MB = 1 << 20; KB = 1 << 10
XT   = 0
XNT  = 2 * MB
X2T  = 4 * MB
KR   = 6 * MB;  KRS = 4160
H1C  = 9 * MB
H2C  = 11 * MB
X2C  = 13 * MB
X1C  = 15 * MB
HC   = 17 * MB; HC_BYTES = 172 * 32768
W1F  = 23 * MB
W2F  = 23 * MB + 512 * KB
W3F  = 24 * MB; W3F_BYTES = 86 * 16 * 1024
W4F  = 26 * MB; W4F_BYTES = 8 * 43 * 4 * 1024
MOD  = 28 * MB
CS1  = 28 * MB + 16 * KB
CS3  = 28 * MB + 32 * KB
ST4  = 28 * MB + 64 * KB
FLG  = 29 * MB
WS_USED = 30 * MB

ARG = dict(u=0, are=8, aim=16, bre=24, bim=32, cre=40, cim=48, ldt=56, dsk=64, bx=72, w1=80, w2=88, w3=96, w4=104, c=112, wmod=120, out=128, dbg=136, ws=144)

LOG2E = 1.4426950408889634
INV2PI = 0.15915494309189535
import struct
def f2u(x): return struct.unpack('<I', struct.pack('<f', x))[0]
def hexf(x): return hex(f2u(x))

def sload(k, sdst, name):
    k.e(f's_load_dwordx2 {s(sdst,2)}, s[0:1], {ARG[name]}')

def srd(k, sd, sp, off, nbytes):
    if off == 0:
        k.e(f's_mov_b32 {s(sd)}, {s(sp)}\ns_mov_b32 {s(sd+1)}, {s(sp+1)}')
    else:
        o = hex(off) if isinstance(off, int) else off
        k.e(f's_add_u32 {s(sd)}, {s(sp)}, {o}\ns_addc_u32 {s(sd+1)}, {s(sp+1)}, 0')
    k.e(f's_mov_b32 {s(sd+2)}, {hex(nbytes)}\ns_mov_b32 {s(sd+3)}, 0x20000')

def cmul(k, d, x, y):
    k.e(f'v_pk_mul_f32 {v(d,2)}, {v(x,2)}, {v(y,2)} op_sel_hi:[0,1]')
    k.e(f'v_pk_fma_f32 {v(d,2)}, {v(x,2)}, {v(y,2)}, {v(d,2)} op_sel:[1,1,0] op_sel_hi:[1,0,1] neg_lo:[1,0,0]')

def cmul_many(k, triples):
    for d, x, y in triples:
        k.e(f'v_pk_mul_f32 {v(d,2)}, {v(x,2)}, {v(y,2)} op_sel_hi:[0,1]')
    for d, x, y in triples:
        k.e(f'v_pk_fma_f32 {v(d,2)}, {v(x,2)}, {v(y,2)}, {v(d,2)} op_sel:[1,1,0] op_sel_hi:[1,0,1] neg_lo:[1,0,0]')

def mfma16(k, d, a_, b_, c=None):
    k.e(f'v_mfma_f32_16x16x32_bf16 {d}, {a_}, {b_}, {c if c is not None else d}')

def code_prefetch(k, lab_from, nbytes, vtmp, vdst, stmp, nthreads=256):
    pass
```

```python
from common import *

OOB = 0x7ff00000

P_U, P_ARE, P_AIM, P_BRE, P_BIM, P_CRE, P_CIM, P_LDT = 4, 6, 8, 10, 12, 14, 16, 18
P_DSK, P_BX, P_W1, P_W2, P_W3, P_W4, P_C, P_WMOD = 20, 22, 24, 26, 28, 30, 32, 34
P_OUT, P_DBG, P_WS = 36, 38, 40
S_WAVE = 42
S_ID = 43

def load_all_ptrs(k):
    k.e('s_load_dwordx16 s[4:19], s[0:1], 0')
    k.e('s_load_dwordx16 s[20:35], s[0:1], 64')
    k.e('s_load_dwordx4 s[36:39], s[0:1], 128')
    k.e('s_load_dwordx2 s[40:41], s[0:1], 144')

def wave_id(k):
    k.e('v_lshrrev_b32 v1, 6, v0')
    k.e(f'v_readfirstlane_b32 {s(S_WAVE)}, v1')

def dma_tile(k, srdq, s_stride, s_rowbase_bytes, lds_base, va, vb, stmp, nrows_per_wave=64):
    for i in range(nrows_per_wave // 8):
        k.e(f's_lshl_b32 {s(stmp)}, {s(S_WAVE)}, 13')
        k.e(f's_add_u32 m0, {s(stmp)}, {lds_base + 1024 * i}')
        if i == 0: k.e(f's_mov_b32 {s(stmp+1)}, {s(s_rowbase_bytes)}')
        else:
            k.e(f's_lshl_b32 {s(stmp)}, {s(s_stride)}, 3')
            k.e(f's_add_u32 {s(stmp+1)}, {s(stmp+1)}, {s(stmp)}')
        k.vm(f'buffer_load_dwordx4 {v(vb if i & 1 else va)}, {s(srdq,4)}, {s(stmp+1)} offen lds')

def dma_voffsets(k, s_stride, va, vb, vt):
    k.e(f'v_and_b32 {v(vt)}, 63, v0')
    k.e(f'v_lshrrev_b32 {v(va)}, 3, {v(vt)}')
    k.e(f'v_and_b32 {v(vb)}, 2, {v(va)}')
    k.e(f'v_and_b32 {v(vt)}, 7, {v(vt)}')
    k.e(f'v_xor_b32 {v(vt)}, {v(vt)}, {v(vb)}')
    k.e(f'v_mul_lo_u32 {v(va)}, {v(va)}, {s(s_stride)}')
    k.e(f'v_xor_b32 {v(vb)}, 4, {v(vt)}')
    k.e(f'v_lshl_add_u32 {v(vb)}, {v(vb)}, 4, {v(va)}')
    k.e(f'v_lshl_add_u32 {v(va)}, {v(vt)}, 4, {v(va)}')

def tr_addr(k, vd, vt, vu, s_chunkbase, s_half, natural):
    k.e(f'v_and_b32 {v(vt)}, 63, v0')
    k.e(f'v_and_b32 {v(vd)}, 3, {v(vt)}')
    if natural:
        k.e(f'v_lshrrev_b32 {v(vu)}, 1, {v(vd)}')
        k.e(f'v_add_u32 {v(vu)}, {s(s_chunkbase)}, {v(vu)}')
        k.e(f'v_and_b32 {v(vd)}, 1, {v(vd)}')
        k.e(f'v_lshlrev_b32 {v(vd)}, 3, {v(vd)}')
    else:
        k.e(f'v_add_u32 {v(vu)}, {s(s_chunkbase)}, {v(vd)}')
        k.e(f'v_mov_b32 {v(vd)}, {s(s_half)}')
    r_ = vt
    k.e(f'v_lshrrev_b32 {v(vt)}, 2, {v(vt)}')
    k.e(f'v_and_b32 {v(vd+1)}, 6, {v(vt)}')
    k.e(f'v_xor_b32 {v(vu)}, {v(vu)}, {v(vd+1)}')
    k.e(f'v_lshl_add_u32 {v(vd)}, {v(vu)}, 4, {v(vd)}')
    k.e(f'v_and_b32 {v(vu)}, 3, {v(vt)}')
    k.e(f'v_lshrrev_b32 {v(vt)}, 2, {v(vt)}')
    k.e(f'v_lshl_add_u32 {v(vu)}, {v(vt)}, 3, {v(vu)}')
    k.e(f'v_lshl_add_u32 {v(vd)}, {v(vu)}, 7, {v(vd)}')

def role_W(k):
    S_STR, S_ROW, S_T0, S_T1 = 44, 45, 46, 47
    SRC, DST, CS = 48, 52, 56
    S_FB, S_KB, S_NAT, S_CSF, S_DOFF, S_DSTEP, S_CH, S_HALF, S_NST, S_CSO = 60, 61, 62, 63, 64, 65, 66, 67, 68, 69
    lw1, lw2, lw3, lw4, lgo = [k.newlabel(x) for x in ('w1', 'w2', 'w3', 'w4', 'wgo')]
    k.c('role W : weight shuffle into MFMA A-fragment order')
    k.e(f's_sub_u32 {s(S_ID)}, s2, 112')
    k.e(f's_cmp_ge_u32 {s(S_ID)}, 76'); k.e(f's_cbranch_scc1 {lw4}')
    k.e(f's_cmp_ge_u32 {s(S_ID)}, 32'); k.e(f's_cbranch_scc1 {lw3}')
    k.e(f's_cmp_ge_u32 {s(S_ID)}, 16'); k.e(f's_cbranch_scc1 {lw2}')
    def perm_setup(stride_tiles):
        k.e(f's_lshr_b32 {s(S_T0)}, {s(S_WAVE)}, 1')
        k.e(f's_lshl_b32 {s(S_CH)}, {s(S_T0)}, 2')
        k.e(f's_and_b32 {s(S_HALF)}, {s(S_WAVE)}, 1')
        k.e(f's_lshl_b32 {s(S_HALF)}, {s(S_HALF)}, 3')
        k.e(f's_mov_b32 {s(S_NAT)}, 0')
    for which, lab in ((1, lw1), (2, lw2)):
        k.label(lab)
        if which == 2: k.e(f's_sub_u32 {s(S_ID)}, {s(S_ID)}, 16')
        srd(k, SRC, P_W1 if which == 1 else P_W2, 0, 512 * 1024)
        srd(k, DST, P_WS, W1F if which == 1 else W2F, 512 * 1024)
        srd(k, CS, P_WS, CS1, 4096)
        k.e(f's_lshr_b32 {s(S_FB)}, {s(S_ID)}, 1\ns_and_b32 {s(S_KB)}, {s(S_ID)}, 1')
        k.e(f's_mov_b32 {s(S_STR)}, 1024')
        perm_setup(0)
        k.e(f's_lshl_b32 {s(S_DOFF)}, {s(S_FB)}, 1\ns_add_u32 {s(S_DOFF)}, {s(S_DOFF)}, {s(S_T0)}\ns_lshl_b32 {s(S_DOFF)}, {s(S_DOFF)}, 15')
        k.e(f's_lshl_b32 {s(S_T1)}, {s(S_KB)}, 14\ns_add_u32 {s(S_DOFF)}, {s(S_DOFF)}, {s(S_T1)}')
        k.e(f's_lshl_b32 {s(S_T1)}, {s(S_HALF)}, 7\ns_add_u32 {s(S_DOFF)}, {s(S_DOFF)}, {s(S_T1)}')
        k.e(f's_mov_b32 {s(S_DSTEP)}, 2048\ns_mov_b32 {s(S_NST)}, 8')
        k.e(f's_mov_b32 {s(S_CSF)}, {1 if which == 1 else 0}')
        k.e(f's_lshl_b32 {s(S_CSO)}, {s(S_KB)}, 11\ns_lshl_b32 {s(S_T1)}, {s(S_FB)}, 8\ns_add_u32 {s(S_CSO)}, {s(S_CSO)}, {s(S_T1)}')
        k.e(f's_lshl_b32 {s(S_T1)}, {s(S_T0)}, 7\ns_add_u32 {s(S_CSO)}, {s(S_CSO)}, {s(S_T1)}')
        k.e(f's_lshl_b32 {s(S_T1)}, {s(S_HALF)}, 1\ns_add_u32 {s(S_CSO)}, {s(S_CSO)}, {s(S_T1)}')
        k.e(f's_branch {lgo}')
    k.label(lw3)
    k.e(f's_sub_u32 {s(S_ID)}, {s(S_ID)}, 32')
    srd(k, SRC, P_W3, 0, 512 * 2752)
    srd(k, DST, P_WS, W3F, W3F_BYTES)
    srd(k, CS, P_WS, CS3, 2 * 1408 * 4)
    k.e(f's_lshr_b32 {s(S_FB)}, {s(S_ID)}, 1\ns_and_b32 {s(S_KB)}, {s(S_ID)}, 1')
    k.e(f's_mov_b32 {s(S_STR)}, 2752')
    k.e(f's_lshl_b32 {s(S_CH)}, {s(S_WAVE)}, 1\ns_mov_b32 {s(S_HALF)}, 0\ns_mov_b32 {s(S_NAT)}, 1')
    k.e(f's_lshl_b32 {s(S_DOFF)}, {s(S_FB)}, 2\ns_add_u32 {s(S_DOFF)}, {s(S_DOFF)}, {s(S_WAVE)}')
    k.e(f's_lshl_b32 {s(S_T0)}, {s(S_DOFF)}, 6')
    k.e(f's_lshl_b32 {s(S_DOFF)}, {s(S_DOFF)}, 14')
    k.e(f's_lshl_b32 {s(S_T1)}, {s(S_KB)}, 13\ns_add_u32 {s(S_DOFF)}, {s(S_DOFF)}, {s(S_T1)}')
    k.e(f's_mov_b32 {s(S_DSTEP)}, 1024\ns_mov_b32 {s(S_NST)}, 8\ns_mov_b32 {s(S_CSF)}, 2')
    k.e(f's_mul_i32 {s(S_CSO)}, {s(S_KB)}, {1408*4}\ns_add_u32 {s(S_CSO)}, {s(S_CSO)}, {s(S_T0)}')
    k.e(f's_branch {lgo}')
    k.label(lw4)
    k.e(f's_sub_u32 {s(S_ID)}, {s(S_ID)}, 76')
    srd(k, SRC, P_W4, 0, 1376 * 1024)
    srd(k, DST, P_WS, W4F, W4F_BYTES)
    srd(k, CS, P_WS, CS1, 4096)
    k.e(f's_mul_i32 {s(S_FB)}, {s(S_ID)}, 43\ns_lshr_b32 {s(S_FB)}, {s(S_FB)}, 8')
    k.e(f's_mul_i32 {s(S_T0)}, {s(S_FB)}, 6\ns_sub_u32 {s(S_KB)}, {s(S_ID)}, {s(S_T0)}')
    k.e(f's_mov_b32 {s(S_STR)}, 1024')
    perm_setup(0)
    k.e(f's_mul_i32 {s(S_DOFF)}, {s(S_FB)}, 176128')
    k.e(f's_lshl_b32 {s(S_T1)}, {s(S_KB)}, 15\ns_add_u32 {s(S_DOFF)}, {s(S_DOFF)}, {s(S_T1)}')
    k.e(f's_lshl_b32 {s(S_T1)}, {s(S_WAVE)}, 10\ns_add_u32 {s(S_DOFF)}, {s(S_DOFF)}, {s(S_T1)}')
    k.e(f's_lshl_b32 {s(S_T1)}, {s(S_KB)}, 3\ns_sub_u32 {s(S_NST)}, 43, {s(S_T1)}')
    k.e(f's_mov_b32 {s(S_DSTEP)}, 4096\ns_mov_b32 {s(S_CSF)}, 0\ns_mov_b32 {s(S_CSO)}, 0')
    k.label(lgo)
    k.e(f's_lshl_b32 {s(S_T0)}, {s(S_KB)}, 8\ns_lshl_b32 {s(S_T1)}, {s(S_WAVE)}, 6\ns_add_u32 {s(S_T0)}, {s(S_T0)}, {s(S_T1)}')
    k.e(f's_mul_i32 {s(S_ROW)}, {s(S_T0)}, {s(S_STR)}\ns_lshl_b32 {s(S_T1)}, {s(S_FB)}, 7\ns_add_u32 {s(S_ROW)}, {s(S_ROW)}, {s(S_T1)}')
    VA, VB, VT, VU, VR = 2, 3, 4, 5, 6
    dma_voffsets(k, S_STR, VA, VB, VT)
    dma_tile(k, SRC, S_STR, S_ROW, 0, VA, VB, S_T0)
    lnat, ljoin = k.newlabel('nat'), k.newlabel('trj')
    k.e(f's_cmp_eq_u32 {s(S_NAT)}, 1'); k.e(f's_cbranch_scc1 {lnat}')
    tr_addr(k, VR, VT, VU, S_CH, S_HALF, False)
    k.e(f's_branch {ljoin}')
    k.label(lnat)
    tr_addr(k, VR, VT, VU, S_CH, S_HALF, True)
    k.label(ljoin)
    VO = 8; ONES = 12; ACC = 16; FR = 20
    k.e(f'v_and_b32 {v(VO)}, 63, v0\nv_lshlrev_b32 {v(VO)}, 4, {v(VO)}')
    for i in range(4): k.e(f'v_mov_b32 {v(ONES+i)}, 0x3f803f80')
    for i in range(4): k.e(f'v_mov_b32 {v(ACC+i)}, 0')
    k.wait_vm0(); k.e('s_barrier')
    toks = []
    for st in range(8):
        k.ds(f'ds_read_b64_tr_b16 {v(FR+4*st,2)}, {v(VR)} offset:{4096*st}')
        toks.append(k.ds(f'ds_read_b64_tr_b16 {v(FR+4*st+2,2)}, {v(VR)} offset:{4096*st+512}'))
    for st in range(8):
        k.wait(toks[st])
        k.e(f's_cmp_gt_u32 {s(S_NST)}, {st}')
        k.e(f's_cselect_b32 {s(S_T0)}, {s(S_DOFF)}, {hex(OOB)}')
        k.vm(f'buffer_store_dwordx4 {v(FR+4*st,4)}, {v(VO)}, {s(DST,4)}, {s(S_T0)} offen')
        k.e(f's_add_u32 {s(S_DOFF)}, {s(S_DOFF)}, {s(S_DSTEP)}')
        mfma16(k, v(ACC,4), v(FR+4*st,4), v(ONES,4))
    ldone = k.newlabel('wdone')
    k.e(f's_cmp_eq_u32 {s(S_CSF)}, 0'); k.e(f's_cbranch_scc1 {ldone}')
    k.e(f'v_and_b32 {v(VT)}, 63, v0\nv_lshrrev_b32 {v(VU)}, 4, {v(VT)}')
    k.e(f's_cmp_eq_u32 {s(S_CSF)}, 1\ns_cselect_b32 {s(S_T0)}, 5, 4')
    k.e(f'v_lshlrev_b32 {v(VU)}, {s(S_T0)}, {v(VU)}')
    k.e(f'v_and_b32 {v(VT)}, 15, {v(VT)}\nv_cmp_eq_u32 vcc, 0, {v(VT)}')
    k.e(f'v_mov_b32 {v(VT)}, {hex(OOB)}\nv_cndmask_b32 {v(VU)}, {v(VT)}, {v(VU)}, vcc')
    k.vm(f'buffer_store_dwordx4 {v(ACC,4)}, {v(VU)}, {s(CS,4)}, {s(S_CSO)} offen')
    k.label(ldone)
    k.e('s_endpgm')

def role_M(k):
    S_STR, S_ROW, S_T0, S_T1 = 44, 45, 46, 47
    SRC, CSRD, DST = 48, 52, 56
    S_CH, S_HALF, S_SEG = 60, 61, 62
    k.c('role M : mod = silu(c) @ w_mod')
    k.e(f's_sub_u32 {s(S_ID)}, s2, 64')
    srd(k, SRC, P_WMOD, 0, 512 * 6144)
    srd(k, CSRD, P_C, 0, 1024)
    srd(k, DST, P_WS, MOD, 3072 * 4)
    k.e(f's_mov_b32 {s(S_STR)}, 6144')
    VA, VB, VT, VU, VR = 2, 3, 4, 5, 6
    VC = 8
    k.e(f'v_lshlrev_b32 {v(VT)}, 2, v0')
    tc = k.vm(f'buffer_load_dword {v(VC)}, {v(VT)}, {s(CSRD,4)}, 0 offen')
    dma_voffsets(k, S_STR, VA, VB, VT)
    for kb in range(2):
        k.e(f's_lshl_b32 {s(S_T0)}, {s(S_WAVE)}, 6\ns_add_u32 {s(S_T0)}, {s(S_T0)}, {256*kb}')
        k.e(f's_mul_i32 {s(S_ROW)}, {s(S_T0)}, {s(S_STR)}\ns_lshl_b32 {s(S_T1)}, {s(S_ID)}, 7\ns_add_u32 {s(S_ROW)}, {s(S_ROW)}, {s(S_T1)}')
        dma_tile(k, SRC, S_STR, S_ROW, 32768 * kb, VA, VB, S_T0)
    k.e(f's_lshl_b32 {s(S_CH)}, {s(S_WAVE)}, 1\ns_mov_b32 {s(S_HALF)}, 0')
    tr_addr(k, VR, VT, VU, S_CH, S_HALF, True)
    k.wait(tc)
    X0, X1, E0, E1 = 10, 11, 12, 13
    k.e(f'v_lshlrev_b32 {v(X0)}, 16, {v(VC)}\nv_and_b32 {v(X1)}, 0xffff0000, {v(VC)}')
    k.e(f'v_mul_f32 {v(E0)}, {hexf(-LOG2E)}, {v(X0)}\nv_mul_f32 {v(E1)}, {hexf(-LOG2E)}, {v(X1)}')
    k.e(f'v_exp_f32 {v(E0)}, {v(E0)}\nv_exp_f32 {v(E1)}, {v(E1)}')
    k.e(f'v_add_f32 {v(E0)}, 1.0, {v(E0)}\nv_add_f32 {v(E1)}, 1.0, {v(E1)}')
    k.e(f'v_rcp_f32 {v(E0)}, {v(E0)}\nv_rcp_f32 {v(E1)}, {v(E1)}')
    k.e(f'v_mul_f32 {v(X0)}, {v(X0)}, {v(E0)}\nv_mul_f32 {v(X1)}, {v(X1)}, {v(E1)}')
    k.e(f'v_cvt_pk_bf16_f32 {v(X0)}, {v(X0)}, {v(X1)}')
    k.e(f'v_lshlrev_b32 {v(VT)}, 2, v0')
    k.e(f'v_add_u32 {v(VT)}, 0x10000, {v(VT)}')
    k.ds(f'ds_write_b32 {v(VT)}, {v(X0)}')
    VS = 14
    k.e(f'v_and_b32 {v(VS)}, 63, v0\nv_lshrrev_b32 {v(VS)}, 4, {v(VS)}\nv_lshlrev_b32 {v(VS)}, 4, {v(VS)}\nv_add_u32 {v(VS)}, 0x10000, {v(VS)}')
    ACC = 16; FR = 20; BF = 84
    for i in range(4): k.e(f'v_mov_b32 {v(ACC+i)}, 0')
    k.e('s_waitcnt vmcnt(0) lgkmcnt(0)'); k.e('s_barrier')
    for half in range(2):
        toks = []
        for st in range(8):
            sg = 8 * half + st
            off = 32768 * half + 4096 * st
            k.ds(f'ds_read_b64_tr_b16 {v(FR+4*st,2)}, {v(VR)} offset:{off}')
            k.ds(f'ds_read_b64_tr_b16 {v(FR+4*st+2,2)}, {v(VR)} offset:{off+512}')
            toks.append(k.ds(f'ds_read_b128 {v(BF+4*st,4)}, {v(VS)} offset:{64*sg}'))
        for st in range(8):
            k.wait(toks[st])
            mfma16(k, v(ACC,4), v(FR+4*st,4), v(BF+4*st,4))
    k.e(f's_lshr_b32 {s(S_SEG)}, {s(S_ID)}, 3')
    k.e(f'v_cvt_pk_bf16_f32 {v(FR)}, {v(ACC)}, {v(ACC+1)}\nv_cvt_pk_bf16_f32 {v(FR+1)}, {v(ACC+2)}, {v(ACC+3)}')
    k.e(f'v_lshlrev_b32 {v(ACC)}, 16, {v(FR)}\nv_and_b32 {v(ACC+1)}, 0xffff0000, {v(FR)}')
    k.e(f'v_lshlrev_b32 {v(ACC+2)}, 16, {v(FR+1)}\nv_and_b32 {v(ACC+3)}, 0xffff0000, {v(FR+1)}')
    lst = k.newlabel('mst'); lad = k.newlabel('mad')
    k.e(f's_cmp_eq_u32 {s(S_SEG)}, 1'); k.e(f's_cbranch_scc1 {lad}')
    k.e(f's_cmp_eq_u32 {s(S_SEG)}, 4'); k.e(f's_cbranch_scc0 {lst}')
    k.label(lad)
    for i in range(4): k.e(f'v_add_f32 {v(ACC+i)}, 1.0, {v(ACC+i)}')
    k.e(f'v_cvt_pk_bf16_f32 {v(FR)}, {v(ACC)}, {v(ACC+1)}\nv_cvt_pk_bf16_f32 {v(FR+1)}, {v(ACC+2)}, {v(ACC+3)}')
    k.e(f'v_lshlrev_b32 {v(ACC)}, 16, {v(FR)}\nv_and_b32 {v(ACC+1)}, 0xffff0000, {v(FR)}')
    k.e(f'v_lshlrev_b32 {v(ACC+2)}, 16, {v(FR+1)}\nv_and_b32 {v(ACC+3)}, 0xffff0000, {v(FR+1)}')
    k.label(lst)
    k.e(f'v_and_b32 {v(VT)}, 63, v0\nv_lshrrev_b32 {v(VU)}, 4, {v(VT)}\nv_lshlrev_b32 {v(VU)}, 4, {v(VU)}')
    k.e(f'v_and_b32 {v(VT)}, 15, {v(VT)}\nv_cmp_eq_u32 vcc, 0, {v(VT)}')
    k.e(f'v_mov_b32 {v(VT)}, {hex(OOB)}\nv_cndmask_b32 {v(VU)}, {v(VT)}, {v(VU)}, vcc')
    k.e(f's_lshl_b32 {s(S_T0)}, {s(S_ID)}, 8\ns_lshl_b32 {s(S_T1)}, {s(S_WAVE)}, 6\ns_add_u32 {s(S_T0)}, {s(S_T0)}, {s(S_T1)}')
    k.vm(f'buffer_store_dwordx4 {v(ACC,4)}, {v(VU)}, {s(DST,4)}, {s(S_T0)} offen')
    k.e('s_endpgm')

def role_X(k):
    S_T0, S_T1, S_R0 = 44, 45, 46
    SRC, DXT, DXN = 48, 52, 56
    k.c('role X : LN statistics of x, writes x^T and LN(x)^T')
    srd(k, SRC, P_U, 0, 2 * MB)
    srd(k, DXT, P_WS, XT, 2 * MB)
    srd(k, DXN, P_WS, XNT, 2 * MB)
    k.e(f's_lshl_b32 {s(S_R0)}, s2, 5')
    VL, VO, VT, VW = 2, 3, 4, 5
    X = 8
    k.e(f'v_and_b32 {v(VL)}, 63, v0')
    k.e(f'v_lshrrev_b32 {v(VT)}, 3, {v(VL)}')
    k.e(f's_lshl_b32 {s(S_T0)}, {s(S_WAVE)}, 3')
    k.e(f'v_add_u32 {v(VW)}, {s(S_T0)}, {v(VT)}')
    k.e(f'v_add_u32 {v(VT)}, {s(S_R0)}, {v(VW)}')
    k.e(f'v_lshlrev_b32 {v(VO)}, 10, {v(VT)}')
    k.e(f'v_and_b32 {v(VT)}, 7, {v(VL)}')
    k.e(f'v_lshl_add_u32 {v(VO)}, {v(VT)}, 4, {v(VO)}')
    toks = [k.vm(f'buffer_load_dwordx4 {v(X+4*j,4)}, {v(VO)}, {s(SRC,4)}, 0 offen offset:{128*j}') for j in range(8)]
    VA = 6
    k.e(f'v_mul_u32_u24 {v(VA)}, 1056, {v(VW)}')
    k.e(f'v_and_b32 {v(VW)}, 24, {v(VW)}\nv_add_u32 {v(VT)}, {v(VT)}, {v(VW)}')
    k.e(f'v_lshl_add_u32 {v(VA)}, {v(VT)}, 4, {v(VA)}')
    S1, S2, S3, S4, ONE = 40, 41, 42, 43, 44
    k.e(f'v_mov_b32 {v(ONE)}, 0x3f803f80')
    for r in (S1, S2, S3, S4): k.e(f'v_mov_b32 {v(r)}, 0')
    for j in range(8):
        k.wait(toks[j])
        for i in range(4):
            k.e(f'v_dot2_f32_bf16 {v(S1 + (i&1))}, {v(X+4*j+i)}, {v(ONE)}, {v(S1 + (i&1))}')
            k.e(f'v_dot2_f32_bf16 {v(S3 + (i&1))}, {v(X+4*j+i)}, {v(X+4*j+i)}, {v(S3 + (i&1))}')
        k.ds(f'ds_write_b128 {v(VA)}, {v(X+4*j,4)} offset:{128*j}')
    k.e(f'v_add_f32 {v(S1)}, {v(S1)}, {v(S2)}\nv_add_f32 {v(S3)}, {v(S3)}, {v(S4)}')
    for m in ('quad_perm:[1,0,3,2]', 'quad_perm:[2,3,0,1]', 'row_half_mirror'):
        k.e(f'v_add_f32_dpp {v(S1)}, {v(S1)}, {v(S1)} {m} row_mask:0xf bank_mask:0xf')
        k.e(f'v_add_f32_dpp {v(S3)}, {v(S3)}, {v(S3)} {m} row_mask:0xf bank_mask:0xf')
    k.e(f'v_mul_f32 {v(S1)}, {hexf(1/512)}, {v(S1)}')
    k.e(f'v_mul_f32 {v(S2)}, {v(S1)}, {v(S1)}')
    k.e(f'v_mov_b32 {v(S4)}, {hexf(1/512)}')
    k.e(f'v_fma_f32 {v(S3)}, {v(S3)}, {v(S4)}, -{v(S2)}')
    k.e(f'v_max_f32 {v(S3)}, 0, {v(S3)}\nv_add_f32 {v(S3)}, {hexf(1e-5)}, {v(S3)}')
    k.e(f'v_rsq_f32 {v(S3)}, {v(S3)}')
    k.e(f'v_mul_f32 {v(S1)}, {v(S1)}, {v(S3)}\nv_sub_f32 {v(S1)}, 0, {v(S1)}')
    STAT = 34816
    k.e(f'v_lshrrev_b32 {v(VT)}, 3, {v(VL)}\ns_lshl_b32 {s(S_T0)}, {s(S_WAVE)}, 3\nv_add_u32 {v(VT)}, {s(S_T0)}, {v(VT)}\nv_lshlrev_b32 {v(VT)}, 2, {v(VT)}')
    k.ds(f'ds_write_b32 {v(VT)}, {v(S3)} offset:{STAT}')
    k.ds(f'ds_write_b32 {v(VT)}, {v(S1)} offset:{STAT+128}')
    k.barrier()
    RS, NMR = 48, 56
    k.e(f'v_lshrrev_b32 {v(VT)}, 4, {v(VL)}\nv_lshlrev_b32 {v(VW)}, 5, {v(VT)}')
    t1 = k.ds(f'ds_read_b128 {v(RS,4)}, {v(VW)} offset:{STAT}')
    k.ds(f'ds_read_b128 {v(RS+4,4)}, {v(VW)} offset:{STAT+16}')
    k.ds(f'ds_read_b128 {v(NMR,4)}, {v(VW)} offset:{STAT+128}')
    t2 = k.ds(f'ds_read_b128 {v(NMR+4,4)}, {v(VW)} offset:{STAT+144}')
    VR = 6
    k.e(f'v_bfe_u32 {v(VW)}, {v(VL)}, 2, 2')
    k.e(f'v_lshl_add_u32 {v(VW)}, {v(VT)}, 3, {v(VW)}')
    k.e(f'v_mul_u32_u24 {v(VR)}, 1056, {v(VW)}')
    k.e(f'v_and_b32 {v(VW)}, 24, {v(VW)}\nv_lshl_add_u32 {v(VR)}, {v(VW)}, 4, {v(VR)}')
    k.e(f'v_and_b32 {v(VW)}, 3, {v(VL)}\nv_lshl_add_u32 {v(VR)}, {v(VW)}, 3, {v(VR)}')
    k.e(f's_lshl_b32 {s(S_T0)}, {s(S_WAVE)}, 8\nv_add_u32 {v(VR)}, {s(S_T0)}, {v(VR)}')
    k.e(f'v_and_b32 {v(VW)}, 15, {v(VL)}\ns_lshl_b32 {s(S_T0)}, {s(S_WAVE)}, 7\nv_add_u32 {v(VW)}, {s(S_T0)}, {v(VW)}')
    k.e(f'v_lshlrev_b32 {v(VO)}, 12, {v(VW)}\nv_lshl_add_u32 {v(VO)}, {v(VT)}, 4, {v(VO)}')
    k.e(f's_lshl_b32 {s(S_T1)}, {s(S_R0)}, 1')
    FR = 8; U = 64; O = 72
    toks = []
    for ct in range(8):
        k.ds(f'ds_read_b64_tr_b16 {v(FR+4*ct,2)}, {v(VR)} offset:{32*ct}')
        toks.append(k.ds(f'ds_read_b64_tr_b16 {v(FR+4*ct+2,2)}, {v(VR)} offset:{32*ct + 4*1056}'))
    k.wait(t2)
    for ct in range(8):
        k.wait(toks[ct])
        k.vm(f'buffer_store_dwordx4 {v(FR+4*ct,4)}, {v(VO)}, {s(DXT,4)}, {s(S_T1)} offen')
        for i in range(4):
            k.e(f'v_lshlrev_b32 {v(U+2*i)}, 16, {v(FR+4*ct+i)}\nv_and_b32 {v(U+2*i+1)}, 0xffff0000, {v(FR+4*ct+i)}')
        for i in range(4):
            k.e(f'v_pk_fma_f32 {v(U+2*i,2)}, {v(U+2*i,2)}, {v(RS+2*i,2)}, {v(NMR+2*i,2)}')
        oo = O + 4 * (ct & 1)
        for i in range(4):
            k.e(f'v_cvt_pk_bf16_f32 {v(oo+i)}, {v(U+2*i)}, {v(U+2*i+1)}')
        k.vm(f'buffer_store_dwordx4 {v(oo,4)}, {v(VO)}, {s(DXN,4)}, {s(S_T1)} offen')
        k.e(f's_add_u32 {s(S_T1)}, {s(S_T1)}, 0x10000')
    k.e('s_endpgm')

def cexp_direct(k, d, zr2, zrev, x, t):
    k.e(f'v_mul_f32 {v(t)}, {hexf(x)}, {v(zr2)}\nv_mul_f32 {v(t+1)}, {hexf(x)}, {v(zrev)}')
    k.e(f'v_exp_f32 {v(t)}, {v(t)}\nv_fract_f32 {v(t+1)}, {v(t+1)}')
    k.e(f'v_cos_f32 {v(d)}, {v(t+1)}\nv_sin_f32 {v(d+1)}, {v(t+1)}')
    k.e(f'v_mul_f32 {v(d)}, {v(d)}, {v(t)}\nv_mul_f32 {v(d+1)}, {v(d+1)}, {v(t)}')

def role_K(k):
    S_T0, S_T1, S_KG = 44, 45, 46
    SR = 48
    DK = 76
    CHB = 53 * 544
    TAB = 2 * CHB
    k.c('role K : K[d, l] generation')
    k.e(f's_sub_u32 {s(S_KG)}, s2, 256')
    VO, VT, VU = 2, 3, 4
    k.e(f's_lshl_b32 {s(S_T0)}, {s(S_KG)}, 9\nv_lshlrev_b32 {v(VO)}, 1, v0\nv_add_u32 {v(VO)}, {s(S_T0)}, {v(VO)}')
    IN = 8
    toks = []
    for i, p in enumerate((P_ARE, P_AIM, P_BRE, P_BIM, P_CRE, P_CIM)):
        srd(k, SR + 4 * i, p, 0, 512 * 128 * 2)
        toks.append(k.vm(f'buffer_load_ushort {v(IN+i)}, {v(VO)}, {s(SR+4*i,4)}, 0 offen'))
    srd(k, SR + 24, P_LDT, 0, 1024)
    k.e(f'v_lshrrev_b32 {v(VT)}, 7, v0\ns_lshl_b32 {s(S_T0)}, {s(S_KG)}, 1\nv_add_u32 {v(VT)}, {s(S_T0)}, {v(VT)}\nv_lshlrev_b32 {v(VT)}, 1, {v(VT)}')
    tl = k.vm(f'buffer_load_ushort {v(IN+6)}, {v(VT)}, {s(SR+24,4)}, 0 offen')
    srd(k, DK, P_WS, KR, 512 * KRS)
    GA = 16
    k.e(f'v_lshlrev_b32 {v(VT)}, 3, v0\nv_sub_u32 {v(VT)}, 2047, {v(VT)}')
    for j in range(8):
        k.e(f'v_subrev_u32 {v(GA+j)}, {j}, {v(VT)}')
    F0 = 24
    for j in range(8): k.e(f'v_cvt_f32_u32 {v(F0+j)}, {v(GA+j)}')
    for j in range(0, 8, 2): k.e(f'v_cvt_pk_bf16_f32 {v(F0+j)}, {v(F0+j)}, {v(F0+j+1)}')
    for j in range(0, 8, 2):
        k.e(f'v_lshrrev_b32 {v(F0+j+1)}, 16, {v(F0+j)}\nv_and_b32 {v(F0+j)}, 0xffff, {v(F0+j)}')
    for j in range(8):
        k.e(f'v_subrev_u32 {v(F0+j)}, {17024}, {v(F0+j)}')
        k.e(f'v_min_u32 {v(GA+j)}, 127, {v(GA+j)}')
    for j in range(8):
        k.e(f'v_max_i32 {v(GA+j)}, {v(GA+j)}, {v(F0+j)}')
        k.e(f'v_lshlrev_b32 {v(GA+j)}, 1, {v(GA+j)}')
        k.e(f'v_add_u32 {v(GA+j)}, {TAB}, {v(GA+j)}')
    VW = 5
    k.e(f'v_lshrrev_b32 {v(VT)}, 7, v0\nv_mul_u32_u24 {v(VW)}, {CHB}, {v(VT)}')
    k.e(f'v_and_b32 {v(VT)}, 127, v0\nv_lshl_add_u32 {v(VW)}, {v(VT)}, 2, {v(VW)}')
    k.wait(tl)
    ARE, AIM, BRE, BIM, CRE, CIM, LDT = range(IN, IN + 7)
    for r in range(IN, IN + 7): k.e(f'v_lshlrev_b32 {v(r)}, 16, {v(r)}')
    DT = 6
    k.e(f'v_mul_f32 {v(LDT)}, {hexf(LOG2E)}, {v(LDT)}\nv_exp_f32 {v(LDT)}, {v(LDT)}')
    k.e(f'v_cvt_pk_bf16_f32 {v(LDT)}, {v(LDT)}, {v(LDT)}\nv_lshlrev_b32 {v(DT)}, 16, {v(LDT)}')
    ZR2, ZRV = 32, 33
    k.e(f'v_mul_f32 {v(ARE)}, {v(DT)}, {v(ARE)}\nv_mul_f32 {v(AIM)}, {v(DT)}, {v(AIM)}')
    k.e(f'v_mul_f32 {v(ZR2)}, {hexf(LOG2E)}, {v(ARE)}\nv_mul_f32 {v(ZRV)}, {hexf(INV2PI)}, {v(AIM)}')
    k.e(f'v_mul_f32 {v(BRE)}, {v(DT)}, {v(BRE)}\nv_mul_f32 {v(BIM)}, {v(DT)}, {v(BIM)}')
    R = Alloc(34, 200)
    pair = lambda: R.get(2, 2)
    W, DBp, CC, T = pair(), pair(), pair(), pair()
    k.e(f'v_mov_b32 {v(DBp)}, {v(BRE)}\nv_mov_b32 {v(DBp+1)}, {v(BIM)}\nv_mov_b32 {v(CC)}, {v(CRE)}\nv_mov_b32 {v(CC+1)}, {v(CIM)}')
    E1, E8, E256 = pair(), pair(), pair()
    cexp_direct(k, E1, ZR2, ZRV, 1.0, T)
    cexp_direct(k, E8, ZR2, ZRV, 8.0, T)
    cexp_direct(k, E256, ZR2, ZRV, 256.0, T)
    cmul(k, W, CC, DBp)
    cv = [R.get(1) for _ in range(4)]
    cvi = [0]
    def put(row, z, xside):
        c = cv[cvi[0] % 4]; cvi[0] += 1
        k.e(f'v_cvt_pk_bf16_f32 {v(c)}, {v(z)}, {"-" if xside else ""}{v(z+1)}')
        k.ds(f'ds_write_b32 {v(VW)}, {v(c)} offset:{row*544}')
    E2, E16, E512 = pair(), pair(), pair()
    cmul_many(k, [(E2, E1, E1), (E16, E8, E8), (E512, E256, E256)])
    WX = [W] + [pair() for _ in range(7)]
    E24, E32, E768, E1024 = pair(), pair(), pair(), pair()
    cmul_many(k, [(WX[1], W, E1), (WX[2], W, E2), (E24, E16, E8), (E32, E16, E16), (E768, E512, E256), (E1024, E512, E512)])
    put(0, W, True); put(1, WX[1], True); put(2, WX[2], True)
    E1280, E1536, E1792, E2048 = pair(), pair(), pair(), pair()
    cmul_many(k, [(WX[3], WX[1], E2), (WX[4], WX[2], E2), (E1280, E1024, E256), (E1536, E1024, E512), (E1792, E1024, E768), (E2048, E1024, E1024)])
    put(3, WX[3], True); put(4, WX[4], True)
    Y0 = pair()
    k.e(f'v_mov_b32 {v(Y0)}, 1.0\nv_mov_b32 {v(Y0+1)}, 0')
    Ya = [Y0, E8, E16, E24]
    for j in range(4): put(21 + j, Ya[j], False)
    cmul_many(k, [(WX[5], WX[3], E2), (WX[6], WX[4], E2)])
    Yb = [pair() for _ in range(4)]
    Yc = [pair() for _ in range(4)]
    cmul_many(k, [(Yb[j], Ya[j], E32) for j in range(4)])
    put(5, WX[5], True); put(6, WX[6], True)
    tmp = [pair() for _ in range(6)]
    cmul_many(k, [(WX[7], WX[5], E2), (tmp[0], W, E256), (tmp[1], WX[2], E256), (tmp[2], WX[4], E256), (tmp[3], WX[6], E256)])
    for j in range(4): put(25 + j, Yb[j], False)
    put(7, WX[7], True)
    for j in range(4): put(8 + j, tmp[j], True)
    cur, nxt = Yb, Yc
    xs = [[(12, W, E512), (13, WX[4], E512), (14, W, E768), (15, WX[4], E768)],
          [(16, W, E1024), (17, W, E1280), (18, W, E1536), (19, W, E1792)],
          [(20, W, E2048)]]
    for it in range(2, 8):
        trip = [(nxt[j], cur[j], E32) for j in range(4)]
        extra = xs[it-2] if it - 2 < len(xs) else []
        trip += [(tmp[i], x, y) for i, (_, x, y) in enumerate(extra)]
        cmul_many(k, trip)
        for j in range(4): put(21 + 4 * it + j, nxt[j], False)
        for i, (row, _, _) in enumerate(extra): put(row, tmp[i], True)
        cur, nxt = nxt, cur
    k.barrier()
    VA, VB = 2, 5
    k.e(f'v_and_b32 {v(VT)}, 63, v0\nv_and_b32 {v(VU)}, 15, {v(VT)}\nv_lshrrev_b32 {v(VT)}, 4, {v(VT)}')
    k.e(f's_lshr_b32 {s(S_T0)}, {s(S_WAVE)}, 1\ns_mul_i32 {s(S_T0)}, {s(S_T0)}, {CHB}')
    k.e(f'v_mul_u32_u24 {v(VA)}, 544, {v(VU)}\nv_lshl_add_u32 {v(VA)}, {v(VT)}, 4, {v(VA)}\nv_add_u32 {v(VA)}, {s(S_T0)}, {v(VA)}')
    k.e(f's_and_b32 {s(S_T1)}, {s(S_WAVE)}, 1\ns_mul_i32 {s(S_T1)}, {s(S_T1)}, {16*544}\ns_add_u32 {s(S_T1)}, {s(S_T1)}, {21*544}')
    k.e(f'v_add_u32 {v(VB)}, {s(S_T1)}, {v(VA)}')
    FA, FB, AC = 40, 104, 136
    toks = []
    for st in range(8):
        k.ds(f'ds_read_b128 {v(FA+8*st,4)}, {v(VA)} offset:{64*st}')
        k.ds(f'ds_read_b128 {v(FA+8*st+4,4)}, {v(VA)} offset:{64*st + 16*544}')
        toks.append(k.ds(f'ds_read_b128 {v(FB+4*st,4)}, {v(VB)} offset:{64*st}'))
    for i in range(8): k.e(f'v_mov_b32 {v(AC+i)}, 0')
    J = 6; MJ = 7; A0 = 32; A1 = 33; A2 = 34
    k.e(f's_and_b32 {s(S_T1)}, {s(S_WAVE)}, 1\ns_lshl_b32 {s(S_T1)}, {s(S_T1)}, 4\nv_add_u32 {v(J)}, {s(S_T1)}, {v(VU)}')
    k.e(f'v_sub_u32 {v(MJ)}, 4, {v(VT)}\nv_min_u32 {v(MJ)}, 3, {v(MJ)}')
    k.e(f'v_lshlrev_b32 {v(MJ)}, {v(MJ)}, {v(J)}')
    k.e(f'v_lshlrev_b32 {v(A0)}, 2, {v(VT)}')
    k.e(f'v_mov_b32 {v(A1)}, 256\nv_cmp_eq_u32 vcc, 2, {v(VT)}\nv_cndmask_b32 {v(A0)}, {v(A0)}, {v(A1)}, vcc')
    k.e(f'v_mov_b32 {v(A1)}, 384\nv_cmp_eq_u32 vcc, 3, {v(VT)}\nv_cndmask_b32 {v(A0)}, {v(A0)}, {v(A1)}, vcc')
    k.e(f'v_add_u32 {v(A0)}, {v(A0)}, {v(MJ)}')
    k.e(f'v_mov_b32 {v(A1)}, 0\nv_mov_b32 {v(A2)}, 62\nv_cndmask_b32 {v(A1)}, {v(A1)}, {v(A2)}, vcc\nv_add_u32 {v(A1)}, {v(A0)}, {v(A1)}')
    k.e(f'v_add_u32 {v(A2)}, 512, {v(J)}\nv_mov_b32 {v(MJ)}, 644\nv_cmp_eq_u32 vcc, 0, {v(VT)}\nv_cndmask_b32 {v(A2)}, {v(MJ)}, {v(A2)}, vcc')
    k.e(f'v_lshl_add_u32 {v(MJ)}, {v(VT)}, 5, {v(J)}\nv_cmp_eq_u32 vcc, 32, {v(MJ)}\nv_mov_b32 {v(MJ)}, 640\nv_cndmask_b32 {v(A2)}, {v(A2)}, {v(MJ)}, vcc')
    k.e(f's_lshr_b32 {s(S_T0)}, {s(S_WAVE)}, 1\ns_mul_i32 {s(S_T0)}, {s(S_T0)}, 1536\ns_add_u32 {s(S_T0)}, {s(S_T0)}, {TAB}')
    for r in (A0, A1, A2): k.e(f'v_lshl_add_u32 {v(r)}, {v(r)}, 1, {s(S_T0)}')
    for st in range(8):
        k.wait(toks[st])
        mfma16(k, v(AC,4), v(FA+8*st,4), v(FB+4*st,4))
        mfma16(k, v(AC+4,4), v(FA+8*st+4,4), v(FB+4*st,4))
    C0 = 40
    k.e(f'v_cvt_pk_bf16_f32 {v(C0)}, {v(AC)}, {v(AC+1)}\nv_cvt_pk_bf16_f32 {v(C0+1)}, {v(AC+2)}, {v(AC+3)}')
    k.e(f'v_cvt_pk_bf16_f32 {v(C0+2)}, {v(AC+4)}, {v(AC+5)}\nv_cvt_pk_bf16_f32 {v(C0+3)}, {v(AC+6)}, {v(AC+7)}')
    k.ds(f'ds_write_b16 {v(A0)}, {v(C0)}');              k.ds(f'ds_write_b16_d16_hi {v(A0)}, {v(C0)} offset:2')
    k.ds(f'ds_write_b16 {v(A1)}, {v(C0+1)} offset:4');   k.ds(f'ds_write_b16_d16_hi {v(A1)}, {v(C0+1)} offset:6')
    k.ds(f'ds_write_b16 {v(A2)}, {v(C0+2)}');            k.ds(f'ds_write_b16_d16_hi {v(A2)}, {v(C0+2)} offset:64')
    k.ds(f'ds_write_b16 {v(A2)}, {v(C0+3)} offset:128'); k.ds(f'ds_write_b16_d16_hi {v(A2)}, {v(C0+3)} offset:192')
    k.barrier()
    G = 44; GH = 56
    for ch in range(2):
        for j in range(8):
            op = 'ds_read_u16_d16_hi' if j & 1 else 'ds_read_u16'
            t = k.ds(f'{op} {v((GH if j & 1 else G)+4*ch+j//2)}, {v(GA+j)} offset:{1536*ch}')
    k.e(f's_mul_i32 {s(S_T0)}, {s(S_KG)}, {2*KRS}\nv_lshlrev_b32 {v(VO)}, 4, v0')
    Z = 52
    for i in range(4): k.e(f'v_mov_b32 {v(Z+i)}, 0')
    k.e(f'v_lshrrev_b32 {v(VT)}, 2, v0\nv_mul_u32_u24 {v(VT)}, {KRS}, {v(VT)}\nv_and_b32 {v(VU)}, 3, v0\nv_lshl_add_u32 {v(VT)}, {v(VU)}, 4, {v(VT)}\nv_add_u32 {v(VT)}, 4096, {v(VT)}')
    k.e(f'v_mov_b32 {v(VU)}, {hex(OOB)}\nv_cmp_gt_u32 vcc, 8, v0\nv_cndmask_b32 {v(VT)}, {v(VU)}, {v(VT)}, vcc')
    k.vm(f'buffer_store_dwordx4 {v(Z,4)}, {v(VT)}, {s(DK,4)}, {s(S_T0)} offen')
    k.wait(t)
    for i in range(8): k.e(f'v_or_b32 {v(G+i)}, {v(G+i)}, {v(GH+i)}')
    k.vm(f'buffer_store_dwordx4 {v(G,4)}, {v(VO)}, {s(DK,4)}, {s(S_T0)} offen')
    k.e(f's_add_u32 {s(S_T0)}, {s(S_T0)}, {KRS}')
    k.vm(f'buffer_store_dwordx4 {v(G+4,4)}, {v(VO)}, {s(DK,4)}, {s(S_T0)} offen')
    k.e('s_endpgm')

LDS_A = 66560

def build_A(name):
    k = Kern(name)
    lx, lm, lw, lk, lend = [k.newlabel(x) for x in ('X', 'M', 'W', 'K', 'end')]
    k.e(f's_cmp_ge_u32 s2, 512'); k.e(f's_cbranch_scc1 {lend}')
    load_all_ptrs(k)
    wave_id(k)
    k.e('s_waitcnt lgkmcnt(0)')
    k.e('s_cmp_ge_u32 s2, 256'); k.e(f's_cbranch_scc1 {lk}')
    k.e('s_cmp_ge_u32 s2, 236'); k.e(f's_cbranch_scc1 {lend}')
    k.e('s_cmp_ge_u32 s2, 112'); k.e(f's_cbranch_scc1 {lw}')
    k.e('s_cmp_ge_u32 s2, 64'); k.e(f's_cbranch_scc1 {lm}')
    for lab, fn in ((lx, role_X), (lm, role_M), (lw, role_W), (lk, role_K)):
        k.label(lab)
        k.vm_done = k.vm_issued; k.lg_done = k.lg_issued
        fn(k)
    k.label(lend)
    k.e('s_endpgm')
    return k
```

```python
from common import *
from phaseA import load_all_ptrs, wave_id, OOB, S_WAVE, P_WS, P_DSK

KC0 = 0; KCS = 4160; KCH = 4 * KCS
HP0 = 2 * KCH; HPS = 4608
RED = HP0 + 2 * HPS
LDS_B = RED + 4 * 4096

def phase_B(k, wg='s2'):
    S_T0, S_T1, S_D, S_P, S_CH = 44, 45, 46, 47, 60
    SK, SXN, SXT, SMOD, SDS, SO = 48, 52, 56, 64, 68, 72
    k.c('phase B : causal convolution of two channels')
    srd(k, SK, P_WS, KR, 512 * KRS)
    srd(k, SXN, P_WS, XNT, 2 * MB)
    srd(k, SXT, P_WS, XT, 2 * MB)
    srd(k, SMOD, P_WS, MOD, 3072 * 4)
    srd(k, SDS, P_DSK, 0, 1024)
    srd(k, SO, P_WS, X2T, 2 * MB)
    k.e(f's_lshr_b32 {s(S_CH)}, {s(S_WAVE)}, 1\ns_and_b32 {s(S_P)}, {s(S_WAVE)}, 1')
    k.e(f's_lshl_b32 {s(S_D)}, {wg}, 1\ns_add_u32 {s(S_D)}, {s(S_D)}, {s(S_CH)}')
    VL, VC, VT, VU = 2, 3, 4, 5
    k.e(f'v_and_b32 {v(VL)}, 63, v0')
    k.e(f's_lshl_b32 {s(S_T0)}, {s(S_P)}, 11\nv_lshl_add_u32 {v(VC)}, {v(VL)}, 4, {s(S_T0)}')
    KA = 8
    k.e(f's_mul_i32 {s(S_T0)}, {s(S_D)}, {KRS}')
    tk = []
    for i in range(2):
        b = KA + 12 * i
        k.vm(f'buffer_load_dwordx4 {v(b,4)}, {v(VC)}, {s(SK,4)}, {s(S_T0)} offen offset:{1024*i}')
        k.vm(f'buffer_load_dwordx4 {v(b+4,4)}, {v(VC)}, {s(SK,4)}, {s(S_T0)} offen offset:{1024*i+4}')
        tk.append(k.vm(f'buffer_load_dword {v(b+8)}, {v(VC)}, {s(SK,4)}, {s(S_T0)} offen offset:{1024*i+20}'))
    XN = 32
    k.e(f's_lshl_b32 {s(S_T1)}, {s(S_D)}, 12')
    tx = [k.vm(f'buffer_load_dwordx4 {v(XN+4*i,4)}, {v(VC)}, {s(SXN,4)}, {s(S_T1)} offen offset:{1024*i}') for i in range(2)]
    SA, C1, GA, DS = 40, 42, 44, 46
    k.e(f's_lshl_b32 {s(S_T0)}, {s(S_D)}, 2\nv_mov_b32 {v(VT)}, {s(S_T0)}')
    k.vm(f'buffer_load_dword {v(SA)}, {v(VT)}, {s(SMOD,4)}, 0 offen')
    tm = k.vm(f'buffer_load_dword {v(C1)}, {v(VT)}, {s(SMOD,4)}, 0 offen offset:2048')
    k.e(f'v_add_u32 {v(VU)}, 4096, {v(VT)}')
    k.vm(f'buffer_load_dword {v(GA)}, {v(VU)}, {s(SMOD,4)}, 0 offen')
    k.e(f'v_lshrrev_b32 {v(VU)}, 1, {v(VT)}')
    td = k.vm(f'buffer_load_ushort {v(DS)}, {v(VU)}, {s(SDS,4)}, 0 offen')
    VE = 6; XE = 48
    k.e(f'v_and_b32 {v(VT)}, 15, {v(VL)}\nv_lshrrev_b32 {v(VU)}, 4, {v(VL)}')
    k.e(f'v_lshlrev_b32 {v(VE)}, 5, {v(VT)}\nv_lshl_add_u32 {v(VE)}, {v(VU)}, 3, {v(VE)}')
    k.e(f's_lshl_b32 {s(S_T0)}, {s(S_P)}, 11\nv_add_u32 {v(VE)}, {s(S_T0)}, {v(VE)}')
    te = [k.vm(f'buffer_load_dwordx2 {v(XE+2*i,2)}, {v(VE)}, {s(SXT,4)}, {s(S_T1)} offen offset:{512*i}') for i in range(4)]
    VKW, VHW, VTA, VHA, VHE = 56, 57, 58, 59, 60
    k.e(f's_mul_i32 {s(S_T0)}, {s(S_CH)}, {KCH}\nv_add_u32 {v(VKW)}, {s(S_T0)}, {v(VC)}')
    k.e(f's_mul_i32 {s(61)}, {s(S_CH)}, {HPS}\ns_add_u32 {s(61)}, {s(61)}, {HP0}')
    k.e(f'v_add_u32 {v(VHW)}, {s(61)}, {v(VC)}')
    k.e(f'v_sub_u32 {v(VTA)}, 3, {v(VT)}\nv_and_b32 {v(VTA)}, 3, {v(VTA)}\nv_mul_u32_u24 {v(VTA)}, {KCS}, {v(VTA)}')
    k.e(f'v_lshrrev_b32 {v(VHA)}, 2, {v(VT)}\nv_lshlrev_b32 {v(VHA)}, 3, {v(VHA)}\nv_sub_u32 {v(VTA)}, {v(VTA)}, {v(VHA)}')
    k.e(f'v_lshl_add_u32 {v(VTA)}, {v(VU)}, 4, {v(VTA)}')
    k.e(f's_lshl_b32 {s(S_T1)}, {s(S_P)}, 6\ns_sub_u32 {s(S_T1)}, 88, {s(S_T1)}\ns_add_u32 {s(S_T0)}, {s(S_T0)}, {s(S_T1)}')
    k.e(f'v_add_u32 {v(VTA)}, {s(S_T0)}, {v(VTA)}')
    k.e(f'v_lshlrev_b32 {v(VHA)}, 5, {v(VT)}\nv_lshl_add_u32 {v(VHA)}, {v(VU)}, 4, {v(VHA)}')
    k.e(f's_lshl_b32 {s(S_T1)}, {s(S_P)}, 6\ns_sub_u32 {s(S_T1)}, 64, {s(S_T1)}\ns_add_u32 {s(S_T1)}, {s(S_T1)}, {s(61)}')
    k.e(f'v_add_u32 {v(VHA)}, {s(S_T1)}, {v(VHA)}')
    k.e(f'v_add_u32 {v(VHE)}, {s(61)}, {v(VE)}')
    Z = 64
    for i in range(4): k.e(f'v_mov_b32 {v(Z+i)}, 0')
    lz1, lz2 = k.newlabel('z1'), k.newlabel('z2')
    k.e(f's_cmp_eq_u32 {s(S_P)}, 0'); k.e(f's_cbranch_scc0 {lz1}')
    k.e(f'v_lshrrev_b32 {v(Z+4)}, 1, {v(VL)}\nv_mul_u32_u24 {v(Z+4)}, {KCS}, {v(Z+4)}\nv_and_b32 {v(Z+5)}, 1, {v(VL)}\nv_lshl_add_u32 {v(Z+4)}, {v(Z+5)}, 4, {v(Z+4)}')
    k.e(f's_mul_i32 {s(S_T0)}, {s(S_CH)}, {KCH}\nv_add_u32 {v(Z+4)}, {s(S_T0)}, {v(Z+4)}')
    k.e('s_mov_b64 exec, 0xff')
    k.ds(f'ds_write_b128 {v(Z+4)}, {v(Z,4)} offset:4096')
    k.e('s_mov_b64 exec, -1')
    k.e(f's_branch {lz2}')
    k.label(lz1)
    k.e(f'v_lshlrev_b32 {v(Z+4)}, 4, {v(VL)}\nv_add_u32 {v(Z+4)}, {s(61)}, {v(Z+4)}')
    k.e('s_mov_b64 exec, 0x3fffffff')
    k.ds(f'ds_write_b128 {v(Z+4)}, {v(Z,4)}')
    k.e('s_mov_b64 exec, -1')
    k.label(lz2)
    U = 72; O = 88
    k.wait(tm, tx[1])
    for i in range(2):
        for j in range(4):
            k.e(f'v_lshlrev_b32 {v(U+2*j)}, 16, {v(XN+4*i+j)}\nv_and_b32 {v(U+2*j+1)}, 0xffff0000, {v(XN+4*i+j)}')
        for j in range(4):
            k.e(f'v_pk_fma_f32 {v(U+2*j,2)}, {v(U+2*j,2)}, {v(C1,2)}, {v(SA,2)} op_sel_hi:[1,0,0]')
        for j in range(4):
            k.e(f'v_cvt_pk_bf16_f32 {v(O+4*i+j)}, {v(U+2*j)}, {v(U+2*j+1)}')
        k.ds(f'ds_write_b128 {v(VHW)}, {v(O+4*i,4)} offset:{480+1024*i}')
    for i in range(2):
        b = KA + 12 * i
        k.wait(tk[i])
        s1, s3 = U + 8 * i, U + 8 * i + 4
        for j in range(4): k.e(f'v_alignbit_b32 {v(s1+j)}, {v(b+4+j)}, {v(b+j)}, 16')
        for j in range(3): k.e(f'v_alignbit_b32 {v(s3+j)}, {v(b+5+j)}, {v(b+4+j)}, 16')
        k.e(f'v_alignbit_b32 {v(s3+3)}, {v(b+8)}, {v(b+7)}, 16')
        k.ds(f'ds_write_b128 {v(VKW)}, {v(b,4)} offset:{1024*i}')
        k.ds(f'ds_write_b128 {v(VKW)}, {v(s1,4)} offset:{1024*i+KCS}')
        k.ds(f'ds_write_b128 {v(VKW)}, {v(b+4,4)} offset:{1024*i+2*KCS}')
        k.ds(f'ds_write_b128 {v(VKW)}, {v(s3,4)} offset:{1024*i+3*KCS}')
    ACC = 96; TR = 8; NT = 4
    for i in range(32): k.e(f'v_mov_b32 {v(ACC+i)}, 0')
    k.barrier()
    def readT(m):
        r = TR + 4 * (m % NT)
        k.ds(f'ds_read_b64 {v(r,2)}, {v(VTA)} offset:{128*(31-m)}')
        return k.ds(f'ds_read_b64 {v(r+2,2)}, {v(VTA)} offset:{128*(31-m)+8}')
    def readH(hi): return k.ds(f'ds_read_b128 {a(4*hi,4)}, {v(VHA)} offset:{128*hi}')
    tT, tH = {}, {}
    tT[0] = readT(0)
    for t in range(8): tH[4*t+3] = readH(4*t+3)
    tT[1] = readT(1)
    for m in range(32):
        dl = m >> 2
        if m + 2 < 32: tT[m+2] = readT(m + 2)
        ts = list(range(dl, 8))
        for n, t in enumerate(ts):
            hi = 4 * t + 3 - m
            if m < 3:
                tH[hi - 1] = readH(hi - 1)
            k.wait(tT[m], tH[hi])
            mfma16(k, v(ACC+4*t,4), v(TR+4*(m % NT),4), a(4*hi,4))
    lp1, lpj = k.newlabel('p1'), k.newlabel('pj')
    VR = 4
    k.e(f's_lshl_b32 {s(S_T0)}, {s(S_WAVE)}, 12\ns_add_u32 {s(S_T0)}, {s(S_T0)}, {RED}\nv_lshl_add_u32 {v(VR)}, {v(VL)}, 4, {s(S_T0)}')
    k.e(f's_cmp_eq_u32 {s(S_P)}, 0'); k.e(f's_cbranch_scc0 {lp1}')
    for i in range(4): k.ds(f'ds_write_b128 {v(VR)}, {v(ACC+16+4*i,4)} offset:{1024*i}')
    k.e(f's_branch {lpj}')
    k.label(lp1)
    k.flush_hazards(8)
    for i in range(4): k.ds(f'ds_write_b128 {v(VR)}, {v(ACC+4*i,4)} offset:{1024*i}')
    k.e('s_nop 1')
    for i in range(16): k.e(f'v_mov_b32 {v(ACC+i)}, {v(ACC+16+i)}')
    k.label(lpj)
    k.unknown_counters()
    k.e('s_waitcnt lgkmcnt(0)'); k.e('s_barrier')
    k.e(f'v_xor_b32 {v(VR)}, 4096, {v(VR)}') if RED % 8192 == 0 else None
    if RED % 8192 != 0:
        k.e(f's_xor_b32 {s(S_T0)}, {s(S_WAVE)}, 1\ns_lshl_b32 {s(S_T0)}, {s(S_T0)}, 12\ns_add_u32 {s(S_T0)}, {s(S_T0)}, {RED}\nv_lshl_add_u32 {v(VR)}, {v(VL)}, 4, {s(S_T0)}')
    PR = 8; HE = 24
    tp = [k.ds(f'ds_read_b128 {v(PR+4*i,4)}, {v(VR)} offset:{1024*i}') for i in range(4)]
    th = [k.ds(f'ds_read_b64 {v(HE+2*i,2)}, {v(VHE)} offset:{480+512*i}') for i in range(4)]
    k.wait(td, te[3])
    k.e(f'v_lshlrev_b32 {v(DS)}, 16, {v(DS)}')
    k.e(f's_lshl_b32 {s(S_T1)}, {s(S_D)}, 12')
    for i in range(4):
        k.wait(tp[i], th[i])
        A_ = ACC + 4 * i
        k.e(f'v_pk_add_f32 {v(A_,2)}, {v(A_,2)}, {v(PR+4*i,2)}\nv_pk_add_f32 {v(A_+2,2)}, {v(A_+2,2)}, {v(PR+4*i+2,2)}')
        for j in range(2):
            k.e(f'v_lshlrev_b32 {v(U+2*j)}, 16, {v(HE+2*i+j)}\nv_and_b32 {v(U+2*j+1)}, 0xffff0000, {v(HE+2*i+j)}')
            k.e(f'v_lshlrev_b32 {v(U+4+2*j)}, 16, {v(XE+2*i+j)}\nv_and_b32 {v(U+4+2*j+1)}, 0xffff0000, {v(XE+2*i+j)}')
        for j in range(2):
            k.e(f'v_pk_fma_f32 {v(A_+2*j,2)}, {v(U+2*j,2)}, {v(DS,2)}, {v(A_+2*j,2)} op_sel_hi:[1,0,1]')
        for j in range(2):
            k.e(f'v_pk_fma_f32 {v(A_+2*j,2)}, {v(A_+2*j,2)}, {v(GA,2)}, {v(U+4+2*j,2)} op_sel_hi:[1,0,1]')
        k.e(f'v_cvt_pk_bf16_f32 {v(O+2*i)}, {v(A_)}, {v(A_+1)}\nv_cvt_pk_bf16_f32 {v(O+2*i+1)}, {v(A_+2)}, {v(A_+3)}')
        k.vm(f'buffer_store_dwordx2 {v(O+2*i,2)}, {v(VE)}, {s(SO,4)}, {s(S_T1)} offen offset:{512*i}')

def build_B(name):
    k = Kern(name)
    lend = k.newlabel('end')
    k.e(f's_cmp_ge_u32 s2, 256'); k.e(f's_cbranch_scc1 {lend}')
    load_all_ptrs(k); wave_id(k)
    k.e('s_waitcnt lgkmcnt(0)')
    phase_B(k)
    k.label(lend)
    k.e('s_endpgm')
    return k
```

```python
from common import *
from phaseA import load_all_ptrs, wave_id, OOB, S_WAVE, P_WS

S_RB64, S_J, S_RB32, S_G, S_R32, S_R64 = 90, 91, 92, 93, 94, 95
def wg_map(k, wg='s2'):
    k.e(f's_and_b32 {s(S_RB64)}, {wg}, 7\ns_lshl_b32 {s(S_RB64)}, {s(S_RB64)}, 2\ns_lshr_b32 {s(S_J)}, {wg}, 6\ns_add_u32 {s(S_RB64)}, {s(S_RB64)}, {s(S_J)}')
    k.e(f's_lshr_b32 {s(S_J)}, {wg}, 3\ns_and_b32 {s(S_J)}, {s(S_J)}, 7')
    k.e(f's_lshr_b32 {s(S_G)}, {s(S_J)}, 2\ns_lshl_b32 {s(S_RB32)}, {s(S_RB64)}, 1\ns_add_u32 {s(S_RB32)}, {s(S_RB32)}, {s(S_G)}')
    k.e(f's_and_b32 {s(S_G)}, {s(S_J)}, 3')
    k.e(f's_lshl_b32 {s(S_R32)}, {s(S_RB32)}, 5\ns_lshl_b32 {s(S_R64)}, {s(S_RB64)}, 6')

GELU_C0 = -2.0 * LOG2E * 0.7978845608028654
GELU_C1 = GELU_C0 * 0.044715
S_GC1 = 96
def gelu_consts(k, vc0):
    k.e(f's_mov_b32 {s(S_GC1)}, {hexf(GELU_C1)}\ns_mov_b32 {s(S_GC1+1)}, {hexf(GELU_C1)}')
    k.e(f'v_mov_b32 {v(vc0)}, {hexf(GELU_C0)}\nv_mov_b32 {v(vc0+1)}, {hexf(GELU_C0)}')
def gelu_steps(pairs, tmps, vc0):
    o = []
    for x, t in zip(pairs, tmps): o.append(f'v_pk_mul_f32 {v(t,2)}, {v(x,2)}, {v(x,2)}')
    for x, t in zip(pairs, tmps): o.append(f'v_pk_fma_f32 {v(t,2)}, {v(t,2)}, {s(S_GC1,2)}, {v(vc0,2)}')
    for x, t in zip(pairs, tmps): o.append(f'v_pk_mul_f32 {v(t,2)}, {v(t,2)}, {v(x,2)}')
    for x, t in zip(pairs, tmps): o += [f'v_exp_f32 {v(t)}, {v(t)}', f'v_exp_f32 {v(t+1)}, {v(t+1)}']
    for x, t in zip(pairs, tmps): o.append(f'v_pk_add_f32 {v(t,2)}, {v(t,2)}, 1.0 op_sel_hi:[1,0]')
    for x, t in zip(pairs, tmps): o += [f'v_rcp_f32 {v(t)}, {v(t)}', f'v_rcp_f32 {v(t+1)}, {v(t+1)}']
    for x, t in zip(pairs, tmps): o.append(f'v_pk_mul_f32 {v(x,2)}, {v(x,2)}, {v(t,2)}')
    return o

def reduce_q(k, regs, tmp):
    for op in ('v_permlane16_swap_b32', 'v_permlane32_swap_b32'):
        for i, r in enumerate(regs): k.e(f'v_mov_b32 {v(tmp+i)}, {v(r)}')
        for i, r in enumerate(regs): k.e(f'{op} {v(r)}, {v(tmp+i)}')
        for i, r in enumerate(regs): k.e(f'v_add_f32 {v(r)}, {v(r)}, {v(tmp+i)}')

def mean_rstd(k, sm, sq, t):
    k.e(f'v_mul_f32 {v(sm)}, {hexf(1/512)}, {v(sm)}')
    k.e(f'v_mul_f32 {v(t)}, {v(sm)}, {v(sm)}')
    k.e(f'v_mul_f32 {v(sq)}, {hexf(1/512)}, {v(sq)}')
    k.e(f'v_sub_f32 {v(sq)}, {v(sq)}, {v(t)}')
    k.e(f'v_max_f32 {v(sq)}, 0, {v(sq)}\nv_add_f32 {v(sq)}, {hexf(1e-5)}, {v(sq)}')
    k.e(f'v_rsq_f32 {v(sq)}, {v(sq)}')
    k.e(f'v_mul_f32 {v(sm)}, {v(sm)}, {v(sq)}\nv_sub_f32 {v(sm)}, 0, {v(sm)}')

C_XT, C_HB, C_PAR, C_ST = 0, 32768, 65536, 69632
LDS_C = 70656

def prefetch_W12(k, srdq, vlane16, s_tmp, abase=0):
    k.e(f's_lshl_b32 {s(s_tmp)}, {s(S_G)}, 2\ns_add_u32 {s(s_tmp)}, {s(s_tmp)}, {s(S_WAVE)}\ns_lshl_b32 {s(s_tmp)}, {s(s_tmp)}, 15')
    toks = []
    for f in range(32):
        if f and f % 4 == 0: k.e(f's_add_u32 {s(s_tmp)}, {s(s_tmp)}, 4096')
        toks.append(k.vm(f'buffer_load_dwordx4 {a(abase+4*f,4)}, {v(vlane16)}, {s(srdq,4)}, {s(s_tmp)} offen offset:{1024*(f%4)}'))
    return toks

def phase_C(k):
    S_T0, S_T1, S_T2, S_RT, S_KH = 44, 45, 46, 47, 60
    SX, SMOD, SW, SCS, SH1, SH2, SX2 = 48, 52, 56, 64, 68, 72, 76
    k.c('phase C : x2 -> LN -> modulate -> LN -> GEMM1 -> gelu')
    srd(k, SX, P_WS, X2T, 2 * MB)
    srd(k, SMOD, P_WS, MOD, 3072 * 4)
    srd(k, SW, P_WS, W1F, 512 * KB)
    srd(k, SCS, P_WS, CS1, 4096)
    srd(k, SH1, P_WS, H1C, 2 * MB)
    srd(k, SH2, P_WS, H2C, 2 * MB)
    srd(k, SX2, P_WS, X2C, 2 * MB)
    k.e(f's_and_b32 {s(S_RT)}, {s(S_WAVE)}, 1\ns_lshr_b32 {s(S_KH)}, {s(S_WAVE)}, 1')
    VL, VI, VQ, VT, VU = 2, 3, 4, 5, 6
    k.e(f'v_and_b32 {v(VL)}, 63, v0\nv_and_b32 {v(VI)}, 15, {v(VL)}\nv_lshrrev_b32 {v(VQ)}, 4, {v(VL)}')
    k.e(f'v_lshrrev_b32 {v(VT)}, 2, {v(VL)}')
    k.e(f'v_lshrrev_b32 {v(VU)}, 4, {v(VL)}\nv_and_b32 {v(VU)}, 2, {v(VU)}')
    k.e(f'v_and_b32 {v(7)}, 3, {v(VL)}\nv_xor_b32 {v(VU)}, {v(VU)}, {v(7)}')
    k.e(f'v_lshlrev_b32 {v(VT)}, 12, {v(VT)}\nv_lshl_add_u32 {v(VT)}, {v(VU)}, 4, {v(VT)}')
    k.e(f's_lshl_b32 {s(S_T1)}, {s(S_WAVE)}, 19\ns_lshl_b32 {s(S_T0)}, {s(S_R32)}, 1\ns_add_u32 {s(S_T1)}, {s(S_T1)}, {s(S_T0)}')
    k.e(f's_lshl_b32 {s(S_T2)}, {s(S_WAVE)}, 13')
    for i in range(8):
        k.e(f's_add_u32 m0, {s(S_T2)}, {C_XT + 1024*i}')
        if i: k.e(f's_add_u32 {s(S_T1)}, {s(S_T1)}, 0x10000')
        k.vm(f'buffer_load_dwordx4 {v(VT)}, {s(SX,4)}, {s(S_T1)} offen lds')
    k.e(f's_lshl_b32 {s(S_T0)}, {s(S_WAVE)}, 10\ns_add_u32 m0, {s(S_T0)}, {C_PAR}\ns_add_u32 {s(S_T0)}, {s(S_T0)}, {3*2048}')
    VL16 = 7
    k.e(f'v_lshlrev_b32 {v(VL16)}, 4, {v(VL)}')
    tdma = k.vm(f'buffer_load_dwordx4 {v(VL16)}, {s(SMOD,4)}, {s(S_T0)} offen lds')
    CS = 8
    k.e(f's_lshl_b32 {s(S_T0)}, {s(S_G)}, 2\ns_add_u32 {s(S_T0)}, {s(S_T0)}, {s(S_WAVE)}\ns_lshl_b32 {s(S_T0)}, {s(S_T0)}, 7')
    k.e(f'v_lshlrev_b32 {v(VT)}, 5, {v(VQ)}')
    k.vm(f'buffer_load_dwordx4 {v(CS,4)}, {v(VT)}, {s(SCS,4)}, {s(S_T0)} offen')
    k.vm(f'buffer_load_dwordx4 {v(CS+4,4)}, {v(VT)}, {s(SCS,4)}, {s(S_T0)} offen offset:16')
    k.vm(f'buffer_load_dwordx4 {v(CS+8,4)}, {v(VT)}, {s(SCS,4)}, {s(S_T0)} offen offset:2048')
    tcs = k.vm(f'buffer_load_dwordx4 {v(CS+12,4)}, {v(VT)}, {s(SCS,4)}, {s(S_T0)} offen offset:2064')
    tW = prefetch_W12(k, SW, VL16, S_T0)
    VTR, VPA, VHW, VST, VHR, VGO = 24, 25, 26, 27, 28, 29
    k.e(f'v_bfe_u32 {v(VT)}, {v(VL)}, 2, 2\nv_lshl_add_u32 {v(VT)}, {v(VQ)}, 3, {v(VT)}\nv_lshlrev_b32 {v(VTR)}, 6, {v(VT)}')
    k.e(f'v_bfe_u32 {v(VT)}, {v(VL)}, 1, 1\ns_lshl_b32 {s(S_T0)}, {s(S_RT)}, 1\nv_add_u32 {v(VT)}, {s(S_T0)}, {v(VT)}')
    k.e(f'v_and_b32 {v(VU)}, 1, {v(VQ)}\nv_lshlrev_b32 {v(VU)}, 1, {v(VU)}\nv_xor_b32 {v(VT)}, {v(VT)}, {v(VU)}')
    k.e(f'v_lshl_add_u32 {v(VTR)}, {v(VT)}, 4, {v(VTR)}\nv_and_b32 {v(VT)}, 1, {v(VL)}\nv_lshl_add_u32 {v(VTR)}, {v(VT)}, 3, {v(VTR)}')
    k.e(f's_lshl_b32 {s(S_T0)}, {s(S_KH)}, 14\nv_add_u32 {v(VTR)}, {s(S_T0)}, {v(VTR)}')
    k.e(f's_lshl_b32 {s(S_T0)}, {s(S_KH)}, 10\ns_add_u32 {s(S_T0)}, {s(S_T0)}, {C_PAR}\nv_lshl_add_u32 {v(VPA)}, {v(VQ)}, 5, {s(S_T0)}')
    k.e(f's_lshl_b32 {s(S_T0)}, {s(S_KH)}, 14\ns_lshl_b32 {s(S_T1)}, {s(S_RT)}, 8\ns_add_u32 {s(S_T0)}, {s(S_T0)}, {s(S_T1)}\ns_add_u32 {s(S_T0)}, {s(S_T0)}, {C_HB}')
    k.e(f'v_lshlrev_b32 {v(VHW)}, 9, {v(VQ)}\nv_lshl_add_u32 {v(VHW)}, {v(VI)}, 4, {v(VHW)}\nv_add_u32 {v(VHW)}, {s(S_T0)}, {v(VHW)}')
    k.e(f'v_lshlrev_b32 {v(VHR)}, 9, {v(VQ)}\nv_lshl_add_u32 {v(VHR)}, {v(VI)}, 4, {v(VHR)}\nv_add_u32 {v(VHR)}, {C_HB}, {v(VHR)}')
    k.e(f's_lshl_b32 {s(S_T0)}, {s(S_WAVE)}, 7\ns_add_u32 {s(S_T0)}, {s(S_T0)}, {C_ST}\nv_lshl_add_u32 {v(VST)}, {v(VI)}, 3, {s(S_T0)}')
    k.e(f'v_add_u32 {v(VT)}, {s(S_R32)}, {v(VI)}\nv_lshlrev_b32 {v(VGO)}, 4, {v(VT)}\nv_lshl_add_u32 {v(VGO)}, {v(VQ)}, 15, {v(VGO)}')
    X = 32
    H = 64
    ONE = 30; S1, S2, S3, S4 = 96, 97, 98, 99; TM = 100
    k.e(f'v_mov_b32 {v(ONE)}, 0x3f803f80')
    for r in (S1, S2, S3, S4): k.e(f'v_mov_b32 {v(r)}, 0')
    k.wait(tdma); k.e('s_barrier')
    toks = []
    for st in range(8):
        k.ds(f'ds_read_b64_tr_b16 {v(X+4*st,2)}, {v(VTR)} offset:{2048*st}')
        toks.append(k.ds(f'ds_read_b64_tr_b16 {v(X+4*st+2,2)}, {v(VTR)} offset:{2048*st+256}'))
    for st in range(8):
        k.wait(toks[st])
        for i in range(4):
            k.e(f'v_dot2_f32_bf16 {v(S1 + (i&1))}, {v(X+4*st+i)}, {v(ONE)}, {v(S1 + (i&1))}')
            k.e(f'v_dot2_f32_bf16 {v(S3 + (i&1))}, {v(X+4*st+i)}, {v(X+4*st+i)}, {v(S3 + (i&1))}')
    k.e(f'v_add_f32 {v(S1)}, {v(S1)}, {v(S2)}\nv_add_f32 {v(S2)}, {v(S3)}, {v(S4)}')
    reduce_q(k, [S1, S2], TM)
    k.ds(f'ds_write_b64 {v(VST)}, {v(S1,2)}')
    k.barrier()
    k.e(f'v_xor_b32 {v(VT)}, 256, {v(VST)}')
    t = k.ds(f'ds_read_b64 {v(S3,2)}, {v(VT)}')
    PA = 104
    def read_par(st):
        b = PA + 16 * (st & 1)
        k.ds(f'ds_read_b128 {v(b,4)}, {v(VPA)} offset:{128*st}')
        k.ds(f'ds_read_b128 {v(b+4,4)}, {v(VPA)} offset:{128*st+16}')
        k.ds(f'ds_read_b128 {v(b+8,4)}, {v(VPA)} offset:{128*st+2048}')
        return k.ds(f'ds_read_b128 {v(b+12,4)}, {v(VPA)} offset:{128*st+2064}')
    tp = {0: read_par(0)}
    k.wait(t)
    k.e(f'v_add_f32 {v(S1)}, {v(S1)}, {v(S3)}\nv_add_f32 {v(S2)}, {v(S2)}, {v(S4)}')
    mean_rstd(k, S1, S2, TM)
    RS, NMR = 136, 138
    k.e(f'v_mov_b32 {v(RS)}, {v(S2)}\nv_mov_b32 {v(NMR)}, {v(S1)}')
    for r in (S1, S2, S3, S4): k.e(f'v_mov_b32 {v(r)}, 0')
    U = 140
    for st in range(8):
        if st + 1 < 8: tp[st+1] = read_par(st + 1)
        b = PA + 16 * (st & 1)
        for i in range(4):
            k.e(f'v_lshlrev_b32 {v(U+2*i)}, 16, {v(X+4*st+i)}\nv_and_b32 {v(U+2*i+1)}, 0xffff0000, {v(X+4*st+i)}')
        for i in range(4):
            k.e(f'v_pk_fma_f32 {v(U+2*i,2)}, {v(U+2*i,2)}, {v(RS,2)}, {v(NMR,2)} op_sel_hi:[1,0,0]')
        k.wait(tp[st])
        for i in range(4):
            k.e(f'v_pk_fma_f32 {v(U+2*i,2)}, {v(U+2*i,2)}, {v(b+8+2*i,2)}, {v(b+2*i,2)}')
        for i in range(4):
            k.e(f'v_cvt_pk_bf16_f32 {v(H+4*st+i)}, {v(U+2*i)}, {v(U+2*i+1)}')
        k.ds(f'ds_write_b128 {v(VHW)}, {v(H+4*st,4)} offset:{2048*st}')
        for i in range(4):
            k.e(f'v_dot2_f32_bf16 {v(S1 + (i&1))}, {v(H+4*st+i)}, {v(ONE)}, {v(S1 + (i&1))}')
            k.e(f'v_dot2_f32_bf16 {v(S3 + (i&1))}, {v(H+4*st+i)}, {v(H+4*st+i)}, {v(S3 + (i&1))}')
    k.e(f'v_add_f32 {v(S1)}, {v(S1)}, {v(S2)}\nv_add_f32 {v(S2)}, {v(S3)}, {v(S4)}')
    reduce_q(k, [S1, S2], TM)
    k.ds(f'ds_write_b64 {v(VST)}, {v(S1,2)} offset:512')
    lskip, lodd, ldone = k.newlabel('skip'), k.newlabel('odd'), k.newlabel('sdone')
    k.wait(tcs, tW[-1])
    k.e(f's_lshr_b32 {s(S_T0)}, {s(S_G)}, 1\ns_cmp_eq_u32 {s(S_T0)}, {s(S_KH)}'); k.e(f's_cbranch_scc0 {ldone}')
    k.e(f's_lshl_b32 {s(S_T0)}, {s(S_G)}, 19\ns_lshl_b32 {s(S_T1)}, {s(S_RT)}, 8\ns_add_u32 {s(S_T0)}, {s(S_T0)}, {s(S_T1)}')
    k.e(f's_bitcmp1_b32 {s(S_G)}, 0'); k.e(f's_cbranch_scc1 {lodd}')
    for base, lab in ((0, None), (4, lodd)):
        if lab: k.label(lab)
        for i in range(4):
            k.vm(f'buffer_store_dwordx4 {v(H+4*(base+i),4)}, {v(VGO)}, {s(SH2,4)}, {s(S_T0)} offen')
            k.vm(f'buffer_store_dwordx4 {v(X+4*(base+i),4)}, {v(VGO)}, {s(SX2,4)}, {s(S_T0)} offen')
            if i < 3: k.e(f's_add_u32 {s(S_T0)}, {s(S_T0)}, 0x20000')
        if not lab: k.e(f's_branch {ldone}')
    k.label(ldone)
    k.barrier()
    k.e(f'v_lshlrev_b32 {v(VT)}, 3, {v(VI)}\nv_add_u32 {v(VT)}, {C_ST + 512}, {v(VT)}')
    ST = 96
    ts = [k.ds(f'ds_read_b64 {v(ST+2*w,2)}, {v(VT)} offset:{128*w}') for w in range(4)]
    ACC = 140; BF = 104; NB = 4
    for i in range(16): k.e(f'v_mov_b32 {v(ACC+i)}, 0')
    def readB(st):
        b = BF + 8 * (st % NB)
        k.ds(f'ds_read_b128 {v(b,4)}, {v(VHR)} offset:{2048*st}')
        return k.ds(f'ds_read_b128 {v(b+4,4)}, {v(VHR)} offset:{2048*st+256}')
    tb = {0: readB(0), 1: readB(1)}
    k.wait(ts[3])
    k.e(f'v_pk_add_f32 {v(ST,2)}, {v(ST,2)}, {v(ST+4,2)}\nv_pk_add_f32 {v(ST+2,2)}, {v(ST+2,2)}, {v(ST+6,2)}')
    for st in range(16):
        if st + 2 < 16: tb[st+2] = readB(st + 2)
        k.wait(tb[st])
        b = BF + 8 * (st % NB)
        for rt in range(2):
            for tau in range(2):
                mfma16(k, v(ACC+8*rt+4*tau,4), a(8*st+4*tau,4), v(b+4*rt,4))
        if st == 0:
            mean_rstd(k, ST, ST+1, TM); mean_rstd(k, ST+2, ST+3, TM)
            for i in range(8): k.e(f'v_add_f32 {v(CS+i)}, {v(CS+i)}, {v(CS+8+i)}')
    GC0 = 30
    gelu_consts(k, GC0)
    RSB = [100, 102]; NMB = [104, 106]
    for rt in range(2):
        k.e(f'v_mov_b32 {v(RSB[rt])}, {v(ST+2*rt+1)}\nv_mov_b32 {v(NMB[rt])}, {v(ST+2*rt)}')
    k.e(f's_lshl_b32 {s(S_T0)}, {s(S_G)}, 2\ns_add_u32 {s(S_T0)}, {s(S_T0)}, {s(S_WAVE)}\ns_lshl_b32 {s(S_T0)}, {s(S_T0)}, 17')
    TP = 112; O = 32
    for rt in range(2):
        prs = [ACC + 8*rt + 2*i for i in range(4)]
        for i, p in enumerate(prs): k.e(f'v_pk_mul_f32 {v(p,2)}, {v(p,2)}, {v(RSB[rt],2)} op_sel_hi:[1,0]')
        for i, p in enumerate(prs): k.e(f'v_pk_fma_f32 {v(p,2)}, {v(CS+2*i,2)}, {v(NMB[rt],2)}, {v(p,2)} op_sel_hi:[1,0,1]')
        for ins in gelu_steps(prs, [TP + 2*i for i in range(4)], GC0): k.e(ins)
        for i, p in enumerate(prs): k.e(f'v_cvt_pk_bf16_f32 {v(O+4*rt+i)}, {v(p)}, {v(p+1)}')
        k.vm(f'buffer_store_dwordx4 {v(O+4*rt,4)}, {v(VGO)}, {s(SH1,4)}, {s(S_T0)} offen offset:{256*rt}')

def build_C(name):
    k = Kern(name)
    lend = k.newlabel('end')
    k.e(f's_cmp_ge_u32 s2, 256'); k.e(f's_cbranch_scc1 {lend}')
    load_all_ptrs(k); wave_id(k); wg_map(k)
    k.e('s_waitcnt lgkmcnt(0)')
    phase_C(k)
    k.label(lend)
    k.e('s_endpgm')
    return k
```

```python
from common import *
from phaseA import load_all_ptrs, wave_id, OOB, S_WAVE, P_WS
from phaseC import *

D_HB, D_ST = 0, 32768
LDS_D = 32768 + 1024

def phase_D(k):
    S_T0, S_T1, S_T2, S_SG = 44, 45, 46, 47
    SH1, SH2, SW, SX1, SST = 48, 52, 56, 64, 68
    k.c('phase D : shifted h1 @ w2 + h2 -> x1, row statistics')
    srd(k, SH1, P_WS, H1C, 2 * MB)
    srd(k, SH2, P_WS, H2C, 2 * MB)
    srd(k, SW, P_WS, W2F, 512 * KB)
    srd(k, SX1, P_WS, X1C, 2 * MB)
    srd(k, SST, P_WS, ST4, 2048 * 32)
    VL, VI, VQ, VT, VU = 2, 3, 4, 5, 6
    k.e(f'v_and_b32 {v(VL)}, 63, v0\nv_and_b32 {v(VI)}, 15, {v(VL)}\nv_lshrrev_b32 {v(VQ)}, 4, {v(VL)}')
    k.e(f's_lshr_b32 {s(S_T0)}, {s(S_WAVE)}, 1\ns_add_u32 {s(S_T0)}, {s(S_T0)}, 1')
    k.e(f's_sub_u32 {s(S_T1)}, 0, {s(S_T0)}\ns_bitcmp1_b32 {s(S_WAVE)}, 0\ns_cselect_b32 {s(S_SG)}, {s(S_T0)}, {s(S_T1)}')
    k.e(f's_add_u32 {s(S_T0)}, {s(S_R32)}, {s(S_SG)}')
    VO0, VO1 = 8, 9
    for rt, vo in ((0, VO0), (1, VO1)):
        k.e(f'v_add_u32 {v(VT)}, {s(S_T0)}, {v(VI)}')
        if rt: k.e(f'v_add_u32 {v(VT)}, 16, {v(VT)}')
        k.e(f'v_lshlrev_b32 {v(vo)}, 4, {v(VT)}\nv_lshl_add_u32 {v(vo)}, {v(VQ)}, 15, {v(vo)}')
        k.e(f'v_mov_b32 {v(VU)}, {hex(OOB)}\nv_cmp_gt_u32 vcc, 2048, {v(VT)}\nv_cndmask_b32 {v(vo)}, {v(VU)}, {v(vo)}, vcc')
    k.e(f's_lshl_b32 {s(S_T1)}, {s(S_WAVE)}, 19')
    k.e(f's_lshl_b32 {s(S_T2)}, {s(S_WAVE)}, 13')
    for i in range(4):
        for rt, vo in ((0, VO0), (1, VO1)):
            k.e(f's_add_u32 m0, {s(S_T2)}, {D_HB + 2048*i + 1024*rt}')
            tdma = k.vm(f'buffer_load_dwordx4 {v(vo)}, {s(SH1,4)}, {s(S_T1)} offen lds')
        if i < 3: k.e(f's_add_u32 {s(S_T1)}, {s(S_T1)}, 0x20000')
    VGO, VL16 = 10, 11
    k.e(f'v_add_u32 {v(VT)}, {s(S_R32)}, {v(VI)}\nv_lshlrev_b32 {v(VGO)}, 4, {v(VT)}\nv_lshl_add_u32 {v(VGO)}, {v(VQ)}, 15, {v(VGO)}')
    S_PO = 60
    k.e(f's_lshl_b32 {s(S_PO)}, {s(S_G)}, 2\ns_add_u32 {s(S_PO)}, {s(S_PO)}, {s(S_WAVE)}\ns_lshl_b32 {s(S_PO)}, {s(S_PO)}, 17')
    H2 = 12
    k.vm(f'buffer_load_dwordx4 {v(H2,4)}, {v(VGO)}, {s(SH2,4)}, {s(S_PO)} offen')
    th2 = k.vm(f'buffer_load_dwordx4 {v(H2+4,4)}, {v(VGO)}, {s(SH2,4)}, {s(S_PO)} offen offset:256')
    k.e(f'v_lshlrev_b32 {v(VL16)}, 4, {v(VL)}')
    tW = prefetch_W12(k, SW, VL16, S_T0)
    ACC = 20; BF = 36; NB = 4
    for i in range(16): k.e(f'v_mov_b32 {v(ACC+i)}, 0')
    k.wait(tdma); k.e('s_barrier')
    def readB(st):
        b = BF + 8 * (st % NB)
        k.ds(f'ds_read_b128 {v(b,4)}, {v(VL16)} offset:{D_HB + 2048*st}')
        return k.ds(f'ds_read_b128 {v(b+4,4)}, {v(VL16)} offset:{D_HB + 2048*st + 1024}')
    tb = {0: readB(0), 1: readB(1)}
    for st in range(16):
        if st + 2 < 16: tb[st+2] = readB(st + 2)
        k.wait(tb[st], tW[2*st+1])
        b = BF + 8 * (st % NB)
        for rt in range(2):
            for tau in range(2):
                mfma16(k, v(ACC+8*rt+4*tau,4), a(8*st+4*tau,4), v(b+4*rt,4))
    U = 36; SM = 52; O = 60; TM = 68
    k.wait(th2)
    for rt in range(2):
        for i in range(4):
            k.e(f'v_lshlrev_b32 {v(U+8*rt+2*i)}, 16, {v(H2+4*rt+i)}\nv_and_b32 {v(U+8*rt+2*i+1)}, 0xffff0000, {v(H2+4*rt+i)}')
    for rt in range(2):
        for i in range(4):
            p = ACC + 8*rt + 2*i
            k.e(f'v_pk_add_f32 {v(p,2)}, {v(p,2)}, {v(U+8*rt+2*i,2)}')
    for rt in range(2):
        for i in range(4):
            p = ACC + 8*rt + 2*i
            k.e(f'v_cvt_pk_bf16_f32 {v(O+4*rt+i)}, {v(p)}, {v(p+1)}')
        k.vm(f'buffer_store_dwordx4 {v(O+4*rt,4)}, {v(VGO)}, {s(SX1,4)}, {s(S_PO)} offen offset:{256*rt}')
    for rt in range(2):
        p = ACC + 8*rt; sm = SM + 4*rt
        k.e(f'v_pk_add_f32 {v(sm,2)}, {v(p,2)}, {v(p+2,2)}\nv_pk_mul_f32 {v(sm+2,2)}, {v(p,2)}, {v(p,2)}')
        k.e(f'v_pk_add_f32 {v(sm,2)}, {v(sm,2)}, {v(p+4,2)}\nv_pk_fma_f32 {v(sm+2,2)}, {v(p+2,2)}, {v(p+2,2)}, {v(sm+2,2)}')
        k.e(f'v_pk_add_f32 {v(sm,2)}, {v(sm,2)}, {v(p+6,2)}\nv_pk_fma_f32 {v(sm+2,2)}, {v(p+4,2)}, {v(p+4,2)}, {v(sm+2,2)}')
        k.e(f'v_pk_fma_f32 {v(sm+2,2)}, {v(p+6,2)}, {v(p+6,2)}, {v(sm+2,2)}')
    for rt in range(2):
        sm = SM + 4*rt
        k.e(f'v_add_f32 {v(sm)}, {v(sm)}, {v(sm+1)}\nv_add_f32 {v(sm+1)}, {v(sm+2)}, {v(sm+3)}')
    reduce_q(k, [SM, SM+1, SM+4, SM+5], TM)
    k.e(f's_lshl_b32 {s(S_T0)}, {s(S_WAVE)}, 8\ns_add_u32 {s(S_T0)}, {s(S_T0)}, {D_ST}\nv_lshl_add_u32 {v(VT)}, {v(VI)}, 3, {s(S_T0)}')
    k.ds(f'ds_write_b64 {v(VT)}, {v(SM,2)}')
    k.ds(f'ds_write_b64 {v(VT)}, {v(SM+4,2)} offset:128')
    k.barrier()
    lend = k.newlabel('dend')
    k.e(f's_cmp_eq_u32 {s(S_WAVE)}, 0'); k.e(f's_cbranch_scc0 {lend}')
    k.e(f'v_and_b32 {v(VT)}, 31, {v(VL)}\nv_lshlrev_b32 {v(VU)}, 3, {v(VT)}\nv_add_u32 {v(VU)}, {D_ST}, {v(VU)}')
    ts = [k.ds(f'ds_read_b64 {v(U+2*w,2)}, {v(VU)} offset:{256*w}') for w in range(4)]
    k.e(f'v_add_u32 {v(VT)}, {s(S_R32)}, {v(VT)}\nv_lshlrev_b32 {v(VT)}, 5, {v(VT)}')
    k.e(f'v_mov_b32 {v(VU)}, {hex(OOB)}\nv_cmp_gt_u32 vcc, 32, {v(VL)}\nv_cndmask_b32 {v(VT)}, {v(VU)}, {v(VT)}, vcc')
    k.e(f's_lshl_b32 {s(S_T0)}, {s(S_G)}, 3')
    k.wait(ts[3])
    k.e(f'v_pk_add_f32 {v(U,2)}, {v(U,2)}, {v(U+2,2)}\nv_pk_add_f32 {v(U+4,2)}, {v(U+4,2)}, {v(U+6,2)}\nv_pk_add_f32 {v(U,2)}, {v(U,2)}, {v(U+4,2)}')
    k.vm(f'buffer_store_dwordx2 {v(U,2)}, {v(VT)}, {s(SST,4)}, {s(S_T0)} offen')
    k.label(lend)

def build_D(name):
    k = Kern(name)
    lend = k.newlabel('end')
    k.e(f's_cmp_ge_u32 s2, 256'); k.e(f's_cbranch_scc1 {lend}')
    load_all_ptrs(k); wave_id(k); wg_map(k)
    k.e('s_waitcnt lgkmcnt(0)')
    phase_D(k)
    k.label(lend)
    k.e('s_endpgm')
    return k
```

```python
from common import *
from phaseA import load_all_ptrs, wave_id, OOB, S_WAVE, P_WS
from phaseC import *

E_XB = 0
LDS_E = 65536

def prefetch_W3(k, srdq, vlane16, s_gw, s_tmp):
    k.e(f's_mul_i32 {s(s_tmp)}, {s(s_gw)}, {3*16384}')
    toks = {}
    order = [(i, st) for st in range(0, 16, 4) for i in range(3)]
    for (i, st0) in order:
        k.e(f's_add_u32 {s(s_tmp+1)}, {s(s_tmp)}, {i*16384 + st0*1024}')
        for st in range(st0, st0 + 4):
            toks[(i, st)] = k.vm(f'buffer_load_dwordx4 {a(4*(16*i+st),4)}, {v(vlane16)}, {s(srdq,4)}, {s(s_tmp+1)} offen offset:{1024*(st-st0)}')
    return toks

def phase_E(k):
    S_T0, S_T1, S_T2, S_GW = 44, 45, 46, 47
    SX1, SST, SW, SCS, SH = 48, 52, 56, 64, 68
    k.c('phase E : LN(x1) @ w3 -> gelu -> H')
    srd(k, SX1, P_WS, X1C, 2 * MB)
    srd(k, SST, P_WS, ST4, 2048 * 32)
    srd(k, SW, P_WS, W3F, W3F_BYTES)
    srd(k, SCS, P_WS, CS3, 2 * 1408 * 4)
    srd(k, SH, P_WS, HC, HC_BYTES)
    VL, VI, VQ, VT, VU = 2, 3, 4, 5, 6
    k.e(f'v_and_b32 {v(VL)}, 63, v0\nv_and_b32 {v(VI)}, 15, {v(VL)}\nv_lshrrev_b32 {v(VQ)}, 4, {v(VL)}')
    k.e(f's_lshl_b32 {s(S_GW)}, {s(S_J)}, 2\ns_add_u32 {s(S_GW)}, {s(S_GW)}, {s(S_WAVE)}')
    VGO, VL16 = 7, 8
    k.e(f'v_add_u32 {v(VT)}, {s(S_R64)}, {v(VI)}\nv_lshlrev_b32 {v(VGO)}, 4, {v(VT)}\nv_lshl_add_u32 {v(VGO)}, {v(VQ)}, 15, {v(VGO)}')
    k.e(f's_lshl_b32 {s(S_T1)}, {s(S_WAVE)}, 19\ns_lshl_b32 {s(S_T2)}, {s(S_WAVE)}, 14')
    for i in range(4):
        for rt in range(4):
            k.e(f's_add_u32 m0, {s(S_T2)}, {E_XB + 4096*i + 1024*rt}')
            k.e(f's_add_u32 {s(S_T0)}, {s(S_T1)}, {256*rt}')
            tdma = k.vm(f'buffer_load_dwordx4 {v(VGO)}, {s(SX1,4)}, {s(S_T0)} offen lds')
        if i < 3: k.e(f's_add_u32 {s(S_T1)}, {s(S_T1)}, 0x20000')
    STR = 16
    k.e(f'v_add_u32 {v(VT)}, {s(S_R64)}, {v(VI)}\nv_lshlrev_b32 {v(VT)}, 5, {v(VT)}')
    for rt in range(4):
        k.vm(f'buffer_load_dwordx4 {v(STR+8*rt,4)}, {v(VT)}, {s(SST,4)}, 0 offen offset:{512*rt}')
        tst = k.vm(f'buffer_load_dwordx4 {v(STR+8*rt+4,4)}, {v(VT)}, {s(SST,4)}, 0 offen offset:{512*rt+16}')
    CS = 48
    k.e(f's_mul_i32 {s(S_T0)}, {s(S_GW)}, {3*64}\nv_lshlrev_b32 {v(VT)}, 4, {v(VQ)}')
    for i in range(3):
        k.vm(f'buffer_load_dwordx4 {v(CS+4*i,4)}, {v(VT)}, {s(SCS,4)}, {s(S_T0)} offen offset:{64*i}')
    k.e(f's_add_u32 {s(S_T0)}, {s(S_T0)}, {1408*4}')
    for i in range(3):
        tcs = k.vm(f'buffer_load_dwordx4 {v(CS+12+4*i,4)}, {v(VT)}, {s(SCS,4)}, {s(S_T0)} offen offset:{64*i}')
    k.e(f'v_lshlrev_b32 {v(VL16)}, 4, {v(VL)}')
    tW = prefetch_W3(k, SW, VL16, S_GW, S_T0)
    VHO = 9
    k.e(f'v_add_u32 {v(VT)}, {s(S_R64)}, {v(VI)}\nv_lshlrev_b32 {v(VHO)}, 4, {v(VT)}')
    k.e(f'v_lshrrev_b32 {v(VT)}, 1, {v(VQ)}\nv_lshl_add_u32 {v(VHO)}, {v(VT)}, 15, {v(VHO)}')
    k.e(f'v_and_b32 {v(VT)}, 1, {v(VQ)}\nv_lshl_add_u32 {v(VHO)}, {v(VT)}, 3, {v(VHO)}')
    S_HO = 60
    k.e(f's_mul_i32 {s(S_HO)}, {s(S_GW)}, {3*65536}')
    GC0 = 10
    gelu_consts(k, GC0)
    k.wait(tst, tcs)
    RS = [72 + 4*rt for rt in range(4)]; NMB = [74 + 4*rt for rt in range(4)]
    for rt in range(4):
        b = STR + 8*rt
        k.e(f'v_pk_add_f32 {v(b,2)}, {v(b,2)}, {v(b+2,2)}\nv_pk_add_f32 {v(b+4,2)}, {v(b+4,2)}, {v(b+6,2)}\nv_pk_add_f32 {v(b,2)}, {v(b,2)}, {v(b+4,2)}')
    for rt in range(4):
        b = STR + 8*rt
        mean_rstd(k, b, b+1, b+2)
        k.e(f'v_mov_b32 {v(RS[rt])}, {v(b+1)}\nv_mov_b32 {v(NMB[rt])}, {v(b)}')
    for i in range(12): k.e(f'v_add_f32 {v(CS+i)}, {v(CS+i)}, {v(CS+12+i)}')
    k.wait(tdma); k.e('s_barrier')
    ACC = [96, 108]
    BF = 120; NB = 4
    TP = 16; O = 28
    def readB(rt, st):
        return k.ds(f'ds_read_b128 {v(BF+4*((16*rt+st) % NB),4)}, {v(VL16)} offset:{E_XB + 4096*st + 1024*rt}')
    def epilogue(rt):
        A_ = ACC[rt & 1]; o = []
        prs = [A_ + 2*i for i in range(6)]
        for p in prs: o.append(f'v_pk_mul_f32 {v(p,2)}, {v(p,2)}, {v(RS[rt],2)} op_sel_hi:[1,0]')
        for i, p in enumerate(prs): o.append(f'v_pk_fma_f32 {v(p,2)}, {v(CS+2*i,2)}, {v(NMB[rt],2)}, {v(p,2)} op_sel_hi:[1,0,1]')
        o += gelu_steps(prs, [TP + 2*i for i in range(6)], GC0)
        for i, p in enumerate(prs): o.append(f'v_cvt_pk_bf16_f32 {v(O+i+8*(rt&1))}, {v(p)}, {v(p+1)}')
        for i in range(3):
            o.append(f's_add_u32 {s(S_T1)}, {s(S_HO)}, {65536*i + 256*rt}')
            o.append(f'buffer_store_dwordx2 {v(O+2*i+8*(rt&1),2)}, {v(VHO)}, {s(SH,4)}, {s(S_T1)} offen')
        return o
    seq = [(rt, st) for rt in range(4) for st in range(16)]
    tb = {}
    for n in range(2): tb[seq[n]] = readB(*seq[n])
    pend = []
    for n, (rt, st) in enumerate(seq):
        if n + 2 < len(seq): tb[seq[n+2]] = readB(*seq[n+2])
        if st == 0 and rt > 0: pend = epilogue(rt - 1)
        toks = [tb[(rt, st)]]
        if rt == 0: toks += [tW[(i, st)] for i in range(3)]
        k.wait(*toks)
        b = BF + 4 * ((16*rt+st) % NB)
        for i in range(3):
            acc = v(ACC[rt & 1] + 4*i, 4)
            mfma16(k, acc, a(4*(16*i+st),4), v(b,4), '0' if st == 0 else acc)
            if pend and (st > 0 or i == 2):
                nper = -(-len(pend) // max(1, (3*(15-st) + (3-i)) - 3))
                for _ in range(min(len(pend), max(1, nper))): k.e(pend.pop(0))
        if st == 15:
            for ins in pend: k.e(ins)
            pend = []
    for ins in epilogue(3): k.e(ins)

def build_E(name):
    k = Kern(name)
    lend = k.newlabel('end')
    k.e(f's_cmp_ge_u32 s2, 256'); k.e(f's_cbranch_scc1 {lend}')
    load_all_ptrs(k); wave_id(k); wg_map(k)
    k.e('s_waitcnt lgkmcnt(0)')
    phase_E(k)
    k.label(lend)
    k.e('s_endpgm')
    return k
```

```python
from common import *
from phaseA import load_all_ptrs, wave_id, OOB, S_WAVE, P_WS, P_OUT
from phaseC import *

F_RED = 0
LDS_F = 4 * 12 * 1024

def prefetch_W4(k, srdq, vlane16, s_tmp):
    k.e(f's_mul_i32 {s(s_tmp)}, {s(S_J)}, 176128\ns_mul_i32 {s(s_tmp+1)}, {s(S_WAVE)}, {11*4096}\ns_add_u32 {s(s_tmp)}, {s(s_tmp)}, {s(s_tmp+1)}')
    toks = {}
    for st in range(11):
        if st: k.e(f's_add_u32 {s(s_tmp)}, {s(s_tmp)}, 4096')
        for t in range(4):
            toks[(st, t)] = k.vm(f'buffer_load_dwordx4 {a(16*st+4*t,4)}, {v(vlane16)}, {s(srdq,4)}, {s(s_tmp)} offen offset:{1024*t}')
    return toks

def phase_F(k):
    S_T0, S_T1, S_T2, S_HO = 44, 45, 46, 47
    SH, SW, SX1, SX2, SMOD, SO = 48, 52, 56, 64, 68, 72
    k.c('phase F : H @ w4, final residual')
    srd(k, SH, P_WS, HC, HC_BYTES)
    srd(k, SW, P_WS, W4F, W4F_BYTES)
    srd(k, SX1, P_WS, X1C, 2 * MB)
    srd(k, SX2, P_WS, X2C, 2 * MB)
    srd(k, SMOD, P_WS, MOD, 3072 * 4)
    srd(k, SO, P_OUT, 0, 2 * MB)
    VL, VI, VQ, VT, VU = 2, 3, 4, 5, 6
    k.e(f'v_and_b32 {v(VL)}, 63, v0\nv_and_b32 {v(VI)}, 15, {v(VL)}\nv_lshrrev_b32 {v(VQ)}, 4, {v(VL)}')
    VGO, VL16 = 7, 8
    k.e(f'v_add_u32 {v(VT)}, {s(S_R64)}, {v(VI)}\nv_lshlrev_b32 {v(VGO)}, 4, {v(VT)}\nv_lshl_add_u32 {v(VGO)}, {v(VQ)}, 15, {v(VGO)}')
    k.e(f'v_lshlrev_b32 {v(VL16)}, 4, {v(VL)}')
    BF = 32; ND = 5
    k.e(f's_mul_i32 {s(S_HO)}, {s(S_WAVE)}, {11*131072}')
    tH = {}
    def loadH(st):
        if st: k.e(f's_add_u32 {s(S_HO)}, {s(S_HO)}, 0x20000')
        for rt in range(4):
            tH[(st, rt)] = k.vm(f'buffer_load_dwordx4 {v(BF+16*(st % ND)+4*rt,4)}, {v(VGO)}, {s(SH,4)}, {s(S_HO)} offen offset:{256*rt}')
    for st in range(2): loadH(st)
    tW = prefetch_W4(k, SW, VL16, S_T0)
    for st in range(2, ND): loadH(st)
    EX1, EX2, GB = 112, 120, 128
    VE = 9
    k.e(f's_lshl_b32 {s(S_T0)}, {s(S_WAVE)}, 8\nv_add_u32 {v(VE)}, {s(S_T0)}, {v(VGO)}\ns_lshl_b32 {s(S_T1)}, {s(S_J)}, 18')
    for p in range(2):
        k.vm(f'buffer_load_dwordx4 {v(EX1+4*p,4)}, {v(VE)}, {s(SX1,4)}, {s(S_T1)} offen')
        k.vm(f'buffer_load_dwordx4 {v(EX2+4*p,4)}, {v(VE)}, {s(SX2,4)}, {s(S_T1)} offen')
        if p == 0: k.e(f's_add_u32 {s(S_T1)}, {s(S_T1)}, 0x20000')
    k.e(f's_lshl_b32 {s(S_T1)}, {s(S_J)}, 8\ns_add_u32 {s(S_T1)}, {s(S_T1)}, {5*2048}\nv_lshlrev_b32 {v(VT)}, 5, {v(VQ)}')
    for p in range(2):
        k.vm(f'buffer_load_dwordx4 {v(GB+8*p,4)}, {v(VT)}, {s(SMOD,4)}, {s(S_T1)} offen offset:{128*p}')
        tep = k.vm(f'buffer_load_dwordx4 {v(GB+8*p+4,4)}, {v(VT)}, {s(SMOD,4)}, {s(S_T1)} offen offset:{128*p+16}')
    ACC = 144
    for st in range(11):
        for rt in range(4):
            k.wait(tH[(st, rt)], tW[(st, 3)])
            for t in range(4):
                acc = v(ACC + 16*rt + 4*t, 4)
                mfma16(k, acc, a(16*st+4*t,4), v(BF+16*(st % ND)+4*rt,4), '0' if st == 0 else acc)
        if st + ND < 11: loadH(st + ND)
    labs = [k.newlabel(f'r{w}') for w in range(4)]; lj = k.newlabel('rj')
    for w in range(1, 4):
        k.e(f's_cmp_eq_u32 {s(S_WAVE)}, {w}'); k.e(f's_cbranch_scc1 {labs[w]}')
    KEEP = 32
    for w in range(4):
        k.label(labs[w])
        k.flush_hazards(8)
        for rt in range(4):
            if rt == w: continue
            idx = rt - (1 if rt > w else 0)
            base = (w*3 + idx) * 4096
            if base + 3072 < 65536:
                for t in range(4): k.ds(f'ds_write_b128 {v(VL16)}, {v(ACC+16*rt+4*t,4)} offset:{base + 1024*t}')
        for i in range(16): k.e(f'v_mov_b32 {v(KEEP+i)}, {v(ACC+16*w+i)}')
        if w < 3: k.e(f's_branch {lj}')
    k.label(lj)
    k.unknown_counters()
    k.e('s_waitcnt lgkmcnt(0)'); k.e('s_barrier')
    PR = 48
    for n in range(3):
        k.e(f's_cmp_ge_u32 {n}, {s(S_WAVE)}\ns_cselect_b32 {s(S_T0)}, 1, 0\ns_add_u32 {s(S_T1)}, {s(S_T0)}, {n}')
        k.e(f's_mul_i32 {s(S_T1)}, {s(S_T1)}, 3\ns_add_u32 {s(S_T1)}, {s(S_T1)}, {s(S_WAVE)}\ns_sub_u32 {s(S_T1)}, {s(S_T1)}, 1\ns_add_u32 {s(S_T1)}, {s(S_T1)}, {s(S_T0)}')
        k.e(f's_lshl_b32 {s(S_T1)}, {s(S_T1)}, 12\nv_add_u32 {v(VT)}, {s(S_T1)}, {v(VL16)}')
        for t in range(4): tr = k.ds(f'ds_read_b128 {v(PR+16*n+4*t,4)}, {v(VT)} offset:{1024*t}')
    k.e(f's_lshl_b32 {s(S_T0)}, {s(S_WAVE)}, 4\ns_add_u32 {s(S_T0)}, {s(S_T0)}, {s(S_R64)}\nv_add_u32 {v(VU)}, {s(S_T0)}, {v(VI)}')
    k.e(f'v_lshlrev_b32 {v(VU)}, 10, {v(VU)}\nv_lshl_add_u32 {v(VU)}, {v(VQ)}, 4, {v(VU)}\ns_lshl_b32 {s(S_T1)}, {s(S_J)}, 7')
    k.wait(tep, tr)
    for n in range(3):
        for i in range(8): k.e(f'v_pk_add_f32 {v(KEEP+2*i,2)}, {v(KEEP+2*i,2)}, {v(PR+16*n+2*i,2)}')
    U = 96; O = 48
    for p in range(2):
        for i in range(4):
            k.e(f'v_lshlrev_b32 {v(U+2*i)}, 16, {v(EX1+4*p+i)}\nv_and_b32 {v(U+2*i+1)}, 0xffff0000, {v(EX1+4*p+i)}')
            k.e(f'v_lshlrev_b32 {v(U+8+2*i)}, 16, {v(EX2+4*p+i)}\nv_and_b32 {v(U+8+2*i+1)}, 0xffff0000, {v(EX2+4*p+i)}')
        for i in range(4):
            x = KEEP + 8*p + 2*i
            k.e(f'v_pk_add_f32 {v(x,2)}, {v(x,2)}, {v(U+2*i,2)}')
        for i in range(4):
            x = KEEP + 8*p + 2*i
            k.e(f'v_pk_fma_f32 {v(x,2)}, {v(x,2)}, {v(GB+8*p+2*i,2)}, {v(U+8+2*i,2)}')
        for i in range(4):
            x = KEEP + 8*p + 2*i
            k.e(f'v_cvt_pk_bf16_f32 {v(O+4*p+i)}, {v(x)}, {v(x+1)}')
        k.vm(f'buffer_store_dwordx4 {v(O+4*p,4)}, {v(VU)}, {s(SO,4)}, {s(S_T1)} offen offset:{64*p}')

def build_F(name):
    k = Kern(name)
    lend = k.newlabel('end')
    k.e(f's_cmp_ge_u32 s2, 256'); k.e(f's_cbranch_scc1 {lend}')
    load_all_ptrs(k); wave_id(k); wg_map(k)
    k.e('s_waitcnt lgkmcnt(0)')
    phase_F(k)
    k.label(lend)
    k.e('s_endpgm')
    return k
```

```python
import sys
from common import *
import phaseA, phaseB, phaseC, phaseD, phaseE, phaseF
MAIN = 'adaLN_cond__ssm_conv_s4__mixer_s_mlp__prompt_kernel'
def assemble(kerns, path):
    out = []
    for k, g, b, lds in kerns:
        out.append(f'; @launch kernel={k.name} grid=({g},1,1) block=({b},1,1) lds={lds}')
    out.append('.amdgcn_target "amdgcn-amd-amdhsa--gfx950"')
    out.append('.text')
    seen = set()
    for k, g, b, lds in kerns:
        if k.name in seen: continue
        seen.add(k.name)
        out.append(k.header()); out.append(k.text())
    out.append('.section .rodata,"a"')
    seen = set()
    for k, g, b, lds in kerns:
        if k.name in seen: continue
        seen.add(k.name)
        out.append('.p2align 6'); out.append(k.descriptor())
    open(path, 'w').write('\n'.join(out) + '\n')
if __name__ == '__main__':
    which = sys.argv[2] if len(sys.argv) > 2 else 'A'
    ks = []
    if 'A' in which: ks.append((phaseA.build_A(MAIN), 512, 256, phaseA.LDS_A))
    if 'B' in which: ks.append((phaseB.build_B('conv_kernel'), 256, 256, phaseB.LDS_B))
    if 'C' in which: ks.append((phaseC.build_C('gemm1_kernel'), 256, 256, phaseC.LDS_C))
    if 'D' in which: ks.append((phaseD.build_D('gemm2_kernel'), 256, 256, phaseD.LDS_D))
    if 'E' in which: ks.append((phaseE.build_E('gemm3_kernel'), 256, 256, phaseE.LDS_E))
    if 'F' in which: ks.append((phaseF.build_F('gemm4_kernel'), 256, 256, phaseF.LDS_F))
    assemble(ks, sys.argv[1])
    for k, g, b, lds in ks: print(k.name[:12], 'v', k.maxv, 'a', k.maxa, 's', k.maxs, 'lds', lds, 'instrs', sum(1 for i in k.items if not isinstance(i, str)))
```

```python
from asmlib import *

L = 2048; D = 512; F = 1376; NM = 128
MB = 1 << 20; KB = 1 << 10
XT   = 0
XNT  = 2 * MB
X2T  = 4 * MB
KR   = 6 * MB;  KRS = 4160
H1C  = 9 * MB
H2C  = 11 * MB
X2C  = 13 * MB
X1C  = 15 * MB
HC   = 17 * MB; HC_BYTES = 172 * 32768
W1F  = 23 * MB
W2F  = 23 * MB + 512 * KB
W3F  = 24 * MB; W3F_BYTES = 86 * 16 * 1024
W4F  = 26 * MB; W4F_BYTES = 8 * 43 * 4 * 1024
MOD  = 28 * MB
CS1  = 28 * MB + 16 * KB
CS3  = 28 * MB + 32 * KB
ST4  = 28 * MB + 64 * KB
FLG  = 29 * MB
WS_USED = 30 * MB

ARG = dict(u=0, are=8, aim=16, bre=24, bim=32, cre=40, cim=48, ldt=56, dsk=64, bx=72, w1=80, w2=88, w3=96, w4=104, c=112, wmod=120, out=128, dbg=136, ws=144)

LOG2E = 1.4426950408889634
INV2PI = 0.15915494309189535
import struct
def f2u(x): return struct.unpack('<I', struct.pack('<f', x))[0]
def hexf(x): return hex(f2u(x))

def sload(k, sdst, name):
    k.e(f's_load_dwordx2 {s(sdst,2)}, s[0:1], {ARG[name]}')

def srd(k, sd, sp, off, nbytes):
    if off == 0:
        k.e(f's_mov_b32 {s(sd)}, {s(sp)}\ns_mov_b32 {s(sd+1)}, {s(sp+1)}')
    else:
        o = hex(off) if isinstance(off, int) else off
        k.e(f's_add_u32 {s(sd)}, {s(sp)}, {o}\ns_addc_u32 {s(sd+1)}, {s(sp+1)}, 0')
    k.e(f's_mov_b32 {s(sd+2)}, {hex(nbytes)}\ns_mov_b32 {s(sd+3)}, 0x20000')

def cmul(k, d, x, y):
    k.e(f'v_pk_mul_f32 {v(d,2)}, {v(x,2)}, {v(y,2)} op_sel_hi:[0,1]')
    k.e(f'v_pk_fma_f32 {v(d,2)}, {v(x,2)}, {v(y,2)}, {v(d,2)} op_sel:[1,1,0] op_sel_hi:[1,0,1] neg_lo:[1,0,0]')

def cmul_many(k, triples):
    for d, x, y in triples:
        k.e(f'v_pk_mul_f32 {v(d,2)}, {v(x,2)}, {v(y,2)} op_sel_hi:[0,1]')
    for d, x, y in triples:
        k.e(f'v_pk_fma_f32 {v(d,2)}, {v(x,2)}, {v(y,2)}, {v(d,2)} op_sel:[1,1,0] op_sel_hi:[1,0,1] neg_lo:[1,0,0]')

def mfma16(k, d, a_, b_, c=None):
    k.e(f'v_mfma_f32_16x16x32_bf16 {d}, {a_}, {b_}, {c if c is not None else d}')

def code_prefetch(k, lab_from, nbytes, vtmp, vdst, stmp, nthreads=256):
    pass

PROF = False
PROF_OFF = 29 * MB + 512 * KB
def stamp(k, i):
    if not PROF: return
    k.e('s_memtime s[98:99]'); k.e('s_waitcnt lgkmcnt(0)'); k.e(f'v_writelane_b32 v1, s98, {i}')
def stamp_rt(k, i):
    if not PROF: return
    k.e('s_memrealtime s[98:99]'); k.e('s_waitcnt lgkmcnt(0)'); k.e(f'v_writelane_b32 v1, s98, {i}')
def stamp_begin(k):
    if not PROF: return
    k.e('v_mov_b32 v1, 0')
    stamp_rt(k, 62)
    stamp(k, 0)
def stamp_end(k, kidx, p_ws=40):
    if not PROF: return
    k.e('s_waitcnt vmcnt(0)')
    stamp(k, 61)
    stamp_rt(k, 63)
    lab = k.newlabel('pe')
    k.e('s_cmp_eq_u32 s42, 0'); k.e(f's_cbranch_scc0 {lab}')
    srd(k, 48, p_ws, PROF_OFF + kidx * 131072, 131072)
    k.e('s_lshl_b32 s98, s2, 8')
    k.e('v_lshlrev_b32 v2, 2, v0')
    k.e('buffer_store_dword v1, v2, s[48:51], s98 offen')
    k.label(lab)
```

```python
from common import *
from phaseA import wave_id, OOB, S_WAVE
from phaseC import (wg_map, S_RB64, S_J, S_RB32, S_G, S_R32, S_R64, gelu_consts, gelu_steps, reduce_q, mean_rstd)
from collections import deque

P_WS, P_OUT = 40, 36
SW1, SW2, SW3, SW4, SFL = 4, 8, 12, 16, 20
S_NONCE, S_LID, S_BG, S_BG2 = 24, 25, 100, 101
SC = ' sc1'
VL, VI, VQ, VL16 = 2, 3, 4, 5
VT, VU = 6, 7

class BG:
    def __init__(self, k): self.k = k; self.q = deque(); self.tok = {}
    def add(self, key, instrs): self.q.append((key, instrs))
    def tick(self, n=1):
        for _ in range(n):
            if not self.q: return
            key, instrs = self.q.popleft()
            for i in instrs[:-1]: self.k.e(i)
            self.tok[key] = self.k.vm(instrs[-1])
    def drain(self): self.tick(len(self.q))
    def upto(self, key):
        while key not in self.tok: self.tick(1)
        return self.tok[key]

def q_W12(k, bg, name, srdq, areg0):
    for f in range(32):
        pre = []
        if f == 0:
            pre = [f's_lshl_b32 {s(S_BG)}, {s(S_G)}, 2', f's_add_u32 {s(S_BG)}, {s(S_BG)}, {s(S_WAVE)}', f's_lshl_b32 {s(S_BG)}, {s(S_BG)}, 15']
        elif f % 4 == 0: pre = [f's_add_u32 {s(S_BG)}, {s(S_BG)}, 4096']
        bg.add((name, f), pre + [f'buffer_load_dwordx4 {a(areg0+4*f,4)}, {v(VL16)}, {s(srdq,4)}, {s(S_BG)} offen offset:{1024*(f%4)}'])

def w3reg(i, st): return a(4*(16*i+st), 4)
def q_W3(k, bg, tiles):
    first = True
    for i in tiles:
        for st0 in range(0, 16, 4):
            for st in range(st0, st0 + 4):
                pre = []
                if st == st0:
                    pre = [f's_lshl_b32 {s(S_BG)}, {s(S_J)}, 2', f's_add_u32 {s(S_BG)}, {s(S_BG)}, {s(S_WAVE)}', f's_mul_i32 {s(S_BG)}, {s(S_BG)}, {3*16384}',
                           f's_add_u32 {s(S_BG)}, {s(S_BG)}, {i*16384 + st0*1024}']
                bg.add(('W3', i, st), pre + [f'buffer_load_dwordx4 {w3reg(i, st)}, {v(VL16)}, {s(SW3,4)}, {s(S_BG)} offen offset:{1024*(st-st0)}'])

def w4reg(st, t):
    f = 4*st + t
    return a(192 + 4*f, 4) if f < 16 else v(144 + 4*(f-16), 4)
def q_W4(k, bg):
    for st in range(11):
        for t in range(4):
            pre = []
            if t == 0:
                if st == 0:
                    pre = [f's_mul_i32 {s(S_BG)}, {s(S_J)}, 176128', f's_mul_i32 {s(S_BG2)}, {s(S_WAVE)}, {11*4096}', f's_add_u32 {s(S_BG)}, {s(S_BG)}, {s(S_BG2)}']
                else: pre = [f's_add_u32 {s(S_BG)}, {s(S_BG)}, 4096']
            bg.add(('W4', st, t), pre + [f'buffer_load_dwordx4 {w4reg(st, t)}, {v(VL16)}, {s(SW4,4)}, {s(S_BG)} offen offset:{1024*t}'])

def publish(k, phase):
    k.e('s_waitcnt vmcnt(0)'); k.barrier()
    lab = k.newlabel('pub')
    k.e(f's_cmp_eq_u32 {s(S_WAVE)}, 0'); k.e(f's_cbranch_scc0 {lab}')
    k.e(f's_lshl_b32 s44, {s(S_LID)}, 6\ns_add_u32 s44, s44, {phase*16384}')
    k.e(f'v_mov_b32 {v(VT)}, {s(S_NONCE)}\nv_mov_b32 {v(VU)}, {hex(OOB)}\nv_cmp_eq_u32 vcc, 0, {v(VL)}\nv_cndmask_b32 {v(VU)}, {v(VU)}, {v(VL)}, vcc')
    k.e(f'buffer_store_dword {v(VT)}, {v(VU)}, {s(SFL,4)}, s44 offen{SC}')
    k.label(lab)
    k.vm_issued += 0

def await_flags(k, phase, s_first, count):
    lab, lp, lo = k.newlabel('aw'), k.newlabel('poll'), k.newlabel('pout')
    k.e(f's_cmp_eq_u32 {s(S_WAVE)}, 0'); k.e(f's_cbranch_scc0 {lab}')
    k.e(f'v_add_u32 {v(VT)}, {s(s_first)}, {v(VL)}')
    k.e(f'v_cmp_gt_u32 vcc, 256, {v(VT)}\nv_cmp_gt_u32 s[46:47], {count}, {v(VL)}\ns_and_b64 vcc, vcc, s[46:47]')
    k.e(f'v_lshlrev_b32 {v(VT)}, 6, {v(VT)}\nv_add_u32 {v(VT)}, {phase*16384}, {v(VT)}')
    k.e('s_mov_b64 exec, vcc')
    k.e('s_mov_b32 s44, 0')
    k.label(lp)
    k.e(f'buffer_load_dword {v(VU)}, {v(VT)}, {s(SFL,4)}, 0 offen{SC}')
    k.e('s_waitcnt vmcnt(0)')
    k.e(f'v_cmp_ne_u32 vcc, {s(S_NONCE)}, {v(VU)}')
    k.e(f's_add_u32 s44, s44, 1\ns_cmp_ge_u32 s44, 0x40000'); k.e(f's_cbranch_scc1 {lo}')
    k.e(f's_cbranch_vccnz {lp}')
    k.label(lo)
    k.e('s_mov_b64 exec, -1')
    k.label(lab)
    k.vm_done = -10**9
    k.barrier()

C_XT, C_HB, C_PAR, C_ST = 0, 32768, 65536, 69632
LDS_P = 70656

def phase_C(k, bg):
    S_T0, S_T1, S_T2, S_RT, S_KH = 44, 45, 46, 47, 60
    SX, SMOD, SCS, SH1, SX2 = 48, 52, 64, 68, 76
    k.c('phase C : x2 -> LN -> modulate -> LN -> GEMM1 -> gelu')
    srd(k, SX, P_WS, X2T, 2 * MB)
    srd(k, SMOD, P_WS, MOD, 3072 * 4)
    srd(k, SCS, P_WS, CS1, 4096)
    srd(k, SH1, P_WS, H1C, 2 * MB)
    srd(k, SX2, P_WS, X2C, 2 * MB)
    k.e(f's_and_b32 {s(S_RT)}, {s(S_WAVE)}, 1\ns_lshr_b32 {s(S_KH)}, {s(S_WAVE)}, 1')
    k.e(f'v_lshrrev_b32 {v(VT)}, 2, {v(VL)}')
    k.e(f'v_lshrrev_b32 {v(VU)}, 4, {v(VL)}\nv_and_b32 {v(VU)}, 2, {v(VU)}')
    k.e(f'v_and_b32 {v(8)}, 3, {v(VL)}\nv_xor_b32 {v(VU)}, {v(VU)}, {v(8)}')
    k.e(f'v_lshlrev_b32 {v(VT)}, 12, {v(VT)}\nv_lshl_add_u32 {v(VT)}, {v(VU)}, 4, {v(VT)}')
    k.e(f's_lshl_b32 {s(S_T1)}, {s(S_WAVE)}, 19\ns_lshl_b32 {s(S_T0)}, {s(S_R32)}, 1\ns_add_u32 {s(S_T1)}, {s(S_T1)}, {s(S_T0)}')
    k.e(f's_lshl_b32 {s(S_T2)}, {s(S_WAVE)}, 13')
    for i in range(8):
        k.e(f's_add_u32 m0, {s(S_T2)}, {C_XT + 1024*i}')
        if i: k.e(f's_add_u32 {s(S_T1)}, {s(S_T1)}, 0x10000')
        k.vm(f'buffer_load_dwordx4 {v(VT)}, {s(SX,4)}, {s(S_T1)} offen{SC} lds')
    k.e(f's_lshl_b32 {s(S_T0)}, {s(S_WAVE)}, 10\ns_add_u32 m0, {s(S_T0)}, {C_PAR}\ns_add_u32 {s(S_T0)}, {s(S_T0)}, {3*2048}')
    tdma = k.vm(f'buffer_load_dwordx4 {v(VL16)}, {s(SMOD,4)}, {s(S_T0)} offen{SC} lds')
    CS = 8
    k.e(f's_lshl_b32 {s(S_T0)}, {s(S_G)}, 2\ns_add_u32 {s(S_T0)}, {s(S_T0)}, {s(S_WAVE)}\ns_lshl_b32 {s(S_T0)}, {s(S_T0)}, 7')
    k.e(f'v_lshlrev_b32 {v(VT)}, 5, {v(VQ)}')
    k.vm(f'buffer_load_dwordx4 {v(CS,4)}, {v(VT)}, {s(SCS,4)}, {s(S_T0)} offen{SC}')
    k.vm(f'buffer_load_dwordx4 {v(CS+4,4)}, {v(VT)}, {s(SCS,4)}, {s(S_T0)} offen offset:16{SC}')
    k.vm(f'buffer_load_dwordx4 {v(CS+8,4)}, {v(VT)}, {s(SCS,4)}, {s(S_T0)} offen offset:2048{SC}')
    tcs = k.vm(f'buffer_load_dwordx4 {v(CS+12,4)}, {v(VT)}, {s(SCS,4)}, {s(S_T0)} offen offset:2064{SC}')
    q_W12(k, bg, 'W1', SW1, 0)
    bg.tick(CFG['c_w1_first'])
    VTR, VPA, VHW, VST, VHR, VGO = 24, 25, 26, 27, 28, 29
    k.e(f'v_bfe_u32 {v(VT)}, {v(VL)}, 2, 2\nv_lshl_add_u32 {v(VT)}, {v(VQ)}, 3, {v(VT)}\nv_lshlrev_b32 {v(VTR)}, 6, {v(VT)}')
    k.e(f'v_bfe_u32 {v(VT)}, {v(VL)}, 1, 1\ns_lshl_b32 {s(S_T0)}, {s(S_RT)}, 1\nv_add_u32 {v(VT)}, {s(S_T0)}, {v(VT)}')
    k.e(f'v_and_b32 {v(VU)}, 1, {v(VQ)}\nv_lshlrev_b32 {v(VU)}, 1, {v(VU)}\nv_xor_b32 {v(VT)}, {v(VT)}, {v(VU)}')
    k.e(f'v_lshl_add_u32 {v(VTR)}, {v(VT)}, 4, {v(VTR)}\nv_and_b32 {v(VT)}, 1, {v(VL)}\nv_lshl_add_u32 {v(VTR)}, {v(VT)}, 3, {v(VTR)}')
    k.e(f's_lshl_b32 {s(S_T0)}, {s(S_KH)}, 14\nv_add_u32 {v(VTR)}, {s(S_T0)}, {v(VTR)}')
    k.e(f's_lshl_b32 {s(S_T0)}, {s(S_KH)}, 10\ns_add_u32 {s(S_T0)}, {s(S_T0)}, {C_PAR}\nv_lshl_add_u32 {v(VPA)}, {v(VQ)}, 5, {s(S_T0)}')
    k.e(f's_lshl_b32 {s(S_T0)}, {s(S_KH)}, 14\ns_lshl_b32 {s(S_T1)}, {s(S_RT)}, 8\ns_add_u32 {s(S_T0)}, {s(S_T0)}, {s(S_T1)}\ns_add_u32 {s(S_T0)}, {s(S_T0)}, {C_HB}')
    k.e(f'v_lshlrev_b32 {v(VHW)}, 9, {v(VQ)}\nv_lshl_add_u32 {v(VHW)}, {v(VI)}, 4, {v(VHW)}\nv_add_u32 {v(VHW)}, {s(S_T0)}, {v(VHW)}')
    k.e(f'v_lshlrev_b32 {v(VHR)}, 9, {v(VQ)}\nv_lshl_add_u32 {v(VHR)}, {v(VI)}, 4, {v(VHR)}\nv_add_u32 {v(VHR)}, {C_HB}, {v(VHR)}')
    k.e(f's_lshl_b32 {s(S_T0)}, {s(S_WAVE)}, 7\ns_add_u32 {s(S_T0)}, {s(S_T0)}, {C_ST}\nv_lshl_add_u32 {v(VST)}, {v(VI)}, 3, {s(S_T0)}')
    k.e(f'v_add_u32 {v(VT)}, {s(S_R32)}, {v(VI)}\nv_lshlrev_b32 {v(VGO)}, 4, {v(VT)}\nv_lshl_add_u32 {v(VGO)}, {v(VQ)}, 15, {v(VGO)}')
    X = 32; H = 64
    ONE = 30; S1, S2, S3, S4 = 96, 97, 98, 99; TM = 100
    k.e(f'v_mov_b32 {v(ONE)}, 0x3f803f80')
    for r in (S1, S2, S3, S4): k.e(f'v_mov_b32 {v(r)}, 0')
    stamp(k, 1)
    k.wait(tdma); k.e('s_barrier')
    stamp(k, 2)
    toks = []
    for st in range(8):
        k.ds(f'ds_read_b64_tr_b16 {v(X+4*st,2)}, {v(VTR)} offset:{2048*st}')
        toks.append(k.ds(f'ds_read_b64_tr_b16 {v(X+4*st+2,2)}, {v(VTR)} offset:{2048*st+256}'))
    for st in range(8):
        k.wait(toks[st])
        for i in range(4):
            k.e(f'v_dot2_f32_bf16 {v(S1 + (i&1))}, {v(X+4*st+i)}, {v(ONE)}, {v(S1 + (i&1))}')
            k.e(f'v_dot2_f32_bf16 {v(S3 + (i&1))}, {v(X+4*st+i)}, {v(X+4*st+i)}, {v(S3 + (i&1))}')
        if st & 1: bg.tick(1)
    k.e(f'v_add_f32 {v(S1)}, {v(S1)}, {v(S2)}\nv_add_f32 {v(S2)}, {v(S3)}, {v(S4)}')
    reduce_q(k, [S1, S2], TM)
    k.ds(f'ds_write_b64 {v(VST)}, {v(S1,2)}')
    k.barrier()
    k.e(f'v_xor_b32 {v(VT)}, 256, {v(VST)}')
    t = k.ds(f'ds_read_b64 {v(S3,2)}, {v(VT)}')
    PA = 104
    def read_par(st):
        b = PA + 16 * (st & 1)
        k.ds(f'ds_read_b128 {v(b,4)}, {v(VPA)} offset:{128*st}')
        k.ds(f'ds_read_b128 {v(b+4,4)}, {v(VPA)} offset:{128*st+16}')
        k.ds(f'ds_read_b128 {v(b+8,4)}, {v(VPA)} offset:{128*st+2048}')
        return k.ds(f'ds_read_b128 {v(b+12,4)}, {v(VPA)} offset:{128*st+2064}')
    tp = {0: read_par(0)}
    k.wait(t)
    k.e(f'v_add_f32 {v(S1)}, {v(S1)}, {v(S3)}\nv_add_f32 {v(S2)}, {v(S2)}, {v(S4)}')
    mean_rstd(k, S1, S2, TM)
    RS, NMR = 136, 138
    k.e(f'v_mov_b32 {v(RS)}, {v(S2)}\nv_mov_b32 {v(NMR)}, {v(S1)}')
    for r in (S1, S2, S3, S4): k.e(f'v_mov_b32 {v(r)}, 0')
    U = 140
    for st in range(8):
        if st + 1 < 8: tp[st+1] = read_par(st + 1)
        b = PA + 16 * (st & 1)
        for i in range(4):
            k.e(f'v_lshlrev_b32 {v(U+2*i)}, 16, {v(X+4*st+i)}\nv_and_b32 {v(U+2*i+1)}, 0xffff0000, {v(X+4*st+i)}')
        bg.tick(1)
        for i in range(4):
            k.e(f'v_pk_fma_f32 {v(U+2*i,2)}, {v(U+2*i,2)}, {v(RS,2)}, {v(NMR,2)} op_sel_hi:[1,0,0]')
        k.wait(tp[st])
        for i in range(4):
            k.e(f'v_pk_fma_f32 {v(U+2*i,2)}, {v(U+2*i,2)}, {v(b+8+2*i,2)}, {v(b+2*i,2)}')
        for i in range(4):
            k.e(f'v_cvt_pk_bf16_f32 {v(H+4*st+i)}, {v(U+2*i)}, {v(U+2*i+1)}')
        k.ds(f'ds_write_b128 {v(VHW)}, {v(H+4*st,4)} offset:{2048*st}')
        bg.tick(1)
        for i in range(4):
            k.e(f'v_dot2_f32_bf16 {v(S1 + (i&1))}, {v(H+4*st+i)}, {v(ONE)}, {v(S1 + (i&1))}')
            k.e(f'v_dot2_f32_bf16 {v(S3 + (i&1))}, {v(H+4*st+i)}, {v(H+4*st+i)}, {v(S3 + (i&1))}')
    k.e(f'v_add_f32 {v(S1)}, {v(S1)}, {v(S2)}\nv_add_f32 {v(S2)}, {v(S3)}, {v(S4)}')
    reduce_q(k, [S1, S2], TM)
    k.ds(f'ds_write_b64 {v(VST)}, {v(S1,2)} offset:512')
    stamp(k, 3)
    bg.upto(('W1', 31))
    lodd, ldone = k.newlabel('odd'), k.newlabel('sdone')
    k.wait(tcs, bg.tok[('W1', 31)])
    k.e(f's_lshr_b32 {s(S_T0)}, {s(S_G)}, 1\ns_cmp_eq_u32 {s(S_T0)}, {s(S_KH)}'); k.e(f's_cbranch_scc0 {ldone}')
    k.e(f's_lshl_b32 {s(S_T0)}, {s(S_G)}, 19\ns_lshl_b32 {s(S_T1)}, {s(S_RT)}, 8\ns_add_u32 {s(S_T0)}, {s(S_T0)}, {s(S_T1)}')
    k.e(f's_bitcmp1_b32 {s(S_G)}, 0'); k.e(f's_cbranch_scc1 {lodd}')
    for base, lab in ((0, None), (4, lodd)):
        if lab: k.label(lab)
        for i in range(4):
            k.vm(f'buffer_store_dwordx4 {v(X+4*(base+i),4)}, {v(VGO)}, {s(SX2,4)}, {s(S_T0)} offen{SC}')
            if i < 3: k.e(f's_add_u32 {s(S_T0)}, {s(S_T0)}, 0x20000')
        if not lab: k.e(f's_branch {ldone}')
    k.label(ldone)
    k.barrier()
    stamp(k, 4)
    k.e(f'v_lshlrev_b32 {v(VT)}, 3, {v(VI)}\nv_add_u32 {v(VT)}, {C_ST + 512}, {v(VT)}')
    ST = 96
    ts = [k.ds(f'ds_read_b64 {v(ST+2*w,2)}, {v(VT)} offset:{128*w}') for w in range(4)]
    ACC = 140; BF = 104; NB = 4
    def readB(st):
        b = BF + 8 * (st % NB)
        k.ds(f'ds_read_b128 {v(b,4)}, {v(VHR)} offset:{2048*st}')
        return k.ds(f'ds_read_b128 {v(b+4,4)}, {v(VHR)} offset:{2048*st+256}')
    tb = {0: readB(0), 1: readB(1)}
    q_W12(k, bg, 'W2', SW2, 128)
    k.wait(ts[3])
    k.e(f'v_pk_add_f32 {v(ST,2)}, {v(ST,2)}, {v(ST+4,2)}\nv_pk_add_f32 {v(ST+2,2)}, {v(ST+2,2)}, {v(ST+6,2)}')
    for st in range(16):
        if st + 2 < 16: tb[st+2] = readB(st + 2)
        k.wait(tb[st])
        b = BF + 8 * (st % NB)
        for rt in range(2):
            for tau in range(2):
                acc = v(ACC+8*rt+4*tau,4)
                mfma16(k, acc, a(8*st+4*tau,4), v(b+4*rt,4), '0' if st == 0 else acc)
        bg.tick(1)
        if st == 0:
            mean_rstd(k, ST, ST+1, TM); mean_rstd(k, ST+2, ST+3, TM)
            for i in range(8): k.e(f'v_add_f32 {v(CS+i)}, {v(CS+i)}, {v(CS+8+i)}')
    stamp(k, 5)
    GC0 = 30
    gelu_consts(k, GC0)
    RSB = [100, 102]; NMB = [104, 106]
    for rt in range(2):
        k.e(f'v_mov_b32 {v(RSB[rt])}, {v(ST+2*rt+1)}\nv_mov_b32 {v(NMB[rt])}, {v(ST+2*rt)}')
    k.e(f's_lshl_b32 {s(S_T0)}, {s(S_G)}, 2\ns_add_u32 {s(S_T0)}, {s(S_T0)}, {s(S_WAVE)}\ns_lshl_b32 {s(S_T0)}, {s(S_T0)}, 17')
    TP = 112; O = 32
    for rt in range(2):
        prs = [ACC + 8*rt + 2*i for i in range(4)]
        for i, p in enumerate(prs): k.e(f'v_pk_mul_f32 {v(p,2)}, {v(p,2)}, {v(RSB[rt],2)} op_sel_hi:[1,0]')
        for i, p in enumerate(prs): k.e(f'v_pk_fma_f32 {v(p,2)}, {v(CS+2*i,2)}, {v(NMB[rt],2)}, {v(p,2)} op_sel_hi:[1,0,1]')
        for n, ins in enumerate(gelu_steps(prs, [TP + 2*i for i in range(4)], GC0)):
            k.e(ins)
            if rt == 0 and n % 12 == 11: bg.tick(1)
        for i, p in enumerate(prs): k.e(f'v_cvt_pk_bf16_f32 {v(O+4*rt+i)}, {v(p)}, {v(p+1)}')
        k.vm(f'buffer_store_dwordx4 {v(O+4*rt,4)}, {v(VGO)}, {s(SH1,4)}, {s(S_T0)} offen offset:{256*rt}{SC}')
    publish(k, 0)
    stamp(k, 6)

D_HB = 0; D_ST = C_ST
def phase_D(k, bg):
    S_T0, S_T1, S_T2, S_SG, S_PO = 44, 45, 46, 47, 60
    SH1, SX1, SST = 48, 64, 68
    k.c('phase D : shifted h1 @ w2 + h2 -> x1, row statistics')
    bg.tick(CFG['d_pre'])
    srd(k, SH1, P_WS, H1C, 2 * MB)
    srd(k, SX1, P_WS, X1C, 2 * MB)
    srd(k, SST, P_WS, ST4, 2048 * 32)
    k.e(f's_lshr_b32 {s(S_T0)}, {s(S_WAVE)}, 1\ns_add_u32 {s(S_T0)}, {s(S_T0)}, 1')
    k.e(f's_sub_u32 {s(S_T1)}, 0, {s(S_T0)}\ns_bitcmp1_b32 {s(S_WAVE)}, 0\ns_cselect_b32 {s(S_SG)}, {s(S_T0)}, {s(S_T1)}')
    k.e(f's_add_u32 {s(S_T0)}, {s(S_R32)}, {s(S_SG)}')
    VO0, VO1 = 8, 9
    for rt, vo in ((0, VO0), (1, VO1)):
        k.e(f'v_add_u32 {v(VT)}, {s(S_T0)}, {v(VI)}')
        if rt: k.e(f'v_add_u32 {v(VT)}, 16, {v(VT)}')
        k.e(f'v_lshlrev_b32 {v(vo)}, 4, {v(VT)}\nv_lshl_add_u32 {v(vo)}, {v(VQ)}, 15, {v(vo)}')
        k.e(f'v_mov_b32 {v(VU)}, {hex(OOB)}\nv_cmp_gt_u32 vcc, 2048, {v(VT)}\nv_cndmask_b32 {v(vo)}, {v(VU)}, {v(vo)}, vcc')
    VGO, VH2 = 10, 11
    k.e(f'v_add_u32 {v(VT)}, {s(S_R32)}, {v(VI)}\nv_lshlrev_b32 {v(VGO)}, 4, {v(VT)}\nv_lshl_add_u32 {v(VGO)}, {v(VQ)}, 15, {v(VGO)}')
    k.e(f's_lshl_b32 {s(S_PO)}, {s(S_G)}, 2\ns_add_u32 {s(S_PO)}, {s(S_PO)}, {s(S_WAVE)}')
    k.e(f's_lshl_b32 {s(S_T0)}, {s(S_PO)}, 11\ns_add_u32 {s(S_T0)}, {s(S_T0)}, {C_HB}')
    k.e(f'v_lshlrev_b32 {v(VH2)}, 9, {v(VQ)}\nv_lshl_add_u32 {v(VH2)}, {v(VI)}, 4, {v(VH2)}\nv_add_u32 {v(VH2)}, {s(S_T0)}, {v(VH2)}')
    k.e(f's_lshl_b32 {s(S_PO)}, {s(S_PO)}, 17')
    H2 = 12
    k.ds(f'ds_read_b128 {v(H2,4)}, {v(VH2)}')
    th2 = k.ds(f'ds_read_b128 {v(H2+4,4)}, {v(VH2)} offset:256')
    bg.drain()
    k.e(f's_lshl_b32 s43, {s(S_RB32)}, 2\ns_sub_u32 s43, s43, 4')
    await_flags(k, 0, 43, 12)
    stamp(k, 11)
    k.e(f's_lshl_b32 {s(S_T1)}, {s(S_WAVE)}, 19')
    k.e(f's_lshl_b32 {s(S_T2)}, {s(S_WAVE)}, 13')
    for i in range(4):
        for rt, vo in ((0, VO0), (1, VO1)):
            k.e(f's_add_u32 m0, {s(S_T2)}, {D_HB + 2048*i + 1024*rt}')
            tdma = k.vm(f'buffer_load_dwordx4 {v(vo)}, {s(SH1,4)}, {s(S_T1)} offen{SC} lds')
        if i < 3: k.e(f's_add_u32 {s(S_T1)}, {s(S_T1)}, 0x20000')
    q_W3(k, bg, (0, 1))
    bg.tick(CFG['d_w3_first'])
    ACC = 20; BF = 36; NB = 4
    k.wait(tdma); k.e('s_barrier')
    stamp(k, 12)
    def readB(st):
        b = BF + 8 * (st % NB)
        k.ds(f'ds_read_b128 {v(b,4)}, {v(VL16)} offset:{D_HB + 2048*st}')
        return k.ds(f'ds_read_b128 {v(b+4,4)}, {v(VL16)} offset:{D_HB + 2048*st + 1024}')
    tb = {0: readB(0), 1: readB(1)}
    for st in range(16):
        if st + 2 < 16: tb[st+2] = readB(st + 2)
        k.wait(tb[st])
        b = BF + 8 * (st % NB)
        for rt in range(2):
            for tau in range(2):
                acc = v(ACC+8*rt+4*tau,4)
                mfma16(k, acc, a(128+8*st+4*tau,4), v(b+4*rt,4), '0' if st == 0 else acc)
        bg.tick(1)
    stamp(k, 13)
    q_W3(k, bg, (2,))
    U = 36; SM = 52; O = 60; TM = 68
    k.wait(th2)
    for rt in range(2):
        for i in range(4):
            k.e(f'v_lshlrev_b32 {v(U+8*rt+2*i)}, 16, {v(H2+4*rt+i)}\nv_and_b32 {v(U+8*rt+2*i+1)}, 0xffff0000, {v(H2+4*rt+i)}')
    for rt in range(2):
        for i in range(4):
            p = ACC + 8*rt + 2*i
            k.e(f'v_pk_add_f32 {v(p,2)}, {v(p,2)}, {v(U+8*rt+2*i,2)}')
    for rt in range(2):
        for i in range(4):
            p = ACC + 8*rt + 2*i
            k.e(f'v_cvt_pk_bf16_f32 {v(O+4*rt+i)}, {v(p)}, {v(p+1)}')
        k.vm(f'buffer_store_dwordx4 {v(O+4*rt,4)}, {v(VGO)}, {s(SX1,4)}, {s(S_PO)} offen offset:{256*rt}{SC}')
    for rt in range(2):
        p = ACC + 8*rt; sm = SM + 4*rt
        k.e(f'v_pk_add_f32 {v(sm,2)}, {v(p,2)}, {v(p+2,2)}\nv_pk_mul_f32 {v(sm+2,2)}, {v(p,2)}, {v(p,2)}')
        k.e(f'v_pk_add_f32 {v(sm,2)}, {v(sm,2)}, {v(p+4,2)}\nv_pk_fma_f32 {v(sm+2,2)}, {v(p+2,2)}, {v(p+2,2)}, {v(sm+2,2)}')
        k.e(f'v_pk_add_f32 {v(sm,2)}, {v(sm,2)}, {v(p+6,2)}\nv_pk_fma_f32 {v(sm+2,2)}, {v(p+4,2)}, {v(p+4,2)}, {v(sm+2,2)}')
        k.e(f'v_pk_fma_f32 {v(sm+2,2)}, {v(p+6,2)}, {v(p+6,2)}, {v(sm+2,2)}')
    for rt in range(2):
        sm = SM + 4*rt
        k.e(f'v_add_f32 {v(sm)}, {v(sm)}, {v(sm+1)}\nv_add_f32 {v(sm+1)}, {v(sm+2)}, {v(sm+3)}')
    reduce_q(k, [SM, SM+1, SM+4, SM+5], TM)
    k.e(f's_lshl_b32 {s(S_T0)}, {s(S_WAVE)}, 8\ns_add_u32 {s(S_T0)}, {s(S_T0)}, {D_ST}\nv_lshl_add_u32 {v(VT)}, {v(VI)}, 3, {s(S_T0)}')
    k.ds(f'ds_write_b64 {v(VT)}, {v(SM,2)}')
    k.ds(f'ds_write_b64 {v(VT)}, {v(SM+4,2)} offset:128')
    k.barrier()
    lend = k.newlabel('dend')
    k.e(f's_cmp_eq_u32 {s(S_WAVE)}, 0'); k.e(f's_cbranch_scc0 {lend}')
    k.e(f'v_and_b32 {v(VT)}, 31, {v(VL)}\nv_lshlrev_b32 {v(VU)}, 3, {v(VT)}\nv_add_u32 {v(VU)}, {D_ST}, {v(VU)}')
    ts = [k.ds(f'ds_read_b64 {v(U+2*w,2)}, {v(VU)} offset:{256*w}') for w in range(4)]
    k.e(f'v_add_u32 {v(VT)}, {s(S_R32)}, {v(VT)}\nv_lshlrev_b32 {v(VT)}, 5, {v(VT)}')
    k.e(f'v_mov_b32 {v(VU)}, {hex(OOB)}\nv_cmp_gt_u32 vcc, 32, {v(VL)}\nv_cndmask_b32 {v(VT)}, {v(VU)}, {v(VT)}, vcc')
    k.e(f's_lshl_b32 {s(S_T0)}, {s(S_G)}, 3')
    k.wait(ts[3])
    k.e(f'v_pk_add_f32 {v(U,2)}, {v(U,2)}, {v(U+2,2)}\nv_pk_add_f32 {v(U+4,2)}, {v(U+4,2)}, {v(U+6,2)}\nv_pk_add_f32 {v(U,2)}, {v(U,2)}, {v(U+4,2)}')
    k.vm(f'buffer_store_dwordx2 {v(U,2)}, {v(VT)}, {s(SST,4)}, {s(S_T0)} offen{SC}')
    k.label(lend)
    publish(k, 1)
    stamp(k, 14)

E_XB = 0
def phase_E(k, bg):
    S_T0, S_T1, S_T2, S_GW = 44, 45, 46, 47
    SX1, SST, SCS, SH = 48, 52, 64, 68
    k.c('phase E : LN(x1) @ w3 -> gelu -> H')
    srd(k, SX1, P_WS, X1C, 2 * MB)
    srd(k, SST, P_WS, ST4, 2048 * 32)
    srd(k, SCS, P_WS, CS3, 2 * 1408 * 4)
    srd(k, SH, P_WS, HC, HC_BYTES)
    k.e(f's_lshl_b32 {s(S_GW)}, {s(S_J)}, 2\ns_add_u32 {s(S_GW)}, {s(S_GW)}, {s(S_WAVE)}')
    CS = 48
    k.e(f's_mul_i32 {s(S_T0)}, {s(S_GW)}, {3*64}\nv_lshlrev_b32 {v(VT)}, 4, {v(VQ)}')
    for i in range(3):
        k.vm(f'buffer_load_dwordx4 {v(CS+4*i,4)}, {v(VT)}, {s(SCS,4)}, {s(S_T0)} offen offset:{64*i}{SC}')
    k.e(f's_add_u32 {s(S_T0)}, {s(S_T0)}, {1408*4}')
    for i in range(3):
        tcs = k.vm(f'buffer_load_dwordx4 {v(CS+12+4*i,4)}, {v(VT)}, {s(SCS,4)}, {s(S_T0)} offen offset:{64*i}{SC}')
    bg.drain()
    VGO, VHO = 8, 9
    k.e(f'v_add_u32 {v(VT)}, {s(S_R64)}, {v(VI)}\nv_lshlrev_b32 {v(VGO)}, 4, {v(VT)}\nv_lshl_add_u32 {v(VGO)}, {v(VQ)}, 15, {v(VGO)}')
    k.e(f'v_add_u32 {v(VT)}, {s(S_R64)}, {v(VI)}\nv_lshlrev_b32 {v(VHO)}, 4, {v(VT)}')
    k.e(f'v_lshrrev_b32 {v(VT)}, 1, {v(VQ)}\nv_lshl_add_u32 {v(VHO)}, {v(VT)}, 15, {v(VHO)}')
    k.e(f'v_and_b32 {v(VT)}, 1, {v(VQ)}\nv_lshl_add_u32 {v(VHO)}, {v(VT)}, 3, {v(VHO)}')
    S_HO = 60
    k.e(f's_mul_i32 {s(S_HO)}, {s(S_GW)}, {3*65536}')
    GC0 = 10
    gelu_consts(k, GC0)
    k.e(f's_lshl_b32 s43, {s(S_RB64)}, 3')
    await_flags(k, 1, 43, 8)
    stamp(k, 21)
    k.e(f's_lshl_b32 s43, {s(S_J)}, 2\ns_add_u32 {s(S_GW)}, s43, {s(S_WAVE)}')
    k.e(f's_lshl_b32 {s(S_T1)}, {s(S_WAVE)}, 19\ns_lshl_b32 {s(S_T2)}, {s(S_WAVE)}, 14')
    STR = 16
    k.e(f'v_add_u32 {v(VT)}, {s(S_R64)}, {v(VI)}\nv_lshlrev_b32 {v(VT)}, 5, {v(VT)}')
    for rt in range(4):
        k.vm(f'buffer_load_dwordx4 {v(STR+8*rt,4)}, {v(VT)}, {s(SST,4)}, 0 offen offset:{512*rt}{SC}')
        tst = k.vm(f'buffer_load_dwordx4 {v(STR+8*rt+4,4)}, {v(VT)}, {s(SST,4)}, 0 offen offset:{512*rt+16}{SC}')
    for i in range(4):
        for rt in range(4):
            k.e(f's_add_u32 m0, {s(S_T2)}, {E_XB + 4096*i + 1024*rt}')
            k.e(f's_add_u32 {s(S_T0)}, {s(S_T1)}, {256*rt}')
            tdma = k.vm(f'buffer_load_dwordx4 {v(VGO)}, {s(SX1,4)}, {s(S_T0)} offen{SC} lds')
        if i < 3: k.e(f's_add_u32 {s(S_T1)}, {s(S_T1)}, 0x20000')
    k.wait(tst, tcs)
    RS = [72 + 4*rt for rt in range(4)]; NMB = [74 + 4*rt for rt in range(4)]
    for rt in range(4):
        b = STR + 8*rt
        k.e(f'v_pk_add_f32 {v(b,2)}, {v(b,2)}, {v(b+2,2)}\nv_pk_add_f32 {v(b+4,2)}, {v(b+4,2)}, {v(b+6,2)}\nv_pk_add_f32 {v(b,2)}, {v(b,2)}, {v(b+4,2)}')
    for rt in range(4):
        b = STR + 8*rt
        mean_rstd(k, b, b+1, b+2)
        k.e(f'v_mov_b32 {v(RS[rt])}, {v(b+1)}\nv_mov_b32 {v(NMB[rt])}, {v(b)}')
    for i in range(12): k.e(f'v_add_f32 {v(CS+i)}, {v(CS+i)}, {v(CS+12+i)}')
    k.wait(tdma); k.e('s_barrier')
    stamp(k, 22)
    q_W4(k, bg)
    ACC = [96, 108]; BF = 120; NB = 4; TP = 16; O = 28
    def readB(rt, st):
        return k.ds(f'ds_read_b128 {v(BF+4*((16*rt+st) % NB),4)}, {v(VL16)} offset:{E_XB + 4096*st + 1024*rt}')
    def epilogue(rt):
        A_ = ACC[rt & 1]; o = []
        prs = [A_ + 2*i for i in range(6)]
        for p in prs: o.append(f'v_pk_mul_f32 {v(p,2)}, {v(p,2)}, {v(RS[rt],2)} op_sel_hi:[1,0]')
        for i, p in enumerate(prs): o.append(f'v_pk_fma_f32 {v(p,2)}, {v(CS+2*i,2)}, {v(NMB[rt],2)}, {v(p,2)} op_sel_hi:[1,0,1]')
        o += gelu_steps(prs, [TP + 2*i for i in range(6)], GC0)
        for i, p in enumerate(prs): o.append(f'v_cvt_pk_bf16_f32 {v(O+i+8*(rt&1))}, {v(p)}, {v(p+1)}')
        for i in range(3):
            o.append(f's_add_u32 {s(S_T1)}, {s(S_HO)}, {65536*i + 256*rt}')
            o.append(f'buffer_store_dwordx2 {v(O+2*i+8*(rt&1),2)}, {v(VHO)}, {s(SH,4)}, {s(S_T1)} offen{SC}')
        return o
    seq = [(rt, st) for rt in range(4) for st in range(16)]
    tb = {}
    for n in range(2): tb[seq[n]] = readB(*seq[n])
    pend = []
    for n, (rt, st) in enumerate(seq):
        if n + 2 < len(seq): tb[seq[n+2]] = readB(*seq[n+2])
        if st == 0 and rt > 0: pend = epilogue(rt - 1)
        k.wait(tb[(rt, st)])
        b = BF + 4 * ((16*rt+st) % NB)
        for i in range(3):
            acc = v(ACC[rt & 1] + 4*i, 4)
            mfma16(k, acc, w3reg(i, st), v(b,4), '0' if st == 0 else acc)
            if pend and (st > 0 or i == 2):
                nper = -(-len(pend) // max(1, (3*(15-st) + (3-i)) - 3))
                for _ in range(min(len(pend), max(1, nper))): k.e(pend.pop(0))
        if rt < 3 and (rt == 0 or True): bg.tick(1)
        if st == 15:
            for ins in pend: k.e(ins)
            pend = []
    stamp(k, 23)
    for ins in epilogue(3): k.e(ins)
    stamp(k, 24)
    publish(k, 2)
    stamp(k, 25)

def phase_F(k, bg):
    S_T0, S_T1, S_T2, S_HO = 44, 45, 46, 47
    SH, SX1, SX2, SMOD, SO = 48, 56, 64, 68, 72
    k.c('phase F : H @ w4, final residual')
    srd(k, SH, P_WS, HC, HC_BYTES)
    srd(k, SX1, P_WS, X1C, 2 * MB)
    srd(k, SX2, P_WS, X2C, 2 * MB)
    srd(k, SMOD, P_WS, MOD, 3072 * 4)
    srd(k, SO, P_OUT, 0, 2 * MB)
    VGO, VE = 8, 9
    k.e(f'v_add_u32 {v(VT)}, {s(S_R64)}, {v(VI)}\nv_lshlrev_b32 {v(VGO)}, 4, {v(VT)}\nv_lshl_add_u32 {v(VGO)}, {v(VQ)}, 15, {v(VGO)}')
    EX1, EX2, GB = 112, 120, 128
    k.e(f's_lshl_b32 {s(S_T0)}, {s(S_WAVE)}, 8\nv_add_u32 {v(VE)}, {s(S_T0)}, {v(VGO)}\ns_lshl_b32 {s(S_T1)}, {s(S_J)}, 18')
    for p in range(2):
        k.vm(f'buffer_load_dwordx4 {v(EX1+4*p,4)}, {v(VE)}, {s(SX1,4)}, {s(S_T1)} offen{SC}')
        k.vm(f'buffer_load_dwordx4 {v(EX2+4*p,4)}, {v(VE)}, {s(SX2,4)}, {s(S_T1)} offen{SC}')
        if p == 0: k.e(f's_add_u32 {s(S_T1)}, {s(S_T1)}, 0x20000')
    k.e(f's_lshl_b32 {s(S_T1)}, {s(S_J)}, 8\ns_add_u32 {s(S_T1)}, {s(S_T1)}, {5*2048}\nv_lshlrev_b32 {v(VT)}, 5, {v(VQ)}')
    for p in range(2):
        k.vm(f'buffer_load_dwordx4 {v(GB+8*p,4)}, {v(VT)}, {s(SMOD,4)}, {s(S_T1)} offen offset:{128*p}{SC}')
        tep = k.vm(f'buffer_load_dwordx4 {v(GB+8*p+4,4)}, {v(VT)}, {s(SMOD,4)}, {s(S_T1)} offen offset:{128*p+16}{SC}')
    bg.drain()
    k.e(f's_lshl_b32 s43, {s(S_RB64)}, 3')
    await_flags(k, 2, 43, 8)
    stamp(k, 31)
    ND = 8
    k.e(f's_mul_i32 {s(S_HO)}, {s(S_WAVE)}, {11*131072}')
    tH = {}
    def loadH(st):
        if st: k.e(f's_add_u32 {s(S_HO)}, {s(S_HO)}, 0x20000')
        for rt in range(4):
            tH[(st, rt)] = k.vm(f'buffer_load_dwordx4 {a(16*(st % ND)+4*rt,4)}, {v(VGO)}, {s(SH,4)}, {s(S_HO)} offen offset:{256*rt}{SC}')
    for st in range(CFG['f_depth']): loadH(st)
    nxt = CFG['f_depth']
    ACC = 128
    for st in range(11):
        for rt in range(4):
            k.wait(tH[(st, rt)])
            for t in range(4):
                acc = a(ACC + 16*rt + 4*t, 4)
                mfma16(k, acc, w4reg(st, t), a(16*(st % ND)+4*rt,4), '0' if st == 0 else acc)
        if nxt < 11: loadH(nxt); nxt += 1
    stamp(k, 32)
    labs = [k.newlabel(f'r{w}') for w in range(4)]; lj = k.newlabel('rj')
    for w in range(1, 4):
        k.e(f's_cmp_eq_u32 {s(S_WAVE)}, {w}'); k.e(f's_cbranch_scc1 {labs[w]}')
    KEEP = 32
    for w in range(4):
        k.label(labs[w])
        k.flush_hazards(8)
        for rt in range(4):
            if rt == w: continue
            idx = rt - (1 if rt > w else 0)
            base = (w*3 + idx) * 4096
            for t in range(4): k.ds(f'ds_write_b128 {v(VL16)}, {a(ACC+16*rt+4*t,4)} offset:{base + 1024*t}')
        for i in range(16): k.e(f'v_accvgpr_read_b32 {v(KEEP+i)}, {a(ACC+16*w+i)}')
        if w < 3: k.e(f's_branch {lj}')
    k.label(lj)
    k.unknown_counters()
    k.e('s_waitcnt lgkmcnt(0)'); k.e('s_barrier')
    stamp(k, 33)
    PR = 48
    for n in range(3):
        k.e(f's_cmp_ge_u32 {n}, {s(S_WAVE)}\ns_cselect_b32 {s(S_T0)}, 1, 0\ns_add_u32 {s(S_T1)}, {s(S_T0)}, {n}')
        k.e(f's_mul_i32 {s(S_T1)}, {s(S_T1)}, 3\ns_add_u32 {s(S_T1)}, {s(S_T1)}, {s(S_WAVE)}\ns_sub_u32 {s(S_T1)}, {s(S_T1)}, 1\ns_add_u32 {s(S_T1)}, {s(S_T1)}, {s(S_T0)}')
        k.e(f's_lshl_b32 {s(S_T1)}, {s(S_T1)}, 12\nv_add_u32 {v(VT)}, {s(S_T1)}, {v(VL16)}')
        for t in range(4): tr = k.ds(f'ds_read_b128 {v(PR+16*n+4*t,4)}, {v(VT)} offset:{1024*t}')
    k.e(f's_lshl_b32 {s(S_T0)}, {s(S_WAVE)}, 4\ns_add_u32 {s(S_T0)}, {s(S_T0)}, {s(S_R64)}\nv_add_u32 {v(VU)}, {s(S_T0)}, {v(VI)}')
    k.e(f'v_lshlrev_b32 {v(VU)}, 10, {v(VU)}\nv_lshl_add_u32 {v(VU)}, {v(VQ)}, 4, {v(VU)}\ns_lshl_b32 {s(S_T1)}, {s(S_J)}, 7')
    k.wait(tr)
    for n in range(3):
        for i in range(8): k.e(f'v_pk_add_f32 {v(KEEP+2*i,2)}, {v(KEEP+2*i,2)}, {v(PR+16*n+2*i,2)}')
    U = 96; O = 48
    for p in range(2):
        for i in range(4):
            k.e(f'v_lshlrev_b32 {v(U+2*i)}, 16, {v(EX1+4*p+i)}\nv_and_b32 {v(U+2*i+1)}, 0xffff0000, {v(EX1+4*p+i)}')
            k.e(f'v_lshlrev_b32 {v(U+8+2*i)}, 16, {v(EX2+4*p+i)}\nv_and_b32 {v(U+8+2*i+1)}, 0xffff0000, {v(EX2+4*p+i)}')
        for i in range(4):
            x = KEEP + 8*p + 2*i
            k.e(f'v_pk_add_f32 {v(x,2)}, {v(x,2)}, {v(U+2*i,2)}')
        for i in range(4):
            x = KEEP + 8*p + 2*i
            k.e(f'v_pk_fma_f32 {v(x,2)}, {v(x,2)}, {v(GB+8*p+2*i,2)}, {v(U+8+2*i,2)}')
        for i in range(4):
            x = KEEP + 8*p + 2*i
            k.e(f'v_cvt_pk_bf16_f32 {v(O+4*p+i)}, {v(x)}, {v(x+1)}')
        k.vm(f'buffer_store_dwordx4 {v(O+4*p,4)}, {v(VU)}, {s(SO,4)}, {s(S_T1)} offen offset:{64*p}')

CFG = dict(c_w1_first=12, d_pre=0, d_w3_first=8, f_depth=6)

def build_P(name):
    k = Kern(name)
    lend = k.newlabel('end')
    k.e(f's_cmp_ge_u32 s2, 256'); k.e(f's_cbranch_scc1 {lend}')
    k.e('s_load_dwordx2 s[36:37], s[0:1], 128'); k.e('s_load_dwordx2 s[40:41], s[0:1], 144')
    wave_id(k); wg_map(k)
    k.e(f's_lshl_b32 {s(S_LID)}, {s(S_RB64)}, 3\ns_add_u32 {s(S_LID)}, {s(S_LID)}, {s(S_J)}')
    k.e(f's_mov_b32 {s(S_NONCE)}, 1')
    k.e(f'v_and_b32 {v(VL)}, 63, v0\nv_and_b32 {v(VI)}, 15, {v(VL)}\nv_lshrrev_b32 {v(VQ)}, 4, {v(VL)}\nv_lshlrev_b32 {v(VL16)}, 4, {v(VL)}')
    k.e('s_waitcnt lgkmcnt(0)')
    stamp_begin(k)
    srd(k, SW1, P_WS, W1F, 512 * KB); srd(k, SW2, P_WS, W2F, 512 * KB)
    srd(k, SW3, P_WS, W3F, W3F_BYTES); srd(k, SW4, P_WS, W4F, W4F_BYTES)
    srd(k, SFL, P_WS, FLG, 4 * 16384)
    bg = BG(k)
    phase_C(k, bg); phase_D(k, bg); phase_E(k, bg); phase_F(k, bg)
    stamp_end(k, 2)
    k.label(lend)
    k.e('s_endpgm')
    return k
```

```python
from common import *

OOB = 0x7ff00000

P_U, P_ARE, P_AIM, P_BRE, P_BIM, P_CRE, P_CIM, P_LDT = 4, 6, 8, 10, 12, 14, 16, 18
P_DSK, P_BX, P_W1, P_W2, P_W3, P_W4, P_C, P_WMOD = 20, 22, 24, 26, 28, 30, 32, 34
P_OUT, P_DBG, P_WS = 36, 38, 40
S_WAVE = 42
S_ID = 43

def load_all_ptrs(k):
    k.e('s_load_dwordx16 s[4:19], s[0:1], 0')
    k.e('s_load_dwordx16 s[20:35], s[0:1], 64')
    k.e('s_load_dwordx4 s[36:39], s[0:1], 128')
    k.e('s_load_dwordx2 s[40:41], s[0:1], 144')

def wave_id(k):
    k.e('v_lshrrev_b32 v1, 6, v0')
    k.e(f'v_readfirstlane_b32 {s(S_WAVE)}, v1')

def dma_tile(k, srdq, s_stride, s_rowbase_bytes, lds_base, va, vb, stmp, nrows_per_wave=64):
    for i in range(nrows_per_wave // 8):
        k.e(f's_lshl_b32 {s(stmp)}, {s(S_WAVE)}, 13')
        k.e(f's_add_u32 m0, {s(stmp)}, {lds_base + 1024 * i}')
        if i == 0: k.e(f's_mov_b32 {s(stmp+1)}, {s(s_rowbase_bytes)}')
        else:
            k.e(f's_lshl_b32 {s(stmp)}, {s(s_stride)}, 3')
            k.e(f's_add_u32 {s(stmp+1)}, {s(stmp+1)}, {s(stmp)}')
        k.vm(f'buffer_load_dwordx4 {v(vb if i & 1 else va)}, {s(srdq,4)}, {s(stmp+1)} offen lds')

def dma_voffsets(k, s_stride, va, vb, vt):
    k.e(f'v_and_b32 {v(vt)}, 63, v0')
    k.e(f'v_lshrrev_b32 {v(va)}, 3, {v(vt)}')
    k.e(f'v_and_b32 {v(vb)}, 2, {v(va)}')
    k.e(f'v_and_b32 {v(vt)}, 7, {v(vt)}')
    k.e(f'v_xor_b32 {v(vt)}, {v(vt)}, {v(vb)}')
    k.e(f'v_mul_lo_u32 {v(va)}, {v(va)}, {s(s_stride)}')
    k.e(f'v_xor_b32 {v(vb)}, 4, {v(vt)}')
    k.e(f'v_lshl_add_u32 {v(vb)}, {v(vb)}, 4, {v(va)}')
    k.e(f'v_lshl_add_u32 {v(va)}, {v(vt)}, 4, {v(va)}')

def tr_addr(k, vd, vt, vu, s_chunkbase, s_half, natural):
    k.e(f'v_and_b32 {v(vt)}, 63, v0')
    k.e(f'v_and_b32 {v(vd)}, 3, {v(vt)}')
    if natural:
        k.e(f'v_lshrrev_b32 {v(vu)}, 1, {v(vd)}')
        k.e(f'v_add_u32 {v(vu)}, {s(s_chunkbase)}, {v(vu)}')
        k.e(f'v_and_b32 {v(vd)}, 1, {v(vd)}')
        k.e(f'v_lshlrev_b32 {v(vd)}, 3, {v(vd)}')
    else:
        k.e(f'v_add_u32 {v(vu)}, {s(s_chunkbase)}, {v(vd)}')
        k.e(f'v_mov_b32 {v(vd)}, {s(s_half)}')
    r_ = vt
    k.e(f'v_lshrrev_b32 {v(vt)}, 2, {v(vt)}')
    k.e(f'v_and_b32 {v(vd+1)}, 6, {v(vt)}')
    k.e(f'v_xor_b32 {v(vu)}, {v(vu)}, {v(vd+1)}')
    k.e(f'v_lshl_add_u32 {v(vd)}, {v(vu)}, 4, {v(vd)}')
    k.e(f'v_and_b32 {v(vu)}, 3, {v(vt)}')
    k.e(f'v_lshrrev_b32 {v(vt)}, 2, {v(vt)}')
    k.e(f'v_lshl_add_u32 {v(vu)}, {v(vt)}, 3, {v(vu)}')
    k.e(f'v_lshl_add_u32 {v(vd)}, {v(vu)}, 7, {v(vd)}')

def role_W(k):
    S_STR, S_ROW, S_T0, S_T1 = 44, 45, 46, 47
    SRC, DST, CS = 48, 52, 56
    S_FB, S_KB, S_NAT, S_CSF, S_DOFF, S_DSTEP, S_CH, S_HALF, S_NST, S_CSO = 60, 61, 62, 63, 64, 65, 66, 67, 68, 69
    lw1, lw2, lw3, lw4, lgo = [k.newlabel(x) for x in ('w1', 'w2', 'w3', 'w4', 'wgo')]
    k.c('role W : weight shuffle into MFMA A-fragment order')
    k.e(f's_sub_u32 {s(S_ID)}, s2, 112')
    k.e(f's_cmp_ge_u32 {s(S_ID)}, 76'); k.e(f's_cbranch_scc1 {lw4}')
    k.e(f's_cmp_ge_u32 {s(S_ID)}, 32'); k.e(f's_cbranch_scc1 {lw3}')
    k.e(f's_cmp_ge_u32 {s(S_ID)}, 16'); k.e(f's_cbranch_scc1 {lw2}')
    def perm_setup(stride_tiles):
        k.e(f's_lshr_b32 {s(S_T0)}, {s(S_WAVE)}, 1')
        k.e(f's_lshl_b32 {s(S_CH)}, {s(S_T0)}, 2')
        k.e(f's_and_b32 {s(S_HALF)}, {s(S_WAVE)}, 1')
        k.e(f's_lshl_b32 {s(S_HALF)}, {s(S_HALF)}, 3')
        k.e(f's_mov_b32 {s(S_NAT)}, 0')
    for which, lab in ((1, lw1), (2, lw2)):
        k.label(lab)
        if which == 2: k.e(f's_sub_u32 {s(S_ID)}, {s(S_ID)}, 16')
        srd(k, SRC, P_W1 if which == 1 else P_W2, 0, 512 * 1024)
        srd(k, DST, P_WS, W1F if which == 1 else W2F, 512 * 1024)
        srd(k, CS, P_WS, CS1, 4096)
        k.e(f's_lshr_b32 {s(S_FB)}, {s(S_ID)}, 1\ns_and_b32 {s(S_KB)}, {s(S_ID)}, 1')
        k.e(f's_mov_b32 {s(S_STR)}, 1024')
        perm_setup(0)
        k.e(f's_lshl_b32 {s(S_DOFF)}, {s(S_FB)}, 1\ns_add_u32 {s(S_DOFF)}, {s(S_DOFF)}, {s(S_T0)}\ns_lshl_b32 {s(S_DOFF)}, {s(S_DOFF)}, 15')
        k.e(f's_lshl_b32 {s(S_T1)}, {s(S_KB)}, 14\ns_add_u32 {s(S_DOFF)}, {s(S_DOFF)}, {s(S_T1)}')
        k.e(f's_lshl_b32 {s(S_T1)}, {s(S_HALF)}, 7\ns_add_u32 {s(S_DOFF)}, {s(S_DOFF)}, {s(S_T1)}')
        k.e(f's_mov_b32 {s(S_DSTEP)}, 2048\ns_mov_b32 {s(S_NST)}, 8')
        k.e(f's_mov_b32 {s(S_CSF)}, {1 if which == 1 else 0}')
        k.e(f's_lshl_b32 {s(S_CSO)}, {s(S_KB)}, 11\ns_lshl_b32 {s(S_T1)}, {s(S_FB)}, 8\ns_add_u32 {s(S_CSO)}, {s(S_CSO)}, {s(S_T1)}')
        k.e(f's_lshl_b32 {s(S_T1)}, {s(S_T0)}, 7\ns_add_u32 {s(S_CSO)}, {s(S_CSO)}, {s(S_T1)}')
        k.e(f's_lshl_b32 {s(S_T1)}, {s(S_HALF)}, 1\ns_add_u32 {s(S_CSO)}, {s(S_CSO)}, {s(S_T1)}')
        k.e(f's_branch {lgo}')
    k.label(lw3)
    k.e(f's_sub_u32 {s(S_ID)}, {s(S_ID)}, 32')
    srd(k, SRC, P_W3, 0, 512 * 2752)
    srd(k, DST, P_WS, W3F, W3F_BYTES)
    srd(k, CS, P_WS, CS3, 2 * 1408 * 4)
    k.e(f's_lshr_b32 {s(S_FB)}, {s(S_ID)}, 1\ns_and_b32 {s(S_KB)}, {s(S_ID)}, 1')
    k.e(f's_mov_b32 {s(S_STR)}, 2752')
    k.e(f's_lshl_b32 {s(S_CH)}, {s(S_WAVE)}, 1\ns_mov_b32 {s(S_HALF)}, 0\ns_mov_b32 {s(S_NAT)}, 1')
    k.e(f's_lshl_b32 {s(S_DOFF)}, {s(S_FB)}, 2\ns_add_u32 {s(S_DOFF)}, {s(S_DOFF)}, {s(S_WAVE)}')
    k.e(f's_lshl_b32 {s(S_T0)}, {s(S_DOFF)}, 6')
    k.e(f's_lshl_b32 {s(S_DOFF)}, {s(S_DOFF)}, 14')
    k.e(f's_lshl_b32 {s(S_T1)}, {s(S_KB)}, 13\ns_add_u32 {s(S_DOFF)}, {s(S_DOFF)}, {s(S_T1)}')
    k.e(f's_mov_b32 {s(S_DSTEP)}, 1024\ns_mov_b32 {s(S_NST)}, 8\ns_mov_b32 {s(S_CSF)}, 2')
    k.e(f's_mul_i32 {s(S_CSO)}, {s(S_KB)}, {1408*4}\ns_add_u32 {s(S_CSO)}, {s(S_CSO)}, {s(S_T0)}')
    k.e(f's_branch {lgo}')
    k.label(lw4)
    k.e(f's_sub_u32 {s(S_ID)}, {s(S_ID)}, 76')
    srd(k, SRC, P_W4, 0, 1376 * 1024)
    srd(k, DST, P_WS, W4F, W4F_BYTES)
    srd(k, CS, P_WS, CS1, 4096)
    k.e(f's_mul_i32 {s(S_FB)}, {s(S_ID)}, 43\ns_lshr_b32 {s(S_FB)}, {s(S_FB)}, 8')
    k.e(f's_mul_i32 {s(S_T0)}, {s(S_FB)}, 6\ns_sub_u32 {s(S_KB)}, {s(S_ID)}, {s(S_T0)}')
    k.e(f's_mov_b32 {s(S_STR)}, 1024')
    perm_setup(0)
    k.e(f's_mul_i32 {s(S_DOFF)}, {s(S_FB)}, 176128')
    k.e(f's_lshl_b32 {s(S_T1)}, {s(S_KB)}, 15\ns_add_u32 {s(S_DOFF)}, {s(S_DOFF)}, {s(S_T1)}')
    k.e(f's_lshl_b32 {s(S_T1)}, {s(S_WAVE)}, 10\ns_add_u32 {s(S_DOFF)}, {s(S_DOFF)}, {s(S_T1)}')
    k.e(f's_lshl_b32 {s(S_T1)}, {s(S_KB)}, 3\ns_sub_u32 {s(S_NST)}, 43, {s(S_T1)}')
    k.e(f's_mov_b32 {s(S_DSTEP)}, 4096\ns_mov_b32 {s(S_CSF)}, 0\ns_mov_b32 {s(S_CSO)}, 0')
    k.label(lgo)
    k.e(f's_lshl_b32 {s(S_T0)}, {s(S_KB)}, 8\ns_lshl_b32 {s(S_T1)}, {s(S_WAVE)}, 6\ns_add_u32 {s(S_T0)}, {s(S_T0)}, {s(S_T1)}')
    k.e(f's_mul_i32 {s(S_ROW)}, {s(S_T0)}, {s(S_STR)}\ns_lshl_b32 {s(S_T1)}, {s(S_FB)}, 7\ns_add_u32 {s(S_ROW)}, {s(S_ROW)}, {s(S_T1)}')
    VA, VB, VT, VU, VR = 2, 3, 4, 5, 6
    dma_voffsets(k, S_STR, VA, VB, VT)
    dma_tile(k, SRC, S_STR, S_ROW, 0, VA, VB, S_T0)
    lnat, ljoin = k.newlabel('nat'), k.newlabel('trj')
    k.e(f's_cmp_eq_u32 {s(S_NAT)}, 1'); k.e(f's_cbranch_scc1 {lnat}')
    tr_addr(k, VR, VT, VU, S_CH, S_HALF, False)
    k.e(f's_branch {ljoin}')
    k.label(lnat)
    tr_addr(k, VR, VT, VU, S_CH, S_HALF, True)
    k.label(ljoin)
    VO = 8; ONES = 12; ACC = 16; FR = 20
    k.e(f'v_and_b32 {v(VO)}, 63, v0\nv_lshlrev_b32 {v(VO)}, 4, {v(VO)}')
    for i in range(4): k.e(f'v_mov_b32 {v(ONES+i)}, 0x3f803f80')
    for i in range(4): k.e(f'v_mov_b32 {v(ACC+i)}, 0')
    stamp(k, 1)
    k.wait_vm0(); k.e('s_barrier')
    stamp(k, 2)
    toks = []
    for st in range(8):
        k.ds(f'ds_read_b64_tr_b16 {v(FR+4*st,2)}, {v(VR)} offset:{4096*st}')
        toks.append(k.ds(f'ds_read_b64_tr_b16 {v(FR+4*st+2,2)}, {v(VR)} offset:{4096*st+512}'))
    for st in range(8):
        k.wait(toks[st])
        k.e(f's_cmp_gt_u32 {s(S_NST)}, {st}')
        k.e(f's_cselect_b32 {s(S_T0)}, {s(S_DOFF)}, {hex(OOB)}')
        k.vm(f'buffer_store_dwordx4 {v(FR+4*st,4)}, {v(VO)}, {s(DST,4)}, {s(S_T0)} offen')
        k.e(f's_add_u32 {s(S_DOFF)}, {s(S_DOFF)}, {s(S_DSTEP)}')
        mfma16(k, v(ACC,4), v(FR+4*st,4), v(ONES,4))
    ldone = k.newlabel('wdone')
    k.e(f's_cmp_eq_u32 {s(S_CSF)}, 0'); k.e(f's_cbranch_scc1 {ldone}')
    k.e(f'v_and_b32 {v(VT)}, 63, v0\nv_lshrrev_b32 {v(VU)}, 4, {v(VT)}')
    k.e(f's_cmp_eq_u32 {s(S_CSF)}, 1\ns_cselect_b32 {s(S_T0)}, 5, 4')
    k.e(f'v_lshlrev_b32 {v(VU)}, {s(S_T0)}, {v(VU)}')
    k.e(f'v_and_b32 {v(VT)}, 15, {v(VT)}\nv_cmp_eq_u32 vcc, 0, {v(VT)}')
    k.e(f'v_mov_b32 {v(VT)}, {hex(OOB)}\nv_cndmask_b32 {v(VU)}, {v(VT)}, {v(VU)}, vcc')
    k.vm(f'buffer_store_dwordx4 {v(ACC,4)}, {v(VU)}, {s(CS,4)}, {s(S_CSO)} offen')
    k.label(ldone)
    stamp_end(k, 0)
    k.e('s_endpgm')

def role_M(k):
    S_STR, S_ROW, S_T0, S_T1 = 44, 45, 46, 47
    SRC, CSRD, DST = 48, 52, 56
    S_CH, S_HALF, S_SEG = 60, 61, 62
    k.c('role M : mod = silu(c) @ w_mod')
    k.e(f's_sub_u32 {s(S_ID)}, s2, 64')
    srd(k, SRC, P_WMOD, 0, 512 * 6144)
    srd(k, CSRD, P_C, 0, 1024)
    srd(k, DST, P_WS, MOD, 3072 * 4)
    k.e(f's_mov_b32 {s(S_STR)}, 6144')
    VA, VB, VT, VU, VR = 2, 3, 4, 5, 6
    VC = 8
    k.e(f'v_lshlrev_b32 {v(VT)}, 2, v0')
    tc = k.vm(f'buffer_load_dword {v(VC)}, {v(VT)}, {s(CSRD,4)}, 0 offen')
    dma_voffsets(k, S_STR, VA, VB, VT)
    for kb in range(2):
        k.e(f's_lshl_b32 {s(S_T0)}, {s(S_WAVE)}, 6\ns_add_u32 {s(S_T0)}, {s(S_T0)}, {256*kb}')
        k.e(f's_mul_i32 {s(S_ROW)}, {s(S_T0)}, {s(S_STR)}\ns_lshl_b32 {s(S_T1)}, {s(S_ID)}, 7\ns_add_u32 {s(S_ROW)}, {s(S_ROW)}, {s(S_T1)}')
        dma_tile(k, SRC, S_STR, S_ROW, 32768 * kb, VA, VB, S_T0)
    k.e(f's_lshl_b32 {s(S_CH)}, {s(S_WAVE)}, 1\ns_mov_b32 {s(S_HALF)}, 0')
    tr_addr(k, VR, VT, VU, S_CH, S_HALF, True)
    k.wait(tc)
    X0, X1, E0, E1 = 10, 11, 12, 13
    k.e(f'v_lshlrev_b32 {v(X0)}, 16, {v(VC)}\nv_and_b32 {v(X1)}, 0xffff0000, {v(VC)}')
    k.e(f'v_mul_f32 {v(E0)}, {hexf(-LOG2E)}, {v(X0)}\nv_mul_f32 {v(E1)}, {hexf(-LOG2E)}, {v(X1)}')
    k.e(f'v_exp_f32 {v(E0)}, {v(E0)}\nv_exp_f32 {v(E1)}, {v(E1)}')
    k.e(f'v_add_f32 {v(E0)}, 1.0, {v(E0)}\nv_add_f32 {v(E1)}, 1.0, {v(E1)}')
    k.e(f'v_rcp_f32 {v(E0)}, {v(E0)}\nv_rcp_f32 {v(E1)}, {v(E1)}')
    k.e(f'v_mul_f32 {v(X0)}, {v(X0)}, {v(E0)}\nv_mul_f32 {v(X1)}, {v(X1)}, {v(E1)}')
    k.e(f'v_cvt_pk_bf16_f32 {v(X0)}, {v(X0)}, {v(X1)}')
    k.e(f'v_lshlrev_b32 {v(VT)}, 2, v0')
    k.e(f'v_add_u32 {v(VT)}, 0x10000, {v(VT)}')
    k.ds(f'ds_write_b32 {v(VT)}, {v(X0)}')
    VS = 14
    k.e(f'v_and_b32 {v(VS)}, 63, v0\nv_lshrrev_b32 {v(VS)}, 4, {v(VS)}\nv_lshlrev_b32 {v(VS)}, 4, {v(VS)}\nv_add_u32 {v(VS)}, 0x10000, {v(VS)}')
    ACC = 16; FR = 20; BF = 84
    for i in range(4): k.e(f'v_mov_b32 {v(ACC+i)}, 0')
    stamp(k, 1)
    k.e('s_waitcnt vmcnt(0) lgkmcnt(0)'); k.e('s_barrier')
    stamp(k, 2)
    for half in range(2):
        toks = []
        for st in range(8):
            sg = 8 * half + st
            off = 32768 * half + 4096 * st
            k.ds(f'ds_read_b64_tr_b16 {v(FR+4*st,2)}, {v(VR)} offset:{off}')
            k.ds(f'ds_read_b64_tr_b16 {v(FR+4*st+2,2)}, {v(VR)} offset:{off+512}')
            toks.append(k.ds(f'ds_read_b128 {v(BF+4*st,4)}, {v(VS)} offset:{64*sg}'))
        for st in range(8):
            k.wait(toks[st])
            mfma16(k, v(ACC,4), v(FR+4*st,4), v(BF+4*st,4))
    k.e(f's_lshr_b32 {s(S_SEG)}, {s(S_ID)}, 3')
    k.e(f'v_cvt_pk_bf16_f32 {v(FR)}, {v(ACC)}, {v(ACC+1)}\nv_cvt_pk_bf16_f32 {v(FR+1)}, {v(ACC+2)}, {v(ACC+3)}')
    k.e(f'v_lshlrev_b32 {v(ACC)}, 16, {v(FR)}\nv_and_b32 {v(ACC+1)}, 0xffff0000, {v(FR)}')
    k.e(f'v_lshlrev_b32 {v(ACC+2)}, 16, {v(FR+1)}\nv_and_b32 {v(ACC+3)}, 0xffff0000, {v(FR+1)}')
    lst = k.newlabel('mst'); lad = k.newlabel('mad')
    k.e(f's_cmp_eq_u32 {s(S_SEG)}, 1'); k.e(f's_cbranch_scc1 {lad}')
    k.e(f's_cmp_eq_u32 {s(S_SEG)}, 4'); k.e(f's_cbranch_scc0 {lst}')
    k.label(lad)
    for i in range(4): k.e(f'v_add_f32 {v(ACC+i)}, 1.0, {v(ACC+i)}')
    k.e(f'v_cvt_pk_bf16_f32 {v(FR)}, {v(ACC)}, {v(ACC+1)}\nv_cvt_pk_bf16_f32 {v(FR+1)}, {v(ACC+2)}, {v(ACC+3)}')
    k.e(f'v_lshlrev_b32 {v(ACC)}, 16, {v(FR)}\nv_and_b32 {v(ACC+1)}, 0xffff0000, {v(FR)}')
    k.e(f'v_lshlrev_b32 {v(ACC+2)}, 16, {v(FR+1)}\nv_and_b32 {v(ACC+3)}, 0xffff0000, {v(FR+1)}')
    k.label(lst)
    k.e(f'v_and_b32 {v(VT)}, 63, v0\nv_lshrrev_b32 {v(VU)}, 4, {v(VT)}\nv_lshlrev_b32 {v(VU)}, 4, {v(VU)}')
    k.e(f'v_and_b32 {v(VT)}, 15, {v(VT)}\nv_cmp_eq_u32 vcc, 0, {v(VT)}')
    k.e(f'v_mov_b32 {v(VT)}, {hex(OOB)}\nv_cndmask_b32 {v(VU)}, {v(VT)}, {v(VU)}, vcc')
    k.e(f's_lshl_b32 {s(S_T0)}, {s(S_ID)}, 8\ns_lshl_b32 {s(S_T1)}, {s(S_WAVE)}, 6\ns_add_u32 {s(S_T0)}, {s(S_T0)}, {s(S_T1)}')
    k.vm(f'buffer_store_dwordx4 {v(ACC,4)}, {v(VU)}, {s(DST,4)}, {s(S_T0)} offen')
    stamp_end(k, 0)
    k.e('s_endpgm')

def role_X(k):
    S_T0, S_T1, S_R0 = 44, 45, 46
    SRC, DXT, DXN = 48, 52, 56
    k.c('role X : LN statistics of x, writes x^T and LN(x)^T')
    srd(k, SRC, P_U, 0, 2 * MB)
    srd(k, DXT, P_WS, XT, 2 * MB)
    srd(k, DXN, P_WS, XNT, 2 * MB)
    k.e(f's_lshl_b32 {s(S_R0)}, s2, 5')
    VL, VO, VT, VW = 2, 3, 4, 5
    X = 8
    k.e(f'v_and_b32 {v(VL)}, 63, v0')
    k.e(f'v_lshrrev_b32 {v(VT)}, 3, {v(VL)}')
    k.e(f's_lshl_b32 {s(S_T0)}, {s(S_WAVE)}, 3')
    k.e(f'v_add_u32 {v(VW)}, {s(S_T0)}, {v(VT)}')
    k.e(f'v_add_u32 {v(VT)}, {s(S_R0)}, {v(VW)}')
    k.e(f'v_lshlrev_b32 {v(VO)}, 10, {v(VT)}')
    k.e(f'v_and_b32 {v(VT)}, 7, {v(VL)}')
    k.e(f'v_lshl_add_u32 {v(VO)}, {v(VT)}, 4, {v(VO)}')
    toks = [k.vm(f'buffer_load_dwordx4 {v(X+4*j,4)}, {v(VO)}, {s(SRC,4)}, 0 offen offset:{128*j}') for j in range(8)]
    VA = 6
    k.e(f'v_mul_u32_u24 {v(VA)}, 1056, {v(VW)}')
    k.e(f'v_and_b32 {v(VW)}, 24, {v(VW)}\nv_add_u32 {v(VT)}, {v(VT)}, {v(VW)}')
    k.e(f'v_lshl_add_u32 {v(VA)}, {v(VT)}, 4, {v(VA)}')
    S1, S2, S3, S4, ONE = 40, 41, 42, 43, 44
    k.e(f'v_mov_b32 {v(ONE)}, 0x3f803f80')
    for r in (S1, S2, S3, S4): k.e(f'v_mov_b32 {v(r)}, 0')
    stamp(k, 1)
    k.wait(toks[0])
    stamp(k, 2)
    for j in range(8):
        k.wait(toks[j])
        for i in range(4):
            k.e(f'v_dot2_f32_bf16 {v(S1 + (i&1))}, {v(X+4*j+i)}, {v(ONE)}, {v(S1 + (i&1))}')
            k.e(f'v_dot2_f32_bf16 {v(S3 + (i&1))}, {v(X+4*j+i)}, {v(X+4*j+i)}, {v(S3 + (i&1))}')
        k.ds(f'ds_write_b128 {v(VA)}, {v(X+4*j,4)} offset:{128*j}')
    k.e(f'v_add_f32 {v(S1)}, {v(S1)}, {v(S2)}\nv_add_f32 {v(S3)}, {v(S3)}, {v(S4)}')
    for m in ('quad_perm:[1,0,3,2]', 'quad_perm:[2,3,0,1]', 'row_half_mirror'):
        k.e(f'v_add_f32_dpp {v(S1)}, {v(S1)}, {v(S1)} {m} row_mask:0xf bank_mask:0xf')
        k.e(f'v_add_f32_dpp {v(S3)}, {v(S3)}, {v(S3)} {m} row_mask:0xf bank_mask:0xf')
    k.e(f'v_mul_f32 {v(S1)}, {hexf(1/512)}, {v(S1)}')
    k.e(f'v_mul_f32 {v(S2)}, {v(S1)}, {v(S1)}')
    k.e(f'v_mov_b32 {v(S4)}, {hexf(1/512)}')
    k.e(f'v_fma_f32 {v(S3)}, {v(S3)}, {v(S4)}, -{v(S2)}')
    k.e(f'v_max_f32 {v(S3)}, 0, {v(S3)}\nv_add_f32 {v(S3)}, {hexf(1e-5)}, {v(S3)}')
    k.e(f'v_rsq_f32 {v(S3)}, {v(S3)}')
    k.e(f'v_mul_f32 {v(S1)}, {v(S1)}, {v(S3)}\nv_sub_f32 {v(S1)}, 0, {v(S1)}')
    STAT = 34816
    k.e(f'v_lshrrev_b32 {v(VT)}, 3, {v(VL)}\ns_lshl_b32 {s(S_T0)}, {s(S_WAVE)}, 3\nv_add_u32 {v(VT)}, {s(S_T0)}, {v(VT)}\nv_lshlrev_b32 {v(VT)}, 2, {v(VT)}')
    k.ds(f'ds_write_b32 {v(VT)}, {v(S3)} offset:{STAT}')
    k.ds(f'ds_write_b32 {v(VT)}, {v(S1)} offset:{STAT+128}')
    k.barrier()
    stamp(k, 3)
    RS, NMR = 48, 56
    k.e(f'v_lshrrev_b32 {v(VT)}, 4, {v(VL)}\nv_lshlrev_b32 {v(VW)}, 5, {v(VT)}')
    t1 = k.ds(f'ds_read_b128 {v(RS,4)}, {v(VW)} offset:{STAT}')
    k.ds(f'ds_read_b128 {v(RS+4,4)}, {v(VW)} offset:{STAT+16}')
    k.ds(f'ds_read_b128 {v(NMR,4)}, {v(VW)} offset:{STAT+128}')
    t2 = k.ds(f'ds_read_b128 {v(NMR+4,4)}, {v(VW)} offset:{STAT+144}')
    VR = 6
    k.e(f'v_bfe_u32 {v(VW)}, {v(VL)}, 2, 2')
    k.e(f'v_lshl_add_u32 {v(VW)}, {v(VT)}, 3, {v(VW)}')
    k.e(f'v_mul_u32_u24 {v(VR)}, 1056, {v(VW)}')
    k.e(f'v_and_b32 {v(VW)}, 24, {v(VW)}\nv_lshl_add_u32 {v(VR)}, {v(VW)}, 4, {v(VR)}')
    k.e(f'v_and_b32 {v(VW)}, 3, {v(VL)}\nv_lshl_add_u32 {v(VR)}, {v(VW)}, 3, {v(VR)}')
    k.e(f's_lshl_b32 {s(S_T0)}, {s(S_WAVE)}, 8\nv_add_u32 {v(VR)}, {s(S_T0)}, {v(VR)}')
    k.e(f'v_and_b32 {v(VW)}, 15, {v(VL)}\ns_lshl_b32 {s(S_T0)}, {s(S_WAVE)}, 7\nv_add_u32 {v(VW)}, {s(S_T0)}, {v(VW)}')
    k.e(f'v_lshlrev_b32 {v(VO)}, 12, {v(VW)}\nv_lshl_add_u32 {v(VO)}, {v(VT)}, 4, {v(VO)}')
    k.e(f's_lshl_b32 {s(S_T1)}, {s(S_R0)}, 1')
    FR = 8; U = 64; O = 72
    toks = []
    for ct in range(8):
        k.ds(f'ds_read_b64_tr_b16 {v(FR+4*ct,2)}, {v(VR)} offset:{32*ct}')
        toks.append(k.ds(f'ds_read_b64_tr_b16 {v(FR+4*ct+2,2)}, {v(VR)} offset:{32*ct + 4*1056}'))
    k.wait(t2)
    for ct in range(8):
        k.wait(toks[ct])
        k.vm(f'buffer_store_dwordx4 {v(FR+4*ct,4)}, {v(VO)}, {s(DXT,4)}, {s(S_T1)} offen')
        for i in range(4):
            k.e(f'v_lshlrev_b32 {v(U+2*i)}, 16, {v(FR+4*ct+i)}\nv_and_b32 {v(U+2*i+1)}, 0xffff0000, {v(FR+4*ct+i)}')
        for i in range(4):
            k.e(f'v_pk_fma_f32 {v(U+2*i,2)}, {v(U+2*i,2)}, {v(RS+2*i,2)}, {v(NMR+2*i,2)}')
        oo = O + 4 * (ct & 1)
        for i in range(4):
            k.e(f'v_cvt_pk_bf16_f32 {v(oo+i)}, {v(U+2*i)}, {v(U+2*i+1)}')
        k.vm(f'buffer_store_dwordx4 {v(oo,4)}, {v(VO)}, {s(DXN,4)}, {s(S_T1)} offen')
        k.e(f's_add_u32 {s(S_T1)}, {s(S_T1)}, 0x10000')
    stamp_end(k, 0)
    k.e('s_endpgm')

def cexp_direct(k, d, zr2, zrev, x, t):
    k.e(f'v_mul_f32 {v(t)}, {hexf(x)}, {v(zr2)}\nv_mul_f32 {v(t+1)}, {hexf(x)}, {v(zrev)}')
    k.e(f'v_exp_f32 {v(t)}, {v(t)}\nv_fract_f32 {v(t+1)}, {v(t+1)}')
    k.e(f'v_cos_f32 {v(d)}, {v(t+1)}\nv_sin_f32 {v(d+1)}, {v(t+1)}')
    k.e(f'v_mul_f32 {v(d)}, {v(d)}, {v(t)}\nv_mul_f32 {v(d+1)}, {v(d+1)}, {v(t)}')

def role_K(k):
    S_T0, S_T1, S_KG = 44, 45, 46
    SR = 48
    DK = 76
    CHB = 53 * 544
    TAB = 2 * CHB
    k.c('role K : K[d, l] generation')
    k.e(f's_sub_u32 {s(S_KG)}, s2, 256')
    VO, VT, VU = 2, 3, 4
    k.e(f's_lshl_b32 {s(S_T0)}, {s(S_KG)}, 9\nv_lshlrev_b32 {v(VO)}, 1, v0\nv_add_u32 {v(VO)}, {s(S_T0)}, {v(VO)}')
    IN = 8
    toks = []
    for i, p in enumerate((P_ARE, P_AIM, P_BRE, P_BIM, P_CRE, P_CIM)):
        srd(k, SR + 4 * i, p, 0, 512 * 128 * 2)
        toks.append(k.vm(f'buffer_load_ushort {v(IN+i)}, {v(VO)}, {s(SR+4*i,4)}, 0 offen'))
    srd(k, SR + 24, P_LDT, 0, 1024)
    k.e(f'v_lshrrev_b32 {v(VT)}, 7, v0\ns_lshl_b32 {s(S_T0)}, {s(S_KG)}, 1\nv_add_u32 {v(VT)}, {s(S_T0)}, {v(VT)}\nv_lshlrev_b32 {v(VT)}, 1, {v(VT)}')
    tl = k.vm(f'buffer_load_ushort {v(IN+6)}, {v(VT)}, {s(SR+24,4)}, 0 offen')
    srd(k, DK, P_WS, KR, 512 * KRS)
    GA = 16
    k.e(f'v_lshlrev_b32 {v(VT)}, 3, v0\nv_sub_u32 {v(VT)}, 2047, {v(VT)}')
    for j in range(8):
        k.e(f'v_subrev_u32 {v(GA+j)}, {j}, {v(VT)}')
    F0 = 24
    for j in range(8): k.e(f'v_cvt_f32_u32 {v(F0+j)}, {v(GA+j)}')
    for j in range(0, 8, 2): k.e(f'v_cvt_pk_bf16_f32 {v(F0+j)}, {v(F0+j)}, {v(F0+j+1)}')
    for j in range(0, 8, 2):
        k.e(f'v_lshrrev_b32 {v(F0+j+1)}, 16, {v(F0+j)}\nv_and_b32 {v(F0+j)}, 0xffff, {v(F0+j)}')
    for j in range(8):
        k.e(f'v_subrev_u32 {v(F0+j)}, {17024}, {v(F0+j)}')
        k.e(f'v_min_u32 {v(GA+j)}, 127, {v(GA+j)}')
    for j in range(8):
        k.e(f'v_max_i32 {v(GA+j)}, {v(GA+j)}, {v(F0+j)}')
        k.e(f'v_lshlrev_b32 {v(GA+j)}, 1, {v(GA+j)}')
        k.e(f'v_add_u32 {v(GA+j)}, {TAB}, {v(GA+j)}')
    VW = 5
    k.e(f'v_lshrrev_b32 {v(VT)}, 7, v0\nv_mul_u32_u24 {v(VW)}, {CHB}, {v(VT)}')
    k.e(f'v_and_b32 {v(VT)}, 127, v0\nv_lshl_add_u32 {v(VW)}, {v(VT)}, 2, {v(VW)}')
    stamp(k, 1)
    k.wait(tl)
    stamp(k, 2)
    ARE, AIM, BRE, BIM, CRE, CIM, LDT = range(IN, IN + 7)
    for r in range(IN, IN + 7): k.e(f'v_lshlrev_b32 {v(r)}, 16, {v(r)}')
    DT = 6
    k.e(f'v_mul_f32 {v(LDT)}, {hexf(LOG2E)}, {v(LDT)}\nv_exp_f32 {v(LDT)}, {v(LDT)}')
    k.e(f'v_cvt_pk_bf16_f32 {v(LDT)}, {v(LDT)}, {v(LDT)}\nv_lshlrev_b32 {v(DT)}, 16, {v(LDT)}')
    ZR2, ZRV = 32, 33
    k.e(f'v_mul_f32 {v(ARE)}, {v(DT)}, {v(ARE)}\nv_mul_f32 {v(AIM)}, {v(DT)}, {v(AIM)}')
    k.e(f'v_mul_f32 {v(ZR2)}, {hexf(LOG2E)}, {v(ARE)}\nv_mul_f32 {v(ZRV)}, {hexf(INV2PI)}, {v(AIM)}')
    k.e(f'v_mul_f32 {v(BRE)}, {v(DT)}, {v(BRE)}\nv_mul_f32 {v(BIM)}, {v(DT)}, {v(BIM)}')
    R = Alloc(34, 200)
    pair = lambda: R.get(2, 2)
    W, DBp, CC, T = pair(), pair(), pair(), pair()
    k.e(f'v_mov_b32 {v(DBp)}, {v(BRE)}\nv_mov_b32 {v(DBp+1)}, {v(BIM)}\nv_mov_b32 {v(CC)}, {v(CRE)}\nv_mov_b32 {v(CC+1)}, {v(CIM)}')
    E1, E8, E256 = pair(), pair(), pair()
    cexp_direct(k, E1, ZR2, ZRV, 1.0, T)
    cexp_direct(k, E8, ZR2, ZRV, 8.0, T)
    cexp_direct(k, E256, ZR2, ZRV, 256.0, T)
    cmul(k, W, CC, DBp)
    cv = [R.get(1) for _ in range(4)]
    cvi = [0]
    def put(row, z, xside):
        c = cv[cvi[0] % 4]; cvi[0] += 1
        k.e(f'v_cvt_pk_bf16_f32 {v(c)}, {v(z)}, {"-" if xside else ""}{v(z+1)}')
        k.ds(f'ds_write_b32 {v(VW)}, {v(c)} offset:{row*544}')
    E2, E16, E512 = pair(), pair(), pair()
    cmul_many(k, [(E2, E1, E1), (E16, E8, E8), (E512, E256, E256)])
    WX = [W] + [pair() for _ in range(7)]
    E24, E32, E768, E1024 = pair(), pair(), pair(), pair()
    cmul_many(k, [(WX[1], W, E1), (WX[2], W, E2), (E24, E16, E8), (E32, E16, E16), (E768, E512, E256), (E1024, E512, E512)])
    put(0, W, True); put(1, WX[1], True); put(2, WX[2], True)
    E1280, E1536, E1792, E2048 = pair(), pair(), pair(), pair()
    cmul_many(k, [(WX[3], WX[1], E2), (WX[4], WX[2], E2), (E1280, E1024, E256), (E1536, E1024, E512), (E1792, E1024, E768), (E2048, E1024, E1024)])
    put(3, WX[3], True); put(4, WX[4], True)
    Y0 = pair()
    k.e(f'v_mov_b32 {v(Y0)}, 1.0\nv_mov_b32 {v(Y0+1)}, 0')
    Ya = [Y0, E8, E16, E24]
    for j in range(4): put(21 + j, Ya[j], False)
    cmul_many(k, [(WX[5], WX[3], E2), (WX[6], WX[4], E2)])
    Yb = [pair() for _ in range(4)]
    Yc = [pair() for _ in range(4)]
    cmul_many(k, [(Yb[j], Ya[j], E32) for j in range(4)])
    put(5, WX[5], True); put(6, WX[6], True)
    tmp = [pair() for _ in range(6)]
    cmul_many(k, [(WX[7], WX[5], E2), (tmp[0], W, E256), (tmp[1], WX[2], E256), (tmp[2], WX[4], E256), (tmp[3], WX[6], E256)])
    for j in range(4): put(25 + j, Yb[j], False)
    put(7, WX[7], True)
    for j in range(4): put(8 + j, tmp[j], True)
    cur, nxt = Yb, Yc
    xs = [[(12, W, E512), (13, WX[4], E512), (14, W, E768), (15, WX[4], E768)],
          [(16, W, E1024), (17, W, E1280), (18, W, E1536), (19, W, E1792)],
          [(20, W, E2048)]]
    for it in range(2, 8):
        trip = [(nxt[j], cur[j], E32) for j in range(4)]
        extra = xs[it-2] if it - 2 < len(xs) else []
        trip += [(tmp[i], x, y) for i, (_, x, y) in enumerate(extra)]
        cmul_many(k, trip)
        for j in range(4): put(21 + 4 * it + j, nxt[j], False)
        for i, (row, _, _) in enumerate(extra): put(row, tmp[i], True)
        cur, nxt = nxt, cur
    stamp(k, 3)
    k.barrier()
    stamp(k, 4)
    VA, VB = 2, 5
    k.e(f'v_and_b32 {v(VT)}, 63, v0\nv_and_b32 {v(VU)}, 15, {v(VT)}\nv_lshrrev_b32 {v(VT)}, 4, {v(VT)}')
    k.e(f's_lshr_b32 {s(S_T0)}, {s(S_WAVE)}, 1\ns_mul_i32 {s(S_T0)}, {s(S_T0)}, {CHB}')
    k.e(f'v_mul_u32_u24 {v(VA)}, 544, {v(VU)}\nv_lshl_add_u32 {v(VA)}, {v(VT)}, 4, {v(VA)}\nv_add_u32 {v(VA)}, {s(S_T0)}, {v(VA)}')
    k.e(f's_and_b32 {s(S_T1)}, {s(S_WAVE)}, 1\ns_mul_i32 {s(S_T1)}, {s(S_T1)}, {16*544}\ns_add_u32 {s(S_T1)}, {s(S_T1)}, {21*544}')
    k.e(f'v_add_u32 {v(VB)}, {s(S_T1)}, {v(VA)}')
    FA, FB, AC = 40, 104, 136
    toks = []
    for st in range(8):
        k.ds(f'ds_read_b128 {v(FA+8*st,4)}, {v(VA)} offset:{64*st}')
        k.ds(f'ds_read_b128 {v(FA+8*st+4,4)}, {v(VA)} offset:{64*st + 16*544}')
        toks.append(k.ds(f'ds_read_b128 {v(FB+4*st,4)}, {v(VB)} offset:{64*st}'))
    for i in range(8): k.e(f'v_mov_b32 {v(AC+i)}, 0')
    J = 6; MJ = 7; A0 = 32; A1 = 33; A2 = 34
    k.e(f's_and_b32 {s(S_T1)}, {s(S_WAVE)}, 1\ns_lshl_b32 {s(S_T1)}, {s(S_T1)}, 4\nv_add_u32 {v(J)}, {s(S_T1)}, {v(VU)}')
    k.e(f'v_sub_u32 {v(MJ)}, 4, {v(VT)}\nv_min_u32 {v(MJ)}, 3, {v(MJ)}')
    k.e(f'v_lshlrev_b32 {v(MJ)}, {v(MJ)}, {v(J)}')
    k.e(f'v_lshlrev_b32 {v(A0)}, 2, {v(VT)}')
    k.e(f'v_mov_b32 {v(A1)}, 256\nv_cmp_eq_u32 vcc, 2, {v(VT)}\nv_cndmask_b32 {v(A0)}, {v(A0)}, {v(A1)}, vcc')
    k.e(f'v_mov_b32 {v(A1)}, 384\nv_cmp_eq_u32 vcc, 3, {v(VT)}\nv_cndmask_b32 {v(A0)}, {v(A0)}, {v(A1)}, vcc')
    k.e(f'v_add_u32 {v(A0)}, {v(A0)}, {v(MJ)}')
    k.e(f'v_mov_b32 {v(A1)}, 0\nv_mov_b32 {v(A2)}, 62\nv_cndmask_b32 {v(A1)}, {v(A1)}, {v(A2)}, vcc\nv_add_u32 {v(A1)}, {v(A0)}, {v(A1)}')
    k.e(f'v_add_u32 {v(A2)}, 512, {v(J)}\nv_mov_b32 {v(MJ)}, 644\nv_cmp_eq_u32 vcc, 0, {v(VT)}\nv_cndmask_b32 {v(A2)}, {v(MJ)}, {v(A2)}, vcc')
    k.e(f'v_lshl_add_u32 {v(MJ)}, {v(VT)}, 5, {v(J)}\nv_cmp_eq_u32 vcc, 32, {v(MJ)}\nv_mov_b32 {v(MJ)}, 640\nv_cndmask_b32 {v(A2)}, {v(A2)}, {v(MJ)}, vcc')
    k.e(f's_lshr_b32 {s(S_T0)}, {s(S_WAVE)}, 1\ns_mul_i32 {s(S_T0)}, {s(S_T0)}, 1536\ns_add_u32 {s(S_T0)}, {s(S_T0)}, {TAB}')
    for r in (A0, A1, A2): k.e(f'v_lshl_add_u32 {v(r)}, {v(r)}, 1, {s(S_T0)}')
    for st in range(8):
        k.wait(toks[st])
        mfma16(k, v(AC,4), v(FA+8*st,4), v(FB+4*st,4))
        mfma16(k, v(AC+4,4), v(FA+8*st+4,4), v(FB+4*st,4))
    C0 = 40
    k.e(f'v_cvt_pk_bf16_f32 {v(C0)}, {v(AC)}, {v(AC+1)}\nv_cvt_pk_bf16_f32 {v(C0+1)}, {v(AC+2)}, {v(AC+3)}')
    k.e(f'v_cvt_pk_bf16_f32 {v(C0+2)}, {v(AC+4)}, {v(AC+5)}\nv_cvt_pk_bf16_f32 {v(C0+3)}, {v(AC+6)}, {v(AC+7)}')
    k.ds(f'ds_write_b16 {v(A0)}, {v(C0)}');              k.ds(f'ds_write_b16_d16_hi {v(A0)}, {v(C0)} offset:2')
    k.ds(f'ds_write_b16 {v(A1)}, {v(C0+1)} offset:4');   k.ds(f'ds_write_b16_d16_hi {v(A1)}, {v(C0+1)} offset:6')
    k.ds(f'ds_write_b16 {v(A2)}, {v(C0+2)}');            k.ds(f'ds_write_b16_d16_hi {v(A2)}, {v(C0+2)} offset:64')
    k.ds(f'ds_write_b16 {v(A2)}, {v(C0+3)} offset:128'); k.ds(f'ds_write_b16_d16_hi {v(A2)}, {v(C0+3)} offset:192')
    k.barrier()
    stamp(k, 5)
    G = 44; GH = 56
    for ch in range(2):
        for j in range(8):
            op = 'ds_read_u16_d16_hi' if j & 1 else 'ds_read_u16'
            t = k.ds(f'{op} {v((GH if j & 1 else G)+4*ch+j//2)}, {v(GA+j)} offset:{1536*ch}')
    k.e(f's_mul_i32 {s(S_T0)}, {s(S_KG)}, {2*KRS}\nv_lshlrev_b32 {v(VO)}, 4, v0')
    Z = 52
    for i in range(4): k.e(f'v_mov_b32 {v(Z+i)}, 0')
    k.e(f'v_lshrrev_b32 {v(VT)}, 2, v0\nv_mul_u32_u24 {v(VT)}, {KRS}, {v(VT)}\nv_and_b32 {v(VU)}, 3, v0\nv_lshl_add_u32 {v(VT)}, {v(VU)}, 4, {v(VT)}\nv_add_u32 {v(VT)}, 4096, {v(VT)}')
    k.e(f'v_mov_b32 {v(VU)}, {hex(OOB)}\nv_cmp_gt_u32 vcc, 8, v0\nv_cndmask_b32 {v(VT)}, {v(VU)}, {v(VT)}, vcc')
    k.vm(f'buffer_store_dwordx4 {v(Z,4)}, {v(VT)}, {s(DK,4)}, {s(S_T0)} offen')
    k.wait(t)
    for i in range(8): k.e(f'v_or_b32 {v(G+i)}, {v(G+i)}, {v(GH+i)}')
    k.vm(f'buffer_store_dwordx4 {v(G,4)}, {v(VO)}, {s(DK,4)}, {s(S_T0)} offen')
    k.e(f's_add_u32 {s(S_T0)}, {s(S_T0)}, {KRS}')
    k.vm(f'buffer_store_dwordx4 {v(G+4,4)}, {v(VO)}, {s(DK,4)}, {s(S_T0)} offen')
    stamp_end(k, 0)
    k.e('s_endpgm')

LDS_A = 66560

def build_A(name):
    k = Kern(name)
    lx, lm, lw, lk, lend = [k.newlabel(x) for x in ('X', 'M', 'W', 'K', 'end')]
    k.e(f's_cmp_ge_u32 s2, 512'); k.e(f's_cbranch_scc1 {lend}')
    load_all_ptrs(k)
    wave_id(k)
    k.e('s_waitcnt lgkmcnt(0)')
    stamp_begin(k)
    k.e('s_cmp_ge_u32 s2, 256'); k.e(f's_cbranch_scc1 {lk}')
    lz = k.newlabel('Z')
    k.e('s_cmp_ge_u32 s2, 236'); k.e(f's_cbranch_scc1 {lz}')
    k.e('s_cmp_ge_u32 s2, 112'); k.e(f's_cbranch_scc1 {lw}')
    k.e('s_cmp_ge_u32 s2, 64'); k.e(f's_cbranch_scc1 {lm}')
    for lab, fn in ((lx, role_X), (lm, role_M), (lw, role_W), (lk, role_K)):
        k.label(lab)
        k.vm_done = k.vm_issued; k.lg_done = k.lg_issued
        fn(k)
    k.label(lz)
    k.e('s_cmp_ge_u32 s2, 252'); k.e(f's_cbranch_scc1 {lend}')
    srd(k, 48, P_WS, FLG, 4 * 16384)
    k.e('s_sub_u32 s44, s2, 236\ns_lshl_b32 s44, s44, 12\nv_lshlrev_b32 v2, 4, v0')
    for i in range(4): k.e(f'v_mov_b32 {v(4+i)}, 0')
    k.e('buffer_store_dwordx4 v[4:7], v2, s[48:51], s44 offen')
    k.label(lend)
    k.e('s_endpgm')
    return k
```

```python
from common import *
from phaseA import load_all_ptrs, wave_id, OOB, S_WAVE, P_WS, P_DSK

KC0 = 0; KCS = 4160; KCH = 4 * KCS
HP0 = 2 * KCH; HPS = 4608
RED = HP0 + 2 * HPS
LDS_B = RED + 4 * 4096

def phase_B(k, wg='s2'):
    S_T0, S_T1, S_D, S_P, S_CH = 44, 45, 46, 47, 60
    SK, SXN, SXT, SMOD, SDS, SO = 48, 52, 56, 64, 68, 72
    k.c('phase B : causal convolution of two channels')
    srd(k, SK, P_WS, KR, 512 * KRS)
    srd(k, SXN, P_WS, XNT, 2 * MB)
    srd(k, SXT, P_WS, XT, 2 * MB)
    srd(k, SMOD, P_WS, MOD, 3072 * 4)
    srd(k, SDS, P_DSK, 0, 1024)
    srd(k, SO, P_WS, X2T, 2 * MB)
    k.e(f's_lshr_b32 {s(S_CH)}, {s(S_WAVE)}, 1\ns_and_b32 {s(S_P)}, {s(S_WAVE)}, 1')
    k.e(f's_lshl_b32 {s(S_D)}, {wg}, 1\ns_add_u32 {s(S_D)}, {s(S_D)}, {s(S_CH)}')
    VL, VC, VT, VU = 2, 3, 4, 5
    k.e(f'v_and_b32 {v(VL)}, 63, v0')
    k.e(f's_lshl_b32 {s(S_T0)}, {s(S_P)}, 11\nv_lshl_add_u32 {v(VC)}, {v(VL)}, 4, {s(S_T0)}')
    KA = 8
    k.e(f's_mul_i32 {s(S_T0)}, {s(S_D)}, {KRS}')
    tk = []
    for i in range(2):
        b = KA + 12 * i
        k.vm(f'buffer_load_dwordx4 {v(b,4)}, {v(VC)}, {s(SK,4)}, {s(S_T0)} offen offset:{1024*i}')
        k.vm(f'buffer_load_dwordx4 {v(b+4,4)}, {v(VC)}, {s(SK,4)}, {s(S_T0)} offen offset:{1024*i+4}')
        tk.append(k.vm(f'buffer_load_dword {v(b+8)}, {v(VC)}, {s(SK,4)}, {s(S_T0)} offen offset:{1024*i+20}'))
    XN = 32
    k.e(f's_lshl_b32 {s(S_T1)}, {s(S_D)}, 12')
    tx = [k.vm(f'buffer_load_dwordx4 {v(XN+4*i,4)}, {v(VC)}, {s(SXN,4)}, {s(S_T1)} offen offset:{1024*i}') for i in range(2)]
    SA, C1, GA, DS = 40, 42, 44, 46
    k.e(f's_lshl_b32 {s(S_T0)}, {s(S_D)}, 2\nv_mov_b32 {v(VT)}, {s(S_T0)}')
    k.vm(f'buffer_load_dword {v(SA)}, {v(VT)}, {s(SMOD,4)}, 0 offen')
    tm = k.vm(f'buffer_load_dword {v(C1)}, {v(VT)}, {s(SMOD,4)}, 0 offen offset:2048')
    k.e(f'v_add_u32 {v(VU)}, 4096, {v(VT)}')
    k.vm(f'buffer_load_dword {v(GA)}, {v(VU)}, {s(SMOD,4)}, 0 offen')
    k.e(f'v_lshrrev_b32 {v(VU)}, 1, {v(VT)}')
    td = k.vm(f'buffer_load_ushort {v(DS)}, {v(VU)}, {s(SDS,4)}, 0 offen')
    VE = 6; XE = 48
    k.e(f'v_and_b32 {v(VT)}, 15, {v(VL)}\nv_lshrrev_b32 {v(VU)}, 4, {v(VL)}')
    k.e(f'v_lshlrev_b32 {v(VE)}, 5, {v(VT)}\nv_lshl_add_u32 {v(VE)}, {v(VU)}, 3, {v(VE)}')
    k.e(f's_lshl_b32 {s(S_T0)}, {s(S_P)}, 11\nv_add_u32 {v(VE)}, {s(S_T0)}, {v(VE)}')
    te = [k.vm(f'buffer_load_dwordx2 {v(XE+2*i,2)}, {v(VE)}, {s(SXT,4)}, {s(S_T1)} offen offset:{512*i}') for i in range(4)]
    VKW, VHW, VTA, VHA, VHE = 56, 57, 58, 59, 60
    k.e(f's_mul_i32 {s(S_T0)}, {s(S_CH)}, {KCH}\nv_add_u32 {v(VKW)}, {s(S_T0)}, {v(VC)}')
    k.e(f's_mul_i32 {s(61)}, {s(S_CH)}, {HPS}\ns_add_u32 {s(61)}, {s(61)}, {HP0}')
    k.e(f'v_add_u32 {v(VHW)}, {s(61)}, {v(VC)}')
    k.e(f'v_sub_u32 {v(VTA)}, 3, {v(VT)}\nv_and_b32 {v(VTA)}, 3, {v(VTA)}\nv_mul_u32_u24 {v(VTA)}, {KCS}, {v(VTA)}')
    k.e(f'v_lshrrev_b32 {v(VHA)}, 2, {v(VT)}\nv_lshlrev_b32 {v(VHA)}, 3, {v(VHA)}\nv_sub_u32 {v(VTA)}, {v(VTA)}, {v(VHA)}')
    k.e(f'v_lshl_add_u32 {v(VTA)}, {v(VU)}, 4, {v(VTA)}')
    k.e(f's_lshl_b32 {s(S_T1)}, {s(S_P)}, 6\ns_sub_u32 {s(S_T1)}, 88, {s(S_T1)}\ns_add_u32 {s(S_T0)}, {s(S_T0)}, {s(S_T1)}')
    k.e(f'v_add_u32 {v(VTA)}, {s(S_T0)}, {v(VTA)}')
    k.e(f'v_lshlrev_b32 {v(VHA)}, 5, {v(VT)}\nv_lshl_add_u32 {v(VHA)}, {v(VU)}, 4, {v(VHA)}')
    k.e(f's_lshl_b32 {s(S_T1)}, {s(S_P)}, 6\ns_sub_u32 {s(S_T1)}, 64, {s(S_T1)}\ns_add_u32 {s(S_T1)}, {s(S_T1)}, {s(61)}')
    k.e(f'v_add_u32 {v(VHA)}, {s(S_T1)}, {v(VHA)}')
    k.e(f'v_add_u32 {v(VHE)}, {s(61)}, {v(VE)}')
    Z = 64
    for i in range(4): k.e(f'v_mov_b32 {v(Z+i)}, 0')
    lz1, lz2 = k.newlabel('z1'), k.newlabel('z2')
    k.e(f's_cmp_eq_u32 {s(S_P)}, 0'); k.e(f's_cbranch_scc0 {lz1}')
    k.e(f'v_lshrrev_b32 {v(Z+4)}, 1, {v(VL)}\nv_mul_u32_u24 {v(Z+4)}, {KCS}, {v(Z+4)}\nv_and_b32 {v(Z+5)}, 1, {v(VL)}\nv_lshl_add_u32 {v(Z+4)}, {v(Z+5)}, 4, {v(Z+4)}')
    k.e(f's_mul_i32 {s(S_T0)}, {s(S_CH)}, {KCH}\nv_add_u32 {v(Z+4)}, {s(S_T0)}, {v(Z+4)}')
    k.e('s_mov_b64 exec, 0xff')
    k.ds(f'ds_write_b128 {v(Z+4)}, {v(Z,4)} offset:4096')
    k.e('s_mov_b64 exec, -1')
    k.e(f's_branch {lz2}')
    k.label(lz1)
    k.e(f'v_lshlrev_b32 {v(Z+4)}, 4, {v(VL)}\nv_add_u32 {v(Z+4)}, {s(61)}, {v(Z+4)}')
    k.e('s_mov_b64 exec, 0x3fffffff')
    k.ds(f'ds_write_b128 {v(Z+4)}, {v(Z,4)}')
    k.e('s_mov_b64 exec, -1')
    k.label(lz2)
    U = 72; O = 88
    stamp(k, 1)
    k.wait(tm, tx[1])
    stamp(k, 2)
    for i in range(2):
        for j in range(4):
            k.e(f'v_lshlrev_b32 {v(U+2*j)}, 16, {v(XN+4*i+j)}\nv_and_b32 {v(U+2*j+1)}, 0xffff0000, {v(XN+4*i+j)}')
        for j in range(4):
            k.e(f'v_pk_fma_f32 {v(U+2*j,2)}, {v(U+2*j,2)}, {v(C1,2)}, {v(SA,2)} op_sel_hi:[1,0,0]')
        for j in range(4):
            k.e(f'v_cvt_pk_bf16_f32 {v(O+4*i+j)}, {v(U+2*j)}, {v(U+2*j+1)}')
        k.ds(f'ds_write_b128 {v(VHW)}, {v(O+4*i,4)} offset:{480+1024*i}')
    for i in range(2):
        b = KA + 12 * i
        k.wait(tk[i])
        s1, s3 = U + 8 * i, U + 8 * i + 4
        for j in range(4): k.e(f'v_alignbit_b32 {v(s1+j)}, {v(b+4+j)}, {v(b+j)}, 16')
        for j in range(3): k.e(f'v_alignbit_b32 {v(s3+j)}, {v(b+5+j)}, {v(b+4+j)}, 16')
        k.e(f'v_alignbit_b32 {v(s3+3)}, {v(b+8)}, {v(b+7)}, 16')
        k.ds(f'ds_write_b128 {v(VKW)}, {v(b,4)} offset:{1024*i}')
        k.ds(f'ds_write_b128 {v(VKW)}, {v(s1,4)} offset:{1024*i+KCS}')
        k.ds(f'ds_write_b128 {v(VKW)}, {v(b+4,4)} offset:{1024*i+2*KCS}')
        k.ds(f'ds_write_b128 {v(VKW)}, {v(s3,4)} offset:{1024*i+3*KCS}')
    ACC = 96; TR = 8; NT = 4
    for i in range(32): k.e(f'v_mov_b32 {v(ACC+i)}, 0')
    stamp(k, 3)
    k.barrier()
    stamp(k, 4)
    def readT(m):
        r = TR + 4 * (m % NT)
        k.ds(f'ds_read_b64 {v(r,2)}, {v(VTA)} offset:{128*(31-m)}')
        return k.ds(f'ds_read_b64 {v(r+2,2)}, {v(VTA)} offset:{128*(31-m)+8}')
    def readH(hi): return k.ds(f'ds_read_b128 {a(4*hi,4)}, {v(VHA)} offset:{128*hi}')
    tT, tH = {}, {}
    tT[0] = readT(0)
    for t in range(8): tH[4*t+3] = readH(4*t+3)
    tT[1] = readT(1)
    for m in range(32):
        dl = m >> 2
        if m + 2 < 32: tT[m+2] = readT(m + 2)
        ts = list(range(dl, 8))
        for n, t in enumerate(ts):
            hi = 4 * t + 3 - m
            if m < 3:
                tH[hi - 1] = readH(hi - 1)
            k.wait(tT[m], tH[hi])
            mfma16(k, v(ACC+4*t,4), v(TR+4*(m % NT),4), a(4*hi,4))
    stamp(k, 5)
    lp1, lpj = k.newlabel('p1'), k.newlabel('pj')
    VR = 4
    k.e(f's_lshl_b32 {s(S_T0)}, {s(S_WAVE)}, 12\ns_add_u32 {s(S_T0)}, {s(S_T0)}, {RED}\nv_lshl_add_u32 {v(VR)}, {v(VL)}, 4, {s(S_T0)}')
    k.e(f's_cmp_eq_u32 {s(S_P)}, 0'); k.e(f's_cbranch_scc0 {lp1}')
    for i in range(4): k.ds(f'ds_write_b128 {v(VR)}, {v(ACC+16+4*i,4)} offset:{1024*i}')
    k.e(f's_branch {lpj}')
    k.label(lp1)
    k.flush_hazards(8)
    for i in range(4): k.ds(f'ds_write_b128 {v(VR)}, {v(ACC+4*i,4)} offset:{1024*i}')
    k.e('s_nop 1')
    for i in range(16): k.e(f'v_mov_b32 {v(ACC+i)}, {v(ACC+16+i)}')
    k.label(lpj)
    k.unknown_counters()
    k.e('s_waitcnt lgkmcnt(0)'); k.e('s_barrier')
    k.e(f'v_xor_b32 {v(VR)}, 4096, {v(VR)}') if RED % 8192 == 0 else None
    if RED % 8192 != 0:
        k.e(f's_xor_b32 {s(S_T0)}, {s(S_WAVE)}, 1\ns_lshl_b32 {s(S_T0)}, {s(S_T0)}, 12\ns_add_u32 {s(S_T0)}, {s(S_T0)}, {RED}\nv_lshl_add_u32 {v(VR)}, {v(VL)}, 4, {s(S_T0)}')
    stamp(k, 6)
    PR = 8; HE = 24
    tp = [k.ds(f'ds_read_b128 {v(PR+4*i,4)}, {v(VR)} offset:{1024*i}') for i in range(4)]
    th = [k.ds(f'ds_read_b64 {v(HE+2*i,2)}, {v(VHE)} offset:{480+512*i}') for i in range(4)]
    k.wait(td, te[3])
    k.e(f'v_lshlrev_b32 {v(DS)}, 16, {v(DS)}')
    k.e(f's_lshl_b32 {s(S_T1)}, {s(S_D)}, 12')
    for i in range(4):
        k.wait(tp[i], th[i])
        A_ = ACC + 4 * i
        k.e(f'v_pk_add_f32 {v(A_,2)}, {v(A_,2)}, {v(PR+4*i,2)}\nv_pk_add_f32 {v(A_+2,2)}, {v(A_+2,2)}, {v(PR+4*i+2,2)}')
        for j in range(2):
            k.e(f'v_lshlrev_b32 {v(U+2*j)}, 16, {v(HE+2*i+j)}\nv_and_b32 {v(U+2*j+1)}, 0xffff0000, {v(HE+2*i+j)}')
            k.e(f'v_lshlrev_b32 {v(U+4+2*j)}, 16, {v(XE+2*i+j)}\nv_and_b32 {v(U+4+2*j+1)}, 0xffff0000, {v(XE+2*i+j)}')
        for j in range(2):
            k.e(f'v_pk_fma_f32 {v(A_+2*j,2)}, {v(U+2*j,2)}, {v(DS,2)}, {v(A_+2*j,2)} op_sel_hi:[1,0,1]')
        for j in range(2):
            k.e(f'v_pk_fma_f32 {v(A_+2*j,2)}, {v(A_+2*j,2)}, {v(GA,2)}, {v(U+4+2*j,2)} op_sel_hi:[1,0,1]')
        k.e(f'v_cvt_pk_bf16_f32 {v(O+2*i)}, {v(A_)}, {v(A_+1)}\nv_cvt_pk_bf16_f32 {v(O+2*i+1)}, {v(A_+2)}, {v(A_+3)}')
        k.vm(f'buffer_store_dwordx2 {v(O+2*i,2)}, {v(VE)}, {s(SO,4)}, {s(S_T1)} offen offset:{512*i}')

def build_B(name):
    k = Kern(name)
    lend = k.newlabel('end')
    k.e(f's_cmp_ge_u32 s2, 256'); k.e(f's_cbranch_scc1 {lend}')
    load_all_ptrs(k); wave_id(k)
    k.e('s_waitcnt lgkmcnt(0)')
    stamp_begin(k)
    phase_B(k)
    stamp_end(k, 1)
    k.label(lend)
    k.e('s_endpgm')
    return k
```

```python
from common import *
from phaseA import load_all_ptrs, wave_id, OOB, S_WAVE, P_WS

S_RB64, S_J, S_RB32, S_G, S_R32, S_R64 = 90, 91, 92, 93, 94, 95
def wg_map(k, wg='s2'):
    k.e(f's_and_b32 {s(S_RB64)}, {wg}, 7\ns_lshl_b32 {s(S_RB64)}, {s(S_RB64)}, 2\ns_lshr_b32 {s(S_J)}, {wg}, 6\ns_add_u32 {s(S_RB64)}, {s(S_RB64)}, {s(S_J)}')
    k.e(f's_lshr_b32 {s(S_J)}, {wg}, 3\ns_and_b32 {s(S_J)}, {s(S_J)}, 7')
    k.e(f's_lshr_b32 {s(S_G)}, {s(S_J)}, 2\ns_lshl_b32 {s(S_RB32)}, {s(S_RB64)}, 1\ns_add_u32 {s(S_RB32)}, {s(S_RB32)}, {s(S_G)}')
    k.e(f's_and_b32 {s(S_G)}, {s(S_J)}, 3')
    k.e(f's_lshl_b32 {s(S_R32)}, {s(S_RB32)}, 5\ns_lshl_b32 {s(S_R64)}, {s(S_RB64)}, 6')

GELU_C0 = -2.0 * LOG2E * 0.7978845608028654
GELU_C1 = GELU_C0 * 0.044715
S_GC1 = 96
def gelu_consts(k, vc0):
    k.e(f's_mov_b32 {s(S_GC1)}, {hexf(GELU_C1)}\ns_mov_b32 {s(S_GC1+1)}, {hexf(GELU_C1)}')
    k.e(f'v_mov_b32 {v(vc0)}, {hexf(GELU_C0)}\nv_mov_b32 {v(vc0+1)}, {hexf(GELU_C0)}')
def gelu_steps(pairs, tmps, vc0):
    o = []
    for x, t in zip(pairs, tmps): o.append(f'v_pk_mul_f32 {v(t,2)}, {v(x,2)}, {v(x,2)}')
    for x, t in zip(pairs, tmps): o.append(f'v_pk_fma_f32 {v(t,2)}, {v(t,2)}, {s(S_GC1,2)}, {v(vc0,2)}')
    for x, t in zip(pairs, tmps): o.append(f'v_pk_mul_f32 {v(t,2)}, {v(t,2)}, {v(x,2)}')
    for x, t in zip(pairs, tmps): o += [f'v_exp_f32 {v(t)}, {v(t)}', f'v_exp_f32 {v(t+1)}, {v(t+1)}']
    for x, t in zip(pairs, tmps): o.append(f'v_pk_add_f32 {v(t,2)}, {v(t,2)}, 1.0 op_sel_hi:[1,0]')
    for x, t in zip(pairs, tmps): o += [f'v_rcp_f32 {v(t)}, {v(t)}', f'v_rcp_f32 {v(t+1)}, {v(t+1)}']
    for x, t in zip(pairs, tmps): o.append(f'v_pk_mul_f32 {v(x,2)}, {v(x,2)}, {v(t,2)}')
    return o

def reduce_q(k, regs, tmp):
    for op in ('v_permlane16_swap_b32', 'v_permlane32_swap_b32'):
        for i, r in enumerate(regs): k.e(f'v_mov_b32 {v(tmp+i)}, {v(r)}')
        for i, r in enumerate(regs): k.e(f'{op} {v(r)}, {v(tmp+i)}')
        for i, r in enumerate(regs): k.e(f'v_add_f32 {v(r)}, {v(r)}, {v(tmp+i)}')

def mean_rstd(k, sm, sq, t):
    k.e(f'v_mul_f32 {v(sm)}, {hexf(1/512)}, {v(sm)}')
    k.e(f'v_mul_f32 {v(t)}, {v(sm)}, {v(sm)}')
    k.e(f'v_mul_f32 {v(sq)}, {hexf(1/512)}, {v(sq)}')
    k.e(f'v_sub_f32 {v(sq)}, {v(sq)}, {v(t)}')
    k.e(f'v_max_f32 {v(sq)}, 0, {v(sq)}\nv_add_f32 {v(sq)}, {hexf(1e-5)}, {v(sq)}')
    k.e(f'v_rsq_f32 {v(sq)}, {v(sq)}')
    k.e(f'v_mul_f32 {v(sm)}, {v(sm)}, {v(sq)}\nv_sub_f32 {v(sm)}, 0, {v(sm)}')

C_XT, C_HB, C_PAR, C_ST = 0, 32768, 65536, 69632
LDS_C = 70656

def prefetch_W12(k, srdq, vlane16, s_tmp, abase=0):
    k.e(f's_lshl_b32 {s(s_tmp)}, {s(S_G)}, 2\ns_add_u32 {s(s_tmp)}, {s(s_tmp)}, {s(S_WAVE)}\ns_lshl_b32 {s(s_tmp)}, {s(s_tmp)}, 15')
    toks = []
    for f in range(32):
        if f and f % 4 == 0: k.e(f's_add_u32 {s(s_tmp)}, {s(s_tmp)}, 4096')
        toks.append(k.vm(f'buffer_load_dwordx4 {a(abase+4*f,4)}, {v(vlane16)}, {s(srdq,4)}, {s(s_tmp)} offen offset:{1024*(f%4)}'))
    return toks

def phase_C(k):
    S_T0, S_T1, S_T2, S_RT, S_KH = 44, 45, 46, 47, 60
    SX, SMOD, SW, SCS, SH1, SH2, SX2 = 48, 52, 56, 64, 68, 72, 76
    k.c('phase C : x2 -> LN -> modulate -> LN -> GEMM1 -> gelu')
    srd(k, SX, P_WS, X2T, 2 * MB)
    srd(k, SMOD, P_WS, MOD, 3072 * 4)
    srd(k, SW, P_WS, W1F, 512 * KB)
    srd(k, SCS, P_WS, CS1, 4096)
    srd(k, SH1, P_WS, H1C, 2 * MB)
    srd(k, SH2, P_WS, H2C, 2 * MB)
    srd(k, SX2, P_WS, X2C, 2 * MB)
    k.e(f's_and_b32 {s(S_RT)}, {s(S_WAVE)}, 1\ns_lshr_b32 {s(S_KH)}, {s(S_WAVE)}, 1')
    VL, VI, VQ, VT, VU = 2, 3, 4, 5, 6
    k.e(f'v_and_b32 {v(VL)}, 63, v0\nv_and_b32 {v(VI)}, 15, {v(VL)}\nv_lshrrev_b32 {v(VQ)}, 4, {v(VL)}')
    k.e(f'v_lshrrev_b32 {v(VT)}, 2, {v(VL)}')
    k.e(f'v_lshrrev_b32 {v(VU)}, 4, {v(VL)}\nv_and_b32 {v(VU)}, 2, {v(VU)}')
    k.e(f'v_and_b32 {v(7)}, 3, {v(VL)}\nv_xor_b32 {v(VU)}, {v(VU)}, {v(7)}')
    k.e(f'v_lshlrev_b32 {v(VT)}, 12, {v(VT)}\nv_lshl_add_u32 {v(VT)}, {v(VU)}, 4, {v(VT)}')
    k.e(f's_lshl_b32 {s(S_T1)}, {s(S_WAVE)}, 19\ns_lshl_b32 {s(S_T0)}, {s(S_R32)}, 1\ns_add_u32 {s(S_T1)}, {s(S_T1)}, {s(S_T0)}')
    k.e(f's_lshl_b32 {s(S_T2)}, {s(S_WAVE)}, 13')
    for i in range(8):
        k.e(f's_add_u32 m0, {s(S_T2)}, {C_XT + 1024*i}')
        if i: k.e(f's_add_u32 {s(S_T1)}, {s(S_T1)}, 0x10000')
        k.vm(f'buffer_load_dwordx4 {v(VT)}, {s(SX,4)}, {s(S_T1)} offen lds')
    k.e(f's_lshl_b32 {s(S_T0)}, {s(S_WAVE)}, 10\ns_add_u32 m0, {s(S_T0)}, {C_PAR}\ns_add_u32 {s(S_T0)}, {s(S_T0)}, {3*2048}')
    VL16 = 7
    k.e(f'v_lshlrev_b32 {v(VL16)}, 4, {v(VL)}')
    tdma = k.vm(f'buffer_load_dwordx4 {v(VL16)}, {s(SMOD,4)}, {s(S_T0)} offen lds')
    CS = 8
    k.e(f's_lshl_b32 {s(S_T0)}, {s(S_G)}, 2\ns_add_u32 {s(S_T0)}, {s(S_T0)}, {s(S_WAVE)}\ns_lshl_b32 {s(S_T0)}, {s(S_T0)}, 7')
    k.e(f'v_lshlrev_b32 {v(VT)}, 5, {v(VQ)}')
    k.vm(f'buffer_load_dwordx4 {v(CS,4)}, {v(VT)}, {s(SCS,4)}, {s(S_T0)} offen')
    k.vm(f'buffer_load_dwordx4 {v(CS+4,4)}, {v(VT)}, {s(SCS,4)}, {s(S_T0)} offen offset:16')
    k.vm(f'buffer_load_dwordx4 {v(CS+8,4)}, {v(VT)}, {s(SCS,4)}, {s(S_T0)} offen offset:2048')
    tcs = k.vm(f'buffer_load_dwordx4 {v(CS+12,4)}, {v(VT)}, {s(SCS,4)}, {s(S_T0)} offen offset:2064')
    tW = prefetch_W12(k, SW, VL16, S_T0)
    VTR, VPA, VHW, VST, VHR, VGO = 24, 25, 26, 27, 28, 29
    k.e(f'v_bfe_u32 {v(VT)}, {v(VL)}, 2, 2\nv_lshl_add_u32 {v(VT)}, {v(VQ)}, 3, {v(VT)}\nv_lshlrev_b32 {v(VTR)}, 6, {v(VT)}')
    k.e(f'v_bfe_u32 {v(VT)}, {v(VL)}, 1, 1\ns_lshl_b32 {s(S_T0)}, {s(S_RT)}, 1\nv_add_u32 {v(VT)}, {s(S_T0)}, {v(VT)}')
    k.e(f'v_and_b32 {v(VU)}, 1, {v(VQ)}\nv_lshlrev_b32 {v(VU)}, 1, {v(VU)}\nv_xor_b32 {v(VT)}, {v(VT)}, {v(VU)}')
    k.e(f'v_lshl_add_u32 {v(VTR)}, {v(VT)}, 4, {v(VTR)}\nv_and_b32 {v(VT)}, 1, {v(VL)}\nv_lshl_add_u32 {v(VTR)}, {v(VT)}, 3, {v(VTR)}')
    k.e(f's_lshl_b32 {s(S_T0)}, {s(S_KH)}, 14\nv_add_u32 {v(VTR)}, {s(S_T0)}, {v(VTR)}')
    k.e(f's_lshl_b32 {s(S_T0)}, {s(S_KH)}, 10\ns_add_u32 {s(S_T0)}, {s(S_T0)}, {C_PAR}\nv_lshl_add_u32 {v(VPA)}, {v(VQ)}, 5, {s(S_T0)}')
    k.e(f's_lshl_b32 {s(S_T0)}, {s(S_KH)}, 14\ns_lshl_b32 {s(S_T1)}, {s(S_RT)}, 8\ns_add_u32 {s(S_T0)}, {s(S_T0)}, {s(S_T1)}\ns_add_u32 {s(S_T0)}, {s(S_T0)}, {C_HB}')
    k.e(f'v_lshlrev_b32 {v(VHW)}, 9, {v(VQ)}\nv_lshl_add_u32 {v(VHW)}, {v(VI)}, 4, {v(VHW)}\nv_add_u32 {v(VHW)}, {s(S_T0)}, {v(VHW)}')
    k.e(f'v_lshlrev_b32 {v(VHR)}, 9, {v(VQ)}\nv_lshl_add_u32 {v(VHR)}, {v(VI)}, 4, {v(VHR)}\nv_add_u32 {v(VHR)}, {C_HB}, {v(VHR)}')
    k.e(f's_lshl_b32 {s(S_T0)}, {s(S_WAVE)}, 7\ns_add_u32 {s(S_T0)}, {s(S_T0)}, {C_ST}\nv_lshl_add_u32 {v(VST)}, {v(VI)}, 3, {s(S_T0)}')
    k.e(f'v_add_u32 {v(VT)}, {s(S_R32)}, {v(VI)}\nv_lshlrev_b32 {v(VGO)}, 4, {v(VT)}\nv_lshl_add_u32 {v(VGO)}, {v(VQ)}, 15, {v(VGO)}')
    X = 32
    H = 64
    ONE = 30; S1, S2, S3, S4 = 96, 97, 98, 99; TM = 100
    k.e(f'v_mov_b32 {v(ONE)}, 0x3f803f80')
    for r in (S1, S2, S3, S4): k.e(f'v_mov_b32 {v(r)}, 0')
    stamp(k, 1)
    k.wait(tdma); k.e('s_barrier')
    stamp(k, 2)
    toks = []
    for st in range(8):
        k.ds(f'ds_read_b64_tr_b16 {v(X+4*st,2)}, {v(VTR)} offset:{2048*st}')
        toks.append(k.ds(f'ds_read_b64_tr_b16 {v(X+4*st+2,2)}, {v(VTR)} offset:{2048*st+256}'))
    for st in range(8):
        k.wait(toks[st])
        for i in range(4):
            k.e(f'v_dot2_f32_bf16 {v(S1 + (i&1))}, {v(X+4*st+i)}, {v(ONE)}, {v(S1 + (i&1))}')
            k.e(f'v_dot2_f32_bf16 {v(S3 + (i&1))}, {v(X+4*st+i)}, {v(X+4*st+i)}, {v(S3 + (i&1))}')
    k.e(f'v_add_f32 {v(S1)}, {v(S1)}, {v(S2)}\nv_add_f32 {v(S2)}, {v(S3)}, {v(S4)}')
    reduce_q(k, [S1, S2], TM)
    k.ds(f'ds_write_b64 {v(VST)}, {v(S1,2)}')
    k.barrier()
    k.e(f'v_xor_b32 {v(VT)}, 256, {v(VST)}')
    t = k.ds(f'ds_read_b64 {v(S3,2)}, {v(VT)}')
    stamp(k, 3)
    PA = 104
    def read_par(st):
        b = PA + 16 * (st & 1)
        k.ds(f'ds_read_b128 {v(b,4)}, {v(VPA)} offset:{128*st}')
        k.ds(f'ds_read_b128 {v(b+4,4)}, {v(VPA)} offset:{128*st+16}')
        k.ds(f'ds_read_b128 {v(b+8,4)}, {v(VPA)} offset:{128*st+2048}')
        return k.ds(f'ds_read_b128 {v(b+12,4)}, {v(VPA)} offset:{128*st+2064}')
    tp = {0: read_par(0)}
    k.wait(t)
    k.e(f'v_add_f32 {v(S1)}, {v(S1)}, {v(S3)}\nv_add_f32 {v(S2)}, {v(S2)}, {v(S4)}')
    mean_rstd(k, S1, S2, TM)
    RS, NMR = 136, 138
    k.e(f'v_mov_b32 {v(RS)}, {v(S2)}\nv_mov_b32 {v(NMR)}, {v(S1)}')
    for r in (S1, S2, S3, S4): k.e(f'v_mov_b32 {v(r)}, 0')
    U = 140
    for st in range(8):
        if st + 1 < 8: tp[st+1] = read_par(st + 1)
        b = PA + 16 * (st & 1)
        for i in range(4):
            k.e(f'v_lshlrev_b32 {v(U+2*i)}, 16, {v(X+4*st+i)}\nv_and_b32 {v(U+2*i+1)}, 0xffff0000, {v(X+4*st+i)}')
        for i in range(4):
            k.e(f'v_pk_fma_f32 {v(U+2*i,2)}, {v(U+2*i,2)}, {v(RS,2)}, {v(NMR,2)} op_sel_hi:[1,0,0]')
        k.wait(tp[st])
        for i in range(4):
            k.e(f'v_pk_fma_f32 {v(U+2*i,2)}, {v(U+2*i,2)}, {v(b+8+2*i,2)}, {v(b+2*i,2)}')
        for i in range(4):
            k.e(f'v_cvt_pk_bf16_f32 {v(H+4*st+i)}, {v(U+2*i)}, {v(U+2*i+1)}')
        k.ds(f'ds_write_b128 {v(VHW)}, {v(H+4*st,4)} offset:{2048*st}')
        for i in range(4):
            k.e(f'v_dot2_f32_bf16 {v(S1 + (i&1))}, {v(H+4*st+i)}, {v(ONE)}, {v(S1 + (i&1))}')
            k.e(f'v_dot2_f32_bf16 {v(S3 + (i&1))}, {v(H+4*st+i)}, {v(H+4*st+i)}, {v(S3 + (i&1))}')
    k.e(f'v_add_f32 {v(S1)}, {v(S1)}, {v(S2)}\nv_add_f32 {v(S2)}, {v(S3)}, {v(S4)}')
    reduce_q(k, [S1, S2], TM)
    k.ds(f'ds_write_b64 {v(VST)}, {v(S1,2)} offset:512')
    lskip, lodd, ldone = k.newlabel('skip'), k.newlabel('odd'), k.newlabel('sdone')
    stamp(k, 4)
    k.wait(tcs, tW[-1])
    k.e(f's_lshr_b32 {s(S_T0)}, {s(S_G)}, 1\ns_cmp_eq_u32 {s(S_T0)}, {s(S_KH)}'); k.e(f's_cbranch_scc0 {ldone}')
    k.e(f's_lshl_b32 {s(S_T0)}, {s(S_G)}, 19\ns_lshl_b32 {s(S_T1)}, {s(S_RT)}, 8\ns_add_u32 {s(S_T0)}, {s(S_T0)}, {s(S_T1)}')
    k.e(f's_bitcmp1_b32 {s(S_G)}, 0'); k.e(f's_cbranch_scc1 {lodd}')
    for base, lab in ((0, None), (4, lodd)):
        if lab: k.label(lab)
        for i in range(4):
            k.vm(f'buffer_store_dwordx4 {v(H+4*(base+i),4)}, {v(VGO)}, {s(SH2,4)}, {s(S_T0)} offen')
            k.vm(f'buffer_store_dwordx4 {v(X+4*(base+i),4)}, {v(VGO)}, {s(SX2,4)}, {s(S_T0)} offen')
            if i < 3: k.e(f's_add_u32 {s(S_T0)}, {s(S_T0)}, 0x20000')
        if not lab: k.e(f's_branch {ldone}')
    k.label(ldone)
    k.barrier()
    stamp(k, 5)
    k.e(f'v_lshlrev_b32 {v(VT)}, 3, {v(VI)}\nv_add_u32 {v(VT)}, {C_ST + 512}, {v(VT)}')
    ST = 96
    ts = [k.ds(f'ds_read_b64 {v(ST+2*w,2)}, {v(VT)} offset:{128*w}') for w in range(4)]
    ACC = 140; BF = 104; NB = 4
    for i in range(16): k.e(f'v_mov_b32 {v(ACC+i)}, 0')
    def readB(st):
        b = BF + 8 * (st % NB)
        k.ds(f'ds_read_b128 {v(b,4)}, {v(VHR)} offset:{2048*st}')
        return k.ds(f'ds_read_b128 {v(b+4,4)}, {v(VHR)} offset:{2048*st+256}')
    tb = {0: readB(0), 1: readB(1)}
    k.wait(ts[3])
    k.e(f'v_pk_add_f32 {v(ST,2)}, {v(ST,2)}, {v(ST+4,2)}\nv_pk_add_f32 {v(ST+2,2)}, {v(ST+2,2)}, {v(ST+6,2)}')
    for st in range(16):
        if st + 2 < 16: tb[st+2] = readB(st + 2)
        k.wait(tb[st])
        b = BF + 8 * (st % NB)
        for rt in range(2):
            for tau in range(2):
                mfma16(k, v(ACC+8*rt+4*tau,4), a(8*st+4*tau,4), v(b+4*rt,4))
        if st == 0:
            mean_rstd(k, ST, ST+1, TM); mean_rstd(k, ST+2, ST+3, TM)
            for i in range(8): k.e(f'v_add_f32 {v(CS+i)}, {v(CS+i)}, {v(CS+8+i)}')
    stamp(k, 6)
    GC0 = 30
    gelu_consts(k, GC0)
    RSB = [100, 102]; NMB = [104, 106]
    for rt in range(2):
        k.e(f'v_mov_b32 {v(RSB[rt])}, {v(ST+2*rt+1)}\nv_mov_b32 {v(NMB[rt])}, {v(ST+2*rt)}')
    k.e(f's_lshl_b32 {s(S_T0)}, {s(S_G)}, 2\ns_add_u32 {s(S_T0)}, {s(S_T0)}, {s(S_WAVE)}\ns_lshl_b32 {s(S_T0)}, {s(S_T0)}, 17')
    TP = 112; O = 32
    for rt in range(2):
        prs = [ACC + 8*rt + 2*i for i in range(4)]
        for i, p in enumerate(prs): k.e(f'v_pk_mul_f32 {v(p,2)}, {v(p,2)}, {v(RSB[rt],2)} op_sel_hi:[1,0]')
        for i, p in enumerate(prs): k.e(f'v_pk_fma_f32 {v(p,2)}, {v(CS+2*i,2)}, {v(NMB[rt],2)}, {v(p,2)} op_sel_hi:[1,0,1]')
        for ins in gelu_steps(prs, [TP + 2*i for i in range(4)], GC0): k.e(ins)
        for i, p in enumerate(prs): k.e(f'v_cvt_pk_bf16_f32 {v(O+4*rt+i)}, {v(p)}, {v(p+1)}')
        k.vm(f'buffer_store_dwordx4 {v(O+4*rt,4)}, {v(VGO)}, {s(SH1,4)}, {s(S_T0)} offen offset:{256*rt}')

def build_C(name):
    k = Kern(name)
    lend = k.newlabel('end')
    k.e(f's_cmp_ge_u32 s2, 256'); k.e(f's_cbranch_scc1 {lend}')
    load_all_ptrs(k); wave_id(k); wg_map(k)
    k.e('s_waitcnt lgkmcnt(0)')
    stamp_begin(k)
    phase_C(k)
    stamp_end(k, 2)
    k.label(lend)
    k.e('s_endpgm')
    return k
```

```python
from common import *
from phaseA import load_all_ptrs, wave_id, OOB, S_WAVE, P_WS
from phaseC import *

D_HB, D_ST = 0, 32768
LDS_D = 32768 + 1024

def phase_D(k):
    S_T0, S_T1, S_T2, S_SG = 44, 45, 46, 47
    SH1, SH2, SW, SX1, SST = 48, 52, 56, 64, 68
    k.c('phase D : shifted h1 @ w2 + h2 -> x1, row statistics')
    srd(k, SH1, P_WS, H1C, 2 * MB)
    srd(k, SH2, P_WS, H2C, 2 * MB)
    srd(k, SW, P_WS, W2F, 512 * KB)
    srd(k, SX1, P_WS, X1C, 2 * MB)
    srd(k, SST, P_WS, ST4, 2048 * 32)
    VL, VI, VQ, VT, VU = 2, 3, 4, 5, 6
    k.e(f'v_and_b32 {v(VL)}, 63, v0\nv_and_b32 {v(VI)}, 15, {v(VL)}\nv_lshrrev_b32 {v(VQ)}, 4, {v(VL)}')
    k.e(f's_lshr_b32 {s(S_T0)}, {s(S_WAVE)}, 1\ns_add_u32 {s(S_T0)}, {s(S_T0)}, 1')
    k.e(f's_sub_u32 {s(S_T1)}, 0, {s(S_T0)}\ns_bitcmp1_b32 {s(S_WAVE)}, 0\ns_cselect_b32 {s(S_SG)}, {s(S_T0)}, {s(S_T1)}')
    k.e(f's_add_u32 {s(S_T0)}, {s(S_R32)}, {s(S_SG)}')
    VO0, VO1 = 8, 9
    for rt, vo in ((0, VO0), (1, VO1)):
        k.e(f'v_add_u32 {v(VT)}, {s(S_T0)}, {v(VI)}')
        if rt: k.e(f'v_add_u32 {v(VT)}, 16, {v(VT)}')
        k.e(f'v_lshlrev_b32 {v(vo)}, 4, {v(VT)}\nv_lshl_add_u32 {v(vo)}, {v(VQ)}, 15, {v(vo)}')
        k.e(f'v_mov_b32 {v(VU)}, {hex(OOB)}\nv_cmp_gt_u32 vcc, 2048, {v(VT)}\nv_cndmask_b32 {v(vo)}, {v(VU)}, {v(vo)}, vcc')
    k.e(f's_lshl_b32 {s(S_T1)}, {s(S_WAVE)}, 19')
    k.e(f's_lshl_b32 {s(S_T2)}, {s(S_WAVE)}, 13')
    for i in range(4):
        for rt, vo in ((0, VO0), (1, VO1)):
            k.e(f's_add_u32 m0, {s(S_T2)}, {D_HB + 2048*i + 1024*rt}')
            tdma = k.vm(f'buffer_load_dwordx4 {v(vo)}, {s(SH1,4)}, {s(S_T1)} offen lds')
        if i < 3: k.e(f's_add_u32 {s(S_T1)}, {s(S_T1)}, 0x20000')
    VGO, VL16 = 10, 11
    k.e(f'v_add_u32 {v(VT)}, {s(S_R32)}, {v(VI)}\nv_lshlrev_b32 {v(VGO)}, 4, {v(VT)}\nv_lshl_add_u32 {v(VGO)}, {v(VQ)}, 15, {v(VGO)}')
    S_PO = 60
    k.e(f's_lshl_b32 {s(S_PO)}, {s(S_G)}, 2\ns_add_u32 {s(S_PO)}, {s(S_PO)}, {s(S_WAVE)}\ns_lshl_b32 {s(S_PO)}, {s(S_PO)}, 17')
    H2 = 12
    k.vm(f'buffer_load_dwordx4 {v(H2,4)}, {v(VGO)}, {s(SH2,4)}, {s(S_PO)} offen')
    th2 = k.vm(f'buffer_load_dwordx4 {v(H2+4,4)}, {v(VGO)}, {s(SH2,4)}, {s(S_PO)} offen offset:256')
    k.e(f'v_lshlrev_b32 {v(VL16)}, 4, {v(VL)}')
    tW = prefetch_W12(k, SW, VL16, S_T0)
    ACC = 20; BF = 36; NB = 4
    for i in range(16): k.e(f'v_mov_b32 {v(ACC+i)}, 0')
    stamp(k, 1)
    k.wait(tdma); k.e('s_barrier')
    stamp(k, 2)
    def readB(st):
        b = BF + 8 * (st % NB)
        k.ds(f'ds_read_b128 {v(b,4)}, {v(VL16)} offset:{D_HB + 2048*st}')
        return k.ds(f'ds_read_b128 {v(b+4,4)}, {v(VL16)} offset:{D_HB + 2048*st + 1024}')
    tb = {0: readB(0), 1: readB(1)}
    for st in range(16):
        if st + 2 < 16: tb[st+2] = readB(st + 2)
        k.wait(tb[st], tW[2*st+1])
        b = BF + 8 * (st % NB)
        for rt in range(2):
            for tau in range(2):
                mfma16(k, v(ACC+8*rt+4*tau,4), a(8*st+4*tau,4), v(b+4*rt,4))
    stamp(k, 3)
    U = 36; SM = 52; O = 60; TM = 68
    k.wait(th2)
    for rt in range(2):
        for i in range(4):
            k.e(f'v_lshlrev_b32 {v(U+8*rt+2*i)}, 16, {v(H2+4*rt+i)}\nv_and_b32 {v(U+8*rt+2*i+1)}, 0xffff0000, {v(H2+4*rt+i)}')
    for rt in range(2):
        for i in range(4):
            p = ACC + 8*rt + 2*i
            k.e(f'v_pk_add_f32 {v(p,2)}, {v(p,2)}, {v(U+8*rt+2*i,2)}')
    for rt in range(2):
        for i in range(4):
            p = ACC + 8*rt + 2*i
            k.e(f'v_cvt_pk_bf16_f32 {v(O+4*rt+i)}, {v(p)}, {v(p+1)}')
        k.vm(f'buffer_store_dwordx4 {v(O+4*rt,4)}, {v(VGO)}, {s(SX1,4)}, {s(S_PO)} offen offset:{256*rt}')
    for rt in range(2):
        p = ACC + 8*rt; sm = SM + 4*rt
        k.e(f'v_pk_add_f32 {v(sm,2)}, {v(p,2)}, {v(p+2,2)}\nv_pk_mul_f32 {v(sm+2,2)}, {v(p,2)}, {v(p,2)}')
        k.e(f'v_pk_add_f32 {v(sm,2)}, {v(sm,2)}, {v(p+4,2)}\nv_pk_fma_f32 {v(sm+2,2)}, {v(p+2,2)}, {v(p+2,2)}, {v(sm+2,2)}')
        k.e(f'v_pk_add_f32 {v(sm,2)}, {v(sm,2)}, {v(p+6,2)}\nv_pk_fma_f32 {v(sm+2,2)}, {v(p+4,2)}, {v(p+4,2)}, {v(sm+2,2)}')
        k.e(f'v_pk_fma_f32 {v(sm+2,2)}, {v(p+6,2)}, {v(p+6,2)}, {v(sm+2,2)}')
    for rt in range(2):
        sm = SM + 4*rt
        k.e(f'v_add_f32 {v(sm)}, {v(sm)}, {v(sm+1)}\nv_add_f32 {v(sm+1)}, {v(sm+2)}, {v(sm+3)}')
    reduce_q(k, [SM, SM+1, SM+4, SM+5], TM)
    k.e(f's_lshl_b32 {s(S_T0)}, {s(S_WAVE)}, 8\ns_add_u32 {s(S_T0)}, {s(S_T0)}, {D_ST}\nv_lshl_add_u32 {v(VT)}, {v(VI)}, 3, {s(S_T0)}')
    k.ds(f'ds_write_b64 {v(VT)}, {v(SM,2)}')
    k.ds(f'ds_write_b64 {v(VT)}, {v(SM+4,2)} offset:128')
    k.barrier()
    stamp(k, 4)
    lend = k.newlabel('dend')
    k.e(f's_cmp_eq_u32 {s(S_WAVE)}, 0'); k.e(f's_cbranch_scc0 {lend}')
    k.e(f'v_and_b32 {v(VT)}, 31, {v(VL)}\nv_lshlrev_b32 {v(VU)}, 3, {v(VT)}\nv_add_u32 {v(VU)}, {D_ST}, {v(VU)}')
    ts = [k.ds(f'ds_read_b64 {v(U+2*w,2)}, {v(VU)} offset:{256*w}') for w in range(4)]
    k.e(f'v_add_u32 {v(VT)}, {s(S_R32)}, {v(VT)}\nv_lshlrev_b32 {v(VT)}, 5, {v(VT)}')
    k.e(f'v_mov_b32 {v(VU)}, {hex(OOB)}\nv_cmp_gt_u32 vcc, 32, {v(VL)}\nv_cndmask_b32 {v(VT)}, {v(VU)}, {v(VT)}, vcc')
    k.e(f's_lshl_b32 {s(S_T0)}, {s(S_G)}, 3')
    k.wait(ts[3])
    k.e(f'v_pk_add_f32 {v(U,2)}, {v(U,2)}, {v(U+2,2)}\nv_pk_add_f32 {v(U+4,2)}, {v(U+4,2)}, {v(U+6,2)}\nv_pk_add_f32 {v(U,2)}, {v(U,2)}, {v(U+4,2)}')
    k.vm(f'buffer_store_dwordx2 {v(U,2)}, {v(VT)}, {s(SST,4)}, {s(S_T0)} offen')
    k.label(lend)

def build_D(name):
    k = Kern(name)
    lend = k.newlabel('end')
    k.e(f's_cmp_ge_u32 s2, 256'); k.e(f's_cbranch_scc1 {lend}')
    load_all_ptrs(k); wave_id(k); wg_map(k)
    k.e('s_waitcnt lgkmcnt(0)')
    stamp_begin(k)
    phase_D(k)
    stamp_end(k, 3)
    k.label(lend)
    k.e('s_endpgm')
    return k
```

```python
from common import *
from phaseA import load_all_ptrs, wave_id, OOB, S_WAVE, P_WS
from phaseC import *

E_XB = 0
LDS_E = 65536

def prefetch_W3(k, srdq, vlane16, s_gw, s_tmp):
    k.e(f's_mul_i32 {s(s_tmp)}, {s(s_gw)}, {3*16384}')
    toks = {}
    order = [(i, st) for st in range(0, 16, 4) for i in range(3)]
    for (i, st0) in order:
        k.e(f's_add_u32 {s(s_tmp+1)}, {s(s_tmp)}, {i*16384 + st0*1024}')
        for st in range(st0, st0 + 4):
            toks[(i, st)] = k.vm(f'buffer_load_dwordx4 {a(4*(16*i+st),4)}, {v(vlane16)}, {s(srdq,4)}, {s(s_tmp+1)} offen offset:{1024*(st-st0)}')
    return toks

def phase_E(k):
    S_T0, S_T1, S_T2, S_GW = 44, 45, 46, 47
    SX1, SST, SW, SCS, SH = 48, 52, 56, 64, 68
    k.c('phase E : LN(x1) @ w3 -> gelu -> H')
    srd(k, SX1, P_WS, X1C, 2 * MB)
    srd(k, SST, P_WS, ST4, 2048 * 32)
    srd(k, SW, P_WS, W3F, W3F_BYTES)
    srd(k, SCS, P_WS, CS3, 2 * 1408 * 4)
    srd(k, SH, P_WS, HC, HC_BYTES)
    VL, VI, VQ, VT, VU = 2, 3, 4, 5, 6
    k.e(f'v_and_b32 {v(VL)}, 63, v0\nv_and_b32 {v(VI)}, 15, {v(VL)}\nv_lshrrev_b32 {v(VQ)}, 4, {v(VL)}')
    k.e(f's_lshl_b32 {s(S_GW)}, {s(S_J)}, 2\ns_add_u32 {s(S_GW)}, {s(S_GW)}, {s(S_WAVE)}')
    VGO, VL16 = 7, 8
    k.e(f'v_add_u32 {v(VT)}, {s(S_R64)}, {v(VI)}\nv_lshlrev_b32 {v(VGO)}, 4, {v(VT)}\nv_lshl_add_u32 {v(VGO)}, {v(VQ)}, 15, {v(VGO)}')
    k.e(f's_lshl_b32 {s(S_T1)}, {s(S_WAVE)}, 19\ns_lshl_b32 {s(S_T2)}, {s(S_WAVE)}, 14')
    for i in range(4):
        for rt in range(4):
            k.e(f's_add_u32 m0, {s(S_T2)}, {E_XB + 4096*i + 1024*rt}')
            k.e(f's_add_u32 {s(S_T0)}, {s(S_T1)}, {256*rt}')
            tdma = k.vm(f'buffer_load_dwordx4 {v(VGO)}, {s(SX1,4)}, {s(S_T0)} offen lds')
        if i < 3: k.e(f's_add_u32 {s(S_T1)}, {s(S_T1)}, 0x20000')
    STR = 16
    k.e(f'v_add_u32 {v(VT)}, {s(S_R64)}, {v(VI)}\nv_lshlrev_b32 {v(VT)}, 5, {v(VT)}')
    for rt in range(4):
        k.vm(f'buffer_load_dwordx4 {v(STR+8*rt,4)}, {v(VT)}, {s(SST,4)}, 0 offen offset:{512*rt}')
        tst = k.vm(f'buffer_load_dwordx4 {v(STR+8*rt+4,4)}, {v(VT)}, {s(SST,4)}, 0 offen offset:{512*rt+16}')
    CS = 48
    k.e(f's_mul_i32 {s(S_T0)}, {s(S_GW)}, {3*64}\nv_lshlrev_b32 {v(VT)}, 4, {v(VQ)}')
    for i in range(3):
        k.vm(f'buffer_load_dwordx4 {v(CS+4*i,4)}, {v(VT)}, {s(SCS,4)}, {s(S_T0)} offen offset:{64*i}')
    k.e(f's_add_u32 {s(S_T0)}, {s(S_T0)}, {1408*4}')
    for i in range(3):
        tcs = k.vm(f'buffer_load_dwordx4 {v(CS+12+4*i,4)}, {v(VT)}, {s(SCS,4)}, {s(S_T0)} offen offset:{64*i}')
    k.e(f'v_lshlrev_b32 {v(VL16)}, 4, {v(VL)}')
    tW = prefetch_W3(k, SW, VL16, S_GW, S_T0)
    VHO = 9
    k.e(f'v_add_u32 {v(VT)}, {s(S_R64)}, {v(VI)}\nv_lshlrev_b32 {v(VHO)}, 4, {v(VT)}')
    k.e(f'v_lshrrev_b32 {v(VT)}, 1, {v(VQ)}\nv_lshl_add_u32 {v(VHO)}, {v(VT)}, 15, {v(VHO)}')
    k.e(f'v_and_b32 {v(VT)}, 1, {v(VQ)}\nv_lshl_add_u32 {v(VHO)}, {v(VT)}, 3, {v(VHO)}')
    S_HO = 60
    k.e(f's_mul_i32 {s(S_HO)}, {s(S_GW)}, {3*65536}')
    GC0 = 10
    gelu_consts(k, GC0)
    stamp(k, 1)
    k.wait(tst, tcs)
    stamp(k, 2)
    RS = [72 + 4*rt for rt in range(4)]; NMB = [74 + 4*rt for rt in range(4)]
    for rt in range(4):
        b = STR + 8*rt
        k.e(f'v_pk_add_f32 {v(b,2)}, {v(b,2)}, {v(b+2,2)}\nv_pk_add_f32 {v(b+4,2)}, {v(b+4,2)}, {v(b+6,2)}\nv_pk_add_f32 {v(b,2)}, {v(b,2)}, {v(b+4,2)}')
    for rt in range(4):
        b = STR + 8*rt
        mean_rstd(k, b, b+1, b+2)
        k.e(f'v_mov_b32 {v(RS[rt])}, {v(b+1)}\nv_mov_b32 {v(NMB[rt])}, {v(b)}')
    for i in range(12): k.e(f'v_add_f32 {v(CS+i)}, {v(CS+i)}, {v(CS+12+i)}')
    k.wait(tdma); k.e('s_barrier')
    stamp(k, 3)
    ACC = [96, 108]
    BF = 120; NB = 4
    TP = 16; O = 28
    def readB(rt, st):
        return k.ds(f'ds_read_b128 {v(BF+4*((16*rt+st) % NB),4)}, {v(VL16)} offset:{E_XB + 4096*st + 1024*rt}')
    def epilogue(rt):
        A_ = ACC[rt & 1]; o = []
        prs = [A_ + 2*i for i in range(6)]
        for p in prs: o.append(f'v_pk_mul_f32 {v(p,2)}, {v(p,2)}, {v(RS[rt],2)} op_sel_hi:[1,0]')
        for i, p in enumerate(prs): o.append(f'v_pk_fma_f32 {v(p,2)}, {v(CS+2*i,2)}, {v(NMB[rt],2)}, {v(p,2)} op_sel_hi:[1,0,1]')
        o += gelu_steps(prs, [TP + 2*i for i in range(6)], GC0)
        for i, p in enumerate(prs): o.append(f'v_cvt_pk_bf16_f32 {v(O+i+8*(rt&1))}, {v(p)}, {v(p+1)}')
        for i in range(3):
            o.append(f's_add_u32 {s(S_T1)}, {s(S_HO)}, {65536*i + 256*rt}')
            o.append(f'buffer_store_dwordx2 {v(O+2*i+8*(rt&1),2)}, {v(VHO)}, {s(SH,4)}, {s(S_T1)} offen')
        return o
    seq = [(rt, st) for rt in range(4) for st in range(16)]
    tb = {}
    for n in range(2): tb[seq[n]] = readB(*seq[n])
    pend = []
    for n, (rt, st) in enumerate(seq):
        if n + 2 < len(seq): tb[seq[n+2]] = readB(*seq[n+2])
        if st == 0 and rt > 0: pend = epilogue(rt - 1)
        toks = [tb[(rt, st)]]
        if rt == 0: toks += [tW[(i, st)] for i in range(3)]
        k.wait(*toks)
        b = BF + 4 * ((16*rt+st) % NB)
        for i in range(3):
            acc = v(ACC[rt & 1] + 4*i, 4)
            mfma16(k, acc, a(4*(16*i+st),4), v(b,4), '0' if st == 0 else acc)
            if pend and (st > 0 or i == 2):
                nper = -(-len(pend) // max(1, (3*(15-st) + (3-i)) - 3))
                for _ in range(min(len(pend), max(1, nper))): k.e(pend.pop(0))
        if st == 15 and rt == 0: stamp(k, 4)
        if st == 15:
            for ins in pend: k.e(ins)
            pend = []
    stamp(k, 5)
    for ins in epilogue(3): k.e(ins)
    stamp(k, 6)

def build_E(name):
    k = Kern(name)
    lend = k.newlabel('end')
    k.e(f's_cmp_ge_u32 s2, 256'); k.e(f's_cbranch_scc1 {lend}')
    load_all_ptrs(k); wave_id(k); wg_map(k)
    k.e('s_waitcnt lgkmcnt(0)')
    stamp_begin(k)
    phase_E(k)
    stamp_end(k, 4)
    k.label(lend)
    k.e('s_endpgm')
    return k
```

```python
from common import *
from phaseA import load_all_ptrs, wave_id, OOB, S_WAVE, P_WS, P_OUT
from phaseC import *

F_RED = 0
LDS_F = 4 * 12 * 1024

def prefetch_W4(k, srdq, vlane16, s_tmp):
    k.e(f's_mul_i32 {s(s_tmp)}, {s(S_J)}, 176128\ns_mul_i32 {s(s_tmp+1)}, {s(S_WAVE)}, {11*4096}\ns_add_u32 {s(s_tmp)}, {s(s_tmp)}, {s(s_tmp+1)}')
    toks = {}
    for st in range(11):
        if st: k.e(f's_add_u32 {s(s_tmp)}, {s(s_tmp)}, 4096')
        for t in range(4):
            toks[(st, t)] = k.vm(f'buffer_load_dwordx4 {a(16*st+4*t,4)}, {v(vlane16)}, {s(srdq,4)}, {s(s_tmp)} offen offset:{1024*t}')
    return toks

def phase_F(k):
    S_T0, S_T1, S_T2, S_HO = 44, 45, 46, 47
    SH, SW, SX1, SX2, SMOD, SO = 48, 52, 56, 64, 68, 72
    k.c('phase F : H @ w4, final residual')
    srd(k, SH, P_WS, HC, HC_BYTES)
    srd(k, SW, P_WS, W4F, W4F_BYTES)
    srd(k, SX1, P_WS, X1C, 2 * MB)
    srd(k, SX2, P_WS, X2C, 2 * MB)
    srd(k, SMOD, P_WS, MOD, 3072 * 4)
    srd(k, SO, P_OUT, 0, 2 * MB)
    VL, VI, VQ, VT, VU = 2, 3, 4, 5, 6
    k.e(f'v_and_b32 {v(VL)}, 63, v0\nv_and_b32 {v(VI)}, 15, {v(VL)}\nv_lshrrev_b32 {v(VQ)}, 4, {v(VL)}')
    VGO, VL16 = 7, 8
    k.e(f'v_add_u32 {v(VT)}, {s(S_R64)}, {v(VI)}\nv_lshlrev_b32 {v(VGO)}, 4, {v(VT)}\nv_lshl_add_u32 {v(VGO)}, {v(VQ)}, 15, {v(VGO)}')
    k.e(f'v_lshlrev_b32 {v(VL16)}, 4, {v(VL)}')
    BF = 32; ND = 5
    k.e(f's_mul_i32 {s(S_HO)}, {s(S_WAVE)}, {11*131072}')
    tH = {}
    def loadH(st):
        if st: k.e(f's_add_u32 {s(S_HO)}, {s(S_HO)}, 0x20000')
        for rt in range(4):
            tH[(st, rt)] = k.vm(f'buffer_load_dwordx4 {v(BF+16*(st % ND)+4*rt,4)}, {v(VGO)}, {s(SH,4)}, {s(S_HO)} offen offset:{256*rt}')
    for st in range(2): loadH(st)
    tW = prefetch_W4(k, SW, VL16, S_T0)
    for st in range(2, ND): loadH(st)
    EX1, EX2, GB = 112, 120, 128
    VE = 9
    k.e(f's_lshl_b32 {s(S_T0)}, {s(S_WAVE)}, 8\nv_add_u32 {v(VE)}, {s(S_T0)}, {v(VGO)}\ns_lshl_b32 {s(S_T1)}, {s(S_J)}, 18')
    for p in range(2):
        k.vm(f'buffer_load_dwordx4 {v(EX1+4*p,4)}, {v(VE)}, {s(SX1,4)}, {s(S_T1)} offen')
        k.vm(f'buffer_load_dwordx4 {v(EX2+4*p,4)}, {v(VE)}, {s(SX2,4)}, {s(S_T1)} offen')
        if p == 0: k.e(f's_add_u32 {s(S_T1)}, {s(S_T1)}, 0x20000')
    k.e(f's_lshl_b32 {s(S_T1)}, {s(S_J)}, 8\ns_add_u32 {s(S_T1)}, {s(S_T1)}, {5*2048}\nv_lshlrev_b32 {v(VT)}, 5, {v(VQ)}')
    for p in range(2):
        k.vm(f'buffer_load_dwordx4 {v(GB+8*p,4)}, {v(VT)}, {s(SMOD,4)}, {s(S_T1)} offen offset:{128*p}')
        tep = k.vm(f'buffer_load_dwordx4 {v(GB+8*p+4,4)}, {v(VT)}, {s(SMOD,4)}, {s(S_T1)} offen offset:{128*p+16}')
    ACC = 144
    stamp(k, 1)
    k.wait(tH[(0, 0)], tW[(0, 3)])
    stamp(k, 2)
    for st in range(11):
        for rt in range(4):
            k.wait(tH[(st, rt)], tW[(st, 3)])
            for t in range(4):
                acc = v(ACC + 16*rt + 4*t, 4)
                mfma16(k, acc, a(16*st+4*t,4), v(BF+16*(st % ND)+4*rt,4), '0' if st == 0 else acc)
        if st + ND < 11: loadH(st + ND)
    stamp(k, 3)
    labs = [k.newlabel(f'r{w}') for w in range(4)]; lj = k.newlabel('rj')
    for w in range(1, 4):
        k.e(f's_cmp_eq_u32 {s(S_WAVE)}, {w}'); k.e(f's_cbranch_scc1 {labs[w]}')
    KEEP = 32
    for w in range(4):
        k.label(labs[w])
        k.flush_hazards(8)
        for rt in range(4):
            if rt == w: continue
            idx = rt - (1 if rt > w else 0)
            base = (w*3 + idx) * 4096
            if base + 3072 < 65536:
                for t in range(4): k.ds(f'ds_write_b128 {v(VL16)}, {v(ACC+16*rt+4*t,4)} offset:{base + 1024*t}')
        for i in range(16): k.e(f'v_mov_b32 {v(KEEP+i)}, {v(ACC+16*w+i)}')
        if w < 3: k.e(f's_branch {lj}')
    k.label(lj)
    k.unknown_counters()
    k.e('s_waitcnt lgkmcnt(0)'); k.e('s_barrier')
    stamp(k, 4)
    PR = 48
    for n in range(3):
        k.e(f's_cmp_ge_u32 {n}, {s(S_WAVE)}\ns_cselect_b32 {s(S_T0)}, 1, 0\ns_add_u32 {s(S_T1)}, {s(S_T0)}, {n}')
        k.e(f's_mul_i32 {s(S_T1)}, {s(S_T1)}, 3\ns_add_u32 {s(S_T1)}, {s(S_T1)}, {s(S_WAVE)}\ns_sub_u32 {s(S_T1)}, {s(S_T1)}, 1\ns_add_u32 {s(S_T1)}, {s(S_T1)}, {s(S_T0)}')
        k.e(f's_lshl_b32 {s(S_T1)}, {s(S_T1)}, 12\nv_add_u32 {v(VT)}, {s(S_T1)}, {v(VL16)}')
        for t in range(4): tr = k.ds(f'ds_read_b128 {v(PR+16*n+4*t,4)}, {v(VT)} offset:{1024*t}')
    k.e(f's_lshl_b32 {s(S_T0)}, {s(S_WAVE)}, 4\ns_add_u32 {s(S_T0)}, {s(S_T0)}, {s(S_R64)}\nv_add_u32 {v(VU)}, {s(S_T0)}, {v(VI)}')
    k.e(f'v_lshlrev_b32 {v(VU)}, 10, {v(VU)}\nv_lshl_add_u32 {v(VU)}, {v(VQ)}, 4, {v(VU)}\ns_lshl_b32 {s(S_T1)}, {s(S_J)}, 7')
    k.wait(tep, tr)
    for n in range(3):
        for i in range(8): k.e(f'v_pk_add_f32 {v(KEEP+2*i,2)}, {v(KEEP+2*i,2)}, {v(PR+16*n+2*i,2)}')
    U = 96; O = 48
    for p in range(2):
        for i in range(4):
            k.e(f'v_lshlrev_b32 {v(U+2*i)}, 16, {v(EX1+4*p+i)}\nv_and_b32 {v(U+2*i+1)}, 0xffff0000, {v(EX1+4*p+i)}')
            k.e(f'v_lshlrev_b32 {v(U+8+2*i)}, 16, {v(EX2+4*p+i)}\nv_and_b32 {v(U+8+2*i+1)}, 0xffff0000, {v(EX2+4*p+i)}')
        for i in range(4):
            x = KEEP + 8*p + 2*i
            k.e(f'v_pk_add_f32 {v(x,2)}, {v(x,2)}, {v(U+2*i,2)}')
        for i in range(4):
            x = KEEP + 8*p + 2*i
            k.e(f'v_pk_fma_f32 {v(x,2)}, {v(x,2)}, {v(GB+8*p+2*i,2)}, {v(U+8+2*i,2)}')
        for i in range(4):
            x = KEEP + 8*p + 2*i
            k.e(f'v_cvt_pk_bf16_f32 {v(O+4*p+i)}, {v(x)}, {v(x+1)}')
        k.vm(f'buffer_store_dwordx4 {v(O+4*p,4)}, {v(VU)}, {s(SO,4)}, {s(S_T1)} offen offset:{64*p}')

def build_F(name):
    k = Kern(name)
    lend = k.newlabel('end')
    k.e(f's_cmp_ge_u32 s2, 256'); k.e(f's_cbranch_scc1 {lend}')
    load_all_ptrs(k); wave_id(k); wg_map(k)
    k.e('s_waitcnt lgkmcnt(0)')
    stamp_begin(k)
    phase_F(k)
    stamp_end(k, 5)
    k.label(lend)
    k.e('s_endpgm')
    return k
```

```python
import sys
from common import *
import phaseA, phaseB, phaseC, phaseD, phaseE, phaseF, persist
MAIN = 'adaLN_cond__ssm_conv_s4__mixer_s_mlp__prompt_kernel'
def assemble(kerns, path):
    out = []
    for k, g, b, lds in kerns:
        out.append(f'; @launch kernel={k.name} grid=({g},1,1) block=({b},1,1) lds={lds}')
    out.append('.amdgcn_target "amdgcn-amd-amdhsa--gfx950"')
    out.append('.text')
    seen = set()
    for k, g, b, lds in kerns:
        if k.name in seen: continue
        seen.add(k.name)
        out.append(k.header()); out.append(k.text())
    out.append('.section .rodata,"a"')
    seen = set()
    for k, g, b, lds in kerns:
        if k.name in seen: continue
        seen.add(k.name)
        out.append('.p2align 6'); out.append(k.descriptor())
    open(path, 'w').write('\n'.join(out) + '\n')
if __name__ == '__main__':
    which = sys.argv[2] if len(sys.argv) > 2 else 'A'
    if 'P' in which:
        import common; common.PROF = True
    ks = []
    if 'A' in which: ks.append((phaseA.build_A(MAIN), 512, 256, phaseA.LDS_A))
    if 'B' in which: ks.append((phaseB.build_B('conv_kernel'), 256, 256, phaseB.LDS_B))
    if 'C' in which: ks.append((phaseC.build_C('gemm1_kernel'), 256, 256, phaseC.LDS_C))
    if 'D' in which: ks.append((phaseD.build_D('gemm2_kernel'), 256, 256, phaseD.LDS_D))
    if 'E' in which: ks.append((phaseE.build_E('gemm3_kernel'), 256, 256, phaseE.LDS_E))
    if 'F' in which: ks.append((phaseF.build_F('gemm4_kernel'), 256, 256, phaseF.LDS_F))
    if 'Q' in which: ks.append((persist.build_P('mlp_kernel'), 256, 256, persist.LDS_P))
    assemble(ks, sys.argv[1])
    for k, g, b, lds in ks: print(k.name[:12], 'v', k.maxv, 'a', k.maxa, 's', k.maxs, 'lds', lds, 'instrs', sum(1 for i in k.items if not isinstance(i, str)))
```

```python
from asmlib import *

L = 2048; D = 512; F = 1376; NM = 128
MB = 1 << 20; KB = 1 << 10
XT   = 0
XNT  = 2 * MB
X2T  = 4 * MB
KR   = 6 * MB;  KRS = 4160
H1C  = 9 * MB
H2C  = 11 * MB
X2C  = 13 * MB
X1C  = 15 * MB
HC   = 17 * MB; HC_BYTES = 172 * 32768
W1F  = 23 * MB
W2F  = 23 * MB + 512 * KB
W3F  = 24 * MB; W3F_BYTES = 86 * 16 * 1024
W4F  = 26 * MB; W4F_BYTES = 8 * 43 * 4 * 1024
MOD  = 28 * MB
CS1  = 28 * MB + 16 * KB
CS3  = 28 * MB + 32 * KB
ST4  = 28 * MB + 64 * KB
FLG  = 29 * MB
WS_USED = 30 * MB

ARG = dict(u=0, are=8, aim=16, bre=24, bim=32, cre=40, cim=48, ldt=56, dsk=64, bx=72, w1=80, w2=88, w3=96, w4=104, c=112, wmod=120, out=128, dbg=136, ws=144)

LOG2E = 1.4426950408889634
INV2PI = 0.15915494309189535
import struct
def f2u(x): return struct.unpack('<I', struct.pack('<f', x))[0]
def hexf(x): return hex(f2u(x))

def sload(k, sdst, name):
    k.e(f's_load_dwordx2 {s(sdst,2)}, s[0:1], {ARG[name]}')

def srd(k, sd, sp, off, nbytes):
    if off == 0:
        k.e(f's_mov_b32 {s(sd)}, {s(sp)}\ns_mov_b32 {s(sd+1)}, {s(sp+1)}')
    else:
        o = hex(off) if isinstance(off, int) else off
        k.e(f's_add_u32 {s(sd)}, {s(sp)}, {o}\ns_addc_u32 {s(sd+1)}, {s(sp+1)}, 0')
    k.e(f's_mov_b32 {s(sd+2)}, {hex(nbytes)}\ns_mov_b32 {s(sd+3)}, 0x20000')

def cmul(k, d, x, y):
    k.e(f'v_pk_mul_f32 {v(d,2)}, {v(x,2)}, {v(y,2)} op_sel_hi:[0,1]')
    k.e(f'v_pk_fma_f32 {v(d,2)}, {v(x,2)}, {v(y,2)}, {v(d,2)} op_sel:[1,1,0] op_sel_hi:[1,0,1] neg_lo:[1,0,0]')

def cmul_many(k, triples):
    for d, x, y in triples:
        k.e(f'v_pk_mul_f32 {v(d,2)}, {v(x,2)}, {v(y,2)} op_sel_hi:[0,1]')
    for d, x, y in triples:
        k.e(f'v_pk_fma_f32 {v(d,2)}, {v(x,2)}, {v(y,2)}, {v(d,2)} op_sel:[1,1,0] op_sel_hi:[1,0,1] neg_lo:[1,0,0]')

def mfma16(k, d, a_, b_, c=None):
    k.e(f'v_mfma_f32_16x16x32_bf16 {d}, {a_}, {b_}, {c if c is not None else d}')

def code_prefetch(k, lab_from, nbytes, vtmp, vdst, stmp, nthreads=256):
    pass

def l2_warm(k, srdq, p_ws, off, nbytes, s_slot, s_wave, vlane, vtmp, vdst, s_tmp, nwaves=4):
    n8 = -(-nbytes // 8192)
    per = -(-n8 // (32 * nwaves))
    srd(k, srdq, p_ws, off, nbytes)
    k.e(f's_mul_i32 {s(s_tmp)}, {s(s_slot)}, {nwaves}\ns_add_u32 {s(s_tmp)}, {s(s_tmp)}, {s(s_wave)}\ns_mul_i32 {s(s_tmp)}, {s(s_tmp)}, {per*8192}')
    k.e(f'v_lshlrev_b32 {v(vtmp)}, 7, {v(vlane)}')
    toks = []
    for i in range(per):
        toks.append(k.vm(f'buffer_load_dword {v(vdst)}, {v(vtmp)}, {s(srdq,4)}, {s(s_tmp)} offen'))
        if i + 1 < per: k.e(f's_add_u32 {s(s_tmp)}, {s(s_tmp)}, 8192')
    return toks

PROF = False
PROF_OFF = 29 * MB + 512 * KB
def stamp(k, i):
    if not PROF: return
    k.e('s_memtime s[98:99]'); k.e('s_waitcnt lgkmcnt(0)'); k.e(f'v_writelane_b32 v1, s98, {i}')
def stamp_rt(k, i):
    if not PROF: return
    k.e('s_memrealtime s[98:99]'); k.e('s_waitcnt lgkmcnt(0)'); k.e(f'v_writelane_b32 v1, s98, {i}')
def stamp_begin(k):
    if not PROF: return
    k.e('v_mov_b32 v1, 0')
    stamp_rt(k, 62)
    stamp(k, 0)
def stamp_end(k, kidx, p_ws=40):
    if not PROF: return
    k.e('s_waitcnt vmcnt(0)')
    stamp(k, 61)
    stamp_rt(k, 63)
    lab = k.newlabel('pe')
    k.e('s_cmp_eq_u32 s42, 0'); k.e(f's_cbranch_scc0 {lab}')
    srd(k, 48, p_ws, PROF_OFF + kidx * 131072, 131072)
    k.e('s_lshl_b32 s98, s2, 8')
    k.e('v_mbcnt_lo_u32_b32 v2, -1, 0\nv_mbcnt_hi_u32_b32 v2, -1, v2\nv_lshlrev_b32 v2, 2, v2')
    k.e('buffer_store_dword v1, v2, s[48:51], s98 offen')
    k.label(lab)
```

```python
from common import *
from phaseA import wave_id, OOB, S_WAVE
from phaseC import (wg_map, S_RB64, S_J, S_RB32, S_G, S_R32, S_R64, gelu_consts, gelu_steps, reduce_q, mean_rstd)
from collections import deque

P_WS, P_OUT = 40, 36
SW1, SW2, SW3, SW4, SFL = 4, 8, 12, 16, 20
S_NONCE, S_LID, S_BG, S_BG2 = 24, 25, 100, 101
SC = ' sc1'
VL, VI, VQ, VL16 = 2, 3, 4, 5
VT, VU = 6, 7

class BG:
    def __init__(self, k): self.k = k; self.q = {}; self.tok = {}
    def add(self, key, instrs): self.q.setdefault(key[0], deque()).append((key, instrs))
    def tick(self, name, n=1):
        q = self.q.get(name)
        for _ in range(n):
            if not q: return
            key, instrs = q.popleft()
            for i in instrs[:-1]: self.k.e(i)
            self.tok[key] = self.k.vm(instrs[-1])
    def drain(self, name): self.tick(name, len(self.q.get(name, ())))
    def need(self, *keys):
        for key in keys:
            while key not in self.tok: self.tick(key[0], 1)
        return [self.tok[key] for key in keys]

def phantom(k, text):
    k.e(text); k.vm_issued -= 1

S_O1, S_O2, S_O3, S_O4 = 26, 27, 28, 29
S_OFC, S_OFD, S_OFE, S_OFF = 30, 31, 32, 33
def q_W12(k, bg, name, srdq, areg0):
    so, of = (S_O1, S_OFC) if name == 'W1' else (S_O2, S_OFD)
    for f in range(32):
        pre = []
        if f == 0: pre = [f's_lshl_b32 {s(so)}, {s(of)}, 11']
        elif f % 2 == 0: pre = [f's_add_u32 {s(so)}, {s(so)}, 2048', f's_and_b32 {s(so)}, {s(so)}, 0x7fff']
        bg.add((name, f), pre + [f'buffer_load_dwordx4 {a(areg0+4*f,4)}, {v(VL16)}, {s(srdq,4)}, {s(so)} offen offset:{1024*(f%2)}'])

def w3reg(i, st): return a(4*(16*i+st), 4)
def q_W3(k, bg, tiles):
    for i in tiles:
        for st in range(16):
            if st == 0:
                pre = [f's_lshl_b32 {s(S_O3)}, {s(S_OFE)}, 10']
                if i: pre += [f's_add_u32 {s(SW3)}, {s(SW3)}, 16384', f's_addc_u32 {s(SW3+1)}, {s(SW3+1)}, 0',
                              f's_sub_i32 {s(SW3+2)}, {s(SW3+2)}, 16384', f's_max_i32 {s(SW3+2)}, {s(SW3+2)}, 0']
            else: pre = [f's_add_u32 {s(S_O3)}, {s(S_O3)}, 1024', f's_and_b32 {s(S_O3)}, {s(S_O3)}, 0x3fff']
            bg.add(('W3', i, st), pre + [f'buffer_load_dwordx4 {w3reg(i, st)}, {v(VL16)}, {s(SW3,4)}, {s(S_O3)} offen'])

def w4reg(st, t):
    f = 4*st + t
    return a(192 + 4*f, 4) if f < 16 else v(144 + 4*(f-16), 4)
def step11(so): return [f's_add_u32 {s(so)}, {s(so)}, 4096', f's_cmp_eq_u32 {s(so)}, {11*4096}', f's_cselect_b32 {s(so)}, 0, {s(so)}']
def q_W4(k, bg):
    for st in range(11):
        for t in range(4):
            pre = []
            if t == 0: pre = [f's_lshl_b32 {s(S_O4)}, {s(S_OFF)}, 12'] if st == 0 else step11(S_O4)
            bg.add(('W4', st, t), pre + [f'buffer_load_dwordx4 {w4reg(st, t)}, {v(VL16)}, {s(SW4,4)}, {s(S_O4)} offen offset:{1024*t}'])

def srd_dyn(k, sd, off_const, s_off, size_total):
    k.e(f's_add_u32 {s(sd)}, {s(P_WS)}, {hex(off_const)}\ns_addc_u32 {s(sd+1)}, {s(P_WS+1)}, 0')
    k.e(f's_add_u32 {s(sd)}, {s(sd)}, {s(s_off)}\ns_addc_u32 {s(sd+1)}, {s(sd+1)}, 0')
    k.e(f's_sub_i32 {s(sd+2)}, {hex(size_total)}, {s(s_off)}\ns_max_i32 {s(sd+2)}, {s(sd+2)}, 0\ns_mov_b32 {s(sd+3)}, 0x20000')

def rotations(k):
    rot = CFG['rot']
    k.e(f's_lshr_b32 s44, s2, 6\ns_lshr_b32 s45, {s(S_J)}, 2\ns_lshl_b32 s46, s44, 1\ns_add_u32 s46, s46, s45')
    k.e(f's_lshl_b32 {s(S_OFC)}, s46, 1')
    k.e(f's_add_u32 {s(S_OFD)}, s46, {s(S_G)}\ns_and_b32 {s(S_OFD)}, {s(S_OFD)}, 3\ns_lshl_b32 {s(S_OFD)}, {s(S_OFD)}, 2')
    k.e(f's_lshl_b32 {s(S_OFE)}, s44, 1\ns_add_u32 {s(S_OFE)}, {s(S_OFE)}, {s(S_J)}\ns_lshl_b32 {s(S_OFE)}, {s(S_OFE)}, 1\ns_and_b32 {s(S_OFE)}, {s(S_OFE)}, 15')
    k.e(f's_mul_i32 {s(S_OFF)}, s44, 3\ns_add_u32 {s(S_OFF)}, {s(S_OFF)}, {s(S_J)}\ns_cmp_ge_u32 {s(S_OFF)}, 11\ns_cselect_b32 s45, 11, 0\ns_sub_u32 {s(S_OFF)}, {s(S_OFF)}, s45')
    if not rot:
        for r in (S_OFC, S_OFD, S_OFE, S_OFF): k.e(f's_mov_b32 {s(r)}, 0')

def mean_var(k, sm, sq, t):
    k.e(f'v_mul_f32 {v(sm)}, {hexf(-1/512)}, {v(sm)}')
    k.e(f'v_mul_f32 {v(t)}, {v(sm)}, {v(sm)}')
    k.e(f'v_mul_f32 {v(sq)}, {hexf(1/512)}, {v(sq)}')
    k.e(f'v_sub_f32 {v(sq)}, {v(sq)}, {v(t)}')
    k.e(f'v_max_f32 {v(sq)}, 0, {v(sq)}\nv_add_f32 {v(sq)}, {hexf(1e-5)}, {v(sq)}')
GC0_ = -2.0 * LOG2E * 0.7978845608028654
GC1_ = GC0_ * 0.044715
def gelu_row_consts(k, nm, ve, out, t):
    NM_, A_, B_, IR_ = out
    k.e(f'v_rsq_f32 {v(t)}, {v(ve)}')
    k.e(f'v_mov_b32 {v(NM_)}, {v(nm)}')
    k.e(f'v_mul_f32 {v(IR_)}, {v(ve)}, {v(t)}')
    k.e(f'v_mul_f32 {v(A_)}, {hexf(GC0_)}, {v(t)}')
    k.e(f'v_mul_f32 {v(B_)}, {v(t)}, {v(t)}\nv_mul_f32 {v(B_)}, {v(B_)}, {v(t)}\nv_mul_f32 {v(B_)}, {hexf(GC1_)}, {v(B_)}')
def gelu_pk(prs, css, tmps, NM_, A_, B_, IR_):
    o = []
    for x, c in zip(prs, css): o.append(f'v_pk_fma_f32 {v(x,2)}, {v(c,2)}, {v(NM_,2)}, {v(x,2)} op_sel_hi:[1,0,1]')
    for x, t in zip(prs, tmps): o.append(f'v_pk_mul_f32 {v(t,2)}, {v(x,2)}, {v(x,2)}')
    for x, t in zip(prs, tmps): o.append(f'v_pk_fma_f32 {v(t,2)}, {v(t,2)}, {v(B_,2)}, {v(A_,2)} op_sel_hi:[1,0,0]')
    for x, t in zip(prs, tmps): o.append(f'v_pk_mul_f32 {v(t,2)}, {v(t,2)}, {v(x,2)}')
    for x, t in zip(prs, tmps): o += [f'v_exp_f32 {v(t)}, {v(t)}', f'v_exp_f32 {v(t+1)}, {v(t+1)}']
    for x, t in zip(prs, tmps): o.append(f'v_pk_fma_f32 {v(t,2)}, {v(t,2)}, {v(IR_,2)}, {v(IR_,2)} op_sel_hi:[1,0,0]')
    for x, t in zip(prs, tmps): o += [f'v_rcp_f32 {v(t)}, {v(t)}', f'v_rcp_f32 {v(t+1)}, {v(t+1)}']
    for x, t in zip(prs, tmps): o.append(f'v_pk_mul_f32 {v(x,2)}, {v(x,2)}, {v(t,2)}')
    return o
def gelu_plain(regs, css, tmps, NM_, A_, B_, IR_):
    o = []
    for x, c in zip(regs, css): o.append(f'v_fma_f32 {v(x)}, {v(c)}, {v(NM_)}, {v(x)}')
    for x, t in zip(regs, tmps): o.append(f'v_mul_f32 {v(t)}, {v(x)}, {v(x)}')
    for x, t in zip(regs, tmps): o.append(f'v_fma_f32 {v(t)}, {v(t)}, {v(B_)}, {v(A_)}')
    for x, t in zip(regs, tmps): o.append(f'v_mul_f32 {v(t)}, {v(t)}, {v(x)}')
    for x, t in zip(regs, tmps): o.append(f'v_exp_f32 {v(t)}, {v(t)}')
    for x, t in zip(regs, tmps): o.append(f'v_fma_f32 {v(t)}, {v(t)}, {v(IR_)}, {v(IR_)}')
    for x, t in zip(regs, tmps): o.append(f'v_rcp_f32 {v(t)}, {v(t)}')
    for x, t in zip(regs, tmps): o.append(f'v_mul_f32 {v(x)}, {v(x)}, {v(t)}')
    return o

def publish(k, phase, reread=None):
    k.e('s_waitcnt vmcnt(0)')
    k.barrier()
    lab = k.newlabel('pub')
    k.e(f's_cmp_eq_u32 {s(S_WAVE)}, 0'); k.e(f's_cbranch_scc0 {lab}')
    k.e(f's_lshl_b32 s44, {s(S_LID)}, 6\ns_add_u32 s44, s44, {phase*16384}')
    k.e(f'v_mov_b32 {v(VT)}, {s(S_NONCE)}\nv_mov_b32 {v(VU)}, {hex(OOB)}\nv_cmp_eq_u32 vcc, 0, {v(VL)}\nv_cndmask_b32 {v(VU)}, {v(VU)}, {v(VL)}, vcc')
    phantom(k, f'buffer_store_dword {v(VT)}, {v(VU)}, {s(SFL,4)}, s44 offen{SC}')
    k.label(lab)
    if reread and CFG['reread']: reread()

def await_flags(k, phase, s_first, count):
    lab, lp, lo = k.newlabel('aw'), k.newlabel('poll'), k.newlabel('pout')
    k.e(f's_cmp_eq_u32 {s(S_WAVE)}, 0'); k.e(f's_cbranch_scc0 {lab}')
    k.e(f'v_add_u32 {v(VT)}, {s(s_first)}, {v(VL)}')
    k.e(f'v_cmp_gt_u32 vcc, 256, {v(VT)}\nv_cmp_gt_u32 s[46:47], {count}, {v(VL)}\ns_and_b64 vcc, vcc, s[46:47]')
    k.e(f'v_lshlrev_b32 {v(VT)}, 6, {v(VT)}\nv_add_u32 {v(VT)}, {phase*16384}, {v(VT)}')
    k.e('s_mov_b64 exec, vcc')
    k.e('s_mov_b32 s44, 0')
    k.label(lp)
    done = k.vm_done
    phantom(k, f'buffer_load_dword {v(VU)}, {v(VT)}, {s(SFL,4)}, 0 offen{SC}')
    k.e('s_waitcnt vmcnt(0)')
    k.vm_done = done
    k.e(f'v_cmp_ne_u32 vcc, {s(S_NONCE)}, {v(VU)}')
    k.e(f's_add_u32 s44, s44, 1\ns_cmp_ge_u32 s44, 0x40000'); k.e(f's_cbranch_scc1 {lo}')
    k.e(f's_cbranch_vccnz {lp}')
    k.label(lo)
    k.e('s_mov_b64 exec, -1')
    k.label(lab)
    k.barrier()

C_XT, C_HB, C_PAR, C_ST = 0, 32768, 65536, 69632
LDS_P = 70656

def phase_C(k, bg):
    S_T0, S_T1, S_T2, S_RT, S_KH = 44, 45, 46, 47, 60
    SX, SMOD, SCS, SH1, SX2 = 48, 52, 64, 68, 76
    k.c('phase C : x2 -> LN -> modulate -> LN -> GEMM1 -> gelu')
    srd(k, SX, P_WS, X2T, 2 * MB)
    srd(k, SMOD, P_WS, MOD, 3072 * 4)
    srd(k, SCS, P_WS, CS1, 4096)
    srd(k, SH1, P_WS, H1C, 2 * MB)
    srd(k, SX2, P_WS, X2C, 2 * MB)
    k.e(f's_and_b32 {s(S_RT)}, {s(S_WAVE)}, 1\ns_lshr_b32 {s(S_KH)}, {s(S_WAVE)}, 1')
    k.e(f'v_lshrrev_b32 {v(VT)}, 2, {v(VL)}')
    k.e(f'v_lshrrev_b32 {v(VU)}, 4, {v(VL)}\nv_and_b32 {v(VU)}, 2, {v(VU)}')
    k.e(f'v_and_b32 {v(8)}, 3, {v(VL)}\nv_xor_b32 {v(VU)}, {v(VU)}, {v(8)}')
    k.e(f'v_lshlrev_b32 {v(VT)}, 6, {v(VT)}\nv_lshl_add_u32 {v(VT)}, {v(VU)}, 4, {v(VT)}')
    k.e(f's_lshl_b32 {s(S_T2)}, {s(S_WAVE)}, 13\ns_lshl_b32 {s(S_T1)}, {s(S_RB32)}, 15\ns_add_u32 {s(S_T1)}, {s(S_T1)}, {s(S_T2)}')
    k.e(f's_lshl_b32 s61, {s(S_G)}, 11') if CFG['rot'] else k.e('s_mov_b32 s61, 0')
    for i in range(8):
        if i: k.e('s_add_u32 s61, s61, 1024\ns_and_b32 s61, s61, 0x1fff')
        k.e(f's_add_u32 m0, {s(S_T2)}, s61') if C_XT == 0 else None
        k.e(f's_add_u32 {s(S_T0)}, {s(S_T1)}, s61')
        k.vm(f'buffer_load_dwordx4 {v(VT)}, {s(SX,4)}, {s(S_T0)} offen{SC} lds')
    k.e(f's_lshl_b32 {s(S_T0)}, {s(S_WAVE)}, 10\ns_add_u32 m0, {s(S_T0)}, {C_PAR}\ns_add_u32 {s(S_T0)}, {s(S_T0)}, {3*2048}')
    tdma = k.vm(f'buffer_load_dwordx4 {v(VL16)}, {s(SMOD,4)}, {s(S_T0)} offen{SC} lds')
    CS = 8
    k.e(f's_lshl_b32 {s(S_T0)}, {s(S_G)}, 2\ns_add_u32 {s(S_T0)}, {s(S_T0)}, {s(S_WAVE)}\ns_lshl_b32 {s(S_T0)}, {s(S_T0)}, 7')
    k.e(f'v_lshlrev_b32 {v(VT)}, 5, {v(VQ)}')
    k.vm(f'buffer_load_dwordx4 {v(CS,4)}, {v(VT)}, {s(SCS,4)}, {s(S_T0)} offen{SC}')
    k.vm(f'buffer_load_dwordx4 {v(CS+4,4)}, {v(VT)}, {s(SCS,4)}, {s(S_T0)} offen offset:16{SC}')
    k.vm(f'buffer_load_dwordx4 {v(CS+8,4)}, {v(VT)}, {s(SCS,4)}, {s(S_T0)} offen offset:2048{SC}')
    tcs = k.vm(f'buffer_load_dwordx4 {v(CS+12,4)}, {v(VT)}, {s(SCS,4)}, {s(S_T0)} offen offset:2064{SC}')
    q_W12(k, bg, 'W1', SW1, 0)
    bg.tick('W1', CFG['c_w1_first'])
    VTR, VPA, VHW, VST, VHR, VGO = 24, 25, 26, 27, 28, 29
    k.e(f'v_bfe_u32 {v(VT)}, {v(VL)}, 2, 2\nv_lshl_add_u32 {v(VT)}, {v(VQ)}, 3, {v(VT)}\nv_lshlrev_b32 {v(VTR)}, 6, {v(VT)}')
    k.e(f'v_bfe_u32 {v(VT)}, {v(VL)}, 1, 1\ns_lshl_b32 {s(S_T0)}, {s(S_RT)}, 1\nv_add_u32 {v(VT)}, {s(S_T0)}, {v(VT)}')
    k.e(f'v_and_b32 {v(VU)}, 1, {v(VQ)}\nv_lshlrev_b32 {v(VU)}, 1, {v(VU)}\nv_xor_b32 {v(VT)}, {v(VT)}, {v(VU)}')
    k.e(f'v_lshl_add_u32 {v(VTR)}, {v(VT)}, 4, {v(VTR)}\nv_and_b32 {v(VT)}, 1, {v(VL)}\nv_lshl_add_u32 {v(VTR)}, {v(VT)}, 3, {v(VTR)}')
    k.e(f's_lshl_b32 {s(S_T0)}, {s(S_KH)}, 14\nv_add_u32 {v(VTR)}, {s(S_T0)}, {v(VTR)}')
    k.e(f's_lshl_b32 {s(S_T0)}, {s(S_KH)}, 10\ns_add_u32 {s(S_T0)}, {s(S_T0)}, {C_PAR}\nv_lshl_add_u32 {v(VPA)}, {v(VQ)}, 5, {s(S_T0)}')
    k.e(f's_lshl_b32 {s(S_T1)}, {s(S_RT)}, 8\ns_add_u32 {s(S_T0)}, {s(S_T1)}, {C_HB}')
    k.e(f'v_lshlrev_b32 {v(VHW)}, 9, {v(VQ)}\nv_lshl_add_u32 {v(VHW)}, {v(VI)}, 4, {v(VHW)}\nv_add_u32 {v(VHW)}, {s(S_T0)}, {v(VHW)}')
    k.e(f's_lshl_b32 s62, {s(S_KH)}, 3\ns_sub_u32 s62, s62, {s(S_OFC)}\ns_and_b32 s62, s62, 15\ns_lshl_b32 s62, s62, 11')
    k.e(f'v_lshlrev_b32 {v(VHR)}, 9, {v(VQ)}\nv_lshl_add_u32 {v(VHR)}, {v(VI)}, 4, {v(VHR)}\nv_add_u32 {v(VHR)}, {C_HB}, {v(VHR)}')
    k.e(f's_lshl_b32 {s(S_T0)}, {s(S_WAVE)}, 7\ns_add_u32 {s(S_T0)}, {s(S_T0)}, {C_ST}\nv_lshl_add_u32 {v(VST)}, {v(VI)}, 3, {s(S_T0)}')
    X = 32; H = 64
    ONE = 30; S1, S2, S3, S4 = 96, 97, 98, 99; TM = 100
    k.e(f'v_mov_b32 {v(ONE)}, 0x3f803f80')
    for r in (S1, S2, S3, S4): k.e(f'v_mov_b32 {v(r)}, 0')
    stamp(k, 1)
    k.wait(tdma); k.e('s_barrier')
    stamp(k, 2)
    toks = []
    for st in range(8):
        k.ds(f'ds_read_b64_tr_b16 {v(X+4*st,2)}, {v(VTR)} offset:{2048*st}')
        toks.append(k.ds(f'ds_read_b64_tr_b16 {v(X+4*st+2,2)}, {v(VTR)} offset:{2048*st+256}'))
    for st in range(8):
        k.wait(toks[st])
        for i in range(4):
            k.e(f'v_dot2_f32_bf16 {v(S1 + (i&1))}, {v(X+4*st+i)}, {v(ONE)}, {v(S1 + (i&1))}')
            k.e(f'v_dot2_f32_bf16 {v(S3 + (i&1))}, {v(X+4*st+i)}, {v(X+4*st+i)}, {v(S3 + (i&1))}')
        if st % CFG['c_st_every'] == CFG['c_st_every'] - 1: bg.tick('W1', 1)
    q_W12(k, bg, 'W2', SW2, 128)
    k.e(f'v_add_f32 {v(S1)}, {v(S1)}, {v(S2)}\nv_add_f32 {v(S2)}, {v(S3)}, {v(S4)}')
    reduce_q(k, [S1, S2], TM)
    k.ds(f'ds_write_b64 {v(VST)}, {v(S1,2)}')
    k.barrier()
    k.e(f'v_xor_b32 {v(VT)}, 256, {v(VST)}')
    t = k.ds(f'ds_read_b64 {v(S3,2)}, {v(VT)}')
    PA = 156; NP = 3
    def read_par(st):
        b = PA + 16 * (st % NP)
        k.ds(f'ds_read_b128 {v(b,4)}, {v(VPA)} offset:{128*st}')
        k.ds(f'ds_read_b128 {v(b+4,4)}, {v(VPA)} offset:{128*st+16}')
        k.ds(f'ds_read_b128 {v(b+8,4)}, {v(VPA)} offset:{128*st+2048}')
        return k.ds(f'ds_read_b128 {v(b+12,4)}, {v(VPA)} offset:{128*st+2064}')
    tp = {0: read_par(0)}
    k.wait(t)
    tp[1] = read_par(1)
    k.e(f'v_add_f32 {v(S1)}, {v(S1)}, {v(S3)}\nv_add_f32 {v(S2)}, {v(S2)}, {v(S4)}')
    mean_rstd(k, S1, S2, TM)
    RS, NMR = 136, 138
    k.e(f'v_mov_b32 {v(RS)}, {v(S2)}\nv_mov_b32 {v(NMR)}, {v(S1)}')
    for r in (S1, S2, S3, S4): k.e(f'v_mov_b32 {v(r)}, 0')
    U = 140
    for st in range(8):
        if st + 2 < 8: tp[st+2] = read_par(st + 2)
        b = PA + 16 * (st % NP)
        for i in range(4):
            k.e(f'v_lshlrev_b32 {v(U+2*i)}, 16, {v(X+4*st+i)}\nv_and_b32 {v(U+2*i+1)}, 0xffff0000, {v(X+4*st+i)}')
        bg.tick('W1', 1)
        for i in range(4):
            k.e(f'v_pk_fma_f32 {v(U+2*i,2)}, {v(U+2*i,2)}, {v(RS,2)}, {v(NMR,2)} op_sel_hi:[1,0,0]')
        k.wait(tp[st])
        for i in range(4):
            k.e(f'v_pk_fma_f32 {v(U+2*i,2)}, {v(U+2*i,2)}, {v(b+8+2*i,2)}, {v(b+2*i,2)}')
        for i in range(4):
            k.e(f'v_cvt_pk_bf16_f32 {v(H+4*st+i)}, {v(U+2*i)}, {v(U+2*i+1)}')
        k.e(f'v_add_u32 {v(VT)}, s62, {v(VHW)}')
        k.ds(f'ds_write_b128 {v(VT)}, {v(H+4*st,4)}')
        if st < 7: k.e('s_add_u32 s62, s62, 2048\ns_and_b32 s62, s62, 0x7fff')
        bg.tick('W1', 1)
        for i in range(4):
            k.e(f'v_dot2_f32_bf16 {v(S1 + (i&1))}, {v(H+4*st+i)}, {v(ONE)}, {v(S1 + (i&1))}')
            k.e(f'v_dot2_f32_bf16 {v(S3 + (i&1))}, {v(H+4*st+i)}, {v(H+4*st+i)}, {v(S3 + (i&1))}')
    k.e(f'v_add_f32 {v(S1)}, {v(S1)}, {v(S2)}\nv_add_f32 {v(S2)}, {v(S3)}, {v(S4)}')
    reduce_q(k, [S1, S2], TM)
    k.ds(f'ds_write_b64 {v(VST)}, {v(S1,2)} offset:512')
    stamp(k, 3)
    bg.drain('W1')
    lodd, ldone = k.newlabel('odd'), k.newlabel('sdone')
    k.wait(tcs, bg.tok[('W1', 31)])
    k.e(f's_lshr_b32 {s(S_T0)}, {s(S_G)}, 1\ns_cmp_eq_u32 {s(S_T0)}, {s(S_KH)}'); k.e(f's_cbranch_scc0 {ldone}')
    k.e(f's_lshl_b32 {s(S_T0)}, {s(S_RB64)}, 16\ns_lshl_b32 {s(S_T1)}, {s(S_G)}, 14\ns_add_u32 {s(S_T0)}, {s(S_T0)}, {s(S_T1)}')
    k.e(f's_and_b32 {s(S_T1)}, {s(S_RB32)}, 1\ns_lshl_b32 {s(S_T1)}, {s(S_T1)}, 1\ns_add_u32 {s(S_T1)}, {s(S_T1)}, {s(S_RT)}\ns_lshl_b32 {s(S_T1)}, {s(S_T1)}, 10\ns_add_u32 {s(S_T0)}, {s(S_T0)}, {s(S_T1)}')
    k.e(f's_bitcmp1_b32 {s(S_G)}, 0'); k.e(f's_cbranch_scc1 {lodd}')
    for base, lab in ((0, None), (4, lodd)):
        if lab: k.label(lab)
        for i in range(4):
            phantom(k, f'buffer_store_dwordx4 {v(X+4*(base+i),4)}, {v(VL16)}, {s(SX2,4)}, {s(S_T0)} offen{SC}')
            if i < 3: k.e(f's_add_u32 {s(S_T0)}, {s(S_T0)}, 4096')
        if not lab: k.e(f's_branch {ldone}')
    k.label(ldone)
    k.barrier()
    stamp(k, 4)
    k.e(f'v_lshlrev_b32 {v(VT)}, 3, {v(VI)}\nv_add_u32 {v(VT)}, {C_ST + 512}, {v(VT)}')
    ST = 96
    ts = [k.ds(f'ds_read_b64 {v(ST+2*w,2)}, {v(VT)} offset:{128*w}') for w in range(4)]
    ACC = 140; BF = 104; NB = 4
    def readB(st):
        b = BF + 8 * (st % NB)
        k.ds(f'ds_read_b128 {v(b,4)}, {v(VHR)} offset:{2048*st}')
        return k.ds(f'ds_read_b128 {v(b+4,4)}, {v(VHR)} offset:{2048*st+256}')
    PD = CFG['c_pd']
    tb = {n: readB(n) for n in range(PD)}
    k.wait(ts[3])
    k.e(f'v_pk_add_f32 {v(ST,2)}, {v(ST,2)}, {v(ST+4,2)}\nv_pk_add_f32 {v(ST+2,2)}, {v(ST+2,2)}, {v(ST+6,2)}')
    for st in range(16):
        if st + PD < 16: tb[st+PD] = readB(st + PD)
        k.wait(tb[st])
        b = BF + 8 * (st % NB)
        for rt in range(2):
            for tau in range(2):
                acc = v(ACC+8*rt+4*tau,4)
                mfma16(k, acc, a(8*st+4*tau,4), v(b+4*rt,4), '0' if st == 0 else acc)
        if st % CFG['c_g_every'] == CFG['c_g_every'] - 1: bg.tick('W2', 1)
        if st == 0:
            mean_var(k, ST, ST+1, TM); mean_var(k, ST+2, ST+3, TM)
        if st == 2:
            for i in range(8): k.e(f'v_add_f32 {v(CS+i)}, {v(CS+i)}, {v(CS+8+i)}')
    stamp(k, 5)
    q_W3(k, bg, (0, 1))
    KC = [[100, 102, 104, 106], [108, 110, 112, 114]]
    for rt in range(2): gelu_row_consts(k, ST + 2*rt, ST + 2*rt + 1, KC[rt], 116)
    k.e(f's_lshl_b32 {s(S_T0)}, {s(S_G)}, 2\ns_add_u32 {s(S_T0)}, {s(S_T0)}, {s(S_WAVE)}\ns_lshl_b32 {s(S_T0)}, {s(S_T0)}, 11')
    k.e(f's_lshl_b32 {s(S_T1)}, {s(S_RB32)}, 15\ns_add_u32 {s(S_T0)}, {s(S_T0)}, {s(S_T1)}\ns_mov_b32 s61, {s(S_T0)}')
    TP = 120; O = 32
    for rt in range(2):
        prs = [ACC + 8*rt + 2*i for i in range(4)]
        NM_, A_, B_, IR_ = KC[rt]
        for n, ins in enumerate(gelu_pk(prs, [CS + 2*i for i in range(4)], [TP + 2*i for i in range(4)], NM_, A_, B_, IR_)):
            k.e(ins)
            if n % CFG['c_epi_bg'] == CFG['c_epi_bg'] - 1: bg.tick('W3', 1)
        for i, p in enumerate(prs): k.e(f'v_cvt_pk_bf16_f32 {v(O+4*rt+i)}, {v(p)}, {v(p+1)}')
        k.vm(f'buffer_store_dwordx4 {v(O+4*rt,4)}, {v(VL16)}, {s(SH1,4)}, {s(S_T0)} offen offset:{1024*rt}{SC}')
    def rr():
        k.e(f'v_lshlrev_b32 {v(VT)}, 7, {v(VL)}\nv_mov_b32 {v(VU)}, {hex(OOB)}\nv_cmp_gt_u32 vcc, 16, {v(VL)}\nv_cndmask_b32 {v(VT)}, {v(VU)}, {v(VT)}, vcc')
        k.vm(f'buffer_load_dword v0, {v(VT)}, {s(SH1,4)}, s61 offen{SC}')
    publish(k, 0, rr)
    stamp(k, 6)

D_HB = 0; D_ST = C_ST
def phase_D(k, bg):
    S_T0, S_T1, S_T2, S_SG, S_PO = 44, 45, 46, 47, 60
    SH1, SX1, SST = 48, 64, 68
    k.c('phase D : shifted h1 @ w2 + h2 -> x1, row statistics')
    bg.tick('W2', CFG['d_pre'])
    srd(k, SH1, P_WS, H1C, 2 * MB)
    srd(k, SX1, P_WS, X1C, 2 * MB)
    srd(k, SST, P_WS, ST4, 2048 * 32)
    S_GWD = 62
    k.e(f's_lshr_b32 {s(S_GWD)}, {s(S_OFD)}, 2\ns_add_u32 {s(S_GWD)}, {s(S_GWD)}, {s(S_WAVE)}\ns_and_b32 {s(S_GWD)}, {s(S_GWD)}, 3')
    k.e(f's_lshr_b32 {s(S_T0)}, {s(S_GWD)}, 1\ns_add_u32 {s(S_T0)}, {s(S_T0)}, 1')
    k.e(f's_sub_u32 {s(S_T1)}, 0, {s(S_T0)}\ns_bitcmp1_b32 {s(S_GWD)}, 0\ns_cselect_b32 {s(S_SG)}, {s(S_T0)}, {s(S_T1)}')
    k.e(f's_add_u32 {s(S_T0)}, {s(S_R32)}, {s(S_SG)}')
    VO0, VO1 = 8, 9
    for rt, vo in ((0, VO0), (1, VO1)):
        k.e(f'v_add_u32 {v(VT)}, {s(S_T0)}, {v(VI)}')
        if rt: k.e(f'v_add_u32 {v(VT)}, 16, {v(VT)}')
        k.e(f'v_lshrrev_b32 {v(vo)}, 5, {v(VT)}\nv_lshlrev_b32 {v(vo)}, 15, {v(vo)}')
        k.e(f'v_bfe_u32 {v(VU)}, {v(VT)}, 4, 1\nv_lshl_add_u32 {v(vo)}, {v(VU)}, 10, {v(vo)}')
        k.e(f'v_and_b32 {v(VU)}, 15, {v(VT)}\nv_lshl_add_u32 {v(vo)}, {v(VU)}, 4, {v(vo)}\nv_lshl_add_u32 {v(vo)}, {v(VQ)}, 8, {v(vo)}')
        k.e(f'v_mov_b32 {v(VU)}, {hex(OOB)}\nv_cmp_gt_u32 vcc, 2048, {v(VT)}\nv_cndmask_b32 {v(vo)}, {v(VU)}, {v(vo)}, vcc')
    VGO, VH2 = 10, 11
    k.e(f's_lshl_b32 {s(S_PO)}, {s(S_G)}, 2\ns_add_u32 {s(S_PO)}, {s(S_PO)}, {s(S_WAVE)}')
    k.e(f's_sub_u32 {s(S_T0)}, {s(S_PO)}, {s(S_OFC)}\ns_and_b32 {s(S_T0)}, {s(S_T0)}, 15\ns_lshl_b32 {s(S_T0)}, {s(S_T0)}, 11\ns_add_u32 {s(S_T0)}, {s(S_T0)}, {C_HB}')
    k.e(f'v_lshlrev_b32 {v(VH2)}, 9, {v(VQ)}\nv_lshl_add_u32 {v(VH2)}, {v(VI)}, 4, {v(VH2)}\nv_add_u32 {v(VH2)}, {s(S_T0)}, {v(VH2)}')
    k.e(f's_lshl_b32 {s(S_PO)}, {s(S_PO)}, 12\ns_lshl_b32 {s(S_T0)}, {s(S_RB64)}, 16\ns_add_u32 {s(S_PO)}, {s(S_PO)}, {s(S_T0)}')
    k.e(f's_and_b32 {s(S_T0)}, {s(S_RB32)}, 1\ns_lshl_b32 {s(S_T0)}, {s(S_T0)}, 11\ns_add_u32 {s(S_PO)}, {s(S_PO)}, {s(S_T0)}')
    H2 = 12
    k.ds(f'ds_read_b128 {v(H2,4)}, {v(VH2)}')
    th2 = k.ds(f'ds_read_b128 {v(H2+4,4)}, {v(VH2)} offset:256')
    k.e(f's_lshl_b32 s43, {s(S_RB32)}, 2\ns_sub_u32 s43, s43, 4')
    await_flags(k, 0, 43, 12)
    stamp(k, 11)
    k.e(f's_lshl_b32 {s(S_T2)}, {s(S_WAVE)}, 13\ns_lshl_b32 {s(S_T1)}, {s(S_GWD)}, 13')
    for i in range(4):
        for rt, vo in ((0, VO0), (1, VO1)):
            k.e(f's_add_u32 m0, {s(S_T2)}, {D_HB + 2048*i + 1024*rt}')
            tdma = k.vm(f'buffer_load_dwordx4 {v(vo)}, {s(SH1,4)}, {s(S_T1)} offen{SC} lds')
        if i < 3: k.e(f's_add_u32 {s(S_T1)}, {s(S_T1)}, 2048')
    bg.tick('W2', CFG['d_dma_bg'])
    ACC = 20; BF = 36; NB = 4
    k.wait(tdma); k.e('s_barrier')
    stamp(k, 12)
    def readB(st):
        b = BF + 8 * (st % NB)
        k.ds(f'ds_read_b128 {v(b,4)}, {v(VL16)} offset:{D_HB + 2048*st}')
        return k.ds(f'ds_read_b128 {v(b+4,4)}, {v(VL16)} offset:{D_HB + 2048*st + 1024}')
    PD = CFG['d_pd']
    tb = {n: readB(n) for n in range(PD)}
    for st in range(16):
        if st + PD < 16: tb[st+PD] = readB(st + PD)
        k.wait(tb[st], *bg.need(('W2', 2*st), ('W2', 2*st+1)))
        b = BF + 8 * (st % NB)
        for rt in range(2):
            for tau in range(2):
                acc = v(ACC+8*rt+4*tau,4)
                mfma16(k, acc, a(128+8*st+4*tau,4), v(b+4*rt,4), '0' if st == 0 else acc)
        if st % CFG['d_g_every'] == CFG['d_g_every'] - 1: bg.tick('W3', 1)
    stamp(k, 13)
    q_W3(k, bg, (2,))
    U = 36; SM = 52; O = 60; TM = 68
    k.wait(th2)
    ne = [CFG['d_epi_bg']]
    def etick():
        if ne[0] > 0: bg.tick('W3', 1); ne[0] -= 1
    for rt in range(2):
        for i in range(4):
            k.e(f'v_lshlrev_b32 {v(U+8*rt+2*i)}, 16, {v(H2+4*rt+i)}\nv_and_b32 {v(U+8*rt+2*i+1)}, 0xffff0000, {v(H2+4*rt+i)}')
            if i & 1: etick()
    for rt in range(2):
        for i in range(4):
            p = ACC + 8*rt + 2*i
            k.e(f'v_pk_add_f32 {v(p,2)}, {v(p,2)}, {v(U+8*rt+2*i,2)}')
    for rt in range(2):
        for i in range(4):
            p = ACC + 8*rt + 2*i
            k.e(f'v_cvt_pk_bf16_f32 {v(O+4*rt+i)}, {v(p)}, {v(p+1)}')
        k.vm(f'buffer_store_dwordx4 {v(O+4*rt,4)}, {v(VL16)}, {s(SX1,4)}, {s(S_PO)} offen offset:{1024*rt}{SC}')
    for rt in range(2):
        p = ACC + 8*rt; sm = SM + 4*rt
        etick(); etick()
        k.e(f'v_pk_add_f32 {v(sm,2)}, {v(p,2)}, {v(p+2,2)}\nv_pk_mul_f32 {v(sm+2,2)}, {v(p,2)}, {v(p,2)}')
        k.e(f'v_pk_add_f32 {v(sm,2)}, {v(sm,2)}, {v(p+4,2)}\nv_pk_fma_f32 {v(sm+2,2)}, {v(p+2,2)}, {v(p+2,2)}, {v(sm+2,2)}')
        k.e(f'v_pk_add_f32 {v(sm,2)}, {v(sm,2)}, {v(p+6,2)}\nv_pk_fma_f32 {v(sm+2,2)}, {v(p+4,2)}, {v(p+4,2)}, {v(sm+2,2)}')
        k.e(f'v_pk_fma_f32 {v(sm+2,2)}, {v(p+6,2)}, {v(p+6,2)}, {v(sm+2,2)}')
    for rt in range(2):
        sm = SM + 4*rt
        k.e(f'v_add_f32 {v(sm)}, {v(sm)}, {v(sm+1)}\nv_add_f32 {v(sm+1)}, {v(sm+2)}, {v(sm+3)}')
    reduce_q(k, [SM, SM+1, SM+4, SM+5], TM)
    k.e(f's_lshl_b32 {s(S_T0)}, {s(S_WAVE)}, 8\ns_add_u32 {s(S_T0)}, {s(S_T0)}, {D_ST}\nv_lshl_add_u32 {v(VT)}, {v(VI)}, 3, {s(S_T0)}')
    k.ds(f'ds_write_b64 {v(VT)}, {v(SM,2)}')
    k.ds(f'ds_write_b64 {v(VT)}, {v(SM+4,2)} offset:128')
    k.barrier()
    lend = k.newlabel('dend')
    k.e(f's_cmp_eq_u32 {s(S_WAVE)}, 0'); k.e(f's_cbranch_scc0 {lend}')
    k.e(f'v_and_b32 {v(VT)}, 31, {v(VL)}\nv_lshlrev_b32 {v(VU)}, 3, {v(VT)}\nv_add_u32 {v(VU)}, {D_ST}, {v(VU)}')
    ts = [k.ds(f'ds_read_b64 {v(U+2*w,2)}, {v(VU)} offset:{256*w}') for w in range(4)]
    k.e(f'v_add_u32 {v(VT)}, {s(S_R32)}, {v(VT)}\nv_lshlrev_b32 {v(VT)}, 5, {v(VT)}')
    k.e(f'v_mov_b32 {v(VU)}, {hex(OOB)}\nv_cmp_gt_u32 vcc, 32, {v(VL)}\nv_cndmask_b32 {v(VT)}, {v(VU)}, {v(VT)}, vcc')
    k.e(f's_lshl_b32 {s(S_T0)}, {s(S_G)}, 3')
    k.wait(ts[3])
    k.e(f'v_pk_add_f32 {v(U,2)}, {v(U,2)}, {v(U+2,2)}\nv_pk_add_f32 {v(U+4,2)}, {v(U+4,2)}, {v(U+6,2)}\nv_pk_add_f32 {v(U,2)}, {v(U,2)}, {v(U+4,2)}')
    phantom(k, f'buffer_store_dwordx2 {v(U,2)}, {v(VT)}, {s(SST,4)}, {s(S_T0)} offen{SC}')
    k.label(lend)
    def rr():
        k.e(f'v_lshlrev_b32 {v(VT)}, 7, {v(VL)}\nv_mov_b32 {v(VU)}, {hex(OOB)}\nv_cmp_gt_u32 vcc, 16, {v(VL)}\nv_cndmask_b32 {v(VT)}, {v(VU)}, {v(VT)}, vcc')
        k.vm(f'buffer_load_dword v0, {v(VT)}, {s(SX1,4)}, {s(S_PO)} offen{SC}')
    publish(k, 1, rr)
    stamp(k, 14)

E_XB = 0
def phase_E(k, bg):
    S_T0, S_T1, S_T2, S_GW = 44, 45, 46, 47
    SX1, SST, SCS, SH = 48, 52, 64, 68
    k.c('phase E : LN(x1) @ w3 -> gelu -> H')
    srd(k, SX1, P_WS, X1C, 2 * MB)
    srd(k, SST, P_WS, ST4, 2048 * 32)
    srd(k, SCS, P_WS, CS3, 2 * 1408 * 4)
    k.e(f's_mul_i32 {s(S_T0)}, {s(S_RB64)}, {HB_BLK}\ns_add_u32 {s(S_T0)}, {s(S_T0)}, {hex(HC)}')
    srd(k, SH, P_WS, s(S_T0), HB_BLK)
    k.e(f's_lshl_b32 {s(S_GW)}, {s(S_J)}, 2\ns_add_u32 {s(S_GW)}, {s(S_GW)}, {s(S_WAVE)}')
    CS = 48
    k.e(f's_mul_i32 {s(S_T0)}, {s(S_GW)}, {3*64}\nv_lshlrev_b32 {v(VT)}, 4, {v(VQ)}')
    for i in range(3):
        k.vm(f'buffer_load_dwordx4 {v(CS+4*i,4)}, {v(VT)}, {s(SCS,4)}, {s(S_T0)} offen offset:{64*i}{SC}')
    k.e(f's_add_u32 {s(S_T0)}, {s(S_T0)}, {1408*4}')
    for i in range(3):
        tcs = k.vm(f'buffer_load_dwordx4 {v(CS+12+4*i,4)}, {v(VT)}, {s(SCS,4)}, {s(S_T0)} offen offset:{64*i}{SC}')
    bg.tick('W3', CFG['e_pre'])
    VHO = 9
    k.e(f'v_lshrrev_b32 {v(VT)}, 1, {v(VQ)}\nv_lshlrev_b32 {v(VHO)}, 8, {v(VT)}\nv_lshl_add_u32 {v(VHO)}, {v(VI)}, 4, {v(VHO)}')
    k.e(f'v_and_b32 {v(VT)}, 1, {v(VQ)}\nv_lshl_add_u32 {v(VHO)}, {v(VT)}, 3, {v(VHO)}')
    S_HO = 61
    for i in range(3):
        k.e(f's_mul_i32 {s(S_T0)}, {s(S_GW)}, 3\ns_add_u32 {s(S_T0)}, {s(S_T0)}, {i}')
        k.e(f's_lshr_b32 {s(S_HO+i)}, {s(S_T0)}, 1\ns_lshl_b32 {s(S_HO+i)}, {s(S_HO+i)}, 12\ns_and_b32 {s(S_T0)}, {s(S_T0)}, 1\ns_lshl_b32 {s(S_T0)}, {s(S_T0)}, 9\ns_add_u32 {s(S_HO+i)}, {s(S_HO+i)}, {s(S_T0)}')
    k.e(f's_lshl_b32 s43, {s(S_RB64)}, 3')
    await_flags(k, 1, 43, 8)
    stamp(k, 21)
    STR = 16
    k.e(f'v_add_u32 {v(VT)}, {s(S_R64)}, {v(VI)}\nv_lshlrev_b32 {v(VT)}, 5, {v(VT)}')
    for rt in range(4):
        k.vm(f'buffer_load_dwordx4 {v(STR+8*rt,4)}, {v(VT)}, {s(SST,4)}, 0 offen offset:{512*rt}{SC}')
        tst = k.vm(f'buffer_load_dwordx4 {v(STR+8*rt+4,4)}, {v(VT)}, {s(SST,4)}, 0 offen offset:{512*rt+16}{SC}')
    k.e(f's_lshl_b32 {s(S_T2)}, {s(S_WAVE)}, 14\ns_lshl_b32 {s(S_T1)}, {s(S_RB64)}, 16')
    k.e(f's_lshl_b32 s60, {s(S_WAVE)}, 2\ns_add_u32 s60, s60, {s(S_OFE)}')
    tdma = {}
    def dma_x1(rt, n):
        k.e(f's_add_u32 m0, {s(S_T2)}, {E_XB + 4096*n + 1024*rt}')
        k.e(f's_add_u32 {s(S_T0)}, s60, {n}\ns_and_b32 {s(S_T0)}, {s(S_T0)}, 15\ns_lshl_b32 {s(S_T0)}, {s(S_T0)}, 12\ns_add_u32 {s(S_T0)}, {s(S_T0)}, {s(64+8)}')
        if rt: k.e(f's_add_u32 {s(S_T0)}, {s(S_T0)}, {1024*rt}')
        tdma[rt] = k.vm(f'buffer_load_dwordx4 {v(VL16)}, {s(SX1,4)}, {s(S_T0)} offen{SC} lds')
    k.e(f's_mov_b32 {s(64+8)}, {s(S_T1)}')
    pend_dma = [(rt, n) for rt in range(4) for n in range(4)]
    for _ in range(CFG['e_dma_first']): dma_x1(*pend_dma.pop(0))
    bg.drain('W3')
    k.wait(tst, tcs)
    KC = [[72 + 4*rt + j for j in range(4)] for rt in range(4)]
    for rt in range(4):
        b = STR + 8*rt
        k.e(f'v_pk_add_f32 {v(b,2)}, {v(b,2)}, {v(b+2,2)}\nv_pk_add_f32 {v(b+4,2)}, {v(b+4,2)}, {v(b+6,2)}\nv_pk_add_f32 {v(b,2)}, {v(b,2)}, {v(b+4,2)}')
    for rt in range(4):
        b = STR + 8*rt
        mean_var(k, b, b+1, b+2)
        gelu_row_consts(k, b, b+1, KC[rt], b+2)
    for i in range(12): k.e(f'v_add_f32 {v(CS+i)}, {v(CS+i)}, {v(CS+12+i)}')
    k.wait(tdma[0]); k.e('s_barrier')
    stamp(k, 22)
    q_W4(k, bg)
    ACC = [96, 108]; BF = 120; NB = 4; TP = 16; O = 28
    def readB(rt, st):
        return k.ds(f'ds_read_b128 {v(BF+4*((16*rt+st) % NB),4)}, {v(VL16)} offset:{E_XB + 4096*st + 1024*rt}')
    def epilogue(rt):
        A_ = ACC[rt & 1]; o = []
        NM_, AA, BB, IR_ = KC[rt]
        for half in range(2):
            regs = [A_ + 6*half + i for i in range(6)]
            o += gelu_plain(regs, [CS + 6*half + i for i in range(6)], [TP + i for i in range(6)], NM_, AA, BB, IR_)
            for i in range(3): o.append(f'v_cvt_pk_bf16_f32 {v(O+3*half+i+8*(rt&1))}, {v(A_+6*half+2*i)}, {v(A_+6*half+2*i+1)}')
        for i in range(3):
            if CFG['e_store']: o.append(f'buffer_store_dwordx2 {v(O+2*i+8*(rt&1),2)}, {v(VHO)}, {s(SH,4)}, {s(S_HO+i)} offen offset:{1024*rt}{SC}')
        return o
    seq = [(rt, st) for rt in range(4) for st in range(16)]
    tb = {}
    PD = CFG['e_pd']
    for n in range(PD): tb[seq[n]] = readB(*seq[n])
    pend = []
    for n, (rt, st) in enumerate(seq):
        if st == 16 - PD - 1 and rt < 3:
            k.wait(tdma[rt+1]); k.e('s_barrier')
        if n + PD < len(seq): tb[seq[n+PD]] = readB(*seq[n+PD])
        if st == 0 and rt > 0 and CFG['e_epi']: pend = epilogue(rt - 1)
        k.wait(tb[(rt, st)])
        if rt == 0: k.wait(*bg.need(*[('W3', i, st) for i in range(3)]))
        b = BF + 4 * ((16*rt+st) % NB)
        for i in range(3):
            acc = v(ACC[rt & 1] + 4*i, 4)
            mfma16(k, acc, w3reg(i, st), v(b,4), '0' if st == 0 else acc)
            if pend and (st > 0 or i == 2):
                nper = -(-len(pend) // max(1, (3*(15-st) + (3-i)) - 3))
                for _ in range(min(len(pend), max(1, nper))): k.e(pend.pop(0))
        if pend_dma: dma_x1(*pend_dma.pop(0))
        elif CFG['e_bg'] and (rt < 3 or st < 12): bg.tick('W4', 1)
        if st == 15: stamp(k, 26 + rt)
        if st == 15:
            for ins in pend: k.e(ins)
            pend = []
    stamp(k, 23)
    for ins in epilogue(3): k.e(ins)
    stamp(k, 24)
    def rr():
        k.e(f'v_mov_b32 {v(VT)}, {s(S_HO)}\nv_mov_b32 {v(VU)}, {s(S_HO+1)}\nv_cmp_eq_u32 vcc, 1, {v(VQ)}\nv_cndmask_b32 {v(VT)}, {v(VT)}, {v(VU)}, vcc')
        k.e(f'v_mov_b32 {v(VU)}, {s(S_HO+2)}\nv_cmp_eq_u32 vcc, 2, {v(VQ)}\nv_cndmask_b32 {v(VT)}, {v(VT)}, {v(VU)}, vcc')
        k.e(f'v_mov_b32 {v(VU)}, {hex(OOB)}\nv_cmp_eq_u32 vcc, 3, {v(VQ)}\nv_cndmask_b32 {v(VT)}, {v(VT)}, {v(VU)}, vcc')
        k.e(f'v_bfe_u32 {v(VU)}, {v(VL)}, 2, 2\nv_lshl_add_u32 {v(VT)}, {v(VU)}, 10, {v(VT)}\nv_and_b32 {v(VU)}, 3, {v(VL)}\nv_lshl_add_u32 {v(VT)}, {v(VU)}, 7, {v(VT)}')
        k.vm(f'buffer_load_dword v0, {v(VT)}, {s(SH,4)}, 0 offen{SC}')
    publish(k, 2, rr)
    stamp(k, 25)

def phase_F(k, bg):
    S_T0, S_T1, S_T2, S_HO = 44, 45, 46, 47
    SH, SX1, SX2, SMOD, SO = 48, 56, 64, 68, 72
    k.c('phase F : H @ w4, final residual')
    k.e(f's_mul_i32 {s(S_T0)}, {s(S_RB64)}, {HB_BLK}\ns_mul_i32 {s(S_T1)}, {s(S_WAVE)}, {11*4096}\ns_add_u32 {s(S_T0)}, {s(S_T0)}, {s(S_T1)}')
    k.e(f's_add_u32 {s(SH)}, {s(P_WS)}, {hex(HC)}\ns_addc_u32 {s(SH+1)}, {s(P_WS+1)}, 0\ns_add_u32 {s(SH)}, {s(SH)}, {s(S_T0)}\ns_addc_u32 {s(SH+1)}, {s(SH+1)}, 0')
    k.e(f's_sub_u32 {s(SH+2)}, {HB_BLK}, {s(S_T1)}\ns_mov_b32 {s(SH+3)}, 0x20000')
    srd(k, SX1, P_WS, X1C, 2 * MB)
    srd(k, SX2, P_WS, X2C, 2 * MB)
    srd(k, SMOD, P_WS, MOD, 3072 * 4)
    srd(k, SO, P_OUT, 0, 2 * MB)
    EX1, EX2, GB = 112, 120, 12
    k.e(f's_lshl_b32 {s(S_T1)}, {s(S_RB64)}, 16\ns_lshl_b32 {s(S_T0)}, {s(S_J)}, 13\ns_add_u32 {s(S_T1)}, {s(S_T1)}, {s(S_T0)}')
    k.e(f's_lshl_b32 {s(S_T0)}, {s(S_WAVE)}, 10\ns_add_u32 {s(S_T1)}, {s(S_T1)}, {s(S_T0)}')
    for p in range(2):
        k.vm(f'buffer_load_dwordx4 {v(EX1+4*p,4)}, {v(VL16)}, {s(SX1,4)}, {s(S_T1)} offen{SC}')
        k.vm(f'buffer_load_dwordx4 {v(EX2+4*p,4)}, {v(VL16)}, {s(SX2,4)}, {s(S_T1)} offen{SC}')
        if p == 0: k.e(f's_add_u32 {s(S_T1)}, {s(S_T1)}, 4096')
    k.e(f's_lshl_b32 {s(S_T1)}, {s(S_J)}, 8\ns_add_u32 {s(S_T1)}, {s(S_T1)}, {5*2048}\nv_lshlrev_b32 {v(VT)}, 5, {v(VQ)}')
    for p in range(2):
        k.vm(f'buffer_load_dwordx4 {v(GB+8*p,4)}, {v(VT)}, {s(SMOD,4)}, {s(S_T1)} offen offset:{128*p}{SC}')
        tep = k.vm(f'buffer_load_dwordx4 {v(GB+8*p+4,4)}, {v(VT)}, {s(SMOD,4)}, {s(S_T1)} offen offset:{128*p+16}{SC}')
    bg.drain('W4')
    k.e(f's_lshl_b32 s43, {s(S_RB64)}, 3')
    await_flags(k, 2, 43, 8)
    stamp(k, 31)
    ND = 8
    k.e(f's_lshl_b32 {s(S_HO)}, {s(S_OFF)}, 12')
    tH = {}
    def loadH(st):
        if st:
            for i_ in step11(S_HO): k.e(i_)
        for rt in range(4):
            tH[(st, rt)] = k.vm(f'buffer_load_dwordx4 {a(16*(st % ND)+4*rt,4)}, {v(VL16)}, {s(SH,4)}, {s(S_HO)} offen offset:{1024*rt}{SC}')
    for st in range(CFG['f_depth']): loadH(st)
    nxt = CFG['f_depth']
    ACC = 128
    for st in range(11):
        for rt in range(4):
            k.wait(tH[(st, rt)])
            for t in range(4):
                acc = a(ACC + 16*rt + 4*t, 4)
                mfma16(k, acc, w4reg(st, t), a(16*(st % ND)+4*rt,4), '0' if st == 0 else acc)
        if nxt < 11: loadH(nxt); nxt += 1
    stamp(k, 32)
    labs = [k.newlabel(f'r{w}') for w in range(4)]; lj = k.newlabel('rj')
    for w in range(1, 4):
        k.e(f's_cmp_eq_u32 {s(S_WAVE)}, {w}'); k.e(f's_cbranch_scc1 {labs[w]}')
    KEEP = 32
    for w in range(4):
        k.label(labs[w])
        k.flush_hazards(8)
        for rt in range(4):
            if rt == w: continue
            idx = rt - (1 if rt > w else 0)
            base = (w*3 + idx) * 4096
            for t in range(4): k.ds(f'ds_write_b128 {v(VL16)}, {a(ACC+16*rt+4*t,4)} offset:{base + 1024*t}')
        for i in range(16): k.e(f'v_accvgpr_read_b32 {v(KEEP+i)}, {a(ACC+16*w+i)}')
        if w < 3: k.e(f's_branch {lj}')
    k.label(lj)
    k.unknown_counters()
    k.e('s_waitcnt lgkmcnt(0)'); k.e('s_barrier')
    stamp(k, 33)
    PR = 48
    for n in range(3):
        k.e(f's_cmp_ge_u32 {n}, {s(S_WAVE)}\ns_cselect_b32 {s(S_T0)}, 1, 0\ns_add_u32 {s(S_T1)}, {s(S_T0)}, {n}')
        k.e(f's_mul_i32 {s(S_T1)}, {s(S_T1)}, 3\ns_add_u32 {s(S_T1)}, {s(S_T1)}, {s(S_WAVE)}\ns_sub_u32 {s(S_T1)}, {s(S_T1)}, 1\ns_add_u32 {s(S_T1)}, {s(S_T1)}, {s(S_T0)}')
        k.e(f's_lshl_b32 {s(S_T1)}, {s(S_T1)}, 12\nv_add_u32 {v(VT)}, {s(S_T1)}, {v(VL16)}')
        for t in range(4): tr = k.ds(f'ds_read_b128 {v(PR+16*n+4*t,4)}, {v(VT)} offset:{1024*t}')
    k.e(f's_lshl_b32 {s(S_T0)}, {s(S_WAVE)}, 4\ns_add_u32 {s(S_T0)}, {s(S_T0)}, {s(S_R64)}\nv_add_u32 {v(VU)}, {s(S_T0)}, {v(VI)}')
    k.e(f'v_lshlrev_b32 {v(VU)}, 10, {v(VU)}\nv_lshl_add_u32 {v(VU)}, {v(VQ)}, 4, {v(VU)}\ns_lshl_b32 {s(S_T1)}, {s(S_J)}, 7')
    k.wait(tr)
    for n in range(3):
        for i in range(8): k.e(f'v_pk_add_f32 {v(KEEP+2*i,2)}, {v(KEEP+2*i,2)}, {v(PR+16*n+2*i,2)}')
    U = 96; O = 48
    for p in range(2):
        for i in range(4):
            k.e(f'v_lshlrev_b32 {v(U+2*i)}, 16, {v(EX1+4*p+i)}\nv_and_b32 {v(U+2*i+1)}, 0xffff0000, {v(EX1+4*p+i)}')
            k.e(f'v_lshlrev_b32 {v(U+8+2*i)}, 16, {v(EX2+4*p+i)}\nv_and_b32 {v(U+8+2*i+1)}, 0xffff0000, {v(EX2+4*p+i)}')
        for i in range(4):
            x = KEEP + 8*p + 2*i
            k.e(f'v_pk_add_f32 {v(x,2)}, {v(x,2)}, {v(U+2*i,2)}')
        for i in range(4):
            x = KEEP + 8*p + 2*i
            k.e(f'v_pk_fma_f32 {v(x,2)}, {v(x,2)}, {v(GB+8*p+2*i,2)}, {v(U+8+2*i,2)}')
        for i in range(4):
            x = KEEP + 8*p + 2*i
            k.e(f'v_cvt_pk_bf16_f32 {v(O+4*p+i)}, {v(x)}, {v(x+1)}')
        k.vm(f'buffer_store_dwordx4 {v(O+4*p,4)}, {v(VU)}, {s(SO,4)}, {s(S_T1)} offen offset:{64*p}')

HB_BLK = 43 * 4096
CFG = dict(rot=0, reread=0, c_w1_first=12, c_st_every=2, c_g_every=1, c_epi_bg=6, c_pd=2, d_pre=8, d_dma_bg=8, d_g_every=1, d_epi_bg=12, d_pd=2, e_pre=8, e_dma_first=4, e_bg=1, e_store=1, e_pd=2, e_epi=1, f_depth=6)

def build_P(name):
    k = Kern(name)
    lend = k.newlabel('end')
    k.e(f's_cmp_ge_u32 s2, 256'); k.e(f's_cbranch_scc1 {lend}')
    k.e('s_load_dwordx2 s[36:37], s[0:1], 128'); k.e('s_load_dwordx2 s[40:41], s[0:1], 144')
    wave_id(k); wg_map(k)
    k.e(f's_lshl_b32 {s(S_LID)}, {s(S_RB64)}, 3\ns_add_u32 {s(S_LID)}, {s(S_LID)}, {s(S_J)}')
    k.e(f's_mov_b32 {s(S_NONCE)}, 1')
    k.e(f'v_and_b32 {v(VL)}, 63, v0\nv_and_b32 {v(VI)}, 15, {v(VL)}\nv_lshrrev_b32 {v(VQ)}, 4, {v(VL)}\nv_lshlrev_b32 {v(VL16)}, 4, {v(VL)}')
    k.e('s_waitcnt lgkmcnt(0)')
    stamp_begin(k)
    rotations(k)
    k.e(f's_lshl_b32 s44, {s(S_G)}, 2\ns_add_u32 s44, s44, {s(S_WAVE)}\ns_lshl_b32 s44, s44, 15')
    srd_dyn(k, SW1, W1F, 44, 512 * KB); srd_dyn(k, SW2, W2F, 44, 512 * KB)
    k.e(f's_lshl_b32 s44, {s(S_J)}, 2\ns_add_u32 s44, s44, {s(S_WAVE)}\ns_mul_i32 s44, s44, {3*16384}')
    srd_dyn(k, SW3, W3F, 44, W3F_BYTES)
    k.e(f's_mul_i32 s44, {s(S_J)}, 176128\ns_mul_i32 s45, {s(S_WAVE)}, {11*4096}\ns_add_u32 s44, s44, s45')
    srd_dyn(k, SW4, W4F, 44, W4F_BYTES)
    srd(k, SFL, P_WS, FLG, 4 * 16384)
    bg = BG(k)
    phase_C(k, bg); phase_D(k, bg); phase_E(k, bg); phase_F(k, bg)
    stamp_end(k, 2)
    k.label(lend)
    k.e('s_endpgm')
    return k
```

```python
from common import *
from phaseA import load_all_ptrs, wave_id, OOB, S_WAVE, P_WS, P_DSK

KC0 = 0; KCS = 4160; KCH = 4 * KCS
HP0 = 2 * KCH; HPS = 4608
RED = HP0 + 2 * HPS
LDS_B = RED + 4 * 4096

WARM_B = False
WARM_ROUNDS = []
WARM_LIST = [(W1F, 1 * MB), (W3F, W3F_BYTES), (W4F, W4F_BYTES)]
def phase_B(k, wg='s2'):
    S_T0, S_T1, S_D, S_P, S_CH = 44, 45, 46, 47, 60
    SK, SXN, SXT, SMOD, SDS, SO = 48, 52, 56, 64, 68, 72
    k.c('phase B : causal convolution of two channels')
    srd(k, SK, P_WS, KR, 512 * KRS)
    srd(k, SXN, P_WS, XNT, 2 * MB)
    srd(k, SXT, P_WS, XT, 2 * MB)
    srd(k, SMOD, P_WS, MOD, 3072 * 4)
    srd(k, SDS, P_DSK, 0, 1024)
    srd(k, SO, P_WS, X2T, 2 * MB)
    k.e(f's_lshr_b32 {s(S_CH)}, {s(S_WAVE)}, 1\ns_and_b32 {s(S_P)}, {s(S_WAVE)}, 1')
    k.e(f's_lshl_b32 {s(S_D)}, {wg}, 1\ns_add_u32 {s(S_D)}, {s(S_D)}, {s(S_CH)}')
    VL, VC, VT, VU = 2, 3, 4, 5
    k.e(f'v_and_b32 {v(VL)}, 63, v0')
    k.e(f's_lshl_b32 {s(S_T0)}, {s(S_P)}, 11\nv_lshl_add_u32 {v(VC)}, {v(VL)}, 4, {s(S_T0)}')
    KA = 8
    k.e(f's_mul_i32 {s(S_T0)}, {s(S_D)}, {KRS}')
    tk = []
    for i in range(2):
        b = KA + 12 * i
        k.vm(f'buffer_load_dwordx4 {v(b,4)}, {v(VC)}, {s(SK,4)}, {s(S_T0)} offen offset:{1024*i}')
        k.vm(f'buffer_load_dwordx4 {v(b+4,4)}, {v(VC)}, {s(SK,4)}, {s(S_T0)} offen offset:{1024*i+4}')
        tk.append(k.vm(f'buffer_load_dword {v(b+8)}, {v(VC)}, {s(SK,4)}, {s(S_T0)} offen offset:{1024*i+20}'))
    XN = 32
    k.e(f's_lshl_b32 {s(S_T1)}, {s(S_D)}, 12')
    tx = [k.vm(f'buffer_load_dwordx4 {v(XN+4*i,4)}, {v(VC)}, {s(SXN,4)}, {s(S_T1)} offen offset:{1024*i}') for i in range(2)]
    SA, C1, GA, DS = 40, 42, 44, 46
    k.e(f's_lshl_b32 {s(S_T0)}, {s(S_D)}, 2\nv_mov_b32 {v(VT)}, {s(S_T0)}')
    k.vm(f'buffer_load_dword {v(SA)}, {v(VT)}, {s(SMOD,4)}, 0 offen')
    tm = k.vm(f'buffer_load_dword {v(C1)}, {v(VT)}, {s(SMOD,4)}, 0 offen offset:2048')
    k.e(f'v_add_u32 {v(VU)}, 4096, {v(VT)}')
    k.vm(f'buffer_load_dword {v(GA)}, {v(VU)}, {s(SMOD,4)}, 0 offen')
    k.e(f'v_lshrrev_b32 {v(VU)}, 1, {v(VT)}')
    td = k.vm(f'buffer_load_ushort {v(DS)}, {v(VU)}, {s(SDS,4)}, 0 offen')
    VE = 6; XE = 48
    k.e(f'v_and_b32 {v(VT)}, 15, {v(VL)}\nv_lshrrev_b32 {v(VU)}, 4, {v(VL)}')
    k.e(f'v_lshlrev_b32 {v(VE)}, 5, {v(VT)}\nv_lshl_add_u32 {v(VE)}, {v(VU)}, 3, {v(VE)}')
    k.e(f's_lshl_b32 {s(S_T0)}, {s(S_P)}, 11\nv_add_u32 {v(VE)}, {s(S_T0)}, {v(VE)}')
    te = [k.vm(f'buffer_load_dwordx2 {v(XE+2*i,2)}, {v(VE)}, {s(SXT,4)}, {s(S_T1)} offen offset:{512*i}') for i in range(4)]
    VKW, VHW, VTA, VHA, VHE = 56, 57, 58, 59, 60
    k.e(f's_mul_i32 {s(S_T0)}, {s(S_CH)}, {KCH}\nv_add_u32 {v(VKW)}, {s(S_T0)}, {v(VC)}')
    k.e(f's_mul_i32 {s(61)}, {s(S_CH)}, {HPS}\ns_add_u32 {s(61)}, {s(61)}, {HP0}')
    k.e(f'v_add_u32 {v(VHW)}, {s(61)}, {v(VC)}')
    k.e(f'v_sub_u32 {v(VTA)}, 3, {v(VT)}\nv_and_b32 {v(VTA)}, 3, {v(VTA)}\nv_mul_u32_u24 {v(VTA)}, {KCS}, {v(VTA)}')
    k.e(f'v_lshrrev_b32 {v(VHA)}, 2, {v(VT)}\nv_lshlrev_b32 {v(VHA)}, 3, {v(VHA)}\nv_sub_u32 {v(VTA)}, {v(VTA)}, {v(VHA)}')
    k.e(f'v_lshl_add_u32 {v(VTA)}, {v(VU)}, 4, {v(VTA)}')
    k.e(f's_lshl_b32 {s(S_T1)}, {s(S_P)}, 6\ns_sub_u32 {s(S_T1)}, 88, {s(S_T1)}\ns_add_u32 {s(S_T0)}, {s(S_T0)}, {s(S_T1)}')
    k.e(f'v_add_u32 {v(VTA)}, {s(S_T0)}, {v(VTA)}')
    k.e(f'v_lshlrev_b32 {v(VHA)}, 5, {v(VT)}\nv_lshl_add_u32 {v(VHA)}, {v(VU)}, 4, {v(VHA)}')
    k.e(f's_lshl_b32 {s(S_T1)}, {s(S_P)}, 6\ns_sub_u32 {s(S_T1)}, 64, {s(S_T1)}\ns_add_u32 {s(S_T1)}, {s(S_T1)}, {s(61)}')
    k.e(f'v_add_u32 {v(VHA)}, {s(S_T1)}, {v(VHA)}')
    k.e(f'v_add_u32 {v(VHE)}, {s(61)}, {v(VE)}')
    Z = 64
    for i in range(4): k.e(f'v_mov_b32 {v(Z+i)}, 0')
    lz1, lz2 = k.newlabel('z1'), k.newlabel('z2')
    k.e(f's_cmp_eq_u32 {s(S_P)}, 0'); k.e(f's_cbranch_scc0 {lz1}')
    k.e(f'v_lshrrev_b32 {v(Z+4)}, 1, {v(VL)}\nv_mul_u32_u24 {v(Z+4)}, {KCS}, {v(Z+4)}\nv_and_b32 {v(Z+5)}, 1, {v(VL)}\nv_lshl_add_u32 {v(Z+4)}, {v(Z+5)}, 4, {v(Z+4)}')
    k.e(f's_mul_i32 {s(S_T0)}, {s(S_CH)}, {KCH}\nv_add_u32 {v(Z+4)}, {s(S_T0)}, {v(Z+4)}')
    k.e('s_mov_b64 exec, 0xff')
    k.ds(f'ds_write_b128 {v(Z+4)}, {v(Z,4)} offset:4096')
    k.e('s_mov_b64 exec, -1')
    k.e(f's_branch {lz2}')
    k.label(lz1)
    k.e(f'v_lshlrev_b32 {v(Z+4)}, 4, {v(VL)}\nv_add_u32 {v(Z+4)}, {s(61)}, {v(Z+4)}')
    k.e('s_mov_b64 exec, 0x3fffffff')
    k.ds(f'ds_write_b128 {v(Z+4)}, {v(Z,4)}')
    k.e('s_mov_b64 exec, -1')
    k.label(lz2)
    def warm_round(off):
        srd(k, 76, P_WS, off, 1 * MB)
        k.e(f's_lshr_b32 s62, {wg}, 3\ns_lshl_b32 s62, s62, 2\ns_add_u32 s62, s62, {s(S_WAVE)}\ns_lshl_b32 s62, s62, 13')
        k.e(f'v_lshlrev_b32 v61, 7, {v(VL)}')
        k.vm(f'buffer_load_dword v62, v61, s[76:79], s62 offen')
    U = 72; O = 88
    stamp(k, 1)
    k.wait(tm, tx[1])
    stamp(k, 2)
    for i in range(2):
        for j in range(4):
            k.e(f'v_lshlrev_b32 {v(U+2*j)}, 16, {v(XN+4*i+j)}\nv_and_b32 {v(U+2*j+1)}, 0xffff0000, {v(XN+4*i+j)}')
        for j in range(4):
            k.e(f'v_pk_fma_f32 {v(U+2*j,2)}, {v(U+2*j,2)}, {v(C1,2)}, {v(SA,2)} op_sel_hi:[1,0,0]')
        for j in range(4):
            k.e(f'v_cvt_pk_bf16_f32 {v(O+4*i+j)}, {v(U+2*j)}, {v(U+2*j+1)}')
        k.ds(f'ds_write_b128 {v(VHW)}, {v(O+4*i,4)} offset:{480+1024*i}')
    for off, pos in WARM_ROUNDS:
        if pos == -1: k.wait(tk[1]); warm_round(off)
    for i in range(2):
        b = KA + 12 * i
        k.wait(tk[i])
        s1, s3 = U + 8 * i, U + 8 * i + 4
        for j in range(4): k.e(f'v_alignbit_b32 {v(s1+j)}, {v(b+4+j)}, {v(b+j)}, 16')
        for j in range(3): k.e(f'v_alignbit_b32 {v(s3+j)}, {v(b+5+j)}, {v(b+4+j)}, 16')
        k.e(f'v_alignbit_b32 {v(s3+3)}, {v(b+8)}, {v(b+7)}, 16')
        k.ds(f'ds_write_b128 {v(VKW)}, {v(b,4)} offset:{1024*i}')
        k.ds(f'ds_write_b128 {v(VKW)}, {v(s1,4)} offset:{1024*i+KCS}')
        k.ds(f'ds_write_b128 {v(VKW)}, {v(b+4,4)} offset:{1024*i+2*KCS}')
        k.ds(f'ds_write_b128 {v(VKW)}, {v(s3,4)} offset:{1024*i+3*KCS}')
    ACC = 96; TR = 8; NT = 4
    for i in range(32): k.e(f'v_mov_b32 {v(ACC+i)}, 0')
    stamp(k, 3)
    k.barrier()
    stamp(k, 4)
    def readT(m):
        r = TR + 4 * (m % NT)
        k.ds(f'ds_read_b64 {v(r,2)}, {v(VTA)} offset:{128*(31-m)}')
        return k.ds(f'ds_read_b64 {v(r+2,2)}, {v(VTA)} offset:{128*(31-m)+8}')
    def readH(hi): return k.ds(f'ds_read_b128 {a(4*hi,4)}, {v(VHA)} offset:{128*hi}')
    tT, tH = {}, {}
    tT[0] = readT(0)
    for t in range(8): tH[4*t+3] = readH(4*t+3)
    tT[1] = readT(1)
    for m in range(32):
        dl = m >> 2
        for off, pos in WARM_ROUNDS:
            if pos == m: warm_round(off)
        if m + 2 < 32: tT[m+2] = readT(m + 2)
        ts = list(range(dl, 8))
        for n, t in enumerate(ts):
            hi = 4 * t + 3 - m
            if m < 3:
                tH[hi - 1] = readH(hi - 1)
            k.wait(tT[m], tH[hi])
            mfma16(k, v(ACC+4*t,4), v(TR+4*(m % NT),4), a(4*hi,4))
    stamp(k, 5)
    lp1, lpj = k.newlabel('p1'), k.newlabel('pj')
    VR = 4
    k.e(f's_lshl_b32 {s(S_T0)}, {s(S_WAVE)}, 12\ns_add_u32 {s(S_T0)}, {s(S_T0)}, {RED}\nv_lshl_add_u32 {v(VR)}, {v(VL)}, 4, {s(S_T0)}')
    k.e(f's_cmp_eq_u32 {s(S_P)}, 0'); k.e(f's_cbranch_scc0 {lp1}')
    for i in range(4): k.ds(f'ds_write_b128 {v(VR)}, {v(ACC+16+4*i,4)} offset:{1024*i}')
    k.e(f's_branch {lpj}')
    k.label(lp1)
    k.flush_hazards(8)
    for i in range(4): k.ds(f'ds_write_b128 {v(VR)}, {v(ACC+4*i,4)} offset:{1024*i}')
    k.e('s_nop 1')
    for i in range(16): k.e(f'v_mov_b32 {v(ACC+i)}, {v(ACC+16+i)}')
    k.label(lpj)
    k.unknown_counters()
    k.e('s_waitcnt lgkmcnt(0)'); k.e('s_barrier')
    k.e(f'v_xor_b32 {v(VR)}, 4096, {v(VR)}') if RED % 8192 == 0 else None
    if RED % 8192 != 0:
        k.e(f's_xor_b32 {s(S_T0)}, {s(S_WAVE)}, 1\ns_lshl_b32 {s(S_T0)}, {s(S_T0)}, 12\ns_add_u32 {s(S_T0)}, {s(S_T0)}, {RED}\nv_lshl_add_u32 {v(VR)}, {v(VL)}, 4, {s(S_T0)}')
    stamp(k, 6)
    PR = 8; HE = 24
    tp = [k.ds(f'ds_read_b128 {v(PR+4*i,4)}, {v(VR)} offset:{1024*i}') for i in range(4)]
    th = [k.ds(f'ds_read_b64 {v(HE+2*i,2)}, {v(VHE)} offset:{480+512*i}') for i in range(4)]
    k.wait(td, te[3])
    k.e(f'v_lshlrev_b32 {v(DS)}, 16, {v(DS)}')
    VXO = 7
    k.e(f'v_and_b32 {v(VT)}, 15, {v(VL)}\nv_lshrrev_b32 {v(VU)}, 4, {v(VL)}')
    k.e(f'v_lshrrev_b32 {v(VXO)}, 1, {v(VT)}\nv_lshlrev_b32 {v(VXO)}, 15, {v(VXO)}')
    k.e(f'v_and_b32 {v(VT)}, 1, {v(VT)}\nv_lshl_add_u32 {v(VXO)}, {v(VT)}, 5, {v(VXO)}\nv_lshl_add_u32 {v(VXO)}, {v(VU)}, 3, {v(VXO)}')
    k.e(f's_lshl_b32 {s(S_T1)}, {s(S_D)}, 6\ns_lshl_b32 {s(S_T0)}, {s(S_P)}, 20\ns_add_u32 {s(S_T1)}, {s(S_T1)}, {s(S_T0)}')
    for i in range(4):
        k.wait(tp[i], th[i])
        A_ = ACC + 4 * i
        k.e(f'v_pk_add_f32 {v(A_,2)}, {v(A_,2)}, {v(PR+4*i,2)}\nv_pk_add_f32 {v(A_+2,2)}, {v(A_+2,2)}, {v(PR+4*i+2,2)}')
        for j in range(2):
            k.e(f'v_lshlrev_b32 {v(U+2*j)}, 16, {v(HE+2*i+j)}\nv_and_b32 {v(U+2*j+1)}, 0xffff0000, {v(HE+2*i+j)}')
            k.e(f'v_lshlrev_b32 {v(U+4+2*j)}, 16, {v(XE+2*i+j)}\nv_and_b32 {v(U+4+2*j+1)}, 0xffff0000, {v(XE+2*i+j)}')
        for j in range(2):
            k.e(f'v_pk_fma_f32 {v(A_+2*j,2)}, {v(U+2*j,2)}, {v(DS,2)}, {v(A_+2*j,2)} op_sel_hi:[1,0,1]')
        for j in range(2):
            k.e(f'v_pk_fma_f32 {v(A_+2*j,2)}, {v(A_+2*j,2)}, {v(GA,2)}, {v(U+4+2*j,2)} op_sel_hi:[1,0,1]')
        k.e(f'v_cvt_pk_bf16_f32 {v(O+2*i)}, {v(A_)}, {v(A_+1)}\nv_cvt_pk_bf16_f32 {v(O+2*i+1)}, {v(A_+2)}, {v(A_+3)}')
        k.vm(f'buffer_store_dwordx2 {v(O+2*i,2)}, {v(VXO)}, {s(SO,4)}, {s(S_T1)} offen')
        if i < 3: k.e(f's_add_u32 {s(S_T1)}, {s(S_T1)}, 0x40000')

def build_B(name):
    k = Kern(name)
    lend = k.newlabel('end')
    k.e(f's_cmp_ge_u32 s2, {512 if WARM_B else 256}'); k.e(f's_cbranch_scc1 {lend}')
    load_all_ptrs(k); wave_id(k)
    k.e('s_waitcnt lgkmcnt(0)')
    if WARM_B:
        lmain = k.newlabel('main')
        k.e('s_cmp_ge_u32 s2, 256'); k.e(f's_cbranch_scc0 {lmain}')
        k.e(f's_cmp_eq_u32 {s(S_WAVE)}, 0'); k.e(f's_cbranch_scc0 {lend}')
        k.e('v_and_b32 v2, 63, v0\ns_sub_u32 s62, s2, 256\ns_lshr_b32 s62, s62, 3\ns_mov_b32 s61, 0')
        for off, nb in WARM_LIST: l2_warm(k, 76, P_WS, off, nb, 62, 61, 2, 3, 4, 63, nwaves=1)
        k.e('s_endpgm')
        k.label(lmain)
        k.vm_done = k.vm_issued
    dbg_stamp(k, 4, 1)
    stamp_begin(k)
    phase_B(k)
    if __import__('common').DBG: k.e('s_waitcnt vmcnt(0)')
    dbg_stamp(k, 5, 1)
    stamp_end(k, 1)
    k.label(lend)
    k.e('s_endpgm')
    return k
```

```python
import sys
from common import *
import phaseA, phaseB, phaseC, phaseD, phaseE, phaseF, persist
MAIN = 'adaLN_cond__ssm_conv_s4__mixer_s_mlp__prompt_kernel'
def assemble(kerns, path):
    out = []
    for k, g, b, lds in kerns:
        out.append(f'; @launch kernel={k.name} grid=({g},1,1) block=({b},1,1) lds={lds}')
    out.append('.amdgcn_target "amdgcn-amd-amdhsa--gfx950"')
    out.append('.text')
    seen = set()
    for k, g, b, lds in kerns:
        if k.name in seen: continue
        seen.add(k.name)
        out.append(k.header()); out.append(k.text())
    out.append('.section .rodata,"a"')
    seen = set()
    for k, g, b, lds in kerns:
        if k.name in seen: continue
        seen.add(k.name)
        out.append('.p2align 6'); out.append(k.descriptor())
    open(path, 'w').write('\n'.join(out) + '\n')
if __name__ == '__main__':
    which = sys.argv[2] if len(sys.argv) > 2 else 'A'
    import common
    if 'P' in which: common.PROF = True
    if 'G' in which: common.DBG = True
    for kv in sys.argv[3:]:
        kk, vv = kv.split('=')
        if kk == 'WARM_B': phaseB.WARM_B = bool(int(vv))
        elif kk == 'WR': phaseB.WARM_ROUNDS = [(W1F, -1), (W3F, 6), (W3F + MB, 16), (W4F + 640*KB, 24)][:int(vv)]
        elif kk == 'WARM_N': phaseB.WARM_LIST = phaseB.WARM_LIST[:int(vv)]
        else: persist.CFG[kk] = int(vv)
    ks = []
    if 'A' in which: ks.append((phaseA.build_A(MAIN), 512, 256, phaseA.LDS_A))
    if 'B' in which: ks.append((phaseB.build_B('conv_kernel'), 512 if phaseB.WARM_B else 256, 256, phaseB.LDS_B))
    if 'C' in which: ks.append((phaseC.build_C('gemm1_kernel'), 256, 256, phaseC.LDS_C))
    if 'D' in which: ks.append((phaseD.build_D('gemm2_kernel'), 256, 256, phaseD.LDS_D))
    if 'E' in which: ks.append((phaseE.build_E('gemm3_kernel'), 256, 256, phaseE.LDS_E))
    if 'F' in which: ks.append((phaseF.build_F('gemm4_kernel'), 256, 256, phaseF.LDS_F))
    if 'Q' in which: ks.append((persist.build_P('mlp_kernel'), 256, 256, persist.LDS_P))
    assemble(ks, sys.argv[1])
    for k, g, b, lds in ks: print(k.name[:12], 'v', k.maxv, 'a', k.maxa, 's', k.maxs, 'lds', lds, 'instrs', sum(1 for i in k.items if not isinstance(i, str)))
```

```python
from asmlib import *

L = 2048; D = 512; F = 1376; NM = 128
MB = 1 << 20; KB = 1 << 10
XT   = 0
XNT  = 2 * MB
X2T  = 4 * MB
KR   = 6 * MB;  KRS = 4160
H1C  = 9 * MB
H2C  = 11 * MB
X2C  = 13 * MB
X1C  = 15 * MB
HC   = 17 * MB; HC_BYTES = 172 * 32768
W1F  = 23 * MB
W2F  = 23 * MB + 512 * KB
W3F  = 24 * MB; W3F_BYTES = 86 * 16 * 1024
W4F  = 26 * MB; W4F_BYTES = 8 * 43 * 4 * 1024
MOD  = 28 * MB
CS1  = 28 * MB + 16 * KB
CS3  = 28 * MB + 32 * KB
ST4  = 28 * MB + 64 * KB
FLG  = 29 * MB
WS_USED = 30 * MB

ARG = dict(u=0, are=8, aim=16, bre=24, bim=32, cre=40, cim=48, ldt=56, dsk=64, bx=72, w1=80, w2=88, w3=96, w4=104, c=112, wmod=120, out=128, dbg=136, ws=144)

LOG2E = 1.4426950408889634
INV2PI = 0.15915494309189535
import struct
def f2u(x): return struct.unpack('<I', struct.pack('<f', x))[0]
def hexf(x): return hex(f2u(x))

def sload(k, sdst, name):
    k.e(f's_load_dwordx2 {s(sdst,2)}, s[0:1], {ARG[name]}')

def srd(k, sd, sp, off, nbytes):
    if off == 0:
        k.e(f's_mov_b32 {s(sd)}, {s(sp)}\ns_mov_b32 {s(sd+1)}, {s(sp+1)}')
    else:
        o = hex(off) if isinstance(off, int) else off
        k.e(f's_add_u32 {s(sd)}, {s(sp)}, {o}\ns_addc_u32 {s(sd+1)}, {s(sp+1)}, 0')
    k.e(f's_mov_b32 {s(sd+2)}, {hex(nbytes)}\ns_mov_b32 {s(sd+3)}, 0x20000')

def cmul(k, d, x, y):
    k.e(f'v_pk_mul_f32 {v(d,2)}, {v(x,2)}, {v(y,2)} op_sel_hi:[0,1]')
    k.e(f'v_pk_fma_f32 {v(d,2)}, {v(x,2)}, {v(y,2)}, {v(d,2)} op_sel:[1,1,0] op_sel_hi:[1,0,1] neg_lo:[1,0,0]')

def cmul_many(k, triples):
    for d, x, y in triples:
        k.e(f'v_pk_mul_f32 {v(d,2)}, {v(x,2)}, {v(y,2)} op_sel_hi:[0,1]')
    for d, x, y in triples:
        k.e(f'v_pk_fma_f32 {v(d,2)}, {v(x,2)}, {v(y,2)}, {v(d,2)} op_sel:[1,1,0] op_sel_hi:[1,0,1] neg_lo:[1,0,0]')

def mfma16(k, d, a_, b_, c=None):
    k.e(f'v_mfma_f32_16x16x32_bf16 {d}, {a_}, {b_}, {c if c is not None else d}')

def code_prefetch(k, lab_from, nbytes, vtmp, vdst, stmp, nthreads=256):
    pass

def l2_warm(k, srdq, p_ws, off, nbytes, s_slot, s_wave, vlane, vtmp, vdst, s_tmp, nwaves=4):
    n8 = -(-nbytes // 8192)
    per = -(-n8 // (32 * nwaves))
    srd(k, srdq, p_ws, off, nbytes)
    k.e(f's_mul_i32 {s(s_tmp)}, {s(s_slot)}, {nwaves}\ns_add_u32 {s(s_tmp)}, {s(s_tmp)}, {s(s_wave)}\ns_mul_i32 {s(s_tmp)}, {s(s_tmp)}, {per*8192}')
    k.e(f'v_lshlrev_b32 {v(vtmp)}, 7, {v(vlane)}')
    toks = []
    for i in range(per):
        toks.append(k.vm(f'buffer_load_dword {v(vdst)}, {v(vtmp)}, {s(srdq,4)}, {s(s_tmp)} offen'))
        if i + 1 < per: k.e(f's_add_u32 {s(s_tmp)}, {s(s_tmp)}, 8192')
    return toks

PROF = False
PROF_OFF = 29 * MB + 512 * KB
def stamp(k, i):
    if not PROF: return
    k.e('s_memtime s[98:99]'); k.e('s_waitcnt lgkmcnt(0)'); k.e(f'v_writelane_b32 v1, s98, {i}')
def stamp_rt(k, i):
    if not PROF: return
    k.e('s_memrealtime s[98:99]'); k.e('s_waitcnt lgkmcnt(0)'); k.e(f'v_writelane_b32 v1, s98, {i}')
def stamp_begin(k):
    if not PROF: return
    k.e('v_mov_b32 v1, 0')
    stamp_rt(k, 62)
    stamp(k, 0)
def stamp_end(k, kidx, p_ws=40):
    if not PROF: return
    k.e('s_waitcnt vmcnt(0)')
    stamp(k, 61)
    stamp_rt(k, 63)
    lab = k.newlabel('pe')
    k.e('s_cmp_eq_u32 s42, 0'); k.e(f's_cbranch_scc0 {lab}')
    srd(k, 48, p_ws, PROF_OFF + kidx * 131072, 131072)
    k.e('s_lshl_b32 s98, s2, 8')
    k.e('v_mbcnt_lo_u32_b32 v2, -1, 0\nv_mbcnt_hi_u32_b32 v2, -1, v2\nv_lshlrev_b32 v2, 2, v2')
    k.e('buffer_store_dword v1, v2, s[48:51], s98 offen')
    k.label(lab)

DBG = False
DBGWG = 0
def dbg_stamp(k, idx, launch_no, real=True, wg=None, va=100):
    if not DBG: return
    saved = (k.vm_done, k.lg_done)
    lab = k.newlabel('ds')
    k.e(f's_cmp_eq_u32 s2, {DBGWG if wg is None else wg}'); k.e(f's_cbranch_scc0 {lab}')
    k.e('s_cmp_eq_u32 s42, 0'); k.e(f's_cbranch_scc0 {lab}')
    k.e('s_load_dwordx2 s[86:87], s[0:1], 136')
    k.e(('s_memrealtime' if real else 's_memtime') + ' s[98:99]'); k.e('s_waitcnt lgkmcnt(0)')
    k.e(f's_sub_u32 s84, s86, {512*launch_no}\ns_subb_u32 s85, s87, 0\ns_mov_b32 s86, 256\ns_mov_b32 s87, 0x20000')
    k.e(f'v_mov_b32 {v(va)}, s98\nv_mov_b32 {v(va+1)}, {4*idx}')
    k.e(f'buffer_store_dword {v(va)}, {v(va+1)}, s[84:87], 0 offen')
    k.vm_issued -= 1
    k.e('s_waitcnt vmcnt(0)')
    k.label(lab)
    k.vm_done, k.lg_done = saved
```

```python
from common import *
from phaseA import wave_id, OOB, S_WAVE
from phaseC import (wg_map, S_RB64, S_J, S_RB32, S_G, S_R32, S_R64, gelu_consts, gelu_steps, reduce_q, mean_rstd)
from collections import deque

P_WS, P_OUT = 40, 36
SW1, SW2, SW3, SW4, SFL = 4, 8, 12, 16, 20
S_NONCE, S_LID, S_BG, S_BG2 = 24, 25, 100, 101
SC = ' sc1'
VL, VI, VQ, VL16 = 2, 3, 4, 5
VT, VU = 6, 7

class BG:
    def __init__(self, k): self.k = k; self.q = {}; self.tok = {}
    def add(self, key, instrs): self.q.setdefault(key[0], deque()).append((key, instrs))
    def tick(self, name, n=1):
        q = self.q.get(name)
        for _ in range(n):
            if not q: return
            key, instrs = q.popleft()
            for i in instrs[:-1]: self.k.e(i)
            self.tok[key] = self.k.vm(instrs[-1])
    def drain(self, name): self.tick(name, len(self.q.get(name, ())))
    def need(self, *keys):
        for key in keys:
            while key not in self.tok: self.tick(key[0], 1)
        return [self.tok[key] for key in keys]

def phantom(k, text):
    k.e(text); k.vm_issued -= 1

S_O1, S_O2, S_O3, S_O4 = 26, 27, 28, 29
S_OFC, S_OFD, S_OFE, S_OFF = 30, 31, 32, 33
def q_W12(k, bg, name, srdq, areg0):
    so, of = (S_O1, S_OFC) if name == 'W1' else (S_O2, S_OFD)
    for f in range(32):
        pre = []
        if f == 0: pre = [f's_lshl_b32 {s(so)}, {s(of)}, 11']
        elif f % 2 == 0: pre = [f's_add_u32 {s(so)}, {s(so)}, 2048', f's_and_b32 {s(so)}, {s(so)}, 0x7fff']
        bg.add((name, f), pre + [f'buffer_load_dwordx4 {a(areg0+4*f,4)}, {v(VL16)}, {s(srdq,4)}, {s(so)} offen offset:{1024*(f%2)}'])

def w3reg(i, st): return a(4*(16*i+st), 4)
def q_W3(k, bg, tiles):
    for i in tiles:
        for st in range(16):
            if st == 0:
                pre = [f's_lshl_b32 {s(S_O3)}, {s(S_OFE)}, 10']
                if i: pre += [f's_add_u32 {s(SW3)}, {s(SW3)}, 16384', f's_addc_u32 {s(SW3+1)}, {s(SW3+1)}, 0',
                              f's_sub_i32 {s(SW3+2)}, {s(SW3+2)}, 16384', f's_max_i32 {s(SW3+2)}, {s(SW3+2)}, 0']
            else: pre = [f's_add_u32 {s(S_O3)}, {s(S_O3)}, 1024', f's_and_b32 {s(S_O3)}, {s(S_O3)}, 0x3fff']
            bg.add(('W3', i, st), pre + [f'buffer_load_dwordx4 {w3reg(i, st)}, {v(VL16)}, {s(SW3,4)}, {s(S_O3)} offen'])

def w4reg(st, t):
    f = 4*st + t
    return a(192 + 4*f, 4) if f < 16 else v(144 + 4*(f-16), 4)
def step11(so): return [f's_add_u32 {s(so)}, {s(so)}, 4096', f's_cmp_eq_u32 {s(so)}, {11*4096}', f's_cselect_b32 {s(so)}, 0, {s(so)}']
def q_W4(k, bg):
    for st in range(11):
        for t in range(4):
            pre = []
            if t == 0: pre = [f's_lshl_b32 {s(S_O4)}, {s(S_OFF)}, 12'] if st == 0 else step11(S_O4)
            bg.add(('W4', st, t), pre + [f'buffer_load_dwordx4 {w4reg(st, t)}, {v(VL16)}, {s(SW4,4)}, {s(S_O4)} offen offset:{1024*t}'])

def srd_dyn(k, sd, off_const, s_off, size_total):
    k.e(f's_add_u32 {s(sd)}, {s(P_WS)}, {hex(off_const)}\ns_addc_u32 {s(sd+1)}, {s(P_WS+1)}, 0')
    k.e(f's_add_u32 {s(sd)}, {s(sd)}, {s(s_off)}\ns_addc_u32 {s(sd+1)}, {s(sd+1)}, 0')
    k.e(f's_sub_i32 {s(sd+2)}, {hex(size_total)}, {s(s_off)}\ns_max_i32 {s(sd+2)}, {s(sd+2)}, 0\ns_mov_b32 {s(sd+3)}, 0x20000')

def rotations(k):
    rot = CFG['rot']
    k.e(f's_lshr_b32 s44, s2, 6\ns_lshr_b32 s45, {s(S_J)}, 2\ns_lshl_b32 s46, s44, 1\ns_add_u32 s46, s46, s45')
    k.e(f's_lshl_b32 {s(S_OFC)}, s46, 1')
    k.e(f's_add_u32 {s(S_OFD)}, s46, {s(S_G)}\ns_and_b32 {s(S_OFD)}, {s(S_OFD)}, 3\ns_lshl_b32 {s(S_OFD)}, {s(S_OFD)}, 2')
    k.e(f's_lshl_b32 {s(S_OFE)}, s44, 1\ns_add_u32 {s(S_OFE)}, {s(S_OFE)}, {s(S_J)}\ns_lshl_b32 {s(S_OFE)}, {s(S_OFE)}, 1\ns_and_b32 {s(S_OFE)}, {s(S_OFE)}, 15')
    k.e(f's_mul_i32 {s(S_OFF)}, s44, 3\ns_add_u32 {s(S_OFF)}, {s(S_OFF)}, {s(S_J)}\ns_cmp_ge_u32 {s(S_OFF)}, 11\ns_cselect_b32 s45, 11, 0\ns_sub_u32 {s(S_OFF)}, {s(S_OFF)}, s45')
    if not rot:
        for r in (S_OFC, S_OFD, S_OFE, S_OFF): k.e(f's_mov_b32 {s(r)}, 0')

def mean_var(k, sm, sq, t):
    k.e(f'v_mul_f32 {v(sm)}, {hexf(-1/512)}, {v(sm)}')
    k.e(f'v_mul_f32 {v(t)}, {v(sm)}, {v(sm)}')
    k.e(f'v_mul_f32 {v(sq)}, {hexf(1/512)}, {v(sq)}')
    k.e(f'v_sub_f32 {v(sq)}, {v(sq)}, {v(t)}')
    k.e(f'v_max_f32 {v(sq)}, 0, {v(sq)}\nv_add_f32 {v(sq)}, {hexf(1e-5)}, {v(sq)}')
GC0_ = -2.0 * LOG2E * 0.7978845608028654
GC1_ = GC0_ * 0.044715
def gelu_row_consts(k, nm, ve, out, t):
    NM_, A_, B_, IR_ = out
    k.e(f'v_rsq_f32 {v(t)}, {v(ve)}')
    k.e(f'v_mov_b32 {v(NM_)}, {v(nm)}')
    k.e(f'v_mul_f32 {v(IR_)}, {v(ve)}, {v(t)}')
    k.e(f'v_mul_f32 {v(A_)}, {hexf(GC0_)}, {v(t)}')
    k.e(f'v_mul_f32 {v(B_)}, {v(t)}, {v(t)}\nv_mul_f32 {v(B_)}, {v(B_)}, {v(t)}\nv_mul_f32 {v(B_)}, {hexf(GC1_)}, {v(B_)}')
def gelu_pk(prs, css, tmps, NM_, A_, B_, IR_):
    o = []
    for x, c in zip(prs, css): o.append(f'v_pk_fma_f32 {v(x,2)}, {v(c,2)}, {v(NM_,2)}, {v(x,2)} op_sel_hi:[1,0,1]')
    for x, t in zip(prs, tmps): o.append(f'v_pk_mul_f32 {v(t,2)}, {v(x,2)}, {v(x,2)}')
    for x, t in zip(prs, tmps): o.append(f'v_pk_fma_f32 {v(t,2)}, {v(t,2)}, {v(B_,2)}, {v(A_,2)} op_sel_hi:[1,0,0]')
    for x, t in zip(prs, tmps): o.append(f'v_pk_mul_f32 {v(t,2)}, {v(t,2)}, {v(x,2)}')
    for x, t in zip(prs, tmps): o += [f'v_exp_f32 {v(t)}, {v(t)}', f'v_exp_f32 {v(t+1)}, {v(t+1)}']
    for x, t in zip(prs, tmps): o.append(f'v_pk_fma_f32 {v(t,2)}, {v(t,2)}, {v(IR_,2)}, {v(IR_,2)} op_sel_hi:[1,0,0]')
    for x, t in zip(prs, tmps): o += [f'v_rcp_f32 {v(t)}, {v(t)}', f'v_rcp_f32 {v(t+1)}, {v(t+1)}']
    for x, t in zip(prs, tmps): o.append(f'v_pk_mul_f32 {v(x,2)}, {v(x,2)}, {v(t,2)}')
    return o
def gelu_plain(regs, css, tmps, NM_, A_, B_, IR_):
    o = []
    for x, c in zip(regs, css): o.append(f'v_fma_f32 {v(x)}, {v(c)}, {v(NM_)}, {v(x)}')
    for x, t in zip(regs, tmps): o.append(f'v_mul_f32 {v(t)}, {v(x)}, {v(x)}')
    for x, t in zip(regs, tmps): o.append(f'v_fma_f32 {v(t)}, {v(t)}, {v(B_)}, {v(A_)}')
    for x, t in zip(regs, tmps): o.append(f'v_mul_f32 {v(t)}, {v(t)}, {v(x)}')
    for x, t in zip(regs, tmps): o.append(f'v_exp_f32 {v(t)}, {v(t)}')
    for x, t in zip(regs, tmps): o.append(f'v_fma_f32 {v(t)}, {v(t)}, {v(IR_)}, {v(IR_)}')
    for x, t in zip(regs, tmps): o.append(f'v_rcp_f32 {v(t)}, {v(t)}')
    for x, t in zip(regs, tmps): o.append(f'v_mul_f32 {v(x)}, {v(x)}, {v(t)}')
    return o

def publish(k, phase, reread=None):
    k.e('s_waitcnt vmcnt(0)')
    k.barrier()
    lab = k.newlabel('pub')
    k.e(f's_cmp_eq_u32 {s(S_WAVE)}, 0'); k.e(f's_cbranch_scc0 {lab}')
    k.e(f's_lshl_b32 s44, {s(S_LID)}, 6\ns_add_u32 s44, s44, {phase*16384}')
    k.e(f'v_mov_b32 {v(VT)}, {s(S_NONCE)}\nv_mov_b32 {v(VU)}, {hex(OOB)}\nv_cmp_eq_u32 vcc, 0, {v(VL)}\nv_cndmask_b32 {v(VU)}, {v(VU)}, {v(VL)}, vcc')
    phantom(k, f'buffer_store_dword {v(VT)}, {v(VU)}, {s(SFL,4)}, s44 offen{SC}')
    k.label(lab)
    if reread and CFG['reread']: reread()

def await_flags(k, phase, s_first, count):
    lab, lp, lo = k.newlabel('aw'), k.newlabel('poll'), k.newlabel('pout')
    k.e(f's_cmp_eq_u32 {s(S_WAVE)}, 0'); k.e(f's_cbranch_scc0 {lab}')
    k.e(f'v_add_u32 {v(VT)}, {s(s_first)}, {v(VL)}')
    k.e(f'v_cmp_gt_u32 vcc, 256, {v(VT)}\nv_cmp_gt_u32 s[46:47], {count}, {v(VL)}\ns_and_b64 vcc, vcc, s[46:47]')
    k.e(f'v_lshlrev_b32 {v(VT)}, 6, {v(VT)}\nv_add_u32 {v(VT)}, {phase*16384}, {v(VT)}')
    k.e('s_mov_b64 exec, vcc')
    k.e('s_mov_b32 s44, 0')
    k.label(lp)
    done = k.vm_done
    phantom(k, f'buffer_load_dword {v(VU)}, {v(VT)}, {s(SFL,4)}, 0 offen{SC}')
    k.e('s_waitcnt vmcnt(0)')
    k.vm_done = done
    k.e(f'v_cmp_ne_u32 vcc, {s(S_NONCE)}, {v(VU)}')
    k.e(f's_add_u32 s44, s44, 1\ns_cmp_ge_u32 s44, 0x40000'); k.e(f's_cbranch_scc1 {lo}')
    k.e(f's_cbranch_vccnz {lp}')
    k.label(lo)
    k.e('s_mov_b64 exec, -1')
    k.label(lab)
    k.barrier()

C_XT, C_HB, C_PAR, C_ST = 0, 32768, 65536, 69632
LDS_P = 70656

def phase_C(k, bg):
    S_T0, S_T1, S_T2, S_RT, S_KH = 44, 45, 46, 47, 60
    SX, SMOD, SCS, SH1, SX2 = 48, 52, 64, 68, 76
    k.c('phase C : x2 -> LN -> modulate -> LN -> GEMM1 -> gelu')
    srd(k, SX, P_WS, X2B, 64 * XBS)
    srd(k, SMOD, P_WS, MOD, 3072 * 4)
    srd(k, SCS, P_WS, CS1, 4096)
    srd(k, SH1, P_WS, H1C, 2 * MB)
    srd(k, SX2, P_WS, X2C, 2 * MB)
    k.e(f's_and_b32 {s(S_RT)}, {s(S_WAVE)}, 1\ns_lshr_b32 {s(S_KH)}, {s(S_WAVE)}, 1')
    k.e(f'v_lshrrev_b32 {v(VT)}, 2, {v(VL)}')
    k.e(f'v_lshrrev_b32 {v(VU)}, 4, {v(VL)}\nv_and_b32 {v(VU)}, 2, {v(VU)}')
    k.e(f'v_and_b32 {v(8)}, 3, {v(VL)}\nv_xor_b32 {v(VU)}, {v(VU)}, {v(8)}')
    k.e(f'v_lshlrev_b32 {v(VT)}, 6, {v(VT)}\nv_lshl_add_u32 {v(VT)}, {v(VU)}, 4, {v(VT)}')
    k.e(f's_lshl_b32 {s(S_T2)}, {s(S_WAVE)}, 13\ns_mul_i32 {s(S_T1)}, {s(S_RB32)}, {XBS}\ns_add_u32 {s(S_T1)}, {s(S_T1)}, {s(S_T2)}')
    k.e(f's_lshl_b32 s61, {s(S_G)}, 11') if CFG['rot'] else k.e('s_mov_b32 s61, 0')
    for i in range(8):
        if i: k.e('s_add_u32 s61, s61, 1024\ns_and_b32 s61, s61, 0x1fff')
        k.e(f's_add_u32 m0, {s(S_T2)}, s61') if C_XT == 0 else None
        k.e(f's_add_u32 {s(S_T0)}, {s(S_T1)}, s61')
        k.vm(f'buffer_load_dwordx4 {v(VT)}, {s(SX,4)}, {s(S_T0)} offen{SC} lds')
    k.e(f's_lshl_b32 {s(S_T0)}, {s(S_WAVE)}, 10\ns_add_u32 m0, {s(S_T0)}, {C_PAR}\ns_add_u32 {s(S_T0)}, {s(S_T0)}, {3*2048}')
    tdma = k.vm(f'buffer_load_dwordx4 {v(VL16)}, {s(SMOD,4)}, {s(S_T0)} offen{SC} lds')
    CS = 8
    k.e(f's_lshl_b32 {s(S_T0)}, {s(S_G)}, 2\ns_add_u32 {s(S_T0)}, {s(S_T0)}, {s(S_WAVE)}\ns_lshl_b32 {s(S_T0)}, {s(S_T0)}, 7')
    k.e(f'v_lshlrev_b32 {v(VT)}, 5, {v(VQ)}')
    k.vm(f'buffer_load_dwordx4 {v(CS,4)}, {v(VT)}, {s(SCS,4)}, {s(S_T0)} offen{SC}')
    k.vm(f'buffer_load_dwordx4 {v(CS+4,4)}, {v(VT)}, {s(SCS,4)}, {s(S_T0)} offen offset:16{SC}')
    k.vm(f'buffer_load_dwordx4 {v(CS+8,4)}, {v(VT)}, {s(SCS,4)}, {s(S_T0)} offen offset:2048{SC}')
    tcs = k.vm(f'buffer_load_dwordx4 {v(CS+12,4)}, {v(VT)}, {s(SCS,4)}, {s(S_T0)} offen offset:2064{SC}')
    q_W12(k, bg, 'W1', SW1, 0)
    bg.tick('W1', CFG['c_w1_first'])
    VTR, VPA, VHW, VST, VHR, VGO = 24, 25, 26, 27, 28, 29
    k.e(f'v_bfe_u32 {v(VT)}, {v(VL)}, 2, 2\nv_lshl_add_u32 {v(VT)}, {v(VQ)}, 3, {v(VT)}\nv_lshlrev_b32 {v(VTR)}, 6, {v(VT)}')
    k.e(f'v_bfe_u32 {v(VT)}, {v(VL)}, 1, 1\ns_lshl_b32 {s(S_T0)}, {s(S_RT)}, 1\nv_add_u32 {v(VT)}, {s(S_T0)}, {v(VT)}')
    k.e(f'v_and_b32 {v(VU)}, 1, {v(VQ)}\nv_lshlrev_b32 {v(VU)}, 1, {v(VU)}\nv_xor_b32 {v(VT)}, {v(VT)}, {v(VU)}')
    k.e(f'v_lshl_add_u32 {v(VTR)}, {v(VT)}, 4, {v(VTR)}\nv_and_b32 {v(VT)}, 1, {v(VL)}\nv_lshl_add_u32 {v(VTR)}, {v(VT)}, 3, {v(VTR)}')
    k.e(f's_lshl_b32 {s(S_T0)}, {s(S_KH)}, 14\nv_add_u32 {v(VTR)}, {s(S_T0)}, {v(VTR)}')
    k.e(f's_lshl_b32 {s(S_T0)}, {s(S_KH)}, 10\ns_add_u32 {s(S_T0)}, {s(S_T0)}, {C_PAR}\nv_lshl_add_u32 {v(VPA)}, {v(VQ)}, 5, {s(S_T0)}')
    k.e(f's_lshl_b32 {s(S_T1)}, {s(S_RT)}, 8\ns_add_u32 {s(S_T0)}, {s(S_T1)}, {C_HB}')
    k.e(f'v_lshlrev_b32 {v(VHW)}, 9, {v(VQ)}\nv_lshl_add_u32 {v(VHW)}, {v(VI)}, 4, {v(VHW)}\nv_add_u32 {v(VHW)}, {s(S_T0)}, {v(VHW)}')
    k.e(f's_lshl_b32 s62, {s(S_KH)}, 3\ns_sub_u32 s62, s62, {s(S_OFC)}\ns_and_b32 s62, s62, 15\ns_lshl_b32 s62, s62, 11')
    k.e(f'v_lshlrev_b32 {v(VHR)}, 9, {v(VQ)}\nv_lshl_add_u32 {v(VHR)}, {v(VI)}, 4, {v(VHR)}\nv_add_u32 {v(VHR)}, {C_HB}, {v(VHR)}')
    k.e(f's_lshl_b32 {s(S_T0)}, {s(S_WAVE)}, 7\ns_add_u32 {s(S_T0)}, {s(S_T0)}, {C_ST}\nv_lshl_add_u32 {v(VST)}, {v(VI)}, 3, {s(S_T0)}')
    X = 32; H = 64
    ONE = 30; S1, S2, S3, S4 = 96, 97, 98, 99; TM = 100
    k.e(f'v_mov_b32 {v(ONE)}, 0x3f803f80')
    for r in (S1, S2, S3, S4): k.e(f'v_mov_b32 {v(r)}, 0')
    stamp(k, 1)
    k.wait(tdma); k.e('s_barrier')
    stamp(k, 2)
    toks = []
    for st in range(8):
        k.ds(f'ds_read_b64_tr_b16 {v(X+4*st,2)}, {v(VTR)} offset:{2048*st}')
        toks.append(k.ds(f'ds_read_b64_tr_b16 {v(X+4*st+2,2)}, {v(VTR)} offset:{2048*st+256}'))
    for st in range(8):
        k.wait(toks[st])
        for i in range(4):
            k.e(f'v_dot2_f32_bf16 {v(S1 + (i&1))}, {v(X+4*st+i)}, {v(ONE)}, {v(S1 + (i&1))}')
            k.e(f'v_dot2_f32_bf16 {v(S3 + (i&1))}, {v(X+4*st+i)}, {v(X+4*st+i)}, {v(S3 + (i&1))}')
        if st % CFG['c_st_every'] == CFG['c_st_every'] - 1: bg.tick('W1', 1)
    q_W12(k, bg, 'W2', SW2, 128)
    k.e(f'v_add_f32 {v(S1)}, {v(S1)}, {v(S2)}\nv_add_f32 {v(S2)}, {v(S3)}, {v(S4)}')
    reduce_q(k, [S1, S2], TM)
    k.ds(f'ds_write_b64 {v(VST)}, {v(S1,2)}')
    k.barrier()
    k.e(f'v_xor_b32 {v(VT)}, 256, {v(VST)}')
    t = k.ds(f'ds_read_b64 {v(S3,2)}, {v(VT)}')
    PA = 156; NP = 3
    def read_par(st):
        b = PA + 16 * (st % NP)
        k.ds(f'ds_read_b128 {v(b,4)}, {v(VPA)} offset:{128*st}')
        k.ds(f'ds_read_b128 {v(b+4,4)}, {v(VPA)} offset:{128*st+16}')
        k.ds(f'ds_read_b128 {v(b+8,4)}, {v(VPA)} offset:{128*st+2048}')
        return k.ds(f'ds_read_b128 {v(b+12,4)}, {v(VPA)} offset:{128*st+2064}')
    tp = {0: read_par(0)}
    k.wait(t)
    tp[1] = read_par(1)
    k.e(f'v_add_f32 {v(S1)}, {v(S1)}, {v(S3)}\nv_add_f32 {v(S2)}, {v(S2)}, {v(S4)}')
    mean_rstd(k, S1, S2, TM)
    RS, NMR = 136, 138
    k.e(f'v_mov_b32 {v(RS)}, {v(S2)}\nv_mov_b32 {v(NMR)}, {v(S1)}')
    for r in (S1, S2, S3, S4): k.e(f'v_mov_b32 {v(r)}, 0')
    U = 140
    for st in range(8):
        if st + 2 < 8: tp[st+2] = read_par(st + 2)
        b = PA + 16 * (st % NP)
        for i in range(4):
            k.e(f'v_lshlrev_b32 {v(U+2*i)}, 16, {v(X+4*st+i)}\nv_and_b32 {v(U+2*i+1)}, 0xffff0000, {v(X+4*st+i)}')
        bg.tick('W1', 1)
        for i in range(4):
            k.e(f'v_pk_fma_f32 {v(U+2*i,2)}, {v(U+2*i,2)}, {v(RS,2)}, {v(NMR,2)} op_sel_hi:[1,0,0]')
        k.wait(tp[st])
        for i in range(4):
            k.e(f'v_pk_fma_f32 {v(U+2*i,2)}, {v(U+2*i,2)}, {v(b+8+2*i,2)}, {v(b+2*i,2)}')
        for i in range(4):
            k.e(f'v_cvt_pk_bf16_f32 {v(H+4*st+i)}, {v(U+2*i)}, {v(U+2*i+1)}')
        k.e(f'v_add_u32 {v(VT)}, s62, {v(VHW)}')
        k.ds(f'ds_write_b128 {v(VT)}, {v(H+4*st,4)}')
        if st < 7: k.e('s_add_u32 s62, s62, 2048\ns_and_b32 s62, s62, 0x7fff')
        bg.tick('W1', 1)
        for i in range(4):
            k.e(f'v_dot2_f32_bf16 {v(S1 + (i&1))}, {v(H+4*st+i)}, {v(ONE)}, {v(S1 + (i&1))}')
            k.e(f'v_dot2_f32_bf16 {v(S3 + (i&1))}, {v(H+4*st+i)}, {v(H+4*st+i)}, {v(S3 + (i&1))}')
    k.e(f'v_add_f32 {v(S1)}, {v(S1)}, {v(S2)}\nv_add_f32 {v(S2)}, {v(S3)}, {v(S4)}')
    reduce_q(k, [S1, S2], TM)
    k.ds(f'ds_write_b64 {v(VST)}, {v(S1,2)} offset:512')
    stamp(k, 3)
    bg.drain('W1')
    lodd, ldone = k.newlabel('odd'), k.newlabel('sdone')
    k.wait(tcs, bg.tok[('W1', 31)])
    k.e(f's_lshr_b32 {s(S_T0)}, {s(S_G)}, 1\ns_cmp_eq_u32 {s(S_T0)}, {s(S_KH)}'); k.e(f's_cbranch_scc0 {ldone}')
    k.e(f's_lshl_b32 {s(S_T0)}, {s(S_RB64)}, 16\ns_lshl_b32 {s(S_T1)}, {s(S_G)}, 14\ns_add_u32 {s(S_T0)}, {s(S_T0)}, {s(S_T1)}')
    k.e(f's_and_b32 {s(S_T1)}, {s(S_RB32)}, 1\ns_lshl_b32 {s(S_T1)}, {s(S_T1)}, 1\ns_add_u32 {s(S_T1)}, {s(S_T1)}, {s(S_RT)}\ns_lshl_b32 {s(S_T1)}, {s(S_T1)}, 10\ns_add_u32 {s(S_T0)}, {s(S_T0)}, {s(S_T1)}')
    k.e(f's_bitcmp1_b32 {s(S_G)}, 0'); k.e(f's_cbranch_scc1 {lodd}')
    for base, lab in ((0, None), (4, lodd)):
        if lab: k.label(lab)
        for i in range(4):
            phantom(k, f'buffer_store_dwordx4 {v(X+4*(base+i),4)}, {v(VL16)}, {s(SX2,4)}, {s(S_T0)} offen{SC}')
            if i < 3: k.e(f's_add_u32 {s(S_T0)}, {s(S_T0)}, 4096')
        if not lab: k.e(f's_branch {ldone}')
    k.label(ldone)
    k.barrier()
    stamp(k, 4)
    k.e(f'v_lshlrev_b32 {v(VT)}, 3, {v(VI)}\nv_add_u32 {v(VT)}, {C_ST + 512}, {v(VT)}')
    ST = 96
    ts = [k.ds(f'ds_read_b64 {v(ST+2*w,2)}, {v(VT)} offset:{128*w}') for w in range(4)]
    ACC = 140; BF = 104; NB = 4
    def readB(st):
        b = BF + 8 * (st % NB)
        k.ds(f'ds_read_b128 {v(b,4)}, {v(VHR)} offset:{2048*st}')
        return k.ds(f'ds_read_b128 {v(b+4,4)}, {v(VHR)} offset:{2048*st+256}')
    PD = CFG['c_pd']
    tb = {n: readB(n) for n in range(PD)}
    k.wait(ts[3])
    k.e(f'v_pk_add_f32 {v(ST,2)}, {v(ST,2)}, {v(ST+4,2)}\nv_pk_add_f32 {v(ST+2,2)}, {v(ST+2,2)}, {v(ST+6,2)}')
    for st in range(16):
        if st + PD < 16: tb[st+PD] = readB(st + PD)
        k.wait(tb[st])
        b = BF + 8 * (st % NB)
        for rt in range(2):
            for tau in range(2):
                acc = v(ACC+8*rt+4*tau,4)
                mfma16(k, acc, a(8*st+4*tau,4), v(b+4*rt,4), '0' if st == 0 else acc)
        if st % CFG['c_g_every'] == CFG['c_g_every'] - 1: bg.tick('W2', 1)
        if st == 0:
            mean_var(k, ST, ST+1, TM); mean_var(k, ST+2, ST+3, TM)
        if st == 2:
            for i in range(8): k.e(f'v_add_f32 {v(CS+i)}, {v(CS+i)}, {v(CS+8+i)}')
    stamp(k, 5)
    q_W3(k, bg, (0, 1))
    KC = [[100, 102, 104, 106], [108, 110, 112, 114]]
    for rt in range(2): gelu_row_consts(k, ST + 2*rt, ST + 2*rt + 1, KC[rt], 116)
    k.e(f's_lshl_b32 {s(S_T0)}, {s(S_G)}, 2\ns_add_u32 {s(S_T0)}, {s(S_T0)}, {s(S_WAVE)}\ns_lshl_b32 {s(S_T0)}, {s(S_T0)}, 11')
    k.e(f's_lshl_b32 {s(S_T1)}, {s(S_RB32)}, 15\ns_add_u32 {s(S_T0)}, {s(S_T0)}, {s(S_T1)}\ns_mov_b32 s61, {s(S_T0)}')
    TP = 120; O = 32
    for rt in range(2):
        prs = [ACC + 8*rt + 2*i for i in range(4)]
        NM_, A_, B_, IR_ = KC[rt]
        for n, ins in enumerate(gelu_pk(prs, [CS + 2*i for i in range(4)], [TP + 2*i for i in range(4)], NM_, A_, B_, IR_)):
            k.e(ins)
            if n % CFG['c_epi_bg'] == CFG['c_epi_bg'] - 1: bg.tick('W3', 1)
        for i, p in enumerate(prs): k.e(f'v_cvt_pk_bf16_f32 {v(O+4*rt+i)}, {v(p)}, {v(p+1)}')
        k.vm(f'buffer_store_dwordx4 {v(O+4*rt,4)}, {v(VL16)}, {s(SH1,4)}, {s(S_T0)} offen offset:{1024*rt}{SC}')
    def rr():
        k.e(f'v_lshlrev_b32 {v(VT)}, 7, {v(VL)}\nv_mov_b32 {v(VU)}, {hex(OOB)}\nv_cmp_gt_u32 vcc, 16, {v(VL)}\nv_cndmask_b32 {v(VT)}, {v(VU)}, {v(VT)}, vcc')
        k.vm(f'buffer_load_dword v0, {v(VT)}, {s(SH1,4)}, s61 offen{SC}')
    publish(k, 0, rr)
    stamp(k, 6)

D_HB = 0; D_ST = C_ST
def phase_D(k, bg):
    S_T0, S_T1, S_T2, S_SG, S_PO = 44, 45, 46, 47, 60
    SH1, SX1, SST = 48, 64, 68
    k.c('phase D : shifted h1 @ w2 + h2 -> x1, row statistics')
    bg.tick('W2', CFG['d_pre'])
    srd(k, SH1, P_WS, H1C, 2 * MB)
    srd(k, SX1, P_WS, X1C, 2 * MB)
    srd(k, SST, P_WS, ST4, 2048 * 32)
    S_GWD = 62
    k.e(f's_lshr_b32 {s(S_GWD)}, {s(S_OFD)}, 2\ns_add_u32 {s(S_GWD)}, {s(S_GWD)}, {s(S_WAVE)}\ns_and_b32 {s(S_GWD)}, {s(S_GWD)}, 3')
    k.e(f's_lshr_b32 {s(S_T0)}, {s(S_GWD)}, 1\ns_add_u32 {s(S_T0)}, {s(S_T0)}, 1')
    k.e(f's_sub_u32 {s(S_T1)}, 0, {s(S_T0)}\ns_bitcmp1_b32 {s(S_GWD)}, 0\ns_cselect_b32 {s(S_SG)}, {s(S_T0)}, {s(S_T1)}')
    k.e(f's_add_u32 {s(S_T0)}, {s(S_R32)}, {s(S_SG)}')
    VO0, VO1 = 8, 9
    for rt, vo in ((0, VO0), (1, VO1)):
        k.e(f'v_add_u32 {v(VT)}, {s(S_T0)}, {v(VI)}')
        if rt: k.e(f'v_add_u32 {v(VT)}, 16, {v(VT)}')
        k.e(f'v_lshrrev_b32 {v(vo)}, 5, {v(VT)}\nv_lshlrev_b32 {v(vo)}, 15, {v(vo)}')
        k.e(f'v_bfe_u32 {v(VU)}, {v(VT)}, 4, 1\nv_lshl_add_u32 {v(vo)}, {v(VU)}, 10, {v(vo)}')
        k.e(f'v_and_b32 {v(VU)}, 15, {v(VT)}\nv_lshl_add_u32 {v(vo)}, {v(VU)}, 4, {v(vo)}\nv_lshl_add_u32 {v(vo)}, {v(VQ)}, 8, {v(vo)}')
        k.e(f'v_mov_b32 {v(VU)}, {hex(OOB)}\nv_cmp_gt_u32 vcc, 2048, {v(VT)}\nv_cndmask_b32 {v(vo)}, {v(VU)}, {v(vo)}, vcc')
    VGO, VH2 = 10, 11
    k.e(f's_lshl_b32 {s(S_PO)}, {s(S_G)}, 2\ns_add_u32 {s(S_PO)}, {s(S_PO)}, {s(S_WAVE)}')
    k.e(f's_sub_u32 {s(S_T0)}, {s(S_PO)}, {s(S_OFC)}\ns_and_b32 {s(S_T0)}, {s(S_T0)}, 15\ns_lshl_b32 {s(S_T0)}, {s(S_T0)}, 11\ns_add_u32 {s(S_T0)}, {s(S_T0)}, {C_HB}')
    k.e(f'v_lshlrev_b32 {v(VH2)}, 9, {v(VQ)}\nv_lshl_add_u32 {v(VH2)}, {v(VI)}, 4, {v(VH2)}\nv_add_u32 {v(VH2)}, {s(S_T0)}, {v(VH2)}')
    k.e(f's_lshl_b32 {s(S_PO)}, {s(S_PO)}, 12\ns_lshl_b32 {s(S_T0)}, {s(S_RB64)}, 16\ns_add_u32 {s(S_PO)}, {s(S_PO)}, {s(S_T0)}')
    k.e(f's_and_b32 {s(S_T0)}, {s(S_RB32)}, 1\ns_lshl_b32 {s(S_T0)}, {s(S_T0)}, 11\ns_add_u32 {s(S_PO)}, {s(S_PO)}, {s(S_T0)}')
    H2 = 12
    k.ds(f'ds_read_b128 {v(H2,4)}, {v(VH2)}')
    th2 = k.ds(f'ds_read_b128 {v(H2+4,4)}, {v(VH2)} offset:256')
    k.e(f's_lshl_b32 s43, {s(S_RB32)}, 2\ns_sub_u32 s43, s43, 4')
    await_flags(k, 0, 43, 12)
    stamp(k, 11)
    k.e(f's_lshl_b32 {s(S_T2)}, {s(S_WAVE)}, 13\ns_lshl_b32 {s(S_T1)}, {s(S_GWD)}, 13')
    for i in range(4):
        for rt, vo in ((0, VO0), (1, VO1)):
            k.e(f's_add_u32 m0, {s(S_T2)}, {D_HB + 2048*i + 1024*rt}')
            tdma = k.vm(f'buffer_load_dwordx4 {v(vo)}, {s(SH1,4)}, {s(S_T1)} offen{SC} lds')
        if i < 3: k.e(f's_add_u32 {s(S_T1)}, {s(S_T1)}, 2048')
    bg.tick('W2', CFG['d_dma_bg'])
    ACC = 20; BF = 36; NB = 4
    k.wait(tdma); k.e('s_barrier')
    stamp(k, 12)
    def readB(st):
        b = BF + 8 * (st % NB)
        k.ds(f'ds_read_b128 {v(b,4)}, {v(VL16)} offset:{D_HB + 2048*st}')
        return k.ds(f'ds_read_b128 {v(b+4,4)}, {v(VL16)} offset:{D_HB + 2048*st + 1024}')
    PD = CFG['d_pd']
    tb = {n: readB(n) for n in range(PD)}
    for st in range(16):
        if st + PD < 16: tb[st+PD] = readB(st + PD)
        k.wait(tb[st], *bg.need(('W2', 2*st), ('W2', 2*st+1)))
        b = BF + 8 * (st % NB)
        for rt in range(2):
            for tau in range(2):
                acc = v(ACC+8*rt+4*tau,4)
                mfma16(k, acc, a(128+8*st+4*tau,4), v(b+4*rt,4), '0' if st == 0 else acc)
        if st % CFG['d_g_every'] == CFG['d_g_every'] - 1: bg.tick('W3', 1)
    stamp(k, 13)
    q_W3(k, bg, (2,))
    U = 36; SM = 52; O = 60; TM = 68
    k.wait(th2)
    ne = [CFG['d_epi_bg']]
    def etick():
        if ne[0] > 0: bg.tick('W3', 1); ne[0] -= 1
    for rt in range(2):
        for i in range(4):
            k.e(f'v_lshlrev_b32 {v(U+8*rt+2*i)}, 16, {v(H2+4*rt+i)}\nv_and_b32 {v(U+8*rt+2*i+1)}, 0xffff0000, {v(H2+4*rt+i)}')
            if i & 1: etick()
    for rt in range(2):
        for i in range(4):
            p = ACC + 8*rt + 2*i
            k.e(f'v_pk_add_f32 {v(p,2)}, {v(p,2)}, {v(U+8*rt+2*i,2)}')
    for rt in range(2):
        for i in range(4):
            p = ACC + 8*rt + 2*i
            k.e(f'v_cvt_pk_bf16_f32 {v(O+4*rt+i)}, {v(p)}, {v(p+1)}')
        k.vm(f'buffer_store_dwordx4 {v(O+4*rt,4)}, {v(VL16)}, {s(SX1,4)}, {s(S_PO)} offen offset:{1024*rt}{SC}')
    for rt in range(2):
        p = ACC + 8*rt; sm = SM + 4*rt
        etick(); etick()
        k.e(f'v_pk_add_f32 {v(sm,2)}, {v(p,2)}, {v(p+2,2)}\nv_pk_mul_f32 {v(sm+2,2)}, {v(p,2)}, {v(p,2)}')
        k.e(f'v_pk_add_f32 {v(sm,2)}, {v(sm,2)}, {v(p+4,2)}\nv_pk_fma_f32 {v(sm+2,2)}, {v(p+2,2)}, {v(p+2,2)}, {v(sm+2,2)}')
        k.e(f'v_pk_add_f32 {v(sm,2)}, {v(sm,2)}, {v(p+6,2)}\nv_pk_fma_f32 {v(sm+2,2)}, {v(p+4,2)}, {v(p+4,2)}, {v(sm+2,2)}')
        k.e(f'v_pk_fma_f32 {v(sm+2,2)}, {v(p+6,2)}, {v(p+6,2)}, {v(sm+2,2)}')
    for rt in range(2):
        sm = SM + 4*rt
        k.e(f'v_add_f32 {v(sm)}, {v(sm)}, {v(sm+1)}\nv_add_f32 {v(sm+1)}, {v(sm+2)}, {v(sm+3)}')
    reduce_q(k, [SM, SM+1, SM+4, SM+5], TM)
    k.e(f's_lshl_b32 {s(S_T0)}, {s(S_WAVE)}, 8\ns_add_u32 {s(S_T0)}, {s(S_T0)}, {D_ST}\nv_lshl_add_u32 {v(VT)}, {v(VI)}, 3, {s(S_T0)}')
    k.ds(f'ds_write_b64 {v(VT)}, {v(SM,2)}')
    k.ds(f'ds_write_b64 {v(VT)}, {v(SM+4,2)} offset:128')
    k.barrier()
    lend = k.newlabel('dend')
    k.e(f's_cmp_eq_u32 {s(S_WAVE)}, 0'); k.e(f's_cbranch_scc0 {lend}')
    k.e(f'v_and_b32 {v(VT)}, 31, {v(VL)}\nv_lshlrev_b32 {v(VU)}, 3, {v(VT)}\nv_add_u32 {v(VU)}, {D_ST}, {v(VU)}')
    ts = [k.ds(f'ds_read_b64 {v(U+2*w,2)}, {v(VU)} offset:{256*w}') for w in range(4)]
    k.e(f'v_add_u32 {v(VT)}, {s(S_R32)}, {v(VT)}\nv_lshlrev_b32 {v(VT)}, 5, {v(VT)}')
    k.e(f'v_mov_b32 {v(VU)}, {hex(OOB)}\nv_cmp_gt_u32 vcc, 32, {v(VL)}\nv_cndmask_b32 {v(VT)}, {v(VU)}, {v(VT)}, vcc')
    k.e(f's_lshl_b32 {s(S_T0)}, {s(S_G)}, 3')
    k.wait(ts[3])
    k.e(f'v_pk_add_f32 {v(U,2)}, {v(U,2)}, {v(U+2,2)}\nv_pk_add_f32 {v(U+4,2)}, {v(U+4,2)}, {v(U+6,2)}\nv_pk_add_f32 {v(U,2)}, {v(U,2)}, {v(U+4,2)}')
    phantom(k, f'buffer_store_dwordx2 {v(U,2)}, {v(VT)}, {s(SST,4)}, {s(S_T0)} offen{SC}')
    k.label(lend)
    def rr():
        k.e(f'v_lshlrev_b32 {v(VT)}, 7, {v(VL)}\nv_mov_b32 {v(VU)}, {hex(OOB)}\nv_cmp_gt_u32 vcc, 16, {v(VL)}\nv_cndmask_b32 {v(VT)}, {v(VU)}, {v(VT)}, vcc')
        k.vm(f'buffer_load_dword v0, {v(VT)}, {s(SX1,4)}, {s(S_PO)} offen{SC}')
    publish(k, 1, rr)
    stamp(k, 14)

E_XB = 0
def phase_E(k, bg):
    S_T0, S_T1, S_T2, S_GW = 44, 45, 46, 47
    SX1, SST, SCS, SH = 48, 52, 64, 68
    k.c('phase E : LN(x1) @ w3 -> gelu -> H')
    srd(k, SX1, P_WS, X1C, 2 * MB)
    srd(k, SST, P_WS, ST4, 2048 * 32)
    srd(k, SCS, P_WS, CS3, 2 * 1408 * 4)
    k.e(f's_mul_i32 {s(S_T0)}, {s(S_RB64)}, {HB_BLK}\ns_add_u32 {s(S_T0)}, {s(S_T0)}, {hex(HC)}')
    srd(k, SH, P_WS, s(S_T0), HB_BLK)
    k.e(f's_lshl_b32 {s(S_GW)}, {s(S_J)}, 2\ns_add_u32 {s(S_GW)}, {s(S_GW)}, {s(S_WAVE)}')
    CS = 48
    k.e(f's_mul_i32 {s(S_T0)}, {s(S_GW)}, {3*64}\nv_lshlrev_b32 {v(VT)}, 4, {v(VQ)}')
    for i in range(3):
        k.vm(f'buffer_load_dwordx4 {v(CS+4*i,4)}, {v(VT)}, {s(SCS,4)}, {s(S_T0)} offen offset:{64*i}{SC}')
    k.e(f's_add_u32 {s(S_T0)}, {s(S_T0)}, {1408*4}')
    for i in range(3):
        tcs = k.vm(f'buffer_load_dwordx4 {v(CS+12+4*i,4)}, {v(VT)}, {s(SCS,4)}, {s(S_T0)} offen offset:{64*i}{SC}')
    bg.tick('W3', CFG['e_pre'])
    VHO = 9
    k.e(f'v_lshrrev_b32 {v(VT)}, 1, {v(VQ)}\nv_lshlrev_b32 {v(VHO)}, 8, {v(VT)}\nv_lshl_add_u32 {v(VHO)}, {v(VI)}, 4, {v(VHO)}')
    k.e(f'v_and_b32 {v(VT)}, 1, {v(VQ)}\nv_lshl_add_u32 {v(VHO)}, {v(VT)}, 3, {v(VHO)}')
    S_HO = 61
    for i in range(3):
        k.e(f's_mul_i32 {s(S_T0)}, {s(S_GW)}, 3\ns_add_u32 {s(S_T0)}, {s(S_T0)}, {i}')
        k.e(f's_lshr_b32 {s(S_HO+i)}, {s(S_T0)}, 1\ns_lshl_b32 {s(S_HO+i)}, {s(S_HO+i)}, 12\ns_and_b32 {s(S_T0)}, {s(S_T0)}, 1\ns_lshl_b32 {s(S_T0)}, {s(S_T0)}, 9\ns_add_u32 {s(S_HO+i)}, {s(S_HO+i)}, {s(S_T0)}')
    k.e(f's_lshl_b32 s43, {s(S_RB64)}, 3')
    await_flags(k, 1, 43, 8)
    stamp(k, 21)
    STR = 16
    k.e(f'v_add_u32 {v(VT)}, {s(S_R64)}, {v(VI)}\nv_lshlrev_b32 {v(VT)}, 5, {v(VT)}')
    for rt in range(4):
        k.vm(f'buffer_load_dwordx4 {v(STR+8*rt,4)}, {v(VT)}, {s(SST,4)}, 0 offen offset:{512*rt}{SC}')
        tst = k.vm(f'buffer_load_dwordx4 {v(STR+8*rt+4,4)}, {v(VT)}, {s(SST,4)}, 0 offen offset:{512*rt+16}{SC}')
    k.e(f's_lshl_b32 {s(S_T2)}, {s(S_WAVE)}, 14\ns_lshl_b32 {s(S_T1)}, {s(S_RB64)}, 16')
    k.e(f's_lshl_b32 s60, {s(S_WAVE)}, 2\ns_add_u32 s60, s60, {s(S_OFE)}')
    tdma = {}
    def dma_x1(rt, n):
        k.e(f's_add_u32 m0, {s(S_T2)}, {E_XB + 4096*n + 1024*rt}')
        k.e(f's_add_u32 {s(S_T0)}, s60, {n}\ns_and_b32 {s(S_T0)}, {s(S_T0)}, 15\ns_lshl_b32 {s(S_T0)}, {s(S_T0)}, 12\ns_add_u32 {s(S_T0)}, {s(S_T0)}, {s(64+8)}')
        if rt: k.e(f's_add_u32 {s(S_T0)}, {s(S_T0)}, {1024*rt}')
        tdma[rt] = k.vm(f'buffer_load_dwordx4 {v(VL16)}, {s(SX1,4)}, {s(S_T0)} offen{SC} lds')
    k.e(f's_mov_b32 {s(64+8)}, {s(S_T1)}')
    pend_dma = [(rt, n) for rt in range(4) for n in range(4)]
    for _ in range(CFG['e_dma_first']): dma_x1(*pend_dma.pop(0))
    bg.drain('W3')
    k.wait(tst, tcs)
    KC = [[72 + 4*rt + j for j in range(4)] for rt in range(4)]
    for rt in range(4):
        b = STR + 8*rt
        k.e(f'v_pk_add_f32 {v(b,2)}, {v(b,2)}, {v(b+2,2)}\nv_pk_add_f32 {v(b+4,2)}, {v(b+4,2)}, {v(b+6,2)}\nv_pk_add_f32 {v(b,2)}, {v(b,2)}, {v(b+4,2)}')
    for rt in range(4):
        b = STR + 8*rt
        mean_var(k, b, b+1, b+2)
        gelu_row_consts(k, b, b+1, KC[rt], b+2)
    for i in range(12): k.e(f'v_add_f32 {v(CS+i)}, {v(CS+i)}, {v(CS+12+i)}')
    k.wait(tdma[0]); k.e('s_barrier')
    stamp(k, 22)
    q_W4(k, bg)
    ACC = [96, 108]; BF = 120; NB = 4; TP = 16; O = 28
    def readB(rt, st):
        return k.ds(f'ds_read_b128 {v(BF+4*((16*rt+st) % NB),4)}, {v(VL16)} offset:{E_XB + 4096*st + 1024*rt}')
    def epilogue(rt):
        A_ = ACC[rt & 1]; o = []
        NM_, AA, BB, IR_ = KC[rt]
        for half in range(2):
            regs = [A_ + 6*half + i for i in range(6)]
            o += gelu_plain(regs, [CS + 6*half + i for i in range(6)], [TP + i for i in range(6)], NM_, AA, BB, IR_)
            for i in range(3): o.append(f'v_cvt_pk_bf16_f32 {v(O+3*half+i+8*(rt&1))}, {v(A_+6*half+2*i)}, {v(A_+6*half+2*i+1)}')
        for i in range(3):
            if CFG['e_store']: o.append(f'buffer_store_dwordx2 {v(O+2*i+8*(rt&1),2)}, {v(VHO)}, {s(SH,4)}, {s(S_HO+i)} offen offset:{1024*rt}{SC}')
        return o
    seq = [(rt, st) for rt in range(4) for st in range(16)]
    tb = {}
    PD = CFG['e_pd']
    for n in range(PD): tb[seq[n]] = readB(*seq[n])
    pend = []
    for n, (rt, st) in enumerate(seq):
        if st == 16 - PD - 1 and rt < 3:
            k.wait(tdma[rt+1]); k.e('s_barrier')
        if n + PD < len(seq): tb[seq[n+PD]] = readB(*seq[n+PD])
        if st == 0 and rt > 0 and CFG['e_epi']: pend = epilogue(rt - 1)
        k.wait(tb[(rt, st)])
        if rt == 0: k.wait(*bg.need(*[('W3', i, st) for i in range(3)]))
        b = BF + 4 * ((16*rt+st) % NB)
        for i in range(3):
            acc = v(ACC[rt & 1] + 4*i, 4)
            mfma16(k, acc, w3reg(i, st), v(b,4), '0' if st == 0 else acc)
            if pend and (st > 0 or i == 2):
                nper = -(-len(pend) // max(1, (3*(15-st) + (3-i)) - 3))
                for _ in range(min(len(pend), max(1, nper))): k.e(pend.pop(0))
        if pend_dma: dma_x1(*pend_dma.pop(0))
        elif CFG['e_bg'] and (rt < 3 or st < 12): bg.tick('W4', 1)
        if st == 15: stamp(k, 26 + rt)
        if st == 15:
            for ins in pend: k.e(ins)
            pend = []
    stamp(k, 23)
    for ins in epilogue(3): k.e(ins)
    stamp(k, 24)
    def rr():
        k.e(f'v_mov_b32 {v(VT)}, {s(S_HO)}\nv_mov_b32 {v(VU)}, {s(S_HO+1)}\nv_cmp_eq_u32 vcc, 1, {v(VQ)}\nv_cndmask_b32 {v(VT)}, {v(VT)}, {v(VU)}, vcc')
        k.e(f'v_mov_b32 {v(VU)}, {s(S_HO+2)}\nv_cmp_eq_u32 vcc, 2, {v(VQ)}\nv_cndmask_b32 {v(VT)}, {v(VT)}, {v(VU)}, vcc')
        k.e(f'v_mov_b32 {v(VU)}, {hex(OOB)}\nv_cmp_eq_u32 vcc, 3, {v(VQ)}\nv_cndmask_b32 {v(VT)}, {v(VT)}, {v(VU)}, vcc')
        k.e(f'v_bfe_u32 {v(VU)}, {v(VL)}, 2, 2\nv_lshl_add_u32 {v(VT)}, {v(VU)}, 10, {v(VT)}\nv_and_b32 {v(VU)}, 3, {v(VL)}\nv_lshl_add_u32 {v(VT)}, {v(VU)}, 7, {v(VT)}')
        k.vm(f'buffer_load_dword v0, {v(VT)}, {s(SH,4)}, 0 offen{SC}')
    publish(k, 2, rr)
    stamp(k, 25)

def phase_F(k, bg):
    S_T0, S_T1, S_T2, S_HO = 44, 45, 46, 47
    SH, SX1, SX2, SMOD, SO = 48, 56, 64, 68, 72
    k.c('phase F : H @ w4, final residual')
    k.e(f's_mul_i32 {s(S_T0)}, {s(S_RB64)}, {HB_BLK}\ns_mul_i32 {s(S_T1)}, {s(S_WAVE)}, {11*4096}\ns_add_u32 {s(S_T0)}, {s(S_T0)}, {s(S_T1)}')
    k.e(f's_add_u32 {s(SH)}, {s(P_WS)}, {hex(HC)}\ns_addc_u32 {s(SH+1)}, {s(P_WS+1)}, 0\ns_add_u32 {s(SH)}, {s(SH)}, {s(S_T0)}\ns_addc_u32 {s(SH+1)}, {s(SH+1)}, 0')
    k.e(f's_sub_u32 {s(SH+2)}, {HB_BLK}, {s(S_T1)}\ns_mov_b32 {s(SH+3)}, 0x20000')
    srd(k, SX1, P_WS, X1C, 2 * MB)
    srd(k, SX2, P_WS, X2C, 2 * MB)
    srd(k, SMOD, P_WS, MOD, 3072 * 4)
    srd(k, SO, P_OUT, 0, 2 * MB)
    EX1, EX2, GB = 112, 120, 12
    k.e(f's_lshl_b32 {s(S_T1)}, {s(S_RB64)}, 16\ns_lshl_b32 {s(S_T0)}, {s(S_J)}, 13\ns_add_u32 {s(S_T1)}, {s(S_T1)}, {s(S_T0)}')
    k.e(f's_lshl_b32 {s(S_T0)}, {s(S_WAVE)}, 10\ns_add_u32 {s(S_T1)}, {s(S_T1)}, {s(S_T0)}')
    for p in range(2):
        k.vm(f'buffer_load_dwordx4 {v(EX1+4*p,4)}, {v(VL16)}, {s(SX1,4)}, {s(S_T1)} offen{SC}')
        k.vm(f'buffer_load_dwordx4 {v(EX2+4*p,4)}, {v(VL16)}, {s(SX2,4)}, {s(S_T1)} offen{SC}')
        if p == 0: k.e(f's_add_u32 {s(S_T1)}, {s(S_T1)}, 4096')
    k.e(f's_lshl_b32 {s(S_T1)}, {s(S_J)}, 8\ns_add_u32 {s(S_T1)}, {s(S_T1)}, {5*2048}\nv_lshlrev_b32 {v(VT)}, 5, {v(VQ)}')
    for p in range(2):
        k.vm(f'buffer_load_dwordx4 {v(GB+8*p,4)}, {v(VT)}, {s(SMOD,4)}, {s(S_T1)} offen offset:{128*p}{SC}')
        tep = k.vm(f'buffer_load_dwordx4 {v(GB+8*p+4,4)}, {v(VT)}, {s(SMOD,4)}, {s(S_T1)} offen offset:{128*p+16}{SC}')
    bg.drain('W4')
    k.e(f's_lshl_b32 s43, {s(S_RB64)}, 3')
    await_flags(k, 2, 43, 8)
    stamp(k, 31)
    ND = 8
    k.e(f's_lshl_b32 {s(S_HO)}, {s(S_OFF)}, 12')
    tH = {}
    def loadH(st):
        if st:
            for i_ in step11(S_HO): k.e(i_)
        for rt in range(4):
            tH[(st, rt)] = k.vm(f'buffer_load_dwordx4 {a(16*(st % ND)+4*rt,4)}, {v(VL16)}, {s(SH,4)}, {s(S_HO)} offen offset:{1024*rt}{SC}')
    for st in range(CFG['f_depth']): loadH(st)
    nxt = CFG['f_depth']
    ACC = 128
    for st in range(11):
        for rt in range(4):
            k.wait(tH[(st, rt)])
            for t in range(4):
                acc = a(ACC + 16*rt + 4*t, 4)
                mfma16(k, acc, w4reg(st, t), a(16*(st % ND)+4*rt,4), '0' if st == 0 else acc)
        if nxt < 11: loadH(nxt); nxt += 1
    stamp(k, 32)
    labs = [k.newlabel(f'r{w}') for w in range(4)]; lj = k.newlabel('rj')
    for w in range(1, 4):
        k.e(f's_cmp_eq_u32 {s(S_WAVE)}, {w}'); k.e(f's_cbranch_scc1 {labs[w]}')
    KEEP = 32
    for w in range(4):
        k.label(labs[w])
        k.flush_hazards(8)
        for rt in range(4):
            if rt == w: continue
            idx = rt - (1 if rt > w else 0)
            base = (w*3 + idx) * 4096
            for t in range(4): k.ds(f'ds_write_b128 {v(VL16)}, {a(ACC+16*rt+4*t,4)} offset:{base + 1024*t}')
        for i in range(16): k.e(f'v_accvgpr_read_b32 {v(KEEP+i)}, {a(ACC+16*w+i)}')
        if w < 3: k.e(f's_branch {lj}')
    k.label(lj)
    k.unknown_counters()
    k.e('s_waitcnt lgkmcnt(0)'); k.e('s_barrier')
    stamp(k, 33)
    PR = 48
    for n in range(3):
        k.e(f's_cmp_ge_u32 {n}, {s(S_WAVE)}\ns_cselect_b32 {s(S_T0)}, 1, 0\ns_add_u32 {s(S_T1)}, {s(S_T0)}, {n}')
        k.e(f's_mul_i32 {s(S_T1)}, {s(S_T1)}, 3\ns_add_u32 {s(S_T1)}, {s(S_T1)}, {s(S_WAVE)}\ns_sub_u32 {s(S_T1)}, {s(S_T1)}, 1\ns_add_u32 {s(S_T1)}, {s(S_T1)}, {s(S_T0)}')
        k.e(f's_lshl_b32 {s(S_T1)}, {s(S_T1)}, 12\nv_add_u32 {v(VT)}, {s(S_T1)}, {v(VL16)}')
        for t in range(4): tr = k.ds(f'ds_read_b128 {v(PR+16*n+4*t,4)}, {v(VT)} offset:{1024*t}')
    k.e(f's_lshl_b32 {s(S_T0)}, {s(S_WAVE)}, 4\ns_add_u32 {s(S_T0)}, {s(S_T0)}, {s(S_R64)}\nv_add_u32 {v(VU)}, {s(S_T0)}, {v(VI)}')
    k.e(f'v_lshlrev_b32 {v(VU)}, 10, {v(VU)}\nv_lshl_add_u32 {v(VU)}, {v(VQ)}, 4, {v(VU)}\ns_lshl_b32 {s(S_T1)}, {s(S_J)}, 7')
    k.wait(tr)
    for n in range(3):
        for i in range(8): k.e(f'v_pk_add_f32 {v(KEEP+2*i,2)}, {v(KEEP+2*i,2)}, {v(PR+16*n+2*i,2)}')
    U = 96; O = 48
    for p in range(2):
        for i in range(4):
            k.e(f'v_lshlrev_b32 {v(U+2*i)}, 16, {v(EX1+4*p+i)}\nv_and_b32 {v(U+2*i+1)}, 0xffff0000, {v(EX1+4*p+i)}')
            k.e(f'v_lshlrev_b32 {v(U+8+2*i)}, 16, {v(EX2+4*p+i)}\nv_and_b32 {v(U+8+2*i+1)}, 0xffff0000, {v(EX2+4*p+i)}')
        for i in range(4):
            x = KEEP + 8*p + 2*i
            k.e(f'v_pk_add_f32 {v(x,2)}, {v(x,2)}, {v(U+2*i,2)}')
        for i in range(4):
            x = KEEP + 8*p + 2*i
            k.e(f'v_pk_fma_f32 {v(x,2)}, {v(x,2)}, {v(GB+8*p+2*i,2)}, {v(U+8+2*i,2)}')
        for i in range(4):
            x = KEEP + 8*p + 2*i
            k.e(f'v_cvt_pk_bf16_f32 {v(O+4*p+i)}, {v(x)}, {v(x+1)}')
        k.vm(f'buffer_store_dwordx4 {v(O+4*p,4)}, {v(VU)}, {s(SO,4)}, {s(S_T1)} offen offset:{64*p}')

HB_BLK = 43 * 4096
CFG = dict(rot=0, reread=0, c_w1_first=12, c_st_every=2, c_g_every=1, c_epi_bg=6, c_pd=2, d_pre=8, d_dma_bg=8, d_g_every=1, d_epi_bg=12, d_pd=2, e_pre=8, e_dma_first=4, e_bg=1, e_store=1, e_pd=2, e_epi=1, f_depth=6)

def build_P(name):
    k = Kern(name)
    lend = k.newlabel('end')
    k.e(f's_cmp_ge_u32 s2, 256'); k.e(f's_cbranch_scc1 {lend}')
    k.e('s_load_dwordx2 s[36:37], s[0:1], 128'); k.e('s_load_dwordx2 s[40:41], s[0:1], 144')
    wave_id(k); wg_map(k)
    k.e(f's_lshl_b32 {s(S_LID)}, {s(S_RB64)}, 3\ns_add_u32 {s(S_LID)}, {s(S_LID)}, {s(S_J)}')
    k.e(f's_mov_b32 {s(S_NONCE)}, 1')
    k.e(f'v_and_b32 {v(VL)}, 63, v0\nv_and_b32 {v(VI)}, 15, {v(VL)}\nv_lshrrev_b32 {v(VQ)}, 4, {v(VL)}\nv_lshlrev_b32 {v(VL16)}, 4, {v(VL)}')
    k.e('s_waitcnt lgkmcnt(0)')
    dbg_stamp(k, 6, 2, va=200)
    stamp_begin(k)
    rotations(k)
    k.e(f's_lshl_b32 s44, {s(S_G)}, 2\ns_add_u32 s44, s44, {s(S_WAVE)}\ns_lshl_b32 s44, s44, 15')
    srd_dyn(k, SW1, W1F, 44, 512 * KB); srd_dyn(k, SW2, W2F, 44, 512 * KB)
    k.e(f's_lshl_b32 s44, {s(S_J)}, 2\ns_add_u32 s44, s44, {s(S_WAVE)}\ns_mul_i32 s44, s44, {3*16384}')
    srd_dyn(k, SW3, W3F, 44, W3F_BYTES)
    k.e(f's_mul_i32 s44, {s(S_J)}, 176128\ns_mul_i32 s45, {s(S_WAVE)}, {11*4096}\ns_add_u32 s44, s44, s45')
    srd_dyn(k, SW4, W4F, 44, W4F_BYTES)
    srd(k, SFL, P_WS, FLG, 4 * 16384)
    bg = BG(k)
    phase_C(k, bg); dbg_stamp(k, 7, 2, va=204); phase_D(k, bg); dbg_stamp(k, 8, 2, va=204); phase_E(k, bg); dbg_stamp(k, 9, 2, va=136); phase_F(k, bg)
    if __import__('common').DBG: k.e('s_waitcnt vmcnt(0)')
    dbg_stamp(k, 10, 2)
    stamp_end(k, 2)
    k.label(lend)
    k.e('s_endpgm')
    return k
```

```python
from common import *

OOB = 0x7ff00000

P_U, P_ARE, P_AIM, P_BRE, P_BIM, P_CRE, P_CIM, P_LDT = 4, 6, 8, 10, 12, 14, 16, 18
P_DSK, P_BX, P_W1, P_W2, P_W3, P_W4, P_C, P_WMOD = 20, 22, 24, 26, 28, 30, 32, 34
P_OUT, P_DBG, P_WS = 36, 38, 40
S_WAVE = 42
S_ID = 43

def load_all_ptrs(k):
    k.e('s_load_dwordx16 s[4:19], s[0:1], 0')
    k.e('s_load_dwordx16 s[20:35], s[0:1], 64')
    k.e('s_load_dwordx4 s[36:39], s[0:1], 128')
    k.e('s_load_dwordx2 s[40:41], s[0:1], 144')

def wave_id(k):
    k.e('v_lshrrev_b32 v1, 6, v0')
    k.e(f'v_readfirstlane_b32 {s(S_WAVE)}, v1')

def dma_tile(k, srdq, s_stride, s_rowbase_bytes, lds_base, va, vb, stmp, nrows_per_wave=64):
    for i in range(nrows_per_wave // 8):
        k.e(f's_lshl_b32 {s(stmp)}, {s(S_WAVE)}, 13')
        k.e(f's_add_u32 m0, {s(stmp)}, {lds_base + 1024 * i}')
        if i == 0: k.e(f's_mov_b32 {s(stmp+1)}, {s(s_rowbase_bytes)}')
        else:
            k.e(f's_lshl_b32 {s(stmp)}, {s(s_stride)}, 3')
            k.e(f's_add_u32 {s(stmp+1)}, {s(stmp+1)}, {s(stmp)}')
        k.vm(f'buffer_load_dwordx4 {v(vb if i & 1 else va)}, {s(srdq,4)}, {s(stmp+1)} offen lds')

def dma_voffsets(k, s_stride, va, vb, vt):
    k.e(f'v_and_b32 {v(vt)}, 63, v0')
    k.e(f'v_lshrrev_b32 {v(va)}, 3, {v(vt)}')
    k.e(f'v_and_b32 {v(vb)}, 2, {v(va)}')
    k.e(f'v_and_b32 {v(vt)}, 7, {v(vt)}')
    k.e(f'v_xor_b32 {v(vt)}, {v(vt)}, {v(vb)}')
    k.e(f'v_mul_lo_u32 {v(va)}, {v(va)}, {s(s_stride)}')
    k.e(f'v_xor_b32 {v(vb)}, 4, {v(vt)}')
    k.e(f'v_lshl_add_u32 {v(vb)}, {v(vb)}, 4, {v(va)}')
    k.e(f'v_lshl_add_u32 {v(va)}, {v(vt)}, 4, {v(va)}')

def tr_addr(k, vd, vt, vu, s_chunkbase, s_half, natural):
    k.e(f'v_and_b32 {v(vt)}, 63, v0')
    k.e(f'v_and_b32 {v(vd)}, 3, {v(vt)}')
    if natural:
        k.e(f'v_lshrrev_b32 {v(vu)}, 1, {v(vd)}')
        k.e(f'v_add_u32 {v(vu)}, {s(s_chunkbase)}, {v(vu)}')
        k.e(f'v_and_b32 {v(vd)}, 1, {v(vd)}')
        k.e(f'v_lshlrev_b32 {v(vd)}, 3, {v(vd)}')
    else:
        k.e(f'v_add_u32 {v(vu)}, {s(s_chunkbase)}, {v(vd)}')
        k.e(f'v_mov_b32 {v(vd)}, {s(s_half)}')
    r_ = vt
    k.e(f'v_lshrrev_b32 {v(vt)}, 2, {v(vt)}')
    k.e(f'v_and_b32 {v(vd+1)}, 6, {v(vt)}')
    k.e(f'v_xor_b32 {v(vu)}, {v(vu)}, {v(vd+1)}')
    k.e(f'v_lshl_add_u32 {v(vd)}, {v(vu)}, 4, {v(vd)}')
    k.e(f'v_and_b32 {v(vu)}, 3, {v(vt)}')
    k.e(f'v_lshrrev_b32 {v(vt)}, 2, {v(vt)}')
    k.e(f'v_lshl_add_u32 {v(vu)}, {v(vt)}, 3, {v(vu)}')
    k.e(f'v_lshl_add_u32 {v(vd)}, {v(vu)}, 7, {v(vd)}')

def role_W(k):
    S_STR, S_ROW, S_T0, S_T1 = 44, 45, 46, 47
    SRC, DST, CS = 48, 52, 56
    S_FB, S_KB, S_NAT, S_CSF, S_DOFF, S_DSTEP, S_CH, S_HALF, S_NST, S_CSO = 60, 61, 62, 63, 64, 65, 66, 67, 68, 69
    lw1, lw2, lw3, lw4, lgo = [k.newlabel(x) for x in ('w1', 'w2', 'w3', 'w4', 'wgo')]
    k.c('role W : weight shuffle into MFMA A-fragment order')
    k.e(f's_sub_u32 {s(S_ID)}, s2, 112')
    k.e(f's_cmp_ge_u32 {s(S_ID)}, 76'); k.e(f's_cbranch_scc1 {lw4}')
    k.e(f's_cmp_ge_u32 {s(S_ID)}, 32'); k.e(f's_cbranch_scc1 {lw3}')
    k.e(f's_cmp_ge_u32 {s(S_ID)}, 16'); k.e(f's_cbranch_scc1 {lw2}')
    def perm_setup(stride_tiles):
        k.e(f's_lshr_b32 {s(S_T0)}, {s(S_WAVE)}, 1')
        k.e(f's_lshl_b32 {s(S_CH)}, {s(S_T0)}, 2')
        k.e(f's_and_b32 {s(S_HALF)}, {s(S_WAVE)}, 1')
        k.e(f's_lshl_b32 {s(S_HALF)}, {s(S_HALF)}, 3')
        k.e(f's_mov_b32 {s(S_NAT)}, 0')
    for which, lab in ((1, lw1), (2, lw2)):
        k.label(lab)
        if which == 2: k.e(f's_sub_u32 {s(S_ID)}, {s(S_ID)}, 16')
        srd(k, SRC, P_W1 if which == 1 else P_W2, 0, 512 * 1024)
        srd(k, DST, P_WS, W1F if which == 1 else W2F, 512 * 1024)
        srd(k, CS, P_WS, CS1, 4096)
        k.e(f's_lshr_b32 {s(S_FB)}, {s(S_ID)}, 1\ns_and_b32 {s(S_KB)}, {s(S_ID)}, 1')
        k.e(f's_mov_b32 {s(S_STR)}, 1024')
        perm_setup(0)
        k.e(f's_lshl_b32 {s(S_DOFF)}, {s(S_FB)}, 1\ns_add_u32 {s(S_DOFF)}, {s(S_DOFF)}, {s(S_T0)}\ns_lshl_b32 {s(S_DOFF)}, {s(S_DOFF)}, 15')
        k.e(f's_lshl_b32 {s(S_T1)}, {s(S_KB)}, 14\ns_add_u32 {s(S_DOFF)}, {s(S_DOFF)}, {s(S_T1)}')
        k.e(f's_lshl_b32 {s(S_T1)}, {s(S_HALF)}, 7\ns_add_u32 {s(S_DOFF)}, {s(S_DOFF)}, {s(S_T1)}')
        k.e(f's_mov_b32 {s(S_DSTEP)}, 2048\ns_mov_b32 {s(S_NST)}, 8')
        k.e(f's_mov_b32 {s(S_CSF)}, {1 if which == 1 else 0}')
        k.e(f's_lshl_b32 {s(S_CSO)}, {s(S_KB)}, 11\ns_lshl_b32 {s(S_T1)}, {s(S_FB)}, 8\ns_add_u32 {s(S_CSO)}, {s(S_CSO)}, {s(S_T1)}')
        k.e(f's_lshl_b32 {s(S_T1)}, {s(S_T0)}, 7\ns_add_u32 {s(S_CSO)}, {s(S_CSO)}, {s(S_T1)}')
        k.e(f's_lshl_b32 {s(S_T1)}, {s(S_HALF)}, 1\ns_add_u32 {s(S_CSO)}, {s(S_CSO)}, {s(S_T1)}')
        k.e(f's_branch {lgo}')
    k.label(lw3)
    k.e(f's_sub_u32 {s(S_ID)}, {s(S_ID)}, 32')
    srd(k, SRC, P_W3, 0, 512 * 2752)
    srd(k, DST, P_WS, W3F, W3F_BYTES)
    srd(k, CS, P_WS, CS3, 2 * 1408 * 4)
    k.e(f's_lshr_b32 {s(S_FB)}, {s(S_ID)}, 1\ns_and_b32 {s(S_KB)}, {s(S_ID)}, 1')
    k.e(f's_mov_b32 {s(S_STR)}, 2752')
    k.e(f's_lshl_b32 {s(S_CH)}, {s(S_WAVE)}, 1\ns_mov_b32 {s(S_HALF)}, 0\ns_mov_b32 {s(S_NAT)}, 1')
    k.e(f's_lshl_b32 {s(S_DOFF)}, {s(S_FB)}, 2\ns_add_u32 {s(S_DOFF)}, {s(S_DOFF)}, {s(S_WAVE)}')
    k.e(f's_lshl_b32 {s(S_T0)}, {s(S_DOFF)}, 6')
    k.e(f's_lshl_b32 {s(S_DOFF)}, {s(S_DOFF)}, 14')
    k.e(f's_lshl_b32 {s(S_T1)}, {s(S_KB)}, 13\ns_add_u32 {s(S_DOFF)}, {s(S_DOFF)}, {s(S_T1)}')
    k.e(f's_mov_b32 {s(S_DSTEP)}, 1024\ns_mov_b32 {s(S_NST)}, 8\ns_mov_b32 {s(S_CSF)}, 2')
    k.e(f's_mul_i32 {s(S_CSO)}, {s(S_KB)}, {1408*4}\ns_add_u32 {s(S_CSO)}, {s(S_CSO)}, {s(S_T0)}')
    k.e(f's_branch {lgo}')
    k.label(lw4)
    k.e(f's_sub_u32 {s(S_ID)}, {s(S_ID)}, 76')
    srd(k, SRC, P_W4, 0, 1376 * 1024)
    srd(k, DST, P_WS, W4F, W4F_BYTES)
    srd(k, CS, P_WS, CS1, 4096)
    k.e(f's_mul_i32 {s(S_FB)}, {s(S_ID)}, 43\ns_lshr_b32 {s(S_FB)}, {s(S_FB)}, 8')
    k.e(f's_mul_i32 {s(S_T0)}, {s(S_FB)}, 6\ns_sub_u32 {s(S_KB)}, {s(S_ID)}, {s(S_T0)}')
    k.e(f's_mov_b32 {s(S_STR)}, 1024')
    perm_setup(0)
    k.e(f's_mul_i32 {s(S_DOFF)}, {s(S_FB)}, 176128')
    k.e(f's_lshl_b32 {s(S_T1)}, {s(S_KB)}, 15\ns_add_u32 {s(S_DOFF)}, {s(S_DOFF)}, {s(S_T1)}')
    k.e(f's_lshl_b32 {s(S_T1)}, {s(S_WAVE)}, 10\ns_add_u32 {s(S_DOFF)}, {s(S_DOFF)}, {s(S_T1)}')
    k.e(f's_lshl_b32 {s(S_T1)}, {s(S_KB)}, 3\ns_sub_u32 {s(S_NST)}, 43, {s(S_T1)}')
    k.e(f's_mov_b32 {s(S_DSTEP)}, 4096\ns_mov_b32 {s(S_CSF)}, 0\ns_mov_b32 {s(S_CSO)}, 0')
    k.label(lgo)
    k.e(f's_lshl_b32 {s(S_T0)}, {s(S_KB)}, 8\ns_lshl_b32 {s(S_T1)}, {s(S_WAVE)}, 6\ns_add_u32 {s(S_T0)}, {s(S_T0)}, {s(S_T1)}')
    k.e(f's_mul_i32 {s(S_ROW)}, {s(S_T0)}, {s(S_STR)}\ns_lshl_b32 {s(S_T1)}, {s(S_FB)}, 7\ns_add_u32 {s(S_ROW)}, {s(S_ROW)}, {s(S_T1)}')
    VA, VB, VT, VU, VR = 2, 3, 4, 5, 6
    dma_voffsets(k, S_STR, VA, VB, VT)
    dma_tile(k, SRC, S_STR, S_ROW, 0, VA, VB, S_T0)
    lnat, ljoin = k.newlabel('nat'), k.newlabel('trj')
    k.e(f's_cmp_eq_u32 {s(S_NAT)}, 1'); k.e(f's_cbranch_scc1 {lnat}')
    tr_addr(k, VR, VT, VU, S_CH, S_HALF, False)
    k.e(f's_branch {ljoin}')
    k.label(lnat)
    tr_addr(k, VR, VT, VU, S_CH, S_HALF, True)
    k.label(ljoin)
    VO = 8; ONES = 12; ACC = 16; FR = 20
    k.e(f'v_and_b32 {v(VO)}, 63, v0\nv_lshlrev_b32 {v(VO)}, 4, {v(VO)}')
    for i in range(4): k.e(f'v_mov_b32 {v(ONES+i)}, 0x3f803f80')
    for i in range(4): k.e(f'v_mov_b32 {v(ACC+i)}, 0')
    stamp(k, 1)
    k.wait_vm0(); k.e('s_barrier')
    stamp(k, 2)
    toks = []
    for st in range(8):
        k.ds(f'ds_read_b64_tr_b16 {v(FR+4*st,2)}, {v(VR)} offset:{4096*st}')
        toks.append(k.ds(f'ds_read_b64_tr_b16 {v(FR+4*st+2,2)}, {v(VR)} offset:{4096*st+512}'))
    for st in range(8):
        k.wait(toks[st])
        k.e(f's_cmp_gt_u32 {s(S_NST)}, {st}')
        k.e(f's_cselect_b32 {s(S_T0)}, {s(S_DOFF)}, {hex(OOB)}')
        k.vm(f'buffer_store_dwordx4 {v(FR+4*st,4)}, {v(VO)}, {s(DST,4)}, {s(S_T0)} offen')
        k.e(f's_add_u32 {s(S_DOFF)}, {s(S_DOFF)}, {s(S_DSTEP)}')
        mfma16(k, v(ACC,4), v(FR+4*st,4), v(ONES,4))
    ldone = k.newlabel('wdone')
    k.e(f's_cmp_eq_u32 {s(S_CSF)}, 0'); k.e(f's_cbranch_scc1 {ldone}')
    k.e(f'v_and_b32 {v(VT)}, 63, v0\nv_lshrrev_b32 {v(VU)}, 4, {v(VT)}')
    k.e(f's_cmp_eq_u32 {s(S_CSF)}, 1\ns_cselect_b32 {s(S_T0)}, 5, 4')
    k.e(f'v_lshlrev_b32 {v(VU)}, {s(S_T0)}, {v(VU)}')
    k.e(f'v_and_b32 {v(VT)}, 15, {v(VT)}\nv_cmp_eq_u32 vcc, 0, {v(VT)}')
    k.e(f'v_mov_b32 {v(VT)}, {hex(OOB)}\nv_cndmask_b32 {v(VU)}, {v(VT)}, {v(VU)}, vcc')
    k.vm(f'buffer_store_dwordx4 {v(ACC,4)}, {v(VU)}, {s(CS,4)}, {s(S_CSO)} offen')
    k.label(ldone)
    stamp_end(k, 0)
    k.e('s_endpgm')

def role_M(k):
    S_STR, S_ROW, S_T0, S_T1 = 44, 45, 46, 47
    SRC, CSRD, DST = 48, 52, 56
    S_CH, S_HALF, S_SEG = 60, 61, 62
    k.c('role M : mod = silu(c) @ w_mod')
    k.e(f's_sub_u32 {s(S_ID)}, s2, 64')
    srd(k, SRC, P_WMOD, 0, 512 * 6144)
    srd(k, CSRD, P_C, 0, 1024)
    srd(k, DST, P_WS, MOD, 3072 * 4)
    k.e(f's_mov_b32 {s(S_STR)}, 6144')
    VA, VB, VT, VU, VR = 2, 3, 4, 5, 6
    VC = 8
    k.e(f'v_lshlrev_b32 {v(VT)}, 2, v0')
    tc = k.vm(f'buffer_load_dword {v(VC)}, {v(VT)}, {s(CSRD,4)}, 0 offen')
    dma_voffsets(k, S_STR, VA, VB, VT)
    for kb in range(2):
        k.e(f's_lshl_b32 {s(S_T0)}, {s(S_WAVE)}, 6\ns_add_u32 {s(S_T0)}, {s(S_T0)}, {256*kb}')
        k.e(f's_mul_i32 {s(S_ROW)}, {s(S_T0)}, {s(S_STR)}\ns_lshl_b32 {s(S_T1)}, {s(S_ID)}, 7\ns_add_u32 {s(S_ROW)}, {s(S_ROW)}, {s(S_T1)}')
        dma_tile(k, SRC, S_STR, S_ROW, 32768 * kb, VA, VB, S_T0)
    k.e(f's_lshl_b32 {s(S_CH)}, {s(S_WAVE)}, 1\ns_mov_b32 {s(S_HALF)}, 0')
    tr_addr(k, VR, VT, VU, S_CH, S_HALF, True)
    k.wait(tc)
    X0, X1, E0, E1 = 10, 11, 12, 13
    k.e(f'v_lshlrev_b32 {v(X0)}, 16, {v(VC)}\nv_and_b32 {v(X1)}, 0xffff0000, {v(VC)}')
    k.e(f'v_mul_f32 {v(E0)}, {hexf(-LOG2E)}, {v(X0)}\nv_mul_f32 {v(E1)}, {hexf(-LOG2E)}, {v(X1)}')
    k.e(f'v_exp_f32 {v(E0)}, {v(E0)}\nv_exp_f32 {v(E1)}, {v(E1)}')
    k.e(f'v_add_f32 {v(E0)}, 1.0, {v(E0)}\nv_add_f32 {v(E1)}, 1.0, {v(E1)}')
    k.e(f'v_rcp_f32 {v(E0)}, {v(E0)}\nv_rcp_f32 {v(E1)}, {v(E1)}')
    k.e(f'v_mul_f32 {v(X0)}, {v(X0)}, {v(E0)}\nv_mul_f32 {v(X1)}, {v(X1)}, {v(E1)}')
    k.e(f'v_cvt_pk_bf16_f32 {v(X0)}, {v(X0)}, {v(X1)}')
    k.e(f'v_lshlrev_b32 {v(VT)}, 2, v0')
    k.e(f'v_add_u32 {v(VT)}, 0x10000, {v(VT)}')
    k.ds(f'ds_write_b32 {v(VT)}, {v(X0)}')
    VS = 14
    k.e(f'v_and_b32 {v(VS)}, 63, v0\nv_lshrrev_b32 {v(VS)}, 4, {v(VS)}\nv_lshlrev_b32 {v(VS)}, 4, {v(VS)}\nv_add_u32 {v(VS)}, 0x10000, {v(VS)}')
    ACC = 16; FR = 20; BF = 84
    for i in range(4): k.e(f'v_mov_b32 {v(ACC+i)}, 0')
    stamp(k, 1)
    k.e('s_waitcnt vmcnt(0) lgkmcnt(0)'); k.e('s_barrier')
    stamp(k, 2)
    for half in range(2):
        toks = []
        for st in range(8):
            sg = 8 * half + st
            off = 32768 * half + 4096 * st
            k.ds(f'ds_read_b64_tr_b16 {v(FR+4*st,2)}, {v(VR)} offset:{off}')
            k.ds(f'ds_read_b64_tr_b16 {v(FR+4*st+2,2)}, {v(VR)} offset:{off+512}')
            toks.append(k.ds(f'ds_read_b128 {v(BF+4*st,4)}, {v(VS)} offset:{64*sg}'))
        for st in range(8):
            k.wait(toks[st])
            mfma16(k, v(ACC,4), v(FR+4*st,4), v(BF+4*st,4))
    k.e(f's_lshr_b32 {s(S_SEG)}, {s(S_ID)}, 3')
    k.e(f'v_cvt_pk_bf16_f32 {v(FR)}, {v(ACC)}, {v(ACC+1)}\nv_cvt_pk_bf16_f32 {v(FR+1)}, {v(ACC+2)}, {v(ACC+3)}')
    k.e(f'v_lshlrev_b32 {v(ACC)}, 16, {v(FR)}\nv_and_b32 {v(ACC+1)}, 0xffff0000, {v(FR)}')
    k.e(f'v_lshlrev_b32 {v(ACC+2)}, 16, {v(FR+1)}\nv_and_b32 {v(ACC+3)}, 0xffff0000, {v(FR+1)}')
    lst = k.newlabel('mst'); lad = k.newlabel('mad')
    k.e(f's_cmp_eq_u32 {s(S_SEG)}, 1'); k.e(f's_cbranch_scc1 {lad}')
    k.e(f's_cmp_eq_u32 {s(S_SEG)}, 4'); k.e(f's_cbranch_scc0 {lst}')
    k.label(lad)
    for i in range(4): k.e(f'v_add_f32 {v(ACC+i)}, 1.0, {v(ACC+i)}')
    k.e(f'v_cvt_pk_bf16_f32 {v(FR)}, {v(ACC)}, {v(ACC+1)}\nv_cvt_pk_bf16_f32 {v(FR+1)}, {v(ACC+2)}, {v(ACC+3)}')
    k.e(f'v_lshlrev_b32 {v(ACC)}, 16, {v(FR)}\nv_and_b32 {v(ACC+1)}, 0xffff0000, {v(FR)}')
    k.e(f'v_lshlrev_b32 {v(ACC+2)}, 16, {v(FR+1)}\nv_and_b32 {v(ACC+3)}, 0xffff0000, {v(FR+1)}')
    k.label(lst)
    k.e(f'v_and_b32 {v(VT)}, 63, v0\nv_lshrrev_b32 {v(VU)}, 4, {v(VT)}\nv_lshlrev_b32 {v(VU)}, 4, {v(VU)}')
    k.e(f'v_and_b32 {v(VT)}, 15, {v(VT)}\nv_cmp_eq_u32 vcc, 0, {v(VT)}')
    k.e(f'v_mov_b32 {v(VT)}, {hex(OOB)}\nv_cndmask_b32 {v(VU)}, {v(VT)}, {v(VU)}, vcc')
    k.e(f's_lshl_b32 {s(S_T0)}, {s(S_ID)}, 8\ns_lshl_b32 {s(S_T1)}, {s(S_WAVE)}, 6\ns_add_u32 {s(S_T0)}, {s(S_T0)}, {s(S_T1)}')
    k.vm(f'buffer_store_dwordx4 {v(ACC,4)}, {v(VU)}, {s(DST,4)}, {s(S_T0)} offen')
    stamp_end(k, 0)
    k.e('s_endpgm')

def role_X(k):
    S_T0, S_T1, S_R0 = 44, 45, 46
    SRC, DXT, DXN = 48, 52, 56
    k.c('role X : LN statistics of x, writes x^T and LN(x)^T')
    srd(k, SRC, P_U, 0, 2 * MB)
    srd(k, DXT, P_WS, XT, 2 * MB)
    srd(k, DXN, P_WS, XNT, 2 * MB)
    k.e(f's_lshl_b32 {s(S_R0)}, s2, 5')
    VL, VO, VT, VW = 2, 3, 4, 5
    X = 8
    k.e(f'v_and_b32 {v(VL)}, 63, v0')
    k.e(f'v_lshrrev_b32 {v(VT)}, 3, {v(VL)}')
    k.e(f's_lshl_b32 {s(S_T0)}, {s(S_WAVE)}, 3')
    k.e(f'v_add_u32 {v(VW)}, {s(S_T0)}, {v(VT)}')
    k.e(f'v_add_u32 {v(VT)}, {s(S_R0)}, {v(VW)}')
    k.e(f'v_lshlrev_b32 {v(VO)}, 10, {v(VT)}')
    k.e(f'v_and_b32 {v(VT)}, 7, {v(VL)}')
    k.e(f'v_lshl_add_u32 {v(VO)}, {v(VT)}, 4, {v(VO)}')
    toks = [k.vm(f'buffer_load_dwordx4 {v(X+4*j,4)}, {v(VO)}, {s(SRC,4)}, 0 offen offset:{128*j}') for j in range(8)]
    VA = 6
    k.e(f'v_mul_u32_u24 {v(VA)}, 1056, {v(VW)}')
    k.e(f'v_and_b32 {v(VW)}, 24, {v(VW)}\nv_add_u32 {v(VT)}, {v(VT)}, {v(VW)}')
    k.e(f'v_lshl_add_u32 {v(VA)}, {v(VT)}, 4, {v(VA)}')
    S1, S2, S3, S4, ONE = 40, 41, 42, 43, 44
    k.e(f'v_mov_b32 {v(ONE)}, 0x3f803f80')
    for r in (S1, S2, S3, S4): k.e(f'v_mov_b32 {v(r)}, 0')
    stamp(k, 1)
    k.wait(toks[0])
    stamp(k, 2)
    for j in range(8):
        k.wait(toks[j])
        for i in range(4):
            k.e(f'v_dot2_f32_bf16 {v(S1 + (i&1))}, {v(X+4*j+i)}, {v(ONE)}, {v(S1 + (i&1))}')
            k.e(f'v_dot2_f32_bf16 {v(S3 + (i&1))}, {v(X+4*j+i)}, {v(X+4*j+i)}, {v(S3 + (i&1))}')
        k.ds(f'ds_write_b128 {v(VA)}, {v(X+4*j,4)} offset:{128*j}')
    k.e(f'v_add_f32 {v(S1)}, {v(S1)}, {v(S2)}\nv_add_f32 {v(S3)}, {v(S3)}, {v(S4)}')
    for m in ('quad_perm:[1,0,3,2]', 'quad_perm:[2,3,0,1]', 'row_half_mirror'):
        k.e(f'v_add_f32_dpp {v(S1)}, {v(S1)}, {v(S1)} {m} row_mask:0xf bank_mask:0xf')
        k.e(f'v_add_f32_dpp {v(S3)}, {v(S3)}, {v(S3)} {m} row_mask:0xf bank_mask:0xf')
    k.e(f'v_mul_f32 {v(S1)}, {hexf(1/512)}, {v(S1)}')
    k.e(f'v_mul_f32 {v(S2)}, {v(S1)}, {v(S1)}')
    k.e(f'v_mov_b32 {v(S4)}, {hexf(1/512)}')
    k.e(f'v_fma_f32 {v(S3)}, {v(S3)}, {v(S4)}, -{v(S2)}')
    k.e(f'v_max_f32 {v(S3)}, 0, {v(S3)}\nv_add_f32 {v(S3)}, {hexf(1e-5)}, {v(S3)}')
    k.e(f'v_rsq_f32 {v(S3)}, {v(S3)}')
    k.e(f'v_mul_f32 {v(S1)}, {v(S1)}, {v(S3)}\nv_sub_f32 {v(S1)}, 0, {v(S1)}')
    STAT = 34816
    k.e(f'v_lshrrev_b32 {v(VT)}, 3, {v(VL)}\ns_lshl_b32 {s(S_T0)}, {s(S_WAVE)}, 3\nv_add_u32 {v(VT)}, {s(S_T0)}, {v(VT)}\nv_lshlrev_b32 {v(VT)}, 2, {v(VT)}')
    k.ds(f'ds_write_b32 {v(VT)}, {v(S3)} offset:{STAT}')
    k.ds(f'ds_write_b32 {v(VT)}, {v(S1)} offset:{STAT+128}')
    k.barrier()
    stamp(k, 3)
    RS, NMR = 48, 56
    k.e(f'v_lshrrev_b32 {v(VT)}, 4, {v(VL)}\nv_lshlrev_b32 {v(VW)}, 5, {v(VT)}')
    t1 = k.ds(f'ds_read_b128 {v(RS,4)}, {v(VW)} offset:{STAT}')
    k.ds(f'ds_read_b128 {v(RS+4,4)}, {v(VW)} offset:{STAT+16}')
    k.ds(f'ds_read_b128 {v(NMR,4)}, {v(VW)} offset:{STAT+128}')
    t2 = k.ds(f'ds_read_b128 {v(NMR+4,4)}, {v(VW)} offset:{STAT+144}')
    VR = 6
    k.e(f'v_bfe_u32 {v(VW)}, {v(VL)}, 2, 2')
    k.e(f'v_lshl_add_u32 {v(VW)}, {v(VT)}, 3, {v(VW)}')
    k.e(f'v_mul_u32_u24 {v(VR)}, 1056, {v(VW)}')
    k.e(f'v_and_b32 {v(VW)}, 24, {v(VW)}\nv_lshl_add_u32 {v(VR)}, {v(VW)}, 4, {v(VR)}')
    k.e(f'v_and_b32 {v(VW)}, 3, {v(VL)}\nv_lshl_add_u32 {v(VR)}, {v(VW)}, 3, {v(VR)}')
    k.e(f's_lshl_b32 {s(S_T0)}, {s(S_WAVE)}, 8\nv_add_u32 {v(VR)}, {s(S_T0)}, {v(VR)}')
    k.e(f'v_and_b32 {v(VW)}, 15, {v(VL)}\ns_lshl_b32 {s(S_T0)}, {s(S_WAVE)}, 7\nv_add_u32 {v(VW)}, {s(S_T0)}, {v(VW)}')
    k.e(f'v_lshlrev_b32 {v(VO)}, 12, {v(VW)}\nv_lshl_add_u32 {v(VO)}, {v(VT)}, 4, {v(VO)}')
    k.e(f's_lshl_b32 {s(S_T1)}, {s(S_R0)}, 1')
    FR = 8; U = 64; O = 72
    toks = []
    for ct in range(8):
        k.ds(f'ds_read_b64_tr_b16 {v(FR+4*ct,2)}, {v(VR)} offset:{32*ct}')
        toks.append(k.ds(f'ds_read_b64_tr_b16 {v(FR+4*ct+2,2)}, {v(VR)} offset:{32*ct + 4*1056}'))
    k.wait(t2)
    for ct in range(8):
        k.wait(toks[ct])
        k.vm(f'buffer_store_dwordx4 {v(FR+4*ct,4)}, {v(VO)}, {s(DXT,4)}, {s(S_T1)} offen')
        for i in range(4):
            k.e(f'v_lshlrev_b32 {v(U+2*i)}, 16, {v(FR+4*ct+i)}\nv_and_b32 {v(U+2*i+1)}, 0xffff0000, {v(FR+4*ct+i)}')
        for i in range(4):
            k.e(f'v_pk_fma_f32 {v(U+2*i,2)}, {v(U+2*i,2)}, {v(RS+2*i,2)}, {v(NMR+2*i,2)}')
        oo = O + 4 * (ct & 1)
        for i in range(4):
            k.e(f'v_cvt_pk_bf16_f32 {v(oo+i)}, {v(U+2*i)}, {v(U+2*i+1)}')
        k.vm(f'buffer_store_dwordx4 {v(oo,4)}, {v(VO)}, {s(DXN,4)}, {s(S_T1)} offen')
        k.e(f's_add_u32 {s(S_T1)}, {s(S_T1)}, 0x10000')
    if __import__('common').DBG: k.e('s_waitcnt vmcnt(0)')
    dbg_stamp(k, 3, 0, wg=0)
    stamp_end(k, 0)
    k.e('s_endpgm')

def cexp_direct(k, d, zr2, zrev, x, t):
    k.e(f'v_mul_f32 {v(t)}, {hexf(x)}, {v(zr2)}\nv_mul_f32 {v(t+1)}, {hexf(x)}, {v(zrev)}')
    k.e(f'v_exp_f32 {v(t)}, {v(t)}\nv_fract_f32 {v(t+1)}, {v(t+1)}')
    k.e(f'v_cos_f32 {v(d)}, {v(t+1)}\nv_sin_f32 {v(d+1)}, {v(t+1)}')
    k.e(f'v_mul_f32 {v(d)}, {v(d)}, {v(t)}\nv_mul_f32 {v(d+1)}, {v(d+1)}, {v(t)}')

def role_K(k):
    S_T0, S_T1, S_KG = 44, 45, 46
    SR = 48
    DK = 76
    CHB = 53 * 544
    TAB = 2 * CHB
    k.c('role K : K[d, l] generation')
    k.e(f's_sub_u32 {s(S_KG)}, s2, 256')
    VO, VT, VU = 2, 3, 4
    k.e(f's_lshl_b32 {s(S_T0)}, {s(S_KG)}, 9\nv_lshlrev_b32 {v(VO)}, 1, v0\nv_add_u32 {v(VO)}, {s(S_T0)}, {v(VO)}')
    IN = 8
    toks = []
    for i, p in enumerate((P_ARE, P_AIM, P_BRE, P_BIM, P_CRE, P_CIM)):
        srd(k, SR + 4 * i, p, 0, 512 * 128 * 2)
        toks.append(k.vm(f'buffer_load_ushort {v(IN+i)}, {v(VO)}, {s(SR+4*i,4)}, 0 offen'))
    srd(k, SR + 24, P_LDT, 0, 1024)
    k.e(f'v_lshrrev_b32 {v(VT)}, 7, v0\ns_lshl_b32 {s(S_T0)}, {s(S_KG)}, 1\nv_add_u32 {v(VT)}, {s(S_T0)}, {v(VT)}\nv_lshlrev_b32 {v(VT)}, 1, {v(VT)}')
    tl = k.vm(f'buffer_load_ushort {v(IN+6)}, {v(VT)}, {s(SR+24,4)}, 0 offen')
    srd(k, DK, P_WS, KR, 512 * KRS)
    GA = 16
    k.e(f'v_lshlrev_b32 {v(VT)}, 3, v0\nv_sub_u32 {v(VT)}, 2047, {v(VT)}')
    for j in range(8):
        k.e(f'v_subrev_u32 {v(GA+j)}, {j}, {v(VT)}')
    F0 = 24
    for j in range(8): k.e(f'v_cvt_f32_u32 {v(F0+j)}, {v(GA+j)}')
    for j in range(0, 8, 2): k.e(f'v_cvt_pk_bf16_f32 {v(F0+j)}, {v(F0+j)}, {v(F0+j+1)}')
    for j in range(0, 8, 2):
        k.e(f'v_lshrrev_b32 {v(F0+j+1)}, 16, {v(F0+j)}\nv_and_b32 {v(F0+j)}, 0xffff, {v(F0+j)}')
    for j in range(8):
        k.e(f'v_subrev_u32 {v(F0+j)}, {17024}, {v(F0+j)}')
        k.e(f'v_min_u32 {v(GA+j)}, 127, {v(GA+j)}')
    for j in range(8):
        k.e(f'v_max_i32 {v(GA+j)}, {v(GA+j)}, {v(F0+j)}')
        k.e(f'v_lshlrev_b32 {v(GA+j)}, 1, {v(GA+j)}')
        k.e(f'v_add_u32 {v(GA+j)}, {TAB}, {v(GA+j)}')
    VW = 5
    k.e(f'v_lshrrev_b32 {v(VT)}, 7, v0\nv_mul_u32_u24 {v(VW)}, {CHB}, {v(VT)}')
    k.e(f'v_and_b32 {v(VT)}, 127, v0\nv_lshl_add_u32 {v(VW)}, {v(VT)}, 2, {v(VW)}')
    stamp(k, 1)
    k.wait(tl)
    stamp(k, 2)
    ARE, AIM, BRE, BIM, CRE, CIM, LDT = range(IN, IN + 7)
    for r in range(IN, IN + 7): k.e(f'v_lshlrev_b32 {v(r)}, 16, {v(r)}')
    DT = 6
    k.e(f'v_mul_f32 {v(LDT)}, {hexf(LOG2E)}, {v(LDT)}\nv_exp_f32 {v(LDT)}, {v(LDT)}')
    k.e(f'v_cvt_pk_bf16_f32 {v(LDT)}, {v(LDT)}, {v(LDT)}\nv_lshlrev_b32 {v(DT)}, 16, {v(LDT)}')
    ZR2, ZRV = 32, 33
    k.e(f'v_mul_f32 {v(ARE)}, {v(DT)}, {v(ARE)}\nv_mul_f32 {v(AIM)}, {v(DT)}, {v(AIM)}')
    k.e(f'v_mul_f32 {v(ZR2)}, {hexf(LOG2E)}, {v(ARE)}\nv_mul_f32 {v(ZRV)}, {hexf(INV2PI)}, {v(AIM)}')
    k.e(f'v_mul_f32 {v(BRE)}, {v(DT)}, {v(BRE)}\nv_mul_f32 {v(BIM)}, {v(DT)}, {v(BIM)}')
    R = Alloc(34, 200)
    pair = lambda: R.get(2, 2)
    W, DBp, CC, T = pair(), pair(), pair(), pair()
    k.e(f'v_mov_b32 {v(DBp)}, {v(BRE)}\nv_mov_b32 {v(DBp+1)}, {v(BIM)}\nv_mov_b32 {v(CC)}, {v(CRE)}\nv_mov_b32 {v(CC+1)}, {v(CIM)}')
    E1, E8, E256 = pair(), pair(), pair()
    cexp_direct(k, E1, ZR2, ZRV, 1.0, T)
    cexp_direct(k, E8, ZR2, ZRV, 8.0, T)
    cexp_direct(k, E256, ZR2, ZRV, 256.0, T)
    cmul(k, W, CC, DBp)
    cv = [R.get(1) for _ in range(4)]
    cvi = [0]
    def put(row, z, xside):
        c = cv[cvi[0] % 4]; cvi[0] += 1
        k.e(f'v_cvt_pk_bf16_f32 {v(c)}, {v(z)}, {"-" if xside else ""}{v(z+1)}')
        k.ds(f'ds_write_b32 {v(VW)}, {v(c)} offset:{row*544}')
    E2, E16, E512 = pair(), pair(), pair()
    cmul_many(k, [(E2, E1, E1), (E16, E8, E8), (E512, E256, E256)])
    WX = [W] + [pair() for _ in range(7)]
    E24, E32, E768, E1024 = pair(), pair(), pair(), pair()
    cmul_many(k, [(WX[1], W, E1), (WX[2], W, E2), (E24, E16, E8), (E32, E16, E16), (E768, E512, E256), (E1024, E512, E512)])
    put(0, W, True); put(1, WX[1], True); put(2, WX[2], True)
    E1280, E1536, E1792, E2048 = pair(), pair(), pair(), pair()
    cmul_many(k, [(WX[3], WX[1], E2), (WX[4], WX[2], E2), (E1280, E1024, E256), (E1536, E1024, E512), (E1792, E1024, E768), (E2048, E1024, E1024)])
    put(3, WX[3], True); put(4, WX[4], True)
    Y0 = pair()
    k.e(f'v_mov_b32 {v(Y0)}, 1.0\nv_mov_b32 {v(Y0+1)}, 0')
    Ya = [Y0, E8, E16, E24]
    for j in range(4): put(21 + j, Ya[j], False)
    cmul_many(k, [(WX[5], WX[3], E2), (WX[6], WX[4], E2)])
    Yb = [pair() for _ in range(4)]
    Yc = [pair() for _ in range(4)]
    cmul_many(k, [(Yb[j], Ya[j], E32) for j in range(4)])
    put(5, WX[5], True); put(6, WX[6], True)
    tmp = [pair() for _ in range(6)]
    cmul_many(k, [(WX[7], WX[5], E2), (tmp[0], W, E256), (tmp[1], WX[2], E256), (tmp[2], WX[4], E256), (tmp[3], WX[6], E256)])
    for j in range(4): put(25 + j, Yb[j], False)
    put(7, WX[7], True)
    for j in range(4): put(8 + j, tmp[j], True)
    cur, nxt = Yb, Yc
    xs = [[(12, W, E512), (13, WX[4], E512), (14, W, E768), (15, WX[4], E768)],
          [(16, W, E1024), (17, W, E1280), (18, W, E1536), (19, W, E1792)],
          [(20, W, E2048)]]
    for it in range(2, 8):
        trip = [(nxt[j], cur[j], E32) for j in range(4)]
        extra = xs[it-2] if it - 2 < len(xs) else []
        trip += [(tmp[i], x, y) for i, (_, x, y) in enumerate(extra)]
        cmul_many(k, trip)
        for j in range(4): put(21 + 4 * it + j, nxt[j], False)
        for i, (row, _, _) in enumerate(extra): put(row, tmp[i], True)
        cur, nxt = nxt, cur
    stamp(k, 3)
    k.barrier()
    stamp(k, 4)
    VA, VB = 2, 5
    k.e(f'v_and_b32 {v(VT)}, 63, v0\nv_and_b32 {v(VU)}, 15, {v(VT)}\nv_lshrrev_b32 {v(VT)}, 4, {v(VT)}')
    k.e(f's_lshr_b32 {s(S_T0)}, {s(S_WAVE)}, 1\ns_mul_i32 {s(S_T0)}, {s(S_T0)}, {CHB}')
    k.e(f'v_mul_u32_u24 {v(VA)}, 544, {v(VU)}\nv_lshl_add_u32 {v(VA)}, {v(VT)}, 4, {v(VA)}\nv_add_u32 {v(VA)}, {s(S_T0)}, {v(VA)}')
    k.e(f's_and_b32 {s(S_T1)}, {s(S_WAVE)}, 1\ns_mul_i32 {s(S_T1)}, {s(S_T1)}, {16*544}\ns_add_u32 {s(S_T1)}, {s(S_T1)}, {21*544}')
    k.e(f'v_add_u32 {v(VB)}, {s(S_T1)}, {v(VA)}')
    FA, FB, AC = 40, 104, 136
    toks = []
    for st in range(8):
        k.ds(f'ds_read_b128 {v(FA+8*st,4)}, {v(VA)} offset:{64*st}')
        k.ds(f'ds_read_b128 {v(FA+8*st+4,4)}, {v(VA)} offset:{64*st + 16*544}')
        toks.append(k.ds(f'ds_read_b128 {v(FB+4*st,4)}, {v(VB)} offset:{64*st}'))
    for i in range(8): k.e(f'v_mov_b32 {v(AC+i)}, 0')
    J = 6; MJ = 7; A0 = 32; A1 = 33; A2 = 34
    k.e(f's_and_b32 {s(S_T1)}, {s(S_WAVE)}, 1\ns_lshl_b32 {s(S_T1)}, {s(S_T1)}, 4\nv_add_u32 {v(J)}, {s(S_T1)}, {v(VU)}')
    k.e(f'v_sub_u32 {v(MJ)}, 4, {v(VT)}\nv_min_u32 {v(MJ)}, 3, {v(MJ)}')
    k.e(f'v_lshlrev_b32 {v(MJ)}, {v(MJ)}, {v(J)}')
    k.e(f'v_lshlrev_b32 {v(A0)}, 2, {v(VT)}')
    k.e(f'v_mov_b32 {v(A1)}, 256\nv_cmp_eq_u32 vcc, 2, {v(VT)}\nv_cndmask_b32 {v(A0)}, {v(A0)}, {v(A1)}, vcc')
    k.e(f'v_mov_b32 {v(A1)}, 384\nv_cmp_eq_u32 vcc, 3, {v(VT)}\nv_cndmask_b32 {v(A0)}, {v(A0)}, {v(A1)}, vcc')
    k.e(f'v_add_u32 {v(A0)}, {v(A0)}, {v(MJ)}')
    k.e(f'v_mov_b32 {v(A1)}, 0\nv_mov_b32 {v(A2)}, 62\nv_cndmask_b32 {v(A1)}, {v(A1)}, {v(A2)}, vcc\nv_add_u32 {v(A1)}, {v(A0)}, {v(A1)}')
    k.e(f'v_add_u32 {v(A2)}, 512, {v(J)}\nv_mov_b32 {v(MJ)}, 644\nv_cmp_eq_u32 vcc, 0, {v(VT)}\nv_cndmask_b32 {v(A2)}, {v(MJ)}, {v(A2)}, vcc')
    k.e(f'v_lshl_add_u32 {v(MJ)}, {v(VT)}, 5, {v(J)}\nv_cmp_eq_u32 vcc, 32, {v(MJ)}\nv_mov_b32 {v(MJ)}, 640\nv_cndmask_b32 {v(A2)}, {v(A2)}, {v(MJ)}, vcc')
    k.e(f's_lshr_b32 {s(S_T0)}, {s(S_WAVE)}, 1\ns_mul_i32 {s(S_T0)}, {s(S_T0)}, 1536\ns_add_u32 {s(S_T0)}, {s(S_T0)}, {TAB}')
    for r in (A0, A1, A2): k.e(f'v_lshl_add_u32 {v(r)}, {v(r)}, 1, {s(S_T0)}')
    for st in range(8):
        k.wait(toks[st])
        mfma16(k, v(AC,4), v(FA+8*st,4), v(FB+4*st,4))
        mfma16(k, v(AC+4,4), v(FA+8*st+4,4), v(FB+4*st,4))
    C0 = 40
    k.e(f'v_cvt_pk_bf16_f32 {v(C0)}, {v(AC)}, {v(AC+1)}\nv_cvt_pk_bf16_f32 {v(C0+1)}, {v(AC+2)}, {v(AC+3)}')
    k.e(f'v_cvt_pk_bf16_f32 {v(C0+2)}, {v(AC+4)}, {v(AC+5)}\nv_cvt_pk_bf16_f32 {v(C0+3)}, {v(AC+6)}, {v(AC+7)}')
    k.ds(f'ds_write_b16 {v(A0)}, {v(C0)}');              k.ds(f'ds_write_b16_d16_hi {v(A0)}, {v(C0)} offset:2')
    k.ds(f'ds_write_b16 {v(A1)}, {v(C0+1)} offset:4');   k.ds(f'ds_write_b16_d16_hi {v(A1)}, {v(C0+1)} offset:6')
    k.ds(f'ds_write_b16 {v(A2)}, {v(C0+2)}');            k.ds(f'ds_write_b16_d16_hi {v(A2)}, {v(C0+2)} offset:64')
    k.ds(f'ds_write_b16 {v(A2)}, {v(C0+3)} offset:128'); k.ds(f'ds_write_b16_d16_hi {v(A2)}, {v(C0+3)} offset:192')
    k.barrier()
    stamp(k, 5)
    G = 44; GH = 56
    for ch in range(2):
        for j in range(8):
            op = 'ds_read_u16_d16_hi' if j & 1 else 'ds_read_u16'
            t = k.ds(f'{op} {v((GH if j & 1 else G)+4*ch+j//2)}, {v(GA+j)} offset:{1536*ch}')
    k.e(f's_mul_i32 {s(S_T0)}, {s(S_KG)}, {2*KRS}\nv_lshlrev_b32 {v(VO)}, 4, v0')
    Z = 52
    for i in range(4): k.e(f'v_mov_b32 {v(Z+i)}, 0')
    k.e(f'v_lshrrev_b32 {v(VT)}, 2, v0\nv_mul_u32_u24 {v(VT)}, {KRS}, {v(VT)}\nv_and_b32 {v(VU)}, 3, v0\nv_lshl_add_u32 {v(VT)}, {v(VU)}, 4, {v(VT)}\nv_add_u32 {v(VT)}, 4096, {v(VT)}')
    k.e(f'v_mov_b32 {v(VU)}, {hex(OOB)}\nv_cmp_gt_u32 vcc, 8, v0\nv_cndmask_b32 {v(VT)}, {v(VU)}, {v(VT)}, vcc')
    k.vm(f'buffer_store_dwordx4 {v(Z,4)}, {v(VT)}, {s(DK,4)}, {s(S_T0)} offen')
    k.wait(t)
    for i in range(8): k.e(f'v_or_b32 {v(G+i)}, {v(G+i)}, {v(GH+i)}')
    k.vm(f'buffer_store_dwordx4 {v(G,4)}, {v(VO)}, {s(DK,4)}, {s(S_T0)} offen')
    k.e(f's_add_u32 {s(S_T0)}, {s(S_T0)}, {KRS}')
    k.vm(f'buffer_store_dwordx4 {v(G+4,4)}, {v(VO)}, {s(DK,4)}, {s(S_T0)} offen')
    if __import__('common').DBG: k.e('s_waitcnt vmcnt(0)')
    dbg_stamp(k, 2, 0, wg=256)
    stamp_end(k, 0)
    k.e('s_endpgm')

LDS_A = 66560

def build_A(name):
    k = Kern(name)
    lx, lm, lw, lk, lend = [k.newlabel(x) for x in ('X', 'M', 'W', 'K', 'end')]
    k.e(f's_cmp_ge_u32 s2, 512'); k.e(f's_cbranch_scc1 {lend}')
    load_all_ptrs(k)
    wave_id(k)
    k.e('s_waitcnt lgkmcnt(0)')
    dbg_stamp(k, 0, 0, wg=0); dbg_stamp(k, 1, 0, wg=256)
    stamp_begin(k)
    k.e('s_cmp_ge_u32 s2, 256'); k.e(f's_cbranch_scc1 {lk}')
    lz = k.newlabel('Z')
    k.e('s_cmp_ge_u32 s2, 236'); k.e(f's_cbranch_scc1 {lz}')
    k.e('s_cmp_ge_u32 s2, 112'); k.e(f's_cbranch_scc1 {lw}')
    k.e('s_cmp_ge_u32 s2, 64'); k.e(f's_cbranch_scc1 {lm}')
    for lab, fn in ((lx, role_X), (lm, role_M), (lw, role_W), (lk, role_K)):
        k.label(lab)
        k.vm_done = k.vm_issued; k.lg_done = k.lg_issued
        fn(k)
    k.label(lz)
    k.e('s_cmp_ge_u32 s2, 252'); k.e(f's_cbranch_scc1 {lend}')
    srd(k, 48, P_WS, FLG, 4 * 16384)
    k.e('s_sub_u32 s44, s2, 236\ns_lshl_b32 s44, s44, 12\nv_lshlrev_b32 v2, 4, v0')
    for i in range(4): k.e(f'v_mov_b32 {v(4+i)}, 0')
    k.e('buffer_store_dwordx4 v[4:7], v2, s[48:51], s44 offen')
    k.label(lend)
    k.e('s_endpgm')
    return k
```

```python
from common import *

PRE_TLB = False
PRE_CODE = False
OOB = 0x7ff00000

P_U, P_ARE, P_AIM, P_BRE, P_BIM, P_CRE, P_CIM, P_LDT = 4, 6, 8, 10, 12, 14, 16, 18
P_DSK, P_BX, P_W1, P_W2, P_W3, P_W4, P_C, P_WMOD = 20, 22, 24, 26, 28, 30, 32, 34
P_OUT, P_DBG, P_WS = 36, 38, 40
S_WAVE = 42
S_ID = 43

def load_all_ptrs(k):
    k.e('s_load_dwordx16 s[4:19], s[0:1], 0')
    k.e('s_load_dwordx16 s[20:35], s[0:1], 64')
    k.e('s_load_dwordx4 s[36:39], s[0:1], 128')
    k.e('s_load_dwordx2 s[40:41], s[0:1], 144')

def wave_id(k):
    k.e('v_lshrrev_b32 v1, 6, v0')
    k.e(f'v_readfirstlane_b32 {s(S_WAVE)}, v1')

def dma_tile(k, srdq, s_stride, s_rowbase_bytes, lds_base, va, vb, stmp, nrows_per_wave=64):
    for i in range(nrows_per_wave // 8):
        k.e(f's_lshl_b32 {s(stmp)}, {s(S_WAVE)}, 13')
        k.e(f's_add_u32 m0, {s(stmp)}, {lds_base + 1024 * i}')
        if i == 0: k.e(f's_mov_b32 {s(stmp+1)}, {s(s_rowbase_bytes)}')
        else:
            k.e(f's_lshl_b32 {s(stmp)}, {s(s_stride)}, 3')
            k.e(f's_add_u32 {s(stmp+1)}, {s(stmp+1)}, {s(stmp)}')
        k.vm(f'buffer_load_dwordx4 {v(vb if i & 1 else va)}, {s(srdq,4)}, {s(stmp+1)} offen lds')

def dma_voffsets(k, s_stride, va, vb, vt):
    k.e(f'v_and_b32 {v(vt)}, 63, v0')
    k.e(f'v_lshrrev_b32 {v(va)}, 3, {v(vt)}')
    k.e(f'v_and_b32 {v(vb)}, 2, {v(va)}')
    k.e(f'v_and_b32 {v(vt)}, 7, {v(vt)}')
    k.e(f'v_xor_b32 {v(vt)}, {v(vt)}, {v(vb)}')
    k.e(f'v_mul_lo_u32 {v(va)}, {v(va)}, {s(s_stride)}')
    k.e(f'v_xor_b32 {v(vb)}, 4, {v(vt)}')
    k.e(f'v_lshl_add_u32 {v(vb)}, {v(vb)}, 4, {v(va)}')
    k.e(f'v_lshl_add_u32 {v(va)}, {v(vt)}, 4, {v(va)}')

def tr_addr(k, vd, vt, vu, s_chunkbase, s_half, natural):
    k.e(f'v_and_b32 {v(vt)}, 63, v0')
    k.e(f'v_and_b32 {v(vd)}, 3, {v(vt)}')
    if natural:
        k.e(f'v_lshrrev_b32 {v(vu)}, 1, {v(vd)}')
        k.e(f'v_add_u32 {v(vu)}, {s(s_chunkbase)}, {v(vu)}')
        k.e(f'v_and_b32 {v(vd)}, 1, {v(vd)}')
        k.e(f'v_lshlrev_b32 {v(vd)}, 3, {v(vd)}')
    else:
        k.e(f'v_add_u32 {v(vu)}, {s(s_chunkbase)}, {v(vd)}')
        k.e(f'v_mov_b32 {v(vd)}, {s(s_half)}')
    r_ = vt
    k.e(f'v_lshrrev_b32 {v(vt)}, 2, {v(vt)}')
    k.e(f'v_and_b32 {v(vd+1)}, 6, {v(vt)}')
    k.e(f'v_xor_b32 {v(vu)}, {v(vu)}, {v(vd+1)}')
    k.e(f'v_lshl_add_u32 {v(vd)}, {v(vu)}, 4, {v(vd)}')
    k.e(f'v_and_b32 {v(vu)}, 3, {v(vt)}')
    k.e(f'v_lshrrev_b32 {v(vt)}, 2, {v(vt)}')
    k.e(f'v_lshl_add_u32 {v(vu)}, {v(vt)}, 3, {v(vu)}')
    k.e(f'v_lshl_add_u32 {v(vd)}, {v(vu)}, 7, {v(vd)}')

def role_W(k):
    S_STR, S_ROW, S_T0, S_T1 = 44, 45, 46, 47
    SRC, DST, CS = 48, 52, 56
    S_FB, S_KB, S_NAT, S_CSF, S_DOFF, S_DSTEP, S_CH, S_HALF, S_NST, S_CSO = 60, 61, 62, 63, 64, 65, 66, 67, 68, 69
    lw1, lw2, lw3, lw4, lgo = [k.newlabel(x) for x in ('w1', 'w2', 'w3', 'w4', 'wgo')]
    k.c('role W : weight shuffle into MFMA A-fragment order')
    k.e(f's_sub_u32 {s(S_ID)}, s2, 112')
    k.e(f's_cmp_ge_u32 {s(S_ID)}, 76'); k.e(f's_cbranch_scc1 {lw4}')
    k.e(f's_cmp_ge_u32 {s(S_ID)}, 32'); k.e(f's_cbranch_scc1 {lw3}')
    k.e(f's_cmp_ge_u32 {s(S_ID)}, 16'); k.e(f's_cbranch_scc1 {lw2}')
    def perm_setup(stride_tiles):
        k.e(f's_lshr_b32 {s(S_T0)}, {s(S_WAVE)}, 1')
        k.e(f's_lshl_b32 {s(S_CH)}, {s(S_T0)}, 2')
        k.e(f's_and_b32 {s(S_HALF)}, {s(S_WAVE)}, 1')
        k.e(f's_lshl_b32 {s(S_HALF)}, {s(S_HALF)}, 3')
        k.e(f's_mov_b32 {s(S_NAT)}, 0')
    for which, lab in ((1, lw1), (2, lw2)):
        k.label(lab)
        if which == 2: k.e(f's_sub_u32 {s(S_ID)}, {s(S_ID)}, 16')
        srd(k, SRC, P_W1 if which == 1 else P_W2, 0, 512 * 1024)
        srd(k, DST, P_WS, W1F if which == 1 else W2F, 512 * 1024)
        srd(k, CS, P_WS, CS1, 4096)
        k.e(f's_lshr_b32 {s(S_FB)}, {s(S_ID)}, 1\ns_and_b32 {s(S_KB)}, {s(S_ID)}, 1')
        k.e(f's_mov_b32 {s(S_STR)}, 1024')
        perm_setup(0)
        k.e(f's_lshl_b32 {s(S_DOFF)}, {s(S_FB)}, 1\ns_add_u32 {s(S_DOFF)}, {s(S_DOFF)}, {s(S_T0)}\ns_lshl_b32 {s(S_DOFF)}, {s(S_DOFF)}, 15')
        k.e(f's_lshl_b32 {s(S_T1)}, {s(S_KB)}, 14\ns_add_u32 {s(S_DOFF)}, {s(S_DOFF)}, {s(S_T1)}')
        k.e(f's_lshl_b32 {s(S_T1)}, {s(S_HALF)}, 7\ns_add_u32 {s(S_DOFF)}, {s(S_DOFF)}, {s(S_T1)}')
        k.e(f's_mov_b32 {s(S_DSTEP)}, 2048\ns_mov_b32 {s(S_NST)}, 8')
        k.e(f's_mov_b32 {s(S_CSF)}, {1 if which == 1 else 0}')
        k.e(f's_lshl_b32 {s(S_CSO)}, {s(S_KB)}, 11\ns_lshl_b32 {s(S_T1)}, {s(S_FB)}, 8\ns_add_u32 {s(S_CSO)}, {s(S_CSO)}, {s(S_T1)}')
        k.e(f's_lshl_b32 {s(S_T1)}, {s(S_T0)}, 7\ns_add_u32 {s(S_CSO)}, {s(S_CSO)}, {s(S_T1)}')
        k.e(f's_lshl_b32 {s(S_T1)}, {s(S_HALF)}, 1\ns_add_u32 {s(S_CSO)}, {s(S_CSO)}, {s(S_T1)}')
        k.e(f's_branch {lgo}')
    k.label(lw3)
    k.e(f's_sub_u32 {s(S_ID)}, {s(S_ID)}, 32')
    srd(k, SRC, P_W3, 0, 512 * 2752)
    srd(k, DST, P_WS, W3F, W3F_BYTES)
    srd(k, CS, P_WS, CS3, 2 * 1408 * 4)
    k.e(f's_lshr_b32 {s(S_FB)}, {s(S_ID)}, 1\ns_and_b32 {s(S_KB)}, {s(S_ID)}, 1')
    k.e(f's_mov_b32 {s(S_STR)}, 2752')
    k.e(f's_lshl_b32 {s(S_CH)}, {s(S_WAVE)}, 1\ns_mov_b32 {s(S_HALF)}, 0\ns_mov_b32 {s(S_NAT)}, 1')
    k.e(f's_lshl_b32 {s(S_DOFF)}, {s(S_FB)}, 2\ns_add_u32 {s(S_DOFF)}, {s(S_DOFF)}, {s(S_WAVE)}')
    k.e(f's_lshl_b32 {s(S_T0)}, {s(S_DOFF)}, 6')
    k.e(f's_lshl_b32 {s(S_DOFF)}, {s(S_DOFF)}, 14')
    k.e(f's_lshl_b32 {s(S_T1)}, {s(S_KB)}, 13\ns_add_u32 {s(S_DOFF)}, {s(S_DOFF)}, {s(S_T1)}')
    k.e(f's_mov_b32 {s(S_DSTEP)}, 1024\ns_mov_b32 {s(S_NST)}, 8\ns_mov_b32 {s(S_CSF)}, 2')
    k.e(f's_mul_i32 {s(S_CSO)}, {s(S_KB)}, {1408*4}\ns_add_u32 {s(S_CSO)}, {s(S_CSO)}, {s(S_T0)}')
    k.e(f's_branch {lgo}')
    k.label(lw4)
    k.e(f's_sub_u32 {s(S_ID)}, {s(S_ID)}, 76')
    srd(k, SRC, P_W4, 0, 1376 * 1024)
    srd(k, DST, P_WS, W4F, W4F_BYTES)
    srd(k, CS, P_WS, CS1, 4096)
    k.e(f's_mul_i32 {s(S_FB)}, {s(S_ID)}, 43\ns_lshr_b32 {s(S_FB)}, {s(S_FB)}, 8')
    k.e(f's_mul_i32 {s(S_T0)}, {s(S_FB)}, 6\ns_sub_u32 {s(S_KB)}, {s(S_ID)}, {s(S_T0)}')
    k.e(f's_mov_b32 {s(S_STR)}, 1024')
    perm_setup(0)
    k.e(f's_mul_i32 {s(S_DOFF)}, {s(S_FB)}, 176128')
    k.e(f's_lshl_b32 {s(S_T1)}, {s(S_KB)}, 15\ns_add_u32 {s(S_DOFF)}, {s(S_DOFF)}, {s(S_T1)}')
    k.e(f's_lshl_b32 {s(S_T1)}, {s(S_WAVE)}, 10\ns_add_u32 {s(S_DOFF)}, {s(S_DOFF)}, {s(S_T1)}')
    k.e(f's_lshl_b32 {s(S_T1)}, {s(S_KB)}, 3\ns_sub_u32 {s(S_NST)}, 43, {s(S_T1)}')
    k.e(f's_mov_b32 {s(S_DSTEP)}, 4096\ns_mov_b32 {s(S_CSF)}, 0\ns_mov_b32 {s(S_CSO)}, 0')
    k.label(lgo)
    k.e(f's_lshl_b32 {s(S_T0)}, {s(S_KB)}, 8\ns_lshl_b32 {s(S_T1)}, {s(S_WAVE)}, 6\ns_add_u32 {s(S_T0)}, {s(S_T0)}, {s(S_T1)}')
    k.e(f's_mul_i32 {s(S_ROW)}, {s(S_T0)}, {s(S_STR)}\ns_lshl_b32 {s(S_T1)}, {s(S_FB)}, 7\ns_add_u32 {s(S_ROW)}, {s(S_ROW)}, {s(S_T1)}')
    VA, VB, VT, VU, VR = 2, 3, 4, 5, 6
    dma_voffsets(k, S_STR, VA, VB, VT)
    dma_tile(k, SRC, S_STR, S_ROW, 0, VA, VB, S_T0)
    lnat, ljoin = k.newlabel('nat'), k.newlabel('trj')
    k.e(f's_cmp_eq_u32 {s(S_NAT)}, 1'); k.e(f's_cbranch_scc1 {lnat}')
    tr_addr(k, VR, VT, VU, S_CH, S_HALF, False)
    k.e(f's_branch {ljoin}')
    k.label(lnat)
    tr_addr(k, VR, VT, VU, S_CH, S_HALF, True)
    k.label(ljoin)
    VO = 8; ONES = 12; ACC = 16; FR = 20
    k.e(f'v_and_b32 {v(VO)}, 63, v0\nv_lshlrev_b32 {v(VO)}, 4, {v(VO)}')
    for i in range(4): k.e(f'v_mov_b32 {v(ONES+i)}, 0x3f803f80')
    for i in range(4): k.e(f'v_mov_b32 {v(ACC+i)}, 0')
    stamp(k, 1)
    k.wait_vm0(); k.e('s_barrier')
    stamp(k, 2)
    toks = []
    for st in range(8):
        k.ds(f'ds_read_b64_tr_b16 {v(FR+4*st,2)}, {v(VR)} offset:{4096*st}')
        toks.append(k.ds(f'ds_read_b64_tr_b16 {v(FR+4*st+2,2)}, {v(VR)} offset:{4096*st+512}'))
    for st in range(8):
        k.wait(toks[st])
        k.e(f's_cmp_gt_u32 {s(S_NST)}, {st}')
        k.e(f's_cselect_b32 {s(S_T0)}, {s(S_DOFF)}, {hex(OOB)}')
        k.vm(f'buffer_store_dwordx4 {v(FR+4*st,4)}, {v(VO)}, {s(DST,4)}, {s(S_T0)} offen')
        k.e(f's_add_u32 {s(S_DOFF)}, {s(S_DOFF)}, {s(S_DSTEP)}')
        mfma16(k, v(ACC,4), v(FR+4*st,4), v(ONES,4))
    ldone = k.newlabel('wdone')
    k.e(f's_cmp_eq_u32 {s(S_CSF)}, 0'); k.e(f's_cbranch_scc1 {ldone}')
    k.e(f'v_and_b32 {v(VT)}, 63, v0\nv_lshrrev_b32 {v(VU)}, 4, {v(VT)}')
    k.e(f's_cmp_eq_u32 {s(S_CSF)}, 1\ns_cselect_b32 {s(S_T0)}, 5, 4')
    k.e(f'v_lshlrev_b32 {v(VU)}, {s(S_T0)}, {v(VU)}')
    k.e(f'v_and_b32 {v(VT)}, 15, {v(VT)}\nv_cmp_eq_u32 vcc, 0, {v(VT)}')
    k.e(f'v_mov_b32 {v(VT)}, {hex(OOB)}\nv_cndmask_b32 {v(VU)}, {v(VT)}, {v(VU)}, vcc')
    k.vm(f'buffer_store_dwordx4 {v(ACC,4)}, {v(VU)}, {s(CS,4)}, {s(S_CSO)} offen')
    k.label(ldone)
    stamp_end(k, 0)
    k.e('s_endpgm')

def role_M(k):
    S_STR, S_ROW, S_T0, S_T1 = 44, 45, 46, 47
    SRC, CSRD, DST = 48, 52, 56
    S_CH, S_HALF, S_SEG = 60, 61, 62
    k.c('role M : mod = silu(c) @ w_mod')
    k.e(f's_sub_u32 {s(S_ID)}, s2, 64')
    srd(k, SRC, P_WMOD, 0, 512 * 6144)
    srd(k, CSRD, P_C, 0, 1024)
    srd(k, DST, P_WS, MOD, 3072 * 4)
    k.e(f's_mov_b32 {s(S_STR)}, 6144')
    VA, VB, VT, VU, VR = 2, 3, 4, 5, 6
    VC = 8
    k.e(f'v_lshlrev_b32 {v(VT)}, 2, v0')
    tc = k.vm(f'buffer_load_dword {v(VC)}, {v(VT)}, {s(CSRD,4)}, 0 offen')
    dma_voffsets(k, S_STR, VA, VB, VT)
    for kb in range(2):
        k.e(f's_lshl_b32 {s(S_T0)}, {s(S_WAVE)}, 6\ns_add_u32 {s(S_T0)}, {s(S_T0)}, {256*kb}')
        k.e(f's_mul_i32 {s(S_ROW)}, {s(S_T0)}, {s(S_STR)}\ns_lshl_b32 {s(S_T1)}, {s(S_ID)}, 7\ns_add_u32 {s(S_ROW)}, {s(S_ROW)}, {s(S_T1)}')
        dma_tile(k, SRC, S_STR, S_ROW, 32768 * kb, VA, VB, S_T0)
    k.e(f's_lshl_b32 {s(S_CH)}, {s(S_WAVE)}, 1\ns_mov_b32 {s(S_HALF)}, 0')
    tr_addr(k, VR, VT, VU, S_CH, S_HALF, True)
    k.wait(tc)
    X0, X1, E0, E1 = 10, 11, 12, 13
    k.e(f'v_lshlrev_b32 {v(X0)}, 16, {v(VC)}\nv_and_b32 {v(X1)}, 0xffff0000, {v(VC)}')
    k.e(f'v_mul_f32 {v(E0)}, {hexf(-LOG2E)}, {v(X0)}\nv_mul_f32 {v(E1)}, {hexf(-LOG2E)}, {v(X1)}')
    k.e(f'v_exp_f32 {v(E0)}, {v(E0)}\nv_exp_f32 {v(E1)}, {v(E1)}')
    k.e(f'v_add_f32 {v(E0)}, 1.0, {v(E0)}\nv_add_f32 {v(E1)}, 1.0, {v(E1)}')
    k.e(f'v_rcp_f32 {v(E0)}, {v(E0)}\nv_rcp_f32 {v(E1)}, {v(E1)}')
    k.e(f'v_mul_f32 {v(X0)}, {v(X0)}, {v(E0)}\nv_mul_f32 {v(X1)}, {v(X1)}, {v(E1)}')
    k.e(f'v_cvt_pk_bf16_f32 {v(X0)}, {v(X0)}, {v(X1)}')
    k.e(f'v_lshlrev_b32 {v(VT)}, 2, v0')
    k.e(f'v_add_u32 {v(VT)}, 0x10000, {v(VT)}')
    k.ds(f'ds_write_b32 {v(VT)}, {v(X0)}')
    VS = 14
    k.e(f'v_and_b32 {v(VS)}, 63, v0\nv_lshrrev_b32 {v(VS)}, 4, {v(VS)}\nv_lshlrev_b32 {v(VS)}, 4, {v(VS)}\nv_add_u32 {v(VS)}, 0x10000, {v(VS)}')
    ACC = 16; FR = 20; BF = 84
    for i in range(4): k.e(f'v_mov_b32 {v(ACC+i)}, 0')
    stamp(k, 1)
    k.e('s_waitcnt vmcnt(0) lgkmcnt(0)'); k.e('s_barrier')
    stamp(k, 2)
    for half in range(2):
        toks = []
        for st in range(8):
            sg = 8 * half + st
            off = 32768 * half + 4096 * st
            k.ds(f'ds_read_b64_tr_b16 {v(FR+4*st,2)}, {v(VR)} offset:{off}')
            k.ds(f'ds_read_b64_tr_b16 {v(FR+4*st+2,2)}, {v(VR)} offset:{off+512}')
            toks.append(k.ds(f'ds_read_b128 {v(BF+4*st,4)}, {v(VS)} offset:{64*sg}'))
        for st in range(8):
            k.wait(toks[st])
            mfma16(k, v(ACC,4), v(FR+4*st,4), v(BF+4*st,4))
    k.e(f's_lshr_b32 {s(S_SEG)}, {s(S_ID)}, 3')
    k.e(f'v_cvt_pk_bf16_f32 {v(FR)}, {v(ACC)}, {v(ACC+1)}\nv_cvt_pk_bf16_f32 {v(FR+1)}, {v(ACC+2)}, {v(ACC+3)}')
    k.e(f'v_lshlrev_b32 {v(ACC)}, 16, {v(FR)}\nv_and_b32 {v(ACC+1)}, 0xffff0000, {v(FR)}')
    k.e(f'v_lshlrev_b32 {v(ACC+2)}, 16, {v(FR+1)}\nv_and_b32 {v(ACC+3)}, 0xffff0000, {v(FR+1)}')
    lst = k.newlabel('mst'); lad = k.newlabel('mad')
    k.e(f's_cmp_eq_u32 {s(S_SEG)}, 1'); k.e(f's_cbranch_scc1 {lad}')
    k.e(f's_cmp_eq_u32 {s(S_SEG)}, 4'); k.e(f's_cbranch_scc0 {lst}')
    k.label(lad)
    for i in range(4): k.e(f'v_add_f32 {v(ACC+i)}, 1.0, {v(ACC+i)}')
    k.e(f'v_cvt_pk_bf16_f32 {v(FR)}, {v(ACC)}, {v(ACC+1)}\nv_cvt_pk_bf16_f32 {v(FR+1)}, {v(ACC+2)}, {v(ACC+3)}')
    k.e(f'v_lshlrev_b32 {v(ACC)}, 16, {v(FR)}\nv_and_b32 {v(ACC+1)}, 0xffff0000, {v(FR)}')
    k.e(f'v_lshlrev_b32 {v(ACC+2)}, 16, {v(FR+1)}\nv_and_b32 {v(ACC+3)}, 0xffff0000, {v(FR+1)}')
    k.label(lst)
    k.e(f'v_and_b32 {v(VT)}, 63, v0\nv_lshrrev_b32 {v(VU)}, 4, {v(VT)}\nv_lshlrev_b32 {v(VU)}, 4, {v(VU)}')
    k.e(f'v_and_b32 {v(VT)}, 15, {v(VT)}\nv_cmp_eq_u32 vcc, 0, {v(VT)}')
    k.e(f'v_mov_b32 {v(VT)}, {hex(OOB)}\nv_cndmask_b32 {v(VU)}, {v(VT)}, {v(VU)}, vcc')
    k.e(f's_lshl_b32 {s(S_T0)}, {s(S_ID)}, 8\ns_lshl_b32 {s(S_T1)}, {s(S_WAVE)}, 6\ns_add_u32 {s(S_T0)}, {s(S_T0)}, {s(S_T1)}')
    k.vm(f'buffer_store_dwordx4 {v(ACC,4)}, {v(VU)}, {s(DST,4)}, {s(S_T0)} offen')
    stamp_end(k, 0)
    k.e('s_endpgm')

def role_X(k):
    S_T0, S_T1, S_R0 = 44, 45, 46
    SRC, DXT, DXN = 48, 52, 56
    k.c('role X : LN statistics of x, writes x^T and LN(x)^T')
    srd(k, SRC, P_U, 0, 2 * MB)
    srd(k, DXT, P_WS, XT, 2 * MB)
    srd(k, DXN, P_WS, XNT, 2 * MB)
    k.e(f's_lshl_b32 {s(S_R0)}, s2, 5')
    VL, VO, VT, VW = 2, 3, 4, 5
    X = 8
    k.e(f'v_and_b32 {v(VL)}, 63, v0')
    k.e(f'v_lshrrev_b32 {v(VT)}, 3, {v(VL)}')
    k.e(f's_lshl_b32 {s(S_T0)}, {s(S_WAVE)}, 3')
    k.e(f'v_add_u32 {v(VW)}, {s(S_T0)}, {v(VT)}')
    k.e(f'v_add_u32 {v(VT)}, {s(S_R0)}, {v(VW)}')
    k.e(f'v_lshlrev_b32 {v(VO)}, 10, {v(VT)}')
    k.e(f'v_and_b32 {v(VT)}, 7, {v(VL)}')
    k.e(f'v_lshl_add_u32 {v(VO)}, {v(VT)}, 4, {v(VO)}')
    toks = [k.vm(f'buffer_load_dwordx4 {v(X+4*j,4)}, {v(VO)}, {s(SRC,4)}, 0 offen offset:{128*j}') for j in range(8)]
    VA = 6
    k.e(f'v_mul_u32_u24 {v(VA)}, 1056, {v(VW)}')
    k.e(f'v_and_b32 {v(VW)}, 24, {v(VW)}\nv_add_u32 {v(VT)}, {v(VT)}, {v(VW)}')
    k.e(f'v_lshl_add_u32 {v(VA)}, {v(VT)}, 4, {v(VA)}')
    S1, S2, S3, S4, ONE = 40, 41, 42, 43, 44
    k.e(f'v_mov_b32 {v(ONE)}, 0x3f803f80')
    for r in (S1, S2, S3, S4): k.e(f'v_mov_b32 {v(r)}, 0')
    stamp(k, 1)
    k.wait(toks[0])
    stamp(k, 2)
    for j in range(8):
        k.wait(toks[j])
        for i in range(4):
            k.e(f'v_dot2_f32_bf16 {v(S1 + (i&1))}, {v(X+4*j+i)}, {v(ONE)}, {v(S1 + (i&1))}')
            k.e(f'v_dot2_f32_bf16 {v(S3 + (i&1))}, {v(X+4*j+i)}, {v(X+4*j+i)}, {v(S3 + (i&1))}')
        k.ds(f'ds_write_b128 {v(VA)}, {v(X+4*j,4)} offset:{128*j}')
    k.e(f'v_add_f32 {v(S1)}, {v(S1)}, {v(S2)}\nv_add_f32 {v(S3)}, {v(S3)}, {v(S4)}')
    for m in ('quad_perm:[1,0,3,2]', 'quad_perm:[2,3,0,1]', 'row_half_mirror'):
        k.e(f'v_add_f32_dpp {v(S1)}, {v(S1)}, {v(S1)} {m} row_mask:0xf bank_mask:0xf')
        k.e(f'v_add_f32_dpp {v(S3)}, {v(S3)}, {v(S3)} {m} row_mask:0xf bank_mask:0xf')
    k.e(f'v_mul_f32 {v(S1)}, {hexf(1/512)}, {v(S1)}')
    k.e(f'v_mul_f32 {v(S2)}, {v(S1)}, {v(S1)}')
    k.e(f'v_mov_b32 {v(S4)}, {hexf(1/512)}')
    k.e(f'v_fma_f32 {v(S3)}, {v(S3)}, {v(S4)}, -{v(S2)}')
    k.e(f'v_max_f32 {v(S3)}, 0, {v(S3)}\nv_add_f32 {v(S3)}, {hexf(1e-5)}, {v(S3)}')
    k.e(f'v_rsq_f32 {v(S3)}, {v(S3)}')
    k.e(f'v_mul_f32 {v(S1)}, {v(S1)}, {v(S3)}\nv_sub_f32 {v(S1)}, 0, {v(S1)}')
    STAT = 34816
    k.e(f'v_lshrrev_b32 {v(VT)}, 3, {v(VL)}\ns_lshl_b32 {s(S_T0)}, {s(S_WAVE)}, 3\nv_add_u32 {v(VT)}, {s(S_T0)}, {v(VT)}\nv_lshlrev_b32 {v(VT)}, 2, {v(VT)}')
    k.ds(f'ds_write_b32 {v(VT)}, {v(S3)} offset:{STAT}')
    k.ds(f'ds_write_b32 {v(VT)}, {v(S1)} offset:{STAT+128}')
    k.barrier()
    stamp(k, 3)
    RS, NMR = 48, 56
    k.e(f'v_lshrrev_b32 {v(VT)}, 4, {v(VL)}\nv_lshlrev_b32 {v(VW)}, 5, {v(VT)}')
    t1 = k.ds(f'ds_read_b128 {v(RS,4)}, {v(VW)} offset:{STAT}')
    k.ds(f'ds_read_b128 {v(RS+4,4)}, {v(VW)} offset:{STAT+16}')
    k.ds(f'ds_read_b128 {v(NMR,4)}, {v(VW)} offset:{STAT+128}')
    t2 = k.ds(f'ds_read_b128 {v(NMR+4,4)}, {v(VW)} offset:{STAT+144}')
    VR = 6
    k.e(f'v_bfe_u32 {v(VW)}, {v(VL)}, 2, 2')
    k.e(f'v_lshl_add_u32 {v(VW)}, {v(VT)}, 3, {v(VW)}')
    k.e(f'v_mul_u32_u24 {v(VR)}, 1056, {v(VW)}')
    k.e(f'v_and_b32 {v(VW)}, 24, {v(VW)}\nv_lshl_add_u32 {v(VR)}, {v(VW)}, 4, {v(VR)}')
    k.e(f'v_and_b32 {v(VW)}, 3, {v(VL)}\nv_lshl_add_u32 {v(VR)}, {v(VW)}, 3, {v(VR)}')
    k.e(f's_lshl_b32 {s(S_T0)}, {s(S_WAVE)}, 8\nv_add_u32 {v(VR)}, {s(S_T0)}, {v(VR)}')
    k.e(f'v_and_b32 {v(VW)}, 15, {v(VL)}\ns_lshl_b32 {s(S_T0)}, {s(S_WAVE)}, 7\nv_add_u32 {v(VW)}, {s(S_T0)}, {v(VW)}')
    k.e(f'v_lshlrev_b32 {v(VO)}, 12, {v(VW)}\nv_lshl_add_u32 {v(VO)}, {v(VT)}, 4, {v(VO)}')
    k.e(f's_lshl_b32 {s(S_T1)}, {s(S_R0)}, 1')
    FR = 8; U = 64; O = 72
    toks = []
    for ct in range(8):
        k.ds(f'ds_read_b64_tr_b16 {v(FR+4*ct,2)}, {v(VR)} offset:{32*ct}')
        toks.append(k.ds(f'ds_read_b64_tr_b16 {v(FR+4*ct+2,2)}, {v(VR)} offset:{32*ct + 4*1056}'))
    k.wait(t2)
    for ct in range(8):
        k.wait(toks[ct])
        k.vm(f'buffer_store_dwordx4 {v(FR+4*ct,4)}, {v(VO)}, {s(DXT,4)}, {s(S_T1)} offen')
        for i in range(4):
            k.e(f'v_lshlrev_b32 {v(U+2*i)}, 16, {v(FR+4*ct+i)}\nv_and_b32 {v(U+2*i+1)}, 0xffff0000, {v(FR+4*ct+i)}')
        for i in range(4):
            k.e(f'v_pk_fma_f32 {v(U+2*i,2)}, {v(U+2*i,2)}, {v(RS+2*i,2)}, {v(NMR+2*i,2)}')
        oo = O + 4 * (ct & 1)
        for i in range(4):
            k.e(f'v_cvt_pk_bf16_f32 {v(oo+i)}, {v(U+2*i)}, {v(U+2*i+1)}')
        k.vm(f'buffer_store_dwordx4 {v(oo,4)}, {v(VO)}, {s(DXN,4)}, {s(S_T1)} offen')
        k.e(f's_add_u32 {s(S_T1)}, {s(S_T1)}, 0x10000')
    if __import__('common').DBG: k.e('s_waitcnt vmcnt(0)')
    dbg_stamp(k, 3, 0, wg=0)
    stamp_end(k, 0)
    k.e('s_endpgm')

def cexp_direct(k, d, zr2, zrev, x, t):
    k.e(f'v_mul_f32 {v(t)}, {hexf(x)}, {v(zr2)}\nv_mul_f32 {v(t+1)}, {hexf(x)}, {v(zrev)}')
    k.e(f'v_exp_f32 {v(t)}, {v(t)}\nv_fract_f32 {v(t+1)}, {v(t+1)}')
    k.e(f'v_cos_f32 {v(d)}, {v(t+1)}\nv_sin_f32 {v(d+1)}, {v(t+1)}')
    k.e(f'v_mul_f32 {v(d)}, {v(d)}, {v(t)}\nv_mul_f32 {v(d+1)}, {v(d+1)}, {v(t)}')

def role_K(k):
    S_T0, S_T1, S_KG = 44, 45, 46
    SR = 48
    DK = 76
    CHB = 53 * 544
    TAB = 2 * CHB
    k.c('role K : K[d, l] generation')
    k.e(f's_sub_u32 {s(S_KG)}, s2, 256')
    VO, VT, VU = 2, 3, 4
    k.e(f's_lshl_b32 {s(S_T0)}, {s(S_KG)}, 9\nv_lshlrev_b32 {v(VO)}, 1, v0\nv_add_u32 {v(VO)}, {s(S_T0)}, {v(VO)}')
    IN = 8
    toks = []
    for i, p in enumerate((P_ARE, P_AIM, P_BRE, P_BIM, P_CRE, P_CIM)):
        srd(k, SR + 4 * i, p, 0, 512 * 128 * 2)
        toks.append(k.vm(f'buffer_load_ushort {v(IN+i)}, {v(VO)}, {s(SR+4*i,4)}, 0 offen'))
    srd(k, SR + 24, P_LDT, 0, 1024)
    k.e(f'v_lshrrev_b32 {v(VT)}, 7, v0\ns_lshl_b32 {s(S_T0)}, {s(S_KG)}, 1\nv_add_u32 {v(VT)}, {s(S_T0)}, {v(VT)}\nv_lshlrev_b32 {v(VT)}, 1, {v(VT)}')
    tl = k.vm(f'buffer_load_ushort {v(IN+6)}, {v(VT)}, {s(SR+24,4)}, 0 offen')
    srd(k, DK, P_WS, KR, 512 * KRS)
    GA = 16
    k.e(f'v_lshlrev_b32 {v(VT)}, 3, v0\nv_sub_u32 {v(VT)}, 2047, {v(VT)}')
    for j in range(8):
        k.e(f'v_subrev_u32 {v(GA+j)}, {j}, {v(VT)}')
    F0 = 24
    for j in range(8): k.e(f'v_cvt_f32_u32 {v(F0+j)}, {v(GA+j)}')
    for j in range(0, 8, 2): k.e(f'v_cvt_pk_bf16_f32 {v(F0+j)}, {v(F0+j)}, {v(F0+j+1)}')
    for j in range(0, 8, 2):
        k.e(f'v_lshrrev_b32 {v(F0+j+1)}, 16, {v(F0+j)}\nv_and_b32 {v(F0+j)}, 0xffff, {v(F0+j)}')
    for j in range(8):
        k.e(f'v_subrev_u32 {v(F0+j)}, {17024}, {v(F0+j)}')
        k.e(f'v_min_u32 {v(GA+j)}, 127, {v(GA+j)}')
    for j in range(8):
        k.e(f'v_max_i32 {v(GA+j)}, {v(GA+j)}, {v(F0+j)}')
        k.e(f'v_lshlrev_b32 {v(GA+j)}, 1, {v(GA+j)}')
        k.e(f'v_add_u32 {v(GA+j)}, {TAB}, {v(GA+j)}')
    VW = 5
    k.e(f'v_lshrrev_b32 {v(VT)}, 7, v0\nv_mul_u32_u24 {v(VW)}, {CHB}, {v(VT)}')
    k.e(f'v_and_b32 {v(VT)}, 127, v0\nv_lshl_add_u32 {v(VW)}, {v(VT)}, 2, {v(VW)}')
    stamp(k, 1)
    k.wait(tl)
    stamp(k, 2)
    ARE, AIM, BRE, BIM, CRE, CIM, LDT = range(IN, IN + 7)
    for r in range(IN, IN + 7): k.e(f'v_lshlrev_b32 {v(r)}, 16, {v(r)}')
    DT = 6
    k.e(f'v_mul_f32 {v(LDT)}, {hexf(LOG2E)}, {v(LDT)}\nv_exp_f32 {v(LDT)}, {v(LDT)}')
    k.e(f'v_cvt_pk_bf16_f32 {v(LDT)}, {v(LDT)}, {v(LDT)}\nv_lshlrev_b32 {v(DT)}, 16, {v(LDT)}')
    ZR2, ZRV = 32, 33
    k.e(f'v_mul_f32 {v(ARE)}, {v(DT)}, {v(ARE)}\nv_mul_f32 {v(AIM)}, {v(DT)}, {v(AIM)}')
    k.e(f'v_mul_f32 {v(ZR2)}, {hexf(LOG2E)}, {v(ARE)}\nv_mul_f32 {v(ZRV)}, {hexf(INV2PI)}, {v(AIM)}')
    k.e(f'v_mul_f32 {v(BRE)}, {v(DT)}, {v(BRE)}\nv_mul_f32 {v(BIM)}, {v(DT)}, {v(BIM)}')
    R = Alloc(34, 200)
    pair = lambda: R.get(2, 2)
    W, DBp, CC, T = pair(), pair(), pair(), pair()
    k.e(f'v_mov_b32 {v(DBp)}, {v(BRE)}\nv_mov_b32 {v(DBp+1)}, {v(BIM)}\nv_mov_b32 {v(CC)}, {v(CRE)}\nv_mov_b32 {v(CC+1)}, {v(CIM)}')
    E1, E8, E256 = pair(), pair(), pair()
    cexp_direct(k, E1, ZR2, ZRV, 1.0, T)
    cexp_direct(k, E8, ZR2, ZRV, 8.0, T)
    cexp_direct(k, E256, ZR2, ZRV, 256.0, T)
    cmul(k, W, CC, DBp)
    cv = [R.get(1) for _ in range(4)]
    cvi = [0]
    def put(row, z, xside):
        c = cv[cvi[0] % 4]; cvi[0] += 1
        k.e(f'v_cvt_pk_bf16_f32 {v(c)}, {v(z)}, {"-" if xside else ""}{v(z+1)}')
        k.ds(f'ds_write_b32 {v(VW)}, {v(c)} offset:{row*544}')
    E2, E16, E512 = pair(), pair(), pair()
    cmul_many(k, [(E2, E1, E1), (E16, E8, E8), (E512, E256, E256)])
    WX = [W] + [pair() for _ in range(7)]
    E24, E32, E768, E1024 = pair(), pair(), pair(), pair()
    cmul_many(k, [(WX[1], W, E1), (WX[2], W, E2), (E24, E16, E8), (E32, E16, E16), (E768, E512, E256), (E1024, E512, E512)])
    put(0, W, True); put(1, WX[1], True); put(2, WX[2], True)
    E1280, E1536, E1792, E2048 = pair(), pair(), pair(), pair()
    cmul_many(k, [(WX[3], WX[1], E2), (WX[4], WX[2], E2), (E1280, E1024, E256), (E1536, E1024, E512), (E1792, E1024, E768), (E2048, E1024, E1024)])
    put(3, WX[3], True); put(4, WX[4], True)
    Y0 = pair()
    k.e(f'v_mov_b32 {v(Y0)}, 1.0\nv_mov_b32 {v(Y0+1)}, 0')
    Ya = [Y0, E8, E16, E24]
    for j in range(4): put(21 + j, Ya[j], False)
    cmul_many(k, [(WX[5], WX[3], E2), (WX[6], WX[4], E2)])
    Yb = [pair() for _ in range(4)]
    Yc = [pair() for _ in range(4)]
    cmul_many(k, [(Yb[j], Ya[j], E32) for j in range(4)])
    put(5, WX[5], True); put(6, WX[6], True)
    tmp = [pair() for _ in range(6)]
    cmul_many(k, [(WX[7], WX[5], E2), (tmp[0], W, E256), (tmp[1], WX[2], E256), (tmp[2], WX[4], E256), (tmp[3], WX[6], E256)])
    for j in range(4): put(25 + j, Yb[j], False)
    put(7, WX[7], True)
    for j in range(4): put(8 + j, tmp[j], True)
    cur, nxt = Yb, Yc
    xs = [[(12, W, E512), (13, WX[4], E512), (14, W, E768), (15, WX[4], E768)],
          [(16, W, E1024), (17, W, E1280), (18, W, E1536), (19, W, E1792)],
          [(20, W, E2048)]]
    for it in range(2, 8):
        trip = [(nxt[j], cur[j], E32) for j in range(4)]
        extra = xs[it-2] if it - 2 < len(xs) else []
        trip += [(tmp[i], x, y) for i, (_, x, y) in enumerate(extra)]
        cmul_many(k, trip)
        for j in range(4): put(21 + 4 * it + j, nxt[j], False)
        for i, (row, _, _) in enumerate(extra): put(row, tmp[i], True)
        cur, nxt = nxt, cur
    stamp(k, 3)
    k.barrier()
    stamp(k, 4)
    VA, VB = 2, 5
    k.e(f'v_and_b32 {v(VT)}, 63, v0\nv_and_b32 {v(VU)}, 15, {v(VT)}\nv_lshrrev_b32 {v(VT)}, 4, {v(VT)}')
    k.e(f's_lshr_b32 {s(S_T0)}, {s(S_WAVE)}, 1\ns_mul_i32 {s(S_T0)}, {s(S_T0)}, {CHB}')
    k.e(f'v_mul_u32_u24 {v(VA)}, 544, {v(VU)}\nv_lshl_add_u32 {v(VA)}, {v(VT)}, 4, {v(VA)}\nv_add_u32 {v(VA)}, {s(S_T0)}, {v(VA)}')
    k.e(f's_and_b32 {s(S_T1)}, {s(S_WAVE)}, 1\ns_mul_i32 {s(S_T1)}, {s(S_T1)}, {16*544}\ns_add_u32 {s(S_T1)}, {s(S_T1)}, {21*544}')
    k.e(f'v_add_u32 {v(VB)}, {s(S_T1)}, {v(VA)}')
    FA, FB, AC = 40, 104, 136
    toks = []
    for st in range(8):
        k.ds(f'ds_read_b128 {v(FA+8*st,4)}, {v(VA)} offset:{64*st}')
        k.ds(f'ds_read_b128 {v(FA+8*st+4,4)}, {v(VA)} offset:{64*st + 16*544}')
        toks.append(k.ds(f'ds_read_b128 {v(FB+4*st,4)}, {v(VB)} offset:{64*st}'))
    for i in range(8): k.e(f'v_mov_b32 {v(AC+i)}, 0')
    J = 6; MJ = 7; A0 = 32; A1 = 33; A2 = 34
    k.e(f's_and_b32 {s(S_T1)}, {s(S_WAVE)}, 1\ns_lshl_b32 {s(S_T1)}, {s(S_T1)}, 4\nv_add_u32 {v(J)}, {s(S_T1)}, {v(VU)}')
    k.e(f'v_sub_u32 {v(MJ)}, 4, {v(VT)}\nv_min_u32 {v(MJ)}, 3, {v(MJ)}')
    k.e(f'v_lshlrev_b32 {v(MJ)}, {v(MJ)}, {v(J)}')
    k.e(f'v_lshlrev_b32 {v(A0)}, 2, {v(VT)}')
    k.e(f'v_mov_b32 {v(A1)}, 256\nv_cmp_eq_u32 vcc, 2, {v(VT)}\nv_cndmask_b32 {v(A0)}, {v(A0)}, {v(A1)}, vcc')
    k.e(f'v_mov_b32 {v(A1)}, 384\nv_cmp_eq_u32 vcc, 3, {v(VT)}\nv_cndmask_b32 {v(A0)}, {v(A0)}, {v(A1)}, vcc')
    k.e(f'v_add_u32 {v(A0)}, {v(A0)}, {v(MJ)}')
    k.e(f'v_mov_b32 {v(A1)}, 0\nv_mov_b32 {v(A2)}, 62\nv_cndmask_b32 {v(A1)}, {v(A1)}, {v(A2)}, vcc\nv_add_u32 {v(A1)}, {v(A0)}, {v(A1)}')
    k.e(f'v_add_u32 {v(A2)}, 512, {v(J)}\nv_mov_b32 {v(MJ)}, 644\nv_cmp_eq_u32 vcc, 0, {v(VT)}\nv_cndmask_b32 {v(A2)}, {v(MJ)}, {v(A2)}, vcc')
    k.e(f'v_lshl_add_u32 {v(MJ)}, {v(VT)}, 5, {v(J)}\nv_cmp_eq_u32 vcc, 32, {v(MJ)}\nv_mov_b32 {v(MJ)}, 640\nv_cndmask_b32 {v(A2)}, {v(A2)}, {v(MJ)}, vcc')
    k.e(f's_lshr_b32 {s(S_T0)}, {s(S_WAVE)}, 1\ns_mul_i32 {s(S_T0)}, {s(S_T0)}, 1536\ns_add_u32 {s(S_T0)}, {s(S_T0)}, {TAB}')
    for r in (A0, A1, A2): k.e(f'v_lshl_add_u32 {v(r)}, {v(r)}, 1, {s(S_T0)}')
    for st in range(8):
        k.wait(toks[st])
        mfma16(k, v(AC,4), v(FA+8*st,4), v(FB+4*st,4))
        mfma16(k, v(AC+4,4), v(FA+8*st+4,4), v(FB+4*st,4))
    C0 = 40
    k.e(f'v_cvt_pk_bf16_f32 {v(C0)}, {v(AC)}, {v(AC+1)}\nv_cvt_pk_bf16_f32 {v(C0+1)}, {v(AC+2)}, {v(AC+3)}')
    k.e(f'v_cvt_pk_bf16_f32 {v(C0+2)}, {v(AC+4)}, {v(AC+5)}\nv_cvt_pk_bf16_f32 {v(C0+3)}, {v(AC+6)}, {v(AC+7)}')
    k.ds(f'ds_write_b16 {v(A0)}, {v(C0)}');              k.ds(f'ds_write_b16_d16_hi {v(A0)}, {v(C0)} offset:2')
    k.ds(f'ds_write_b16 {v(A1)}, {v(C0+1)} offset:4');   k.ds(f'ds_write_b16_d16_hi {v(A1)}, {v(C0+1)} offset:6')
    k.ds(f'ds_write_b16 {v(A2)}, {v(C0+2)}');            k.ds(f'ds_write_b16_d16_hi {v(A2)}, {v(C0+2)} offset:64')
    k.ds(f'ds_write_b16 {v(A2)}, {v(C0+3)} offset:128'); k.ds(f'ds_write_b16_d16_hi {v(A2)}, {v(C0+3)} offset:192')
    k.barrier()
    stamp(k, 5)
    G = 44; GH = 56
    for ch in range(2):
        for j in range(8):
            op = 'ds_read_u16_d16_hi' if j & 1 else 'ds_read_u16'
            t = k.ds(f'{op} {v((GH if j & 1 else G)+4*ch+j//2)}, {v(GA+j)} offset:{1536*ch}')
    k.e(f's_mul_i32 {s(S_T0)}, {s(S_KG)}, {2*KRS}\nv_lshlrev_b32 {v(VO)}, 4, v0')
    Z = 52
    for i in range(4): k.e(f'v_mov_b32 {v(Z+i)}, 0')
    k.e(f'v_lshrrev_b32 {v(VT)}, 2, v0\nv_mul_u32_u24 {v(VT)}, {KRS}, {v(VT)}\nv_and_b32 {v(VU)}, 3, v0\nv_lshl_add_u32 {v(VT)}, {v(VU)}, 4, {v(VT)}\nv_add_u32 {v(VT)}, 4096, {v(VT)}')
    k.e(f'v_mov_b32 {v(VU)}, {hex(OOB)}\nv_cmp_gt_u32 vcc, 8, v0\nv_cndmask_b32 {v(VT)}, {v(VU)}, {v(VT)}, vcc')
    k.vm(f'buffer_store_dwordx4 {v(Z,4)}, {v(VT)}, {s(DK,4)}, {s(S_T0)} offen')
    k.wait(t)
    for i in range(8): k.e(f'v_or_b32 {v(G+i)}, {v(G+i)}, {v(GH+i)}')
    k.vm(f'buffer_store_dwordx4 {v(G,4)}, {v(VO)}, {s(DK,4)}, {s(S_T0)} offen')
    k.e(f's_add_u32 {s(S_T0)}, {s(S_T0)}, {KRS}')
    k.vm(f'buffer_store_dwordx4 {v(G+4,4)}, {v(VO)}, {s(DK,4)}, {s(S_T0)} offen')
    if __import__('common').DBG: k.e('s_waitcnt vmcnt(0)')
    dbg_stamp(k, 2, 0, wg=256)
    stamp_end(k, 0)
    k.e('s_endpgm')

LDS_A = 66560

def build_A(name):
    k = Kern(name)
    lx, lm, lw, lk, lend = [k.newlabel(x) for x in ('X', 'M', 'W', 'K', 'end')]
    k.e(f's_cmp_ge_u32 s2, 512'); k.e(f's_cbranch_scc1 {lend}')
    load_all_ptrs(k)
    wave_id(k)
    k.e('s_waitcnt lgkmcnt(0)')
    dbg_stamp(k, 0, 0, wg=0); dbg_stamp(k, 1, 0, wg=256)
    stamp_begin(k)
    if PRE_TLB or PRE_CODE:
        lp = k.newlabel('pre')
        k.e(f's_cmp_eq_u32 {s(S_WAVE)}, 3'); k.e(f's_cbranch_scc0 {lp}')
        k.e('s_cmp_lt_u32 s2, 256'); k.e(f's_cbranch_scc0 {lp}')
        k.e('v_and_b32 v100, 63, v0')
        if PRE_TLB:
            srd(k, 48, P_WS, 0, 32 * MB)
            k.e('v_lshlrev_b32 v101, 19, v100')
            k.e('buffer_load_dword v102, v101, s[48:51], 0 offen')
            srd(k, 48, P_OUT, 0, 2 * MB)
            k.e('v_lshlrev_b32 v101, 15, v100')
            k.e('buffer_load_dword v103, v101, s[48:51], 0 offen')
        if PRE_CODE:
            lh = k.newlabel('pc')
            k.e('s_getpc_b64 s[44:45]')
            k.label(lh)
            k.e(f's_add_u32 s44, s44, CODE_FROM-{lh}\ns_addc_u32 s45, s45, 0')
            k.e('s_lshr_b32 s46, s2, 3\ns_cmp_lt_u32 s46, (CODE_TO-CODE_FROM+8191)/8192'); k.e(f's_cbranch_scc0 {lp}')
            k.e('s_lshl_b32 s46, s46, 13\nv_lshlrev_b32 v101, 7, v100\nv_add_u32 v101, s46, v101')
            k.e('v_min_u32 v101, CODE_TO-CODE_FROM-4, v101')
            k.e('global_load_dword v104, v101, s[44:45]')
        k.label(lp)
        k.vm_done = k.vm_issued = k.vm_issued
    k.e('s_cmp_ge_u32 s2, 256'); k.e(f's_cbranch_scc1 {lk}')
    lz = k.newlabel('Z')
    k.e('s_cmp_ge_u32 s2, 236'); k.e(f's_cbranch_scc1 {lz}')
    k.e('s_cmp_ge_u32 s2, 112'); k.e(f's_cbranch_scc1 {lw}')
    k.e('s_cmp_ge_u32 s2, 64'); k.e(f's_cbranch_scc1 {lm}')
    for lab, fn in ((lx, role_X), (lm, role_M), (lw, role_W), (lk, role_K)):
        k.label(lab)
        k.vm_done = k.vm_issued; k.lg_done = k.lg_issued
        fn(k)
    k.label(lz)
    k.e('s_cmp_ge_u32 s2, 252'); k.e(f's_cbranch_scc1 {lend}')
    srd(k, 48, P_WS, FLG, 4 * 16384)
    k.e('s_sub_u32 s44, s2, 236\ns_lshl_b32 s44, s44, 12\nv_lshlrev_b32 v2, 4, v0')
    for i in range(4): k.e(f'v_mov_b32 {v(4+i)}, 0')
    k.e('buffer_store_dwordx4 v[4:7], v2, s[48:51], s44 offen')
    k.label(lend)
    k.e('s_endpgm')
    return k
```

```python
import sys
from common import *
import phaseA, phaseB, phaseC, phaseD, phaseE, phaseF, persist
MAIN = 'adaLN_cond__ssm_conv_s4__mixer_s_mlp__prompt_kernel'
def assemble(kerns, path):
    out = []
    for k, g, b, lds in kerns:
        out.append(f'; @launch kernel={k.name} grid=({g},1,1) block=({b},1,1) lds={lds}')
    out.append('.amdgcn_target "amdgcn-amd-amdhsa--gfx950"')
    out.append('.text')
    seen = set()
    for k, g, b, lds in kerns:
        if k.name in seen: continue
        seen.add(k.name)
        if len(seen) == 2: out.append('.p2align 8\nCODE_FROM:')
        out.append(k.header()); out.append(k.text())
    out.append('CODE_TO:')
    out.append('.section .rodata,"a"')
    seen = set()
    for k, g, b, lds in kerns:
        if k.name in seen: continue
        seen.add(k.name)
        out.append('.p2align 6'); out.append(k.descriptor())
    open(path, 'w').write('\n'.join(out) + '\n')
if __name__ == '__main__':
    which = sys.argv[2] if len(sys.argv) > 2 else 'A'
    import common
    if 'P' in which: common.PROF = True
    if 'G' in which: common.DBG = True
    for kv in sys.argv[3:]:
        kk, vv = kv.split('=')
        if kk == 'WARM_B': phaseB.WARM_B = bool(int(vv))
        elif kk == 'TLB': phaseA.PRE_TLB = bool(int(vv))
        elif kk == 'CODE': phaseA.PRE_CODE = bool(int(vv))
        elif kk == 'WR': phaseB.WARM_ROUNDS = [(W1F, -1), (W3F, 6), (W3F + MB, 16), (W4F + 640*KB, 24)][:int(vv)]
        elif kk == 'WARM_N': phaseB.WARM_LIST = phaseB.WARM_LIST[:int(vv)]
        else: persist.CFG[kk] = int(vv)
    ks = []
    if 'A' in which: ks.append((phaseA.build_A(MAIN), 512, 256, phaseA.LDS_A))
    if 'B' in which: ks.append((phaseB.build_B('conv_kernel'), 512 if phaseB.WARM_B else 256, 256, phaseB.LDS_B))
    if 'C' in which: ks.append((phaseC.build_C('gemm1_kernel'), 256, 256, phaseC.LDS_C))
    if 'D' in which: ks.append((phaseD.build_D('gemm2_kernel'), 256, 256, phaseD.LDS_D))
    if 'E' in which: ks.append((phaseE.build_E('gemm3_kernel'), 256, 256, phaseE.LDS_E))
    if 'F' in which: ks.append((phaseF.build_F('gemm4_kernel'), 256, 256, phaseF.LDS_F))
    if 'Q' in which: ks.append((persist.build_P('mlp_kernel'), 256, 256, persist.LDS_P))
    assemble(ks, sys.argv[1])
    for k, g, b, lds in ks: print(k.name[:12], 'v', k.maxv, 'a', k.maxa, 's', k.maxs, 'lds', lds, 'instrs', sum(1 for i in k.items if not isinstance(i, str)))
```

```python
from asmlib import *

L = 2048; D = 512; F = 1376; NM = 128
MB = 1 << 20; KB = 1 << 10
XT   = 0
XNT  = 2 * MB
X2T  = 4 * MB
KR   = 6 * MB;  KRS = 4160
XBS  = 32768 + 256
XTB  = 30 * MB
XNB  = 33 * MB
X2B  = 36 * MB
XBS16 = 16384 + 128
MODP = 28 * MB + 48 * KB
H1C  = 9 * MB
H2C  = 11 * MB
X2C  = 13 * MB
X1C  = 15 * MB
HC   = 17 * MB; HC_BYTES = 172 * 32768
W1F  = 23 * MB
W2F  = 23 * MB + 512 * KB
W3F  = 24 * MB; W3F_BYTES = 86 * 16 * 1024
W4F  = 26 * MB; W4F_BYTES = 8 * 43 * 4 * 1024
MOD  = 28 * MB
CS1  = 28 * MB + 16 * KB
CS3  = 28 * MB + 32 * KB
ST4  = 28 * MB + 64 * KB
FLG  = 29 * MB
WS_USED = 40 * MB

ARG = dict(u=0, are=8, aim=16, bre=24, bim=32, cre=40, cim=48, ldt=56, dsk=64, bx=72, w1=80, w2=88, w3=96, w4=104, c=112, wmod=120, out=128, dbg=136, ws=144)

LOG2E = 1.4426950408889634
INV2PI = 0.15915494309189535
import struct
def f2u(x): return struct.unpack('<I', struct.pack('<f', x))[0]
def hexf(x): return hex(f2u(x))

def sload(k, sdst, name):
    k.e(f's_load_dwordx2 {s(sdst,2)}, s[0:1], {ARG[name]}')

def srd(k, sd, sp, off, nbytes):
    if off == 0:
        k.e(f's_mov_b32 {s(sd)}, {s(sp)}\ns_mov_b32 {s(sd+1)}, {s(sp+1)}')
    else:
        o = hex(off) if isinstance(off, int) else off
        k.e(f's_add_u32 {s(sd)}, {s(sp)}, {o}\ns_addc_u32 {s(sd+1)}, {s(sp+1)}, 0')
    k.e(f's_mov_b32 {s(sd+2)}, {hex(nbytes)}\ns_mov_b32 {s(sd+3)}, 0x20000')

def cmul(k, d, x, y):
    k.e(f'v_pk_mul_f32 {v(d,2)}, {v(x,2)}, {v(y,2)} op_sel_hi:[0,1]')
    k.e(f'v_pk_fma_f32 {v(d,2)}, {v(x,2)}, {v(y,2)}, {v(d,2)} op_sel:[1,1,0] op_sel_hi:[1,0,1] neg_lo:[1,0,0]')

def cmul_many(k, triples):
    for d, x, y in triples:
        k.e(f'v_pk_mul_f32 {v(d,2)}, {v(x,2)}, {v(y,2)} op_sel_hi:[0,1]')
    for d, x, y in triples:
        k.e(f'v_pk_fma_f32 {v(d,2)}, {v(x,2)}, {v(y,2)}, {v(d,2)} op_sel:[1,1,0] op_sel_hi:[1,0,1] neg_lo:[1,0,0]')

def mfma16(k, d, a_, b_, c=None):
    k.e(f'v_mfma_f32_16x16x32_bf16 {d}, {a_}, {b_}, {c if c is not None else d}')

def code_prefetch(k, lab_from, nbytes, vtmp, vdst, stmp, nthreads=256):
    pass

def l2_warm(k, srdq, p_ws, off, nbytes, s_slot, s_wave, vlane, vtmp, vdst, s_tmp, nwaves=4):
    n8 = -(-nbytes // 8192)
    per = -(-n8 // (32 * nwaves))
    srd(k, srdq, p_ws, off, nbytes)
    k.e(f's_mul_i32 {s(s_tmp)}, {s(s_slot)}, {nwaves}\ns_add_u32 {s(s_tmp)}, {s(s_tmp)}, {s(s_wave)}\ns_mul_i32 {s(s_tmp)}, {s(s_tmp)}, {per*8192}')
    k.e(f'v_lshlrev_b32 {v(vtmp)}, 7, {v(vlane)}')
    toks = []
    for i in range(per):
        toks.append(k.vm(f'buffer_load_dword {v(vdst)}, {v(vtmp)}, {s(srdq,4)}, {s(s_tmp)} offen'))
        if i + 1 < per: k.e(f's_add_u32 {s(s_tmp)}, {s(s_tmp)}, 8192')
    return toks

PROF = False
PROF_OFF = 29 * MB + 512 * KB
LIGHT = False
def stamp(k, i):
    if not PROF: return
    if LIGHT and i not in (0, 61): return
    k.e('s_memtime s[98:99]'); k.e('s_waitcnt lgkmcnt(0)'); k.e(f'v_writelane_b32 v1, s98, {i}')
def stamp_rt(k, i):
    if not PROF: return
    k.e('s_memrealtime s[98:99]'); k.e('s_waitcnt lgkmcnt(0)'); k.e(f'v_writelane_b32 v1, s98, {i}')
def stamp_begin(k):
    if not PROF: return
    k.e('v_mov_b32 v1, 0')
    stamp_rt(k, 62)
    stamp(k, 0)
def stamp_end(k, kidx, p_ws=40):
    if not PROF: return
    k.e('s_waitcnt vmcnt(0)')
    stamp(k, 61)
    stamp_rt(k, 63)
    lab = k.newlabel('pe')
    k.e('s_cmp_eq_u32 s42, 0'); k.e(f's_cbranch_scc0 {lab}')
    srd(k, 48, p_ws, PROF_OFF + kidx * 131072, 131072)
    k.e('s_lshl_b32 s98, s2, 8')
    k.e('v_mbcnt_lo_u32_b32 v2, -1, 0\nv_mbcnt_hi_u32_b32 v2, -1, v2\nv_lshlrev_b32 v2, 2, v2')
    k.e('buffer_store_dword v1, v2, s[48:51], s98 offen')
    k.label(lab)

DBG = False
DBGWG = 0
def dbg_stamp(k, idx, launch_no, real=True, wg=None, va=100):
    if not DBG: return
    saved = (k.vm_done, k.lg_done)
    lab = k.newlabel('ds')
    k.e(f's_cmp_eq_u32 s2, {DBGWG if wg is None else wg}'); k.e(f's_cbranch_scc0 {lab}')
    k.e('s_cmp_eq_u32 s42, 0'); k.e(f's_cbranch_scc0 {lab}')
    k.e('s_load_dwordx2 s[86:87], s[0:1], 136')
    k.e(('s_memrealtime' if real else 's_memtime') + ' s[98:99]'); k.e('s_waitcnt lgkmcnt(0)')
    k.e(f's_sub_u32 s84, s86, {512*launch_no}\ns_subb_u32 s85, s87, 0\ns_mov_b32 s86, 256\ns_mov_b32 s87, 0x20000')
    k.e(f'v_mov_b32 {v(va)}, s98\nv_mov_b32 {v(va+1)}, {4*idx}')
    k.e(f'buffer_store_dword {v(va)}, {v(va+1)}, s[84:87], 0 offen')
    k.vm_issued -= 1
    k.e('s_waitcnt vmcnt(0)')
    k.label(lab)
    k.vm_done, k.lg_done = saved
```

```python
from common import *
from phaseA import (PRE_TLB, OOB, P_U, P_ARE, P_AIM, P_BRE, P_BIM, P_CRE, P_CIM, P_LDT, P_DSK, P_W1, P_W2, P_W3, P_W4, P_C, P_WMOD,
                    P_OUT, P_DBG, P_WS, S_WAVE, S_ID, load_all_ptrs, wave_id, dma_tile, dma_voffsets, tr_addr, cexp_direct)
SC = ' sc1'
AFL = FLG + 4 * 16384
EPOCH = AFL + 16384
FSH = 6
S_NONCE = 3
CFGAB = dict(wt_w=0, wt_x=0, prio=1, late=0, late_m=0, tlb=1, code=1)

def nonce_fetch(k, vn, vt):
    srd(k, 76, P_DBG, 0, 256)
    k.e(f'v_mov_b32 {v(vt)}, 0')
    return k.vm(f'buffer_load_dword {v(vn)}, {v(vt)}, s[76:79], 0 offen{SC}')

def get_nonce(k, vn, vt):
    lp, lo = k.newlabel('nl'), k.newlabel('no')
    k.e(f'v_readfirstlane_b32 {s(S_NONCE)}, {v(vn)}')
    k.e(f's_cmp_lg_u32 {s(S_NONCE)}, 0'); k.e(f's_cbranch_scc1 {lo}')
    srd(k, 76, P_DBG, 0, 256)
    k.e(f'v_mov_b32 {v(vt)}, 0\ns_mov_b32 s44, 0')
    k.label(lp)
    done = (k.vm_done, k.lg_done)
    k.e(f'buffer_load_dword {v(vn)}, {v(vt)}, s[76:79], 0 offen{SC}'); k.vm_issued -= 1
    k.e('s_waitcnt vmcnt(0)')
    k.e(f'v_readfirstlane_b32 {s(S_NONCE)}, {v(vn)}')
    k.e('s_add_u32 s44, s44, 1\ns_cmp_ge_u32 s44, 0x40000'); k.e(f's_cbranch_scc1 {lo}')
    k.e(f's_cmp_eq_u32 {s(S_NONCE)}, 0'); k.e(f's_cbranch_scc1 {lp}')
    k.label(lo)
    k.vm_done, k.lg_done = done

def publish_job(k, s_idx, vt, vu, vn):
    k.e('s_waitcnt vmcnt(0)'); k.barrier()
    lab = k.newlabel('pj')
    k.e(f's_cmp_eq_u32 {s(S_WAVE)}, 0'); k.e(f's_cbranch_scc0 {lab}')
    get_nonce(k, vn, vt)
    srd(k, 76, P_WS, AFL, 16384)
    k.e(f's_lshl_b32 s44, {s(s_idx)}, {FSH}')
    k.e(f'v_mov_b32 {v(vt)}, {s(S_NONCE)}\nv_and_b32 {v(vu)}, 63, v0\nv_cmp_eq_u32 vcc, 0, {v(vu)}\nv_mov_b32 {v(vu)}, {hex(OOB)}\nv_cndmask_b32 {v(vu)}, {v(vu)}, 0, vcc')
    k.e(f'buffer_store_dword {v(vt)}, {v(vu)}, s[76:79], s44 offen{SC}'); k.vm_issued -= 1
    k.label(lab)

def await_jobs(k, vn, tn, vt, vu, vw, s_blk):
    lab, lp, lo = k.newlabel('aw'), k.newlabel('ap'), k.newlabel('ao')
    k.wait(tn)
    k.e(f's_cmp_eq_u32 {s(S_WAVE)}, 0'); k.e(f's_cbranch_scc0 {lab}')
    get_nonce(k, vn, vt)
    srd(k, 76, P_WS, AFL, 16384)
    k.e(f'v_and_b32 {v(vt)}, 63, v0\nv_lshlrev_b32 {v(vt)}, {FSH}, {v(vt)}')
    k.e(f'v_and_b32 {v(vw)}, 63, v0\nv_min_u32 {v(vw)}, 5, {v(vw)}\nv_and_b32 {v(vu)}, 1, {v(vw)}\nv_lshrrev_b32 {v(vw)}, 1, {v(vw)}\nv_lshlrev_b32 {v(vw)}, 3, {v(vw)}')
    k.e(f'v_add_u32 {v(vw)}, {s(s_blk)}, {v(vw)}\nv_lshl_add_u32 {v(vw)}, {v(vw)}, 1, {v(vu)}\nv_add_u32 {v(vw)}, 128, {v(vw)}\nv_lshlrev_b32 {v(vw)}, {FSH}, {v(vw)}')
    k.e(f's_mov_b32 s44, 0\ns_movk_i32 s45, {64 << FSH}')
    k.label(lp)
    done = (k.vm_done, k.lg_done)
    k.e(f'buffer_load_dword {v(vu)}, {v(vt)}, s[76:79], 0 offen{SC}')
    k.e(f'buffer_load_dword {v(vu+1)}, {v(vt)}, s[76:79], s45 offen{SC}')
    k.e(f'buffer_load_dword {v(vw+1)}, {v(vw)}, s[76:79], 0 offen{SC}')
    k.vm_issued -= 3
    k.e('s_waitcnt vmcnt(0)')
    k.e(f'v_cmp_ne_u32 vcc, {s(S_NONCE)}, {v(vu)}')
    k.e(f'v_cmp_ne_u32 s[80:81], {s(S_NONCE)}, {v(vu+1)}\ns_or_b64 vcc, vcc, s[80:81]')
    k.e(f'v_cmp_ne_u32 s[80:81], {s(S_NONCE)}, {v(vw+1)}\ns_or_b64 vcc, vcc, s[80:81]')
    k.e('s_add_u32 s44, s44, 1\ns_cmp_ge_u32 s44, 0x40000'); k.e(f's_cbranch_scc1 {lo}')
    k.e(f's_cbranch_vccnz {lp}')
    k.label(lo)
    k.vm_done, k.lg_done = done
    k.label(lab)
    k.barrier()

GO = 192
def raise_go(k, vt, vu):
    lab = k.newlabel('go')
    k.e('s_and_b32 s44, s2, 31\ns_cmp_eq_u32 s44, 0'); k.e(f's_cbranch_scc0 {lab}')
    k.e(f's_cmp_eq_u32 {s(S_WAVE)}, 0'); k.e(f's_cbranch_scc0 {lab}')
    srd(k, 76, P_WS, AFL, 16384)
    k.e(f's_movk_i32 s44, {GO << FSH}')
    k.e(f'v_mov_b32 {v(vt)}, {s(S_NONCE)}\nv_and_b32 {v(vu)}, 63, v0\nv_cmp_eq_u32 vcc, 0, {v(vu)}\nv_mov_b32 {v(vu)}, {hex(OOB)}\nv_cndmask_b32 {v(vu)}, {v(vu)}, 0, vcc')
    k.e(f'buffer_store_dword {v(vt)}, {v(vu)}, s[76:79], s44 offen{SC}'); k.vm_issued -= 1
    k.label(lab)
def await_go(k, vt, vu):
    lab, lp, lo = k.newlabel('gw'), k.newlabel('gp'), k.newlabel('gq')
    k.e(f's_cmp_eq_u32 {s(S_WAVE)}, 0'); k.e(f's_cbranch_scc0 {lab}')
    srd(k, 76, P_WS, AFL, 16384)
    k.e(f'v_mov_b32 {v(vt)}, {GO << FSH}\ns_mov_b32 s44, 0')
    k.label(lp)
    done = (k.vm_done, k.lg_done)
    k.e(f'buffer_load_dword {v(vu)}, {v(vt)}, s[76:79], 0 offen{SC}'); k.vm_issued -= 1
    k.e('s_waitcnt vmcnt(0)')
    k.e(f'v_cmp_ne_u32 vcc, {s(S_NONCE)}, {v(vu)}')
    k.e('s_add_u32 s44, s44, 1\ns_cmp_ge_u32 s44, 0x8000'); k.e(f's_cbranch_scc1 {lo}')
    k.e(f's_cbranch_vccnz {lp}')
    k.label(lo)
    k.vm_done, k.lg_done = done
    k.label(lab)
    k.barrier()

def role_W(k):
    S_STR, S_ROW, S_T0, S_T1 = 44, 45, 46, 47
    SRC, DST, CS = 48, 52, 56
    S_FB, S_KB, S_NAT, S_CSF, S_DOFF, S_DSTEP, S_CH, S_HALF, S_NST, S_CSO = 60, 61, 62, 63, 64, 65, 66, 67, 68, 69
    lw1, lw2, lw3, lw4, lgo = [k.newlabel(x) for x in ('w1', 'w2', 'w3', 'w4', 'wgo')]
    k.c('role W : weight shuffle into MFMA A-fragment order')
    k.e(f's_sub_u32 {s(S_ID)}, s2, 256')
    if CFGAB['late']: await_go(k, 2, 3)
    k.e(f's_cmp_ge_u32 {s(S_ID)}, 76'); k.e(f's_cbranch_scc1 {lw4}')
    k.e(f's_cmp_ge_u32 {s(S_ID)}, 32'); k.e(f's_cbranch_scc1 {lw3}')
    k.e(f's_cmp_ge_u32 {s(S_ID)}, 16'); k.e(f's_cbranch_scc1 {lw2}')
    def perm_setup(stride_tiles):
        k.e(f's_lshr_b32 {s(S_T0)}, {s(S_WAVE)}, 1')
        k.e(f's_lshl_b32 {s(S_CH)}, {s(S_T0)}, 2')
        k.e(f's_and_b32 {s(S_HALF)}, {s(S_WAVE)}, 1')
        k.e(f's_lshl_b32 {s(S_HALF)}, {s(S_HALF)}, 3')
        k.e(f's_mov_b32 {s(S_NAT)}, 0')
    for which, lab in ((1, lw1), (2, lw2)):
        k.label(lab)
        if which == 2: k.e(f's_sub_u32 {s(S_ID)}, {s(S_ID)}, 16')
        srd(k, SRC, P_W1 if which == 1 else P_W2, 0, 512 * 1024)
        srd(k, DST, P_WS, W1F if which == 1 else W2F, 512 * 1024)
        srd(k, CS, P_WS, CS1, 4096)
        k.e(f's_lshr_b32 {s(S_FB)}, {s(S_ID)}, 1\ns_and_b32 {s(S_KB)}, {s(S_ID)}, 1')
        k.e(f's_mov_b32 {s(S_STR)}, 1024')
        perm_setup(0)
        k.e(f's_lshl_b32 {s(S_DOFF)}, {s(S_FB)}, 1\ns_add_u32 {s(S_DOFF)}, {s(S_DOFF)}, {s(S_T0)}\ns_lshl_b32 {s(S_DOFF)}, {s(S_DOFF)}, 15')
        k.e(f's_lshl_b32 {s(S_T1)}, {s(S_KB)}, 14\ns_add_u32 {s(S_DOFF)}, {s(S_DOFF)}, {s(S_T1)}')
        k.e(f's_lshl_b32 {s(S_T1)}, {s(S_HALF)}, 7\ns_add_u32 {s(S_DOFF)}, {s(S_DOFF)}, {s(S_T1)}')
        k.e(f's_mov_b32 {s(S_DSTEP)}, 2048\ns_mov_b32 {s(S_NST)}, 8')
        k.e(f's_mov_b32 {s(S_CSF)}, {1 if which == 1 else 0}')
        k.e(f's_lshl_b32 {s(S_CSO)}, {s(S_KB)}, 11\ns_lshl_b32 {s(S_T1)}, {s(S_FB)}, 8\ns_add_u32 {s(S_CSO)}, {s(S_CSO)}, {s(S_T1)}')
        k.e(f's_lshl_b32 {s(S_T1)}, {s(S_T0)}, 7\ns_add_u32 {s(S_CSO)}, {s(S_CSO)}, {s(S_T1)}')
        k.e(f's_lshl_b32 {s(S_T1)}, {s(S_HALF)}, 1\ns_add_u32 {s(S_CSO)}, {s(S_CSO)}, {s(S_T1)}')
        k.e(f's_branch {lgo}')
    k.label(lw3)
    k.e(f's_sub_u32 {s(S_ID)}, {s(S_ID)}, 32')
    srd(k, SRC, P_W3, 0, 512 * 2752)
    srd(k, DST, P_WS, W3F, W3F_BYTES)
    srd(k, CS, P_WS, CS3, 2 * 1408 * 4)
    k.e(f's_lshr_b32 {s(S_FB)}, {s(S_ID)}, 1\ns_and_b32 {s(S_KB)}, {s(S_ID)}, 1')
    k.e(f's_mov_b32 {s(S_STR)}, 2752')
    k.e(f's_lshl_b32 {s(S_CH)}, {s(S_WAVE)}, 1\ns_mov_b32 {s(S_HALF)}, 0\ns_mov_b32 {s(S_NAT)}, 1')
    k.e(f's_lshl_b32 {s(S_DOFF)}, {s(S_FB)}, 2\ns_add_u32 {s(S_DOFF)}, {s(S_DOFF)}, {s(S_WAVE)}')
    k.e(f's_lshl_b32 {s(S_T0)}, {s(S_DOFF)}, 6')
    k.e(f's_lshl_b32 {s(S_DOFF)}, {s(S_DOFF)}, 14')
    k.e(f's_lshl_b32 {s(S_T1)}, {s(S_KB)}, 13\ns_add_u32 {s(S_DOFF)}, {s(S_DOFF)}, {s(S_T1)}')
    k.e(f's_mov_b32 {s(S_DSTEP)}, 1024\ns_mov_b32 {s(S_NST)}, 8\ns_mov_b32 {s(S_CSF)}, 2')
    k.e(f's_mul_i32 {s(S_CSO)}, {s(S_KB)}, {1408*4}\ns_add_u32 {s(S_CSO)}, {s(S_CSO)}, {s(S_T0)}')
    k.e(f's_branch {lgo}')
    k.label(lw4)
    k.e(f's_sub_u32 {s(S_ID)}, {s(S_ID)}, 76')
    srd(k, SRC, P_W4, 0, 1376 * 1024)
    srd(k, DST, P_WS, W4F, W4F_BYTES)
    srd(k, CS, P_WS, CS1, 4096)
    k.e(f's_mul_i32 {s(S_FB)}, {s(S_ID)}, 43\ns_lshr_b32 {s(S_FB)}, {s(S_FB)}, 8')
    k.e(f's_mul_i32 {s(S_T0)}, {s(S_FB)}, 6\ns_sub_u32 {s(S_KB)}, {s(S_ID)}, {s(S_T0)}')
    k.e(f's_mov_b32 {s(S_STR)}, 1024')
    perm_setup(0)
    k.e(f's_mul_i32 {s(S_DOFF)}, {s(S_FB)}, 176128')
    k.e(f's_lshl_b32 {s(S_T1)}, {s(S_KB)}, 15\ns_add_u32 {s(S_DOFF)}, {s(S_DOFF)}, {s(S_T1)}')
    k.e(f's_lshl_b32 {s(S_T1)}, {s(S_WAVE)}, 10\ns_add_u32 {s(S_DOFF)}, {s(S_DOFF)}, {s(S_T1)}')
    k.e(f's_lshl_b32 {s(S_T1)}, {s(S_KB)}, 3\ns_sub_u32 {s(S_NST)}, 43, {s(S_T1)}')
    k.e(f's_mov_b32 {s(S_DSTEP)}, 4096\ns_mov_b32 {s(S_CSF)}, 0\ns_mov_b32 {s(S_CSO)}, 0')
    k.label(lgo)
    k.e(f's_lshl_b32 {s(S_T0)}, {s(S_KB)}, 8\ns_lshl_b32 {s(S_T1)}, {s(S_WAVE)}, 6\ns_add_u32 {s(S_T0)}, {s(S_T0)}, {s(S_T1)}')
    k.e(f's_mul_i32 {s(S_ROW)}, {s(S_T0)}, {s(S_STR)}\ns_lshl_b32 {s(S_T1)}, {s(S_FB)}, 7\ns_add_u32 {s(S_ROW)}, {s(S_ROW)}, {s(S_T1)}')
    VA, VB, VT, VU, VR = 2, 3, 4, 5, 6
    dma_voffsets(k, S_STR, VA, VB, VT)
    dma_tile(k, SRC, S_STR, S_ROW, 0, VA, VB, S_T0)
    lnat, ljoin = k.newlabel('nat'), k.newlabel('trj')
    k.e(f's_cmp_eq_u32 {s(S_NAT)}, 1'); k.e(f's_cbranch_scc1 {lnat}')
    tr_addr(k, VR, VT, VU, S_CH, S_HALF, False)
    k.e(f's_branch {ljoin}')
    k.label(lnat)
    tr_addr(k, VR, VT, VU, S_CH, S_HALF, True)
    k.label(ljoin)
    VO = 8; ONES = 12; ACC = 16; FR = 20
    k.e(f'v_and_b32 {v(VO)}, 63, v0\nv_lshlrev_b32 {v(VO)}, 4, {v(VO)}')
    for i in range(4): k.e(f'v_mov_b32 {v(ONES+i)}, 0x3f803f80')
    for i in range(4): k.e(f'v_mov_b32 {v(ACC+i)}, 0')
    stamp(k, 1)
    k.wait_vm0(); k.e('s_barrier')
    stamp(k, 2)
    toks = []
    for st in range(8):
        k.ds(f'ds_read_b64_tr_b16 {v(FR+4*st,2)}, {v(VR)} offset:{4096*st}')
        toks.append(k.ds(f'ds_read_b64_tr_b16 {v(FR+4*st+2,2)}, {v(VR)} offset:{4096*st+512}'))
    for st in range(8):
        k.wait(toks[st])
        k.e(f's_cmp_gt_u32 {s(S_NST)}, {st}')
        k.e(f's_cselect_b32 {s(S_T0)}, {s(S_DOFF)}, {hex(OOB)}')
        k.vm(f'buffer_store_dwordx4 {v(FR+4*st,4)}, {v(VO)}, {s(DST,4)}, {s(S_T0)} offen' + (SC if CFGAB['wt_w'] else ''))
        k.e(f's_add_u32 {s(S_DOFF)}, {s(S_DOFF)}, {s(S_DSTEP)}')
        mfma16(k, v(ACC,4), v(FR+4*st,4), v(ONES,4))
    ldone = k.newlabel('wdone')
    k.e(f's_cmp_eq_u32 {s(S_CSF)}, 0'); k.e(f's_cbranch_scc1 {ldone}')
    k.e(f'v_and_b32 {v(VT)}, 63, v0\nv_lshrrev_b32 {v(VU)}, 4, {v(VT)}')
    k.e(f's_cmp_eq_u32 {s(S_CSF)}, 1\ns_cselect_b32 {s(S_T0)}, 5, 4')
    k.e(f'v_lshlrev_b32 {v(VU)}, {s(S_T0)}, {v(VU)}')
    k.e(f'v_and_b32 {v(VT)}, 15, {v(VT)}\nv_cmp_eq_u32 vcc, 0, {v(VT)}')
    k.e(f'v_mov_b32 {v(VT)}, {hex(OOB)}\nv_cndmask_b32 {v(VU)}, {v(VT)}, {v(VU)}, vcc')
    k.vm(f'buffer_store_dwordx4 {v(ACC,4)}, {v(VU)}, {s(CS,4)}, {s(S_CSO)} offen')
    k.label(ldone)
    stamp_end(k, 0)
    k.e('s_endpgm')

def role_M(k):
    S_STR, S_ROW, S_T0, S_T1 = 44, 45, 46, 47
    SRC, CSRD, DST = 48, 52, 56
    S_CH, S_HALF, S_SEG, S_JB, S_KH = 60, 61, 62, 63, 64
    k.c('role M : mod = silu(c) @ w_mod ; first the K halves of the three vectors the convolution needs, then the other three')
    if CFGAB['prio']: k.e('s_setprio 3')
    lfull = k.newlabel('mfull'); lset = k.newlabel('mset')
    k.e(f's_sub_u32 {s(S_ID)}, s2, {256+128}\ns_lshr_b32 {s(S_JB)}, {s(S_ID)}, 1\ns_and_b32 {s(S_KH)}, {s(S_ID)}, 1')
    k.e(f's_cmp_ge_u32 {s(S_ID)}, 48'); k.e(f's_cbranch_scc0 {lset}')
    k.e(f's_sub_u32 {s(S_JB)}, {s(S_ID)}, 24\ns_mov_b32 {s(S_KH)}, 2')
    k.label(lset)
    srd(k, SRC, P_WMOD, 0, 512 * 6144)
    srd(k, CSRD, P_C, 0, 1024)
    k.e(f's_mov_b32 {s(S_STR)}, 6144')
    VA, VB, VT, VU, VR = 2, 3, 4, 5, 6
    VC = 8; VN = 110
    k.e(f'v_lshlrev_b32 {v(VT)}, 2, v0')
    tc = k.vm(f'buffer_load_dword {v(VC)}, {v(VT)}, {s(CSRD,4)}, 0 offen')
    dma_voffsets(k, S_STR, VA, VB, VT)
    def stage(kb_sgpr_or_int, lds):
        if isinstance(kb_sgpr_or_int, int): k.e(f's_lshl_b32 {s(S_T0)}, {s(S_WAVE)}, 6\ns_add_u32 {s(S_T0)}, {s(S_T0)}, {256*kb_sgpr_or_int}')
        else: k.e(f's_lshl_b32 {s(S_T0)}, {s(S_WAVE)}, 6\ns_lshl_b32 {s(S_T1)}, {kb_sgpr_or_int}, 8\ns_add_u32 {s(S_T0)}, {s(S_T0)}, {s(S_T1)}')
        k.e(f's_mul_i32 {s(S_ROW)}, {s(S_T0)}, {s(S_STR)}\ns_lshl_b32 {s(S_T1)}, {s(S_JB)}, 7\ns_add_u32 {s(S_ROW)}, {s(S_ROW)}, {s(S_T1)}')
        dma_tile(k, SRC, S_STR, S_ROW, lds, VA, VB, S_T0)
    lst1, lst2 = k.newlabel('ms1'), k.newlabel('ms2')
    k.e(f's_cmp_eq_u32 {s(S_KH)}, 2'); k.e(f's_cbranch_scc1 {lst1}')
    stage(s(S_KH), 0)
    k.e(f's_branch {lst2}')
    k.label(lst1)
    stage(0, 0); stage(1, 32768)
    k.label(lst2)
    k.e(f's_lshl_b32 {s(S_CH)}, {s(S_WAVE)}, 1\ns_mov_b32 {s(S_HALF)}, 0')
    tr_addr(k, VR, VT, VU, S_CH, S_HALF, True)
    k.e('s_waitcnt vmcnt(8)')
    X0, X1, E0, E1 = 10, 11, 12, 13
    k.e(f'v_lshlrev_b32 {v(X0)}, 16, {v(VC)}\nv_and_b32 {v(X1)}, 0xffff0000, {v(VC)}')
    k.e(f'v_mul_f32 {v(E0)}, {hexf(-LOG2E)}, {v(X0)}\nv_mul_f32 {v(E1)}, {hexf(-LOG2E)}, {v(X1)}')
    k.e(f'v_exp_f32 {v(E0)}, {v(E0)}\nv_exp_f32 {v(E1)}, {v(E1)}')
    k.e(f'v_add_f32 {v(E0)}, 1.0, {v(E0)}\nv_add_f32 {v(E1)}, 1.0, {v(E1)}')
    k.e(f'v_rcp_f32 {v(E0)}, {v(E0)}\nv_rcp_f32 {v(E1)}, {v(E1)}')
    k.e(f'v_mul_f32 {v(X0)}, {v(X0)}, {v(E0)}\nv_mul_f32 {v(X1)}, {v(X1)}, {v(E1)}')
    k.e(f'v_cvt_pk_bf16_f32 {v(X0)}, {v(X0)}, {v(X1)}')
    k.e(f'v_lshlrev_b32 {v(VT)}, 2, v0\nv_add_u32 {v(VT)}, 0x10000, {v(VT)}')
    k.ds(f'ds_write_b32 {v(VT)}, {v(X0)}')
    VS, VS2 = 14, 15
    k.e(f'v_and_b32 {v(VS)}, 63, v0\nv_lshrrev_b32 {v(VS)}, 4, {v(VS)}\nv_lshlrev_b32 {v(VS)}, 4, {v(VS)}\nv_add_u32 {v(VS)}, 0x10000, {v(VS)}')
    k.e(f's_lshl_b32 {s(S_T0)}, {s(S_KH)}, 9\nv_add_u32 {v(VS2)}, {s(S_T0)}, {v(VS)}')
    ACC = 16; FR = 20; BF = 52
    def gemv(tiles, vs):
        for i in range(4): k.e(f'v_mov_b32 {v(ACC+i)}, 0')
        for n, lds in enumerate(tiles):
            toks = []
            for st in range(8):
                k.ds(f'ds_read_b64_tr_b16 {v(FR+4*st,2)}, {v(VR)} offset:{lds + 4096*st}')
                k.ds(f'ds_read_b64_tr_b16 {v(FR+4*st+2,2)}, {v(VR)} offset:{lds + 4096*st+512}')
                toks.append(k.ds(f'ds_read_b128 {v(BF+4*st,4)}, {v(vs)} offset:{64*(8*n+st)}'))
            for st in range(8):
                k.wait(toks[st])
                mfma16(k, v(ACC,4), v(FR+4*st,4), v(BF+4*st,4))
    def out_offset():
        k.e(f'v_and_b32 {v(VT)}, 63, v0\nv_lshrrev_b32 {v(VU)}, 4, {v(VT)}\nv_lshlrev_b32 {v(VU)}, 4, {v(VU)}')
        k.e(f'v_and_b32 {v(VT)}, 15, {v(VT)}\nv_cmp_eq_u32 vcc, 0, {v(VT)}')
        k.e(f'v_mov_b32 {v(VT)}, {hex(OOB)}\nv_cndmask_b32 {v(VU)}, {v(VT)}, {v(VU)}, vcc')
        k.e(f's_lshl_b32 {s(S_T0)}, {s(S_JB)}, 8\ns_lshl_b32 {s(S_T1)}, {s(S_WAVE)}, 6\ns_add_u32 {s(S_T0)}, {s(S_T0)}, {s(S_T1)}')
    stamp(k, 1)
    k.e('s_waitcnt vmcnt(0) lgkmcnt(0)'); k.e('s_barrier')
    stamp(k, 2)
    k.e(f's_cmp_eq_u32 {s(S_KH)}, 2'); k.e(f's_cbranch_scc1 {lfull}')
    nonce_fetch(k, VN, VT)
    gemv([0], VS2)
    srd(k, DST, P_WS, MODP, 2 * 1536 * 4)
    out_offset()
    k.e(f's_mul_i32 {s(S_T1)}, {s(S_KH)}, {1536*4}\ns_add_u32 {s(S_T0)}, {s(S_T0)}, {s(S_T1)}')
    k.vm(f'buffer_store_dwordx4 {v(ACC,4)}, {v(VU)}, {s(DST,4)}, {s(S_T0)} offen{SC}')
    k.e(f's_add_u32 {s(S_SEG)}, {s(S_ID)}, 128')
    publish_job(k, S_SEG, 102, 103, VN)
    stamp(k, 3)
    lend = k.newlabel('mend')
    k.e(f's_branch {lend}')
    k.label(lfull)
    k.vm_done = k.vm_issued; k.lg_done = k.lg_issued
    gemv([0, 32768], VS)
    k.e(f's_lshr_b32 {s(S_SEG)}, {s(S_JB)}, 3')
    def rnd():
        k.e(f'v_cvt_pk_bf16_f32 {v(FR)}, {v(ACC)}, {v(ACC+1)}\nv_cvt_pk_bf16_f32 {v(FR+1)}, {v(ACC+2)}, {v(ACC+3)}')
        k.e(f'v_lshlrev_b32 {v(ACC)}, 16, {v(FR)}\nv_and_b32 {v(ACC+1)}, 0xffff0000, {v(FR)}')
        k.e(f'v_lshlrev_b32 {v(ACC+2)}, 16, {v(FR+1)}\nv_and_b32 {v(ACC+3)}, 0xffff0000, {v(FR+1)}')
    rnd()
    lst = k.newlabel('mst')
    k.e(f's_cmp_eq_u32 {s(S_SEG)}, 4'); k.e(f's_cbranch_scc0 {lst}')
    for i in range(4): k.e(f'v_add_f32 {v(ACC+i)}, 1.0, {v(ACC+i)}')
    rnd()
    k.label(lst)
    srd(k, DST, P_WS, MOD, 3072 * 4)
    out_offset()
    k.vm(f'buffer_store_dwordx4 {v(ACC,4)}, {v(VU)}, {s(DST,4)}, {s(S_T0)} offen')
    k.label(lend)
    stamp_end(k, 0)
    k.e('s_endpgm')

def role_X(k, lw):
    S_T0, S_T1, S_R0 = 44, 45, 46
    SRC, DXT, DXN = 48, 52, 56
    k.c('role X : LN statistics of 16 rows of x, writes x^T and LN(x)^T')
    if CFGAB['prio']: k.e('s_setprio 3')
    srd(k, SRC, P_U, 0, 2 * MB)
    srd(k, DXT, P_WS, XTB, 128 * XBS16)
    srd(k, DXN, P_WS, XNB, 128 * XBS16)
    k.e(f's_sub_u32 {s(S_ID)}, s2, 256\ns_lshl_b32 {s(S_R0)}, {s(S_ID)}, 4')
    VL, VO, VT, VW = 2, 3, 4, 5
    X = 8
    k.e(f'v_and_b32 {v(VL)}, 63, v0\nv_lshrrev_b32 {v(VT)}, 4, {v(VL)}')
    k.e(f's_lshl_b32 {s(S_T0)}, {s(S_WAVE)}, 2\nv_add_u32 {v(VW)}, {s(S_T0)}, {v(VT)}')
    k.e(f'v_add_u32 {v(VT)}, {s(S_R0)}, {v(VW)}\nv_lshlrev_b32 {v(VO)}, 10, {v(VT)}')
    k.e(f'v_and_b32 {v(VT)}, 15, {v(VL)}\nv_lshl_add_u32 {v(VO)}, {v(VT)}, 4, {v(VO)}')
    toks = [k.vm(f'buffer_load_dwordx4 {v(X+4*j,4)}, {v(VO)}, {s(SRC,4)}, 0 offen offset:{256*j}') for j in range(4)]
    VA = 6; VST = 7
    k.e(f'v_mul_u32_u24 {v(VA)}, 1056, {v(VW)}\nv_lshlrev_b32 {v(VST)}, 2, {v(VW)}')
    k.e(f'v_and_b32 {v(VW)}, 8, {v(VW)}\nv_add_u32 {v(VT)}, {v(VT)}, {v(VW)}\nv_lshl_add_u32 {v(VA)}, {v(VT)}, 4, {v(VA)}')
    S1, S2, S3, S4, ONE = 40, 41, 42, 43, 44
    VN = 110
    k.e(f'v_mov_b32 {v(ONE)}, 0x3f803f80')
    for r in (S1, S2, S3, S4): k.e(f'v_mov_b32 {v(r)}, 0')
    stamp(k, 1)
    for j in range(4):
        k.wait(toks[j])
        if j == 0: stamp(k, 2)
        for i in range(4):
            k.e(f'v_dot2_f32_bf16 {v(S1 + (i&1))}, {v(X+4*j+i)}, {v(ONE)}, {v(S1 + (i&1))}')
            k.e(f'v_dot2_f32_bf16 {v(S3 + (i&1))}, {v(X+4*j+i)}, {v(X+4*j+i)}, {v(S3 + (i&1))}')
        k.ds(f'ds_write_b128 {v(VA)}, {v(X+4*j,4)} offset:{256*j}')
    nonce_fetch(k, VN, VT)
    k.e(f'v_add_f32 {v(S1)}, {v(S1)}, {v(S2)}\nv_add_f32 {v(S3)}, {v(S3)}, {v(S4)}')
    for m in ('quad_perm:[1,0,3,2]', 'quad_perm:[2,3,0,1]', 'row_half_mirror', 'row_mirror'):
        k.e(f'v_add_f32_dpp {v(S1)}, {v(S1)}, {v(S1)} {m} row_mask:0xf bank_mask:0xf')
        k.e(f'v_add_f32_dpp {v(S3)}, {v(S3)}, {v(S3)} {m} row_mask:0xf bank_mask:0xf')
    k.e(f'v_mul_f32 {v(S1)}, {hexf(1/512)}, {v(S1)}')
    k.e(f'v_mul_f32 {v(S2)}, {v(S1)}, {v(S1)}')
    k.e(f'v_mov_b32 {v(S4)}, {hexf(1/512)}')
    k.e(f'v_fma_f32 {v(S3)}, {v(S3)}, {v(S4)}, -{v(S2)}')
    k.e(f'v_max_f32 {v(S3)}, 0, {v(S3)}\nv_add_f32 {v(S3)}, {hexf(1e-5)}, {v(S3)}')
    k.e(f'v_rsq_f32 {v(S3)}, {v(S3)}')
    k.e(f'v_mul_f32 {v(S1)}, {v(S1)}, {v(S3)}\nv_sub_f32 {v(S1)}, 0, {v(S1)}')
    STAT = 17408
    k.ds(f'ds_write_b32 {v(VST)}, {v(S3)} offset:{STAT}')
    k.ds(f'ds_write_b32 {v(VST)}, {v(S1)} offset:{STAT+128}')
    k.barrier()
    stamp(k, 3)
    RS, NMR = 48, 56
    k.e(f'v_bfe_u32 {v(VT)}, {v(VL)}, 4, 1\nv_lshlrev_b32 {v(VW)}, 5, {v(VT)}')
    k.ds(f'ds_read_b128 {v(RS,4)}, {v(VW)} offset:{STAT}')
    k.ds(f'ds_read_b128 {v(RS+4,4)}, {v(VW)} offset:{STAT+16}')
    k.ds(f'ds_read_b128 {v(NMR,4)}, {v(VW)} offset:{STAT+128}')
    t2 = k.ds(f'ds_read_b128 {v(NMR+4,4)}, {v(VW)} offset:{STAT+144}')
    VR = 6
    k.e(f'v_bfe_u32 {v(VW)}, {v(VL)}, 2, 2\nv_lshl_add_u32 {v(VW)}, {v(VT)}, 3, {v(VW)}')
    k.e(f'v_mul_u32_u24 {v(VR)}, 1056, {v(VW)}\nv_lshl_add_u32 {v(VR)}, {v(VT)}, 7, {v(VR)}')
    k.e(f'v_and_b32 {v(VW)}, 3, {v(VL)}\nv_lshl_add_u32 {v(VR)}, {v(VW)}, 3, {v(VR)}')
    k.e(f'v_lshrrev_b32 {v(VW)}, 5, {v(VL)}\nv_lshl_add_u32 {v(VR)}, {v(VW)}, 5, {v(VR)}')
    k.e(f's_lshl_b32 {s(S_T0)}, {s(S_WAVE)}, 8\nv_add_u32 {v(VR)}, {s(S_T0)}, {v(VR)}')
    k.e(f'v_and_b32 {v(VO)}, 15, {v(VL)}\nv_lshl_add_u32 {v(VO)}, {v(VW)}, 4, {v(VO)}\ns_lshl_b32 {s(S_T0)}, {s(S_WAVE)}, 7\nv_add_u32 {v(VO)}, {s(S_T0)}, {v(VO)}')
    k.e(f'v_lshlrev_b32 {v(VO)}, 5, {v(VO)}\nv_lshl_add_u32 {v(VO)}, {v(VT)}, 4, {v(VO)}')
    k.e(f's_mul_i32 {s(S_T1)}, {s(S_ID)}, {XBS16}')
    FR = 8; U = 64; O = 72
    toks = []
    for u in range(4):
        k.ds(f'ds_read_b64_tr_b16 {v(FR+4*u,2)}, {v(VR)} offset:{64*u}')
        toks.append(k.ds(f'ds_read_b64_tr_b16 {v(FR+4*u+2,2)}, {v(VR)} offset:{64*u + 4*1056}'))
    k.wait(t2)
    for u in range(4):
        k.wait(toks[u])
        for i in range(4):
            k.e(f'v_lshlrev_b32 {v(U+2*i)}, 16, {v(FR+4*u+i)}\nv_and_b32 {v(U+2*i+1)}, 0xffff0000, {v(FR+4*u+i)}')
        for i in range(4):
            k.e(f'v_pk_fma_f32 {v(U+2*i,2)}, {v(U+2*i,2)}, {v(RS+2*i,2)}, {v(NMR+2*i,2)}')
        oo = O + 4 * (u & 1)
        for i in range(4):
            k.e(f'v_cvt_pk_bf16_f32 {v(oo+i)}, {v(U+2*i)}, {v(U+2*i+1)}')
        k.vm(f'buffer_store_dwordx4 {v(oo,4)}, {v(VO)}, {s(DXN,4)}, {s(S_T1)} offen{SC}')
        k.vm(f'buffer_store_dwordx4 {v(FR+4*u,4)}, {v(VO)}, {s(DXT,4)}, {s(S_T1)} offen{SC}')
        k.e(f's_add_u32 {s(S_T1)}, {s(S_T1)}, 1024')
    stamp(k, 4)
    publish_job(k, S_ID, 102, 103, VN)
    if CFGAB['prio']: k.e('s_setprio 0')
    stamp(k, 5)
    lend = k.newlabel('xend')
    k.e(f's_cmp_lt_u32 {s(S_ID)}, 124'); k.e(f's_cbranch_scc1 {lw}')
    stamp_end(k, 0)
    k.e('s_endpgm')

KC0 = 0; KCS = 4160; KCH = 4 * KCS
HP0 = 2 * KCH; HPS = 4608
RED = HP0 + 2 * HPS
XP0 = RED + 4 * 4096

def conv_part(k, tnonce, wg='s2'):
    S_T0, S_T1, S_D, S_P, S_CH = 44, 45, 46, 47, 60
    SK, SXN, SXT, SMOD, SDS, SO = 48, 52, 56, 64, 68, 72
    k.c('phase B : causal convolution of two channels')
    srd(k, SXN, P_WS, XNB, 128 * XBS16)
    srd(k, SXT, P_WS, XTB, 128 * XBS16)
    srd(k, SMOD, P_WS, MODP, 2 * 1536 * 4)
    srd(k, SDS, P_DSK, 0, 1024)
    srd(k, SO, P_WS, X2B, 64 * XBS)
    k.e(f's_lshr_b32 {s(S_CH)}, {s(S_WAVE)}, 1\ns_and_b32 {s(S_P)}, {s(S_WAVE)}, 1')
    k.e(f's_lshl_b32 {s(S_D)}, {wg}, 1\ns_add_u32 {s(S_D)}, {s(S_D)}, {s(S_CH)}')
    VL, VC, VT, VU = 2, 3, 4, 5
    k.e(f'v_and_b32 {v(VL)}, 63, v0')
    k.e(f's_lshl_b32 {s(S_T0)}, {s(S_P)}, 11\nv_lshl_add_u32 {v(VC)}, {v(VL)}, 4, {s(S_T0)}')
    SA, C1, GA, DS = 40, 42, 44, 46
    k.e(f's_lshl_b32 {s(S_T0)}, {s(S_D)}, 1\nv_mov_b32 {v(VU)}, {s(S_T0)}')
    td = k.vm(f'buffer_load_ushort {v(DS)}, {v(VU)}, {s(SDS,4)}, 0 offen')
    VE = 6; XE = 48
    k.e(f'v_and_b32 {v(VT)}, 15, {v(VL)}\nv_lshrrev_b32 {v(VU)}, 4, {v(VL)}')
    k.e(f'v_lshlrev_b32 {v(VE)}, 5, {v(VT)}\nv_lshl_add_u32 {v(VE)}, {v(VU)}, 3, {v(VE)}')
    k.e(f's_lshl_b32 {s(S_T0)}, {s(S_P)}, 11\nv_add_u32 {v(VE)}, {s(S_T0)}, {v(VE)}')
    VKW, VHW, VTA, VHA, VHE = 56, 57, 58, 59, 60
    k.e(f's_mul_i32 {s(S_T0)}, {s(S_CH)}, {KCH}\nv_add_u32 {v(VKW)}, {s(S_T0)}, {v(VC)}')
    k.e(f's_mul_i32 {s(61)}, {s(S_CH)}, {HPS}\ns_add_u32 {s(61)}, {s(61)}, {HP0}')
    k.e(f'v_add_u32 {v(VHW)}, {s(61)}, {v(VC)}')
    k.e(f'v_sub_u32 {v(VTA)}, 3, {v(VT)}\nv_and_b32 {v(VTA)}, 3, {v(VTA)}\nv_mul_u32_u24 {v(VTA)}, {KCS}, {v(VTA)}')
    k.e(f'v_lshrrev_b32 {v(VHA)}, 2, {v(VT)}\nv_lshlrev_b32 {v(VHA)}, 3, {v(VHA)}\nv_sub_u32 {v(VTA)}, {v(VTA)}, {v(VHA)}')
    k.e(f'v_lshl_add_u32 {v(VTA)}, {v(VU)}, 4, {v(VTA)}')
    k.e(f's_lshl_b32 {s(S_T1)}, {s(S_P)}, 6\ns_sub_u32 {s(S_T1)}, 88, {s(S_T1)}\ns_add_u32 {s(S_T0)}, {s(S_T0)}, {s(S_T1)}')
    k.e(f'v_add_u32 {v(VTA)}, {s(S_T0)}, {v(VTA)}')
    k.e(f'v_lshlrev_b32 {v(VHA)}, 5, {v(VT)}\nv_lshl_add_u32 {v(VHA)}, {v(VU)}, 4, {v(VHA)}')
    k.e(f's_lshl_b32 {s(S_T1)}, {s(S_P)}, 6\ns_sub_u32 {s(S_T1)}, 64, {s(S_T1)}\ns_add_u32 {s(S_T1)}, {s(S_T1)}, {s(61)}')
    k.e(f'v_add_u32 {v(VHA)}, {s(S_T1)}, {v(VHA)}')
    k.e(f'v_add_u32 {v(VHE)}, {s(61)}, {v(VE)}')
    Z = 64
    for i in range(4): k.e(f'v_mov_b32 {v(Z+i)}, 0')
    lz1, lz2 = k.newlabel('z1'), k.newlabel('z2')
    k.e(f's_cmp_eq_u32 {s(S_P)}, 0'); k.e(f's_cbranch_scc0 {lz1}')
    k.e(f'v_lshrrev_b32 {v(Z+4)}, 1, {v(VL)}\nv_mul_u32_u24 {v(Z+4)}, {KCS}, {v(Z+4)}\nv_and_b32 {v(Z+5)}, 1, {v(VL)}\nv_lshl_add_u32 {v(Z+4)}, {v(Z+5)}, 4, {v(Z+4)}')
    k.e(f's_mul_i32 {s(S_T0)}, {s(S_CH)}, {KCH}\nv_add_u32 {v(Z+4)}, {s(S_T0)}, {v(Z+4)}')
    k.e('s_mov_b64 exec, 0xff')
    k.ds(f'ds_write_b128 {v(Z+4)}, {v(Z,4)} offset:4096')
    k.e('s_mov_b64 exec, -1')
    k.e(f's_branch {lz2}')
    k.label(lz1)
    k.e(f'v_lshlrev_b32 {v(Z+4)}, 4, {v(VL)}\nv_add_u32 {v(Z+4)}, {s(61)}, {v(Z+4)}')
    k.e('s_mov_b64 exec, 0x3fffffff')
    k.ds(f'ds_write_b128 {v(Z+4)}, {v(Z,4)}')
    k.e('s_mov_b64 exec, -1')
    k.label(lz2)
    VG, VXO, VXI = 61, 62, 63
    k.e(f'v_lshrrev_b32 {v(VG)}, 2, {v(VL)}\ns_lshl_b32 {s(S_T0)}, {s(S_WAVE)}, 5\nv_add_u32 {v(VG)}, {s(S_T0)}, {v(VG)}')
    k.e(f'v_and_b32 {v(Z)}, 1, {v(VL)}\nv_lshl_add_u32 {v(VXI)}, {v(VG)}, 1, {v(Z)}\nv_lshlrev_b32 {v(VXI)}, 4, {v(VXI)}')
    k.e(f'v_bfe_u32 {v(Z)}, {v(VL)}, 1, 1\nv_mul_u32_u24 {v(VHW)}, {HPS}, {v(Z)}\nv_add_u32 {v(VHW)}, {HP0}, {v(VHW)}\nv_add_u32 {v(VHW)}, {v(VXI)}, {v(VHW)}')
    k.e(f'v_lshl_add_u32 {v(VXI)}, {v(Z)}, 12, {v(VXI)}\nv_add_u32 {v(VXI)}, {XP0}, {v(VXI)}')
    k.e(f'v_mul_u32_u24 {v(VG)}, {XBS16}, {v(VG)}\nv_and_b32 {v(Z+1)}, 3, {v(VL)}\nv_lshl_add_u32 {v(VG)}, {v(Z+1)}, 4, {v(VG)}')
    VM = 65
    k.e(f's_lshl_b32 {s(S_T0)}, {wg}, 3\nv_lshl_add_u32 {v(VM)}, {v(Z)}, 2, {s(S_T0)}')
    VM2 = 66
    k.e(f's_lshl_b32 {s(S_T0)}, {s(S_D)}, 2\nv_mov_b32 {v(VM2)}, {s(S_T0)}')
    VXE = 67
    k.e(f's_lshl_b32 {s(S_T0)}, {s(S_CH)}, 12\ns_add_u32 {s(S_T0)}, {s(S_T0)}, {XP0}\nv_add_u32 {v(VXE)}, {s(S_T0)}, {v(VE)}')
    k.e(f'v_and_b32 {v(VXO)}, 15, {v(VL)}\nv_lshrrev_b32 {v(VXO)}, 1, {v(VXO)}\ns_lshl_b32 {s(S_T0)}, {s(S_P)}, 5\nv_add_u32 {v(VXO)}, {s(S_T0)}, {v(VXO)}\nv_mul_u32_u24 {v(VXO)}, {XBS}, {v(VXO)}')
    k.e(f'v_and_b32 {v(Z)}, 1, {v(VL)}\nv_lshl_add_u32 {v(VXO)}, {v(Z)}, 5, {v(VXO)}\nv_lshrrev_b32 {v(Z)}, 4, {v(VL)}\nv_lshl_add_u32 {v(VXO)}, {v(Z)}, 3, {v(VXO)}')
    k.e(f's_lshr_b32 s63, {wg}, 5')
    stamp(k, 6)
    await_jobs(k, 127, tnonce, 7, 8, 10, 63)
    stamp(k, 7)
    XN = 32; XR = 48
    k.e(f's_lshl_b32 {s(S_T1)}, {wg}, 6\ns_add_u32 s62, {s(S_T1)}, {16*XBS16}')
    tx = [k.vm(f'buffer_load_dwordx4 {v(XN+4*i,4)}, {v(VG)}, {s(SXN,4)}, {s(S_T1) if i == 0 else "s62"} offen{SC}') for i in range(2)]
    MP = 16
    k.e(f'v_add_u32 {v(VU)}, {1536*4}, {v(VM)}')
    for kh, vv in ((0, VM), (1, VU)):
        k.vm(f'buffer_load_dword {v(MP+2*kh)}, {v(vv)}, {s(SMOD,4)}, 0 offen{SC}')
        tm = k.vm(f'buffer_load_dword {v(MP+2*kh+1)}, {v(vv)}, {s(SMOD,4)}, 0 offen offset:2048{SC}')
    k.e(f'v_add_u32 {v(VM2)}, 4096, {v(VM2)}\nv_add_u32 {v(VU)}, {1536*4}, {v(VM2)}')
    MG = 68
    k.vm(f'buffer_load_dword {v(MG)}, {v(VM2)}, {s(SMOD,4)}, 0 offen{SC}')
    tg = k.vm(f'buffer_load_dword {v(MG+1)}, {v(VU)}, {s(SMOD,4)}, 0 offen{SC}')
    te = [k.vm(f'buffer_load_dwordx4 {v(XR+4*i,4)}, {v(VG)}, {s(SXT,4)}, {s(S_T1) if i == 0 else "s62"} offen{SC}') for i in range(2)]
    U = 72; O = 88
    if CFGAB['late'] == 1: raise_go(k, 7, 8)
    k.wait(tm, tx[1])
    stamp(k, 8)
    k.e(f'v_add_f32 {v(MP)}, {v(MP)}, {v(MP+2)}\nv_add_f32 {v(MP+1)}, {v(MP+1)}, {v(MP+3)}')
    k.e(f'v_cvt_pk_bf16_f32 {v(MP)}, {v(MP)}, {v(MP+1)}')
    k.e(f'v_lshlrev_b32 {v(SA)}, 16, {v(MP)}\nv_and_b32 {v(C1)}, 0xffff0000, {v(MP)}')
    k.e(f'v_add_f32 {v(C1)}, 1.0, {v(C1)}\nv_cvt_pk_bf16_f32 {v(C1)}, {v(C1)}, {v(C1)}\nv_lshlrev_b32 {v(C1)}, 16, {v(C1)}')
    for i in range(2):
        for j in range(4):
            k.e(f'v_lshlrev_b32 {v(U+2*j)}, 16, {v(XN+4*i+j)}\nv_and_b32 {v(U+2*j+1)}, 0xffff0000, {v(XN+4*i+j)}')
        for j in range(4):
            k.e(f'v_pk_fma_f32 {v(U+2*j,2)}, {v(U+2*j,2)}, {v(C1,2)}, {v(SA,2)} op_sel_hi:[1,0,0]')
        for j in range(4):
            k.e(f'v_cvt_pk_bf16_f32 {v(O+4*i+j)}, {v(U+2*j)}, {v(U+2*j+1)}')
        k.ds(f'ds_write_b128 {v(VHW)}, {v(O+4*i,4)} offset:{480+512*i}')
    ACC = 96; TR = 8; NT = 4
    for i in range(32): k.e(f'v_mov_b32 {v(ACC+i)}, 0')
    stamp(k, 9)
    k.barrier()
    stamp(k, 10)
    def readT(m):
        r = TR + 4 * (m % NT)
        k.ds(f'ds_read_b64 {v(r,2)}, {v(VTA)} offset:{128*(31-m)}')
        return k.ds(f'ds_read_b64 {v(r+2,2)}, {v(VTA)} offset:{128*(31-m)+8}')
    def readH(hi): return k.ds(f'ds_read_b128 {a(4*hi,4)}, {v(VHA)} offset:{128*hi}')
    tT, tH = {}, {}
    tT[0] = readT(0)
    for t in range(8): tH[4*t+3] = readH(4*t+3)
    tT[1] = readT(1)
    for m in range(32):
        dl = m >> 2
        if m + 2 < 32: tT[m+2] = readT(m + 2)
        ts = list(range(dl, 8))
        for n, t in enumerate(ts):
            hi = 4 * t + 3 - m
            if m < 3:
                tH[hi - 1] = readH(hi - 1)
            k.wait(tT[m], tH[hi])
            mfma16(k, v(ACC+4*t,4), v(TR+4*(m % NT),4), a(4*hi,4))
    stamp(k, 11)
    k.wait(tg, te[1])
    k.e(f'v_add_f32 {v(MG)}, {v(MG)}, {v(MG+1)}\nv_cvt_pk_bf16_f32 {v(MG)}, {v(MG)}, {v(MG)}\nv_lshlrev_b32 {v(GA)}, 16, {v(MG)}')
    for i in range(2): k.ds(f'ds_write_b128 {v(VXI)}, {v(XR+4*i,4)} offset:{512*i}')
    lp1, lpj = k.newlabel('p1'), k.newlabel('pj')
    VR = 4
    k.e(f's_lshl_b32 {s(S_T0)}, {s(S_WAVE)}, 12\ns_add_u32 {s(S_T0)}, {s(S_T0)}, {RED}\nv_lshl_add_u32 {v(VR)}, {v(VL)}, 4, {s(S_T0)}')
    k.e(f's_cmp_eq_u32 {s(S_P)}, 0'); k.e(f's_cbranch_scc0 {lp1}')
    for i in range(4): k.ds(f'ds_write_b128 {v(VR)}, {v(ACC+16+4*i,4)} offset:{1024*i}')
    k.e(f's_branch {lpj}')
    k.label(lp1)
    k.flush_hazards(8)
    for i in range(4): k.ds(f'ds_write_b128 {v(VR)}, {v(ACC+4*i,4)} offset:{1024*i}')
    k.e('s_nop 1')
    for i in range(16): k.e(f'v_mov_b32 {v(ACC+i)}, {v(ACC+16+i)}')
    k.label(lpj)
    k.unknown_counters()
    k.e('s_waitcnt lgkmcnt(0)'); k.e('s_barrier')
    k.e(f'v_xor_b32 {v(VR)}, 4096, {v(VR)}') if RED % 8192 == 0 else None
    if RED % 8192 != 0:
        k.e(f's_xor_b32 {s(S_T0)}, {s(S_WAVE)}, 1\ns_lshl_b32 {s(S_T0)}, {s(S_T0)}, 12\ns_add_u32 {s(S_T0)}, {s(S_T0)}, {RED}\nv_lshl_add_u32 {v(VR)}, {v(VL)}, 4, {s(S_T0)}')
    stamp(k, 12)
    PR = 8; HE = 24
    tp = [k.ds(f'ds_read_b128 {v(PR+4*i,4)}, {v(VR)} offset:{1024*i}') for i in range(4)]
    th = [k.ds(f'ds_read_b64 {v(HE+2*i,2)}, {v(VHE)} offset:{480+512*i}') for i in range(4)]
    XE = 48
    tx_ = [k.ds(f'ds_read_b64 {v(XE+2*i,2)}, {v(VXE)} offset:{512*i}') for i in range(4)]
    k.wait(td)
    k.e(f'v_lshlrev_b32 {v(DS)}, 16, {v(DS)}')
    k.e(f's_lshl_b32 {s(S_T1)}, {s(S_D)}, 6')
    for i in range(4):
        k.wait(tp[i], th[i], tx_[i])
        A_ = ACC + 4 * i
        k.e(f'v_pk_add_f32 {v(A_,2)}, {v(A_,2)}, {v(PR+4*i,2)}\nv_pk_add_f32 {v(A_+2,2)}, {v(A_+2,2)}, {v(PR+4*i+2,2)}')
        for j in range(2):
            k.e(f'v_lshlrev_b32 {v(U+2*j)}, 16, {v(HE+2*i+j)}\nv_and_b32 {v(U+2*j+1)}, 0xffff0000, {v(HE+2*i+j)}')
            k.e(f'v_lshlrev_b32 {v(U+4+2*j)}, 16, {v(XE+2*i+j)}\nv_and_b32 {v(U+4+2*j+1)}, 0xffff0000, {v(XE+2*i+j)}')
        for j in range(2):
            k.e(f'v_pk_fma_f32 {v(A_+2*j,2)}, {v(U+2*j,2)}, {v(DS,2)}, {v(A_+2*j,2)} op_sel_hi:[1,0,1]')
        for j in range(2):
            k.e(f'v_pk_fma_f32 {v(A_+2*j,2)}, {v(A_+2*j,2)}, {v(GA,2)}, {v(U+4+2*j,2)} op_sel_hi:[1,0,1]')
        k.e(f'v_cvt_pk_bf16_f32 {v(O+2*i)}, {v(A_)}, {v(A_+1)}\nv_cvt_pk_bf16_f32 {v(O+2*i+1)}, {v(A_+2)}, {v(A_+3)}')
        k.vm(f'buffer_store_dwordx2 {v(O+2*i,2)}, {v(VXO)}, {s(SO,4)}, {s(S_T1)} offen' + (SC if CFGAB['wt_x'] else ''))
        if i < 3: k.e(f's_add_u32 {s(S_T1)}, {s(S_T1)}, {8*XBS}')

def role_KC(k):
    S_T0, S_T1, S_KG = 44, 45, 46
    SR = 48
    DK = 76
    CHB = 53 * 544
    TAB = 2 * CHB
    k.c('role K : K[d, l] generation')
    k.e(f's_mov_b32 {s(S_KG)}, s2')
    VO, VT, VU = 2, 3, 4
    k.e(f's_lshl_b32 {s(S_T0)}, {s(S_KG)}, 9\nv_lshlrev_b32 {v(VO)}, 1, v0\nv_add_u32 {v(VO)}, {s(S_T0)}, {v(VO)}')
    IN = 8
    toks = []
    for i, p in enumerate((P_ARE, P_AIM, P_BRE, P_BIM, P_CRE, P_CIM)):
        srd(k, SR + 4 * i, p, 0, 512 * 128 * 2)
        toks.append(k.vm(f'buffer_load_ushort {v(IN+i)}, {v(VO)}, {s(SR+4*i,4)}, 0 offen'))
    srd(k, SR + 24, P_LDT, 0, 1024)
    k.e(f'v_lshrrev_b32 {v(VT)}, 7, v0\ns_lshl_b32 {s(S_T0)}, {s(S_KG)}, 1\nv_add_u32 {v(VT)}, {s(S_T0)}, {v(VT)}\nv_lshlrev_b32 {v(VT)}, 1, {v(VT)}')
    tl = k.vm(f'buffer_load_ushort {v(IN+6)}, {v(VT)}, {s(SR+24,4)}, 0 offen')
    GA = 116
    NG = 11
    k.e(f'v_lshlrev_b32 {v(VT)}, 3, v0\nv_sub_u32 {v(VT)}, 2047, {v(VT)}')
    F0 = 16
    for j in range(NG): k.e(f'v_subrev_u32 {v(GA+j)}, {j}, {v(VT)}')
    for j in range(NG): k.e(f'v_max_i32 {v(F0+j)}, 0, {v(GA+j)}\nv_cvt_f32_u32 {v(F0+j)}, {v(F0+j)}')
    k.e(f'v_mov_b32 {v(F0+11)}, 0')
    for j in range(0, 12, 2): k.e(f'v_cvt_pk_bf16_f32 {v(F0+j)}, {v(F0+j)}, {v(F0+j+1)}')
    for j in range(0, 12, 2):
        k.e(f'v_lshrrev_b32 {v(F0+j+1)}, 16, {v(F0+j)}\nv_and_b32 {v(F0+j)}, 0xffff, {v(F0+j)}')
    for j in range(NG):
        k.e(f'v_subrev_u32 {v(F0+j)}, {17024}, {v(F0+j)}')
        if j >= 8: k.e(f'v_cmp_gt_i32 vcc, 0, {v(GA+j)}')
        k.e(f'v_min_i32 {v(GA+j)}, 127, {v(GA+j)}')
        k.e(f'v_max_i32 {v(GA+j)}, {v(GA+j)}, {v(F0+j)}')
        if j >= 8: k.e(f'v_mov_b32 {v(F0+j)}, 641\nv_cndmask_b32 {v(GA+j)}, {v(GA+j)}, {v(F0+j)}, vcc')
        k.e(f'v_lshlrev_b32 {v(GA+j)}, 1, {v(GA+j)}')
        k.e(f'v_add_u32 {v(GA+j)}, {TAB}, {v(GA+j)}')
    VW = 5
    k.e(f'v_lshrrev_b32 {v(VT)}, 7, v0\nv_mul_u32_u24 {v(VW)}, {CHB}, {v(VT)}')
    k.e(f'v_and_b32 {v(VT)}, 127, v0\nv_lshl_add_u32 {v(VW)}, {v(VT)}, 2, {v(VW)}')
    stamp(k, 1)
    k.wait(tl)
    stamp(k, 2)
    ARE, AIM, BRE, BIM, CRE, CIM, LDT = range(IN, IN + 7)
    for r in range(IN, IN + 7): k.e(f'v_lshlrev_b32 {v(r)}, 16, {v(r)}')
    DT = 6
    k.e(f'v_mul_f32 {v(LDT)}, {hexf(LOG2E)}, {v(LDT)}\nv_exp_f32 {v(LDT)}, {v(LDT)}')
    k.e(f'v_cvt_pk_bf16_f32 {v(LDT)}, {v(LDT)}, {v(LDT)}\nv_lshlrev_b32 {v(DT)}, 16, {v(LDT)}')
    ZR2, ZRV = 32, 33
    k.e(f'v_mul_f32 {v(ARE)}, {v(DT)}, {v(ARE)}\nv_mul_f32 {v(AIM)}, {v(DT)}, {v(AIM)}')
    k.e(f'v_mul_f32 {v(ZR2)}, {hexf(LOG2E)}, {v(ARE)}\nv_mul_f32 {v(ZRV)}, {hexf(INV2PI)}, {v(AIM)}')
    k.e(f'v_mul_f32 {v(BRE)}, {v(DT)}, {v(BRE)}\nv_mul_f32 {v(BIM)}, {v(DT)}, {v(BIM)}')
    R = Alloc(34, 115)
    pair = lambda: R.get(2, 2)
    W, DBp, CC, T = pair(), pair(), pair(), pair()
    k.e(f'v_mov_b32 {v(DBp)}, {v(BRE)}\nv_mov_b32 {v(DBp+1)}, {v(BIM)}\nv_mov_b32 {v(CC)}, {v(CRE)}\nv_mov_b32 {v(CC+1)}, {v(CIM)}')
    E1, E8, E256 = pair(), pair(), pair()
    cexp_direct(k, E1, ZR2, ZRV, 1.0, T)
    cexp_direct(k, E8, ZR2, ZRV, 8.0, T)
    cexp_direct(k, E256, ZR2, ZRV, 256.0, T)
    cmul(k, W, CC, DBp)
    R.put(DBp, 2); R.put(CC, 2); R.put(T, 2)
    cv = [R.get(1) for _ in range(4)]
    cvi = [0]
    def put(row, z, xside):
        c = cv[cvi[0] % 4]; cvi[0] += 1
        k.e(f'v_cvt_pk_bf16_f32 {v(c)}, {v(z)}, {"-" if xside else ""}{v(z+1)}')
        k.ds(f'ds_write_b32 {v(VW)}, {v(c)} offset:{row*544}')
    E2, E16, E512 = pair(), pair(), pair()
    cmul_many(k, [(E2, E1, E1), (E16, E8, E8), (E512, E256, E256)])
    WX = [W] + [pair() for _ in range(7)]
    E24, E32, E768, E1024 = pair(), pair(), pair(), pair()
    cmul_many(k, [(WX[1], W, E1), (WX[2], W, E2), (E24, E16, E8), (E32, E16, E16), (E768, E512, E256), (E1024, E512, E512)])
    put(0, W, True); put(1, WX[1], True); put(2, WX[2], True)
    E1280, E1536, E1792, E2048 = pair(), pair(), pair(), pair()
    cmul_many(k, [(WX[3], WX[1], E2), (WX[4], WX[2], E2), (E1280, E1024, E256), (E1536, E1024, E512), (E1792, E1024, E768), (E2048, E1024, E1024)])
    put(3, WX[3], True); put(4, WX[4], True)
    Y0 = pair()
    k.e(f'v_mov_b32 {v(Y0)}, 1.0\nv_mov_b32 {v(Y0+1)}, 0')
    Ya = [Y0, E8, E16, E24]
    for j in range(4): put(21 + j, Ya[j], False)
    cmul_many(k, [(WX[5], WX[3], E2), (WX[6], WX[4], E2)])
    Yb = [pair() for _ in range(4)]
    Yc = [pair() for _ in range(4)]
    cmul_many(k, [(Yb[j], Ya[j], E32) for j in range(4)])
    put(5, WX[5], True); put(6, WX[6], True)
    tmp = [pair() for _ in range(6)]
    cmul_many(k, [(WX[7], WX[5], E2), (tmp[0], W, E256), (tmp[1], WX[2], E256), (tmp[2], WX[4], E256), (tmp[3], WX[6], E256)])
    for j in range(4): put(25 + j, Yb[j], False)
    put(7, WX[7], True)
    for j in range(4): put(8 + j, tmp[j], True)
    cur, nxt = Yb, Yc
    xs = [[(12, W, E512), (13, WX[4], E512), (14, W, E768), (15, WX[4], E768)],
          [(16, W, E1024), (17, W, E1280), (18, W, E1536), (19, W, E1792)],
          [(20, W, E2048)]]
    for it in range(2, 8):
        trip = [(nxt[j], cur[j], E32) for j in range(4)]
        extra = xs[it-2] if it - 2 < len(xs) else []
        trip += [(tmp[i], x, y) for i, (_, x, y) in enumerate(extra)]
        cmul_many(k, trip)
        for j in range(4): put(21 + 4 * it + j, nxt[j], False)
        for i, (row, _, _) in enumerate(extra): put(row, tmp[i], True)
        cur, nxt = nxt, cur
    stamp(k, 3)
    k.barrier()
    stamp(k, 4)
    VA, VB = 2, 5
    k.e(f'v_and_b32 {v(VT)}, 63, v0\nv_and_b32 {v(VU)}, 15, {v(VT)}\nv_lshrrev_b32 {v(VT)}, 4, {v(VT)}')
    k.e(f's_lshr_b32 {s(S_T0)}, {s(S_WAVE)}, 1\ns_mul_i32 {s(S_T0)}, {s(S_T0)}, {CHB}')
    k.e(f'v_mul_u32_u24 {v(VA)}, 544, {v(VU)}\nv_lshl_add_u32 {v(VA)}, {v(VT)}, 4, {v(VA)}\nv_add_u32 {v(VA)}, {s(S_T0)}, {v(VA)}')
    k.e(f's_and_b32 {s(S_T1)}, {s(S_WAVE)}, 1\ns_mul_i32 {s(S_T1)}, {s(S_T1)}, {16*544}\ns_add_u32 {s(S_T1)}, {s(S_T1)}, {21*544}')
    k.e(f'v_add_u32 {v(VB)}, {s(S_T1)}, {v(VA)}')
    FA, FB, AC = 0, 64, 48
    toks = []
    for st in range(8):
        k.ds(f'ds_read_b128 {a(FA+8*st,4)}, {v(VA)} offset:{64*st}')
        k.ds(f'ds_read_b128 {a(FA+8*st+4,4)}, {v(VA)} offset:{64*st + 16*544}')
        toks.append(k.ds(f'ds_read_b128 {a(FB+4*st,4)}, {v(VB)} offset:{64*st}'))
    for i in range(8): k.e(f'v_mov_b32 {v(AC+i)}, 0')
    J = 6; MJ = 7; A0 = 32; A1 = 33; A2 = 34
    k.e(f's_and_b32 {s(S_T1)}, {s(S_WAVE)}, 1\ns_lshl_b32 {s(S_T1)}, {s(S_T1)}, 4\nv_add_u32 {v(J)}, {s(S_T1)}, {v(VU)}')
    k.e(f'v_sub_u32 {v(MJ)}, 4, {v(VT)}\nv_min_u32 {v(MJ)}, 3, {v(MJ)}')
    k.e(f'v_lshlrev_b32 {v(MJ)}, {v(MJ)}, {v(J)}')
    k.e(f'v_lshlrev_b32 {v(A0)}, 2, {v(VT)}')
    k.e(f'v_mov_b32 {v(A1)}, 256\nv_cmp_eq_u32 vcc, 2, {v(VT)}\nv_cndmask_b32 {v(A0)}, {v(A0)}, {v(A1)}, vcc')
    k.e(f'v_mov_b32 {v(A1)}, 384\nv_cmp_eq_u32 vcc, 3, {v(VT)}\nv_cndmask_b32 {v(A0)}, {v(A0)}, {v(A1)}, vcc')
    k.e(f'v_add_u32 {v(A0)}, {v(A0)}, {v(MJ)}')
    k.e(f'v_mov_b32 {v(A1)}, 0\nv_mov_b32 {v(A2)}, 62\nv_cndmask_b32 {v(A1)}, {v(A1)}, {v(A2)}, vcc\nv_add_u32 {v(A1)}, {v(A0)}, {v(A1)}')
    k.e(f'v_add_u32 {v(A2)}, 512, {v(J)}\nv_mov_b32 {v(MJ)}, 644\nv_cmp_eq_u32 vcc, 0, {v(VT)}\nv_cndmask_b32 {v(A2)}, {v(MJ)}, {v(A2)}, vcc')
    k.e(f'v_lshl_add_u32 {v(MJ)}, {v(VT)}, 5, {v(J)}\nv_cmp_eq_u32 vcc, 32, {v(MJ)}\nv_mov_b32 {v(MJ)}, 640\nv_cndmask_b32 {v(A2)}, {v(A2)}, {v(MJ)}, vcc')
    k.e(f's_lshr_b32 {s(S_T0)}, {s(S_WAVE)}, 1\ns_mul_i32 {s(S_T0)}, {s(S_T0)}, 1536\ns_add_u32 {s(S_T0)}, {s(S_T0)}, {TAB}')
    for r in (A0, A1, A2): k.e(f'v_lshl_add_u32 {v(r)}, {v(r)}, 1, {s(S_T0)}')
    for st in range(8):
        k.wait(toks[st])
        mfma16(k, v(AC,4), a(FA+8*st,4), a(FB+4*st,4))
        mfma16(k, v(AC+4,4), a(FA+8*st+4,4), a(FB+4*st,4))
    C0 = 40
    k.e(f'v_cvt_pk_bf16_f32 {v(C0)}, {v(AC)}, {v(AC+1)}\nv_cvt_pk_bf16_f32 {v(C0+1)}, {v(AC+2)}, {v(AC+3)}')
    k.e(f'v_cvt_pk_bf16_f32 {v(C0+2)}, {v(AC+4)}, {v(AC+5)}\nv_cvt_pk_bf16_f32 {v(C0+3)}, {v(AC+6)}, {v(AC+7)}')
    k.ds(f'ds_write_b16 {v(A0)}, {v(C0)}');              k.ds(f'ds_write_b16_d16_hi {v(A0)}, {v(C0)} offset:2')
    k.ds(f'ds_write_b16 {v(A1)}, {v(C0+1)} offset:4');   k.ds(f'ds_write_b16_d16_hi {v(A1)}, {v(C0+1)} offset:6')
    k.ds(f'ds_write_b16 {v(A2)}, {v(C0+2)}');            k.ds(f'ds_write_b16_d16_hi {v(A2)}, {v(C0+2)} offset:64')
    k.ds(f'ds_write_b16 {v(A2)}, {v(C0+3)} offset:128'); k.ds(f'ds_write_b16_d16_hi {v(A2)}, {v(C0+3)} offset:192')
    k.e(f's_add_u32 {s(S_T0)}, {s(S_T0)}, {641*2}\nv_mov_b32 {v(C0+4)}, {s(S_T0)}\nv_mov_b32 {v(C0+5)}, 0')
    k.ds(f'ds_write_b16 {v(C0+4)}, {v(C0+5)}')
    k.barrier()
    stamp(k, 5)
    tnonce = nonce_fetch(k, 127, 5)
    G = 16
    for ch in range(2):
        for j in range(NG): t = k.ds(f'ds_read_u16 {v(G+NG*ch+j)}, {v(GA+j)} offset:{1536*ch}')
    VKW = 6
    k.e(f'v_lshlrev_b32 {v(VKW)}, 4, v0')
    PK = 56
    k.wait(t)
    for ch in range(2):
        for sft in range(4):
            for i in range(4):
                e0 = G + NG*ch + sft + 2*i
                k.e(f'v_lshl_or_b32 {v(PK+16*ch+4*sft+i)}, {v(e0+1)}, 16, {v(e0)}')
            k.ds(f'ds_write_b128 {v(VKW)}, {v(PK+16*ch+4*sft,4)} offset:{ch*KCH + sft*KCS}')
    conv_part(k, tnonce)
    stamp_end(k, 0)
    k.e('s_endpgm')

LDS_AB = 67584

def build_AB(name):
    k = Kern(name)
    lx, lm, lw, lk, lz, ln, lend = [k.newlabel(x) for x in ('X', 'M', 'W', 'K', 'Z', 'N', 'end')]
    k.e(f's_cmp_ge_u32 s2, 512'); k.e(f's_cbranch_scc1 {lend}')
    load_all_ptrs(k)
    if CFGAB['code']:
        lp, lh = k.newlabel('pre0'), k.newlabel('pc0')
        k.e('s_cmp_lt_u32 s2, 8'); k.e(f's_cbranch_scc0 {lp}')
        k.e('s_getpc_b64 s[44:45]')
        k.label(lh)
        k.e(f's_sub_u32 s44, s44, {lh}-CODE_BEGIN\ns_subb_u32 s45, s45, 0')
        k.e('v_lshrrev_b32 v100, 6, v0\nv_lshlrev_b32 v100, 13, v100\nv_and_b32 v101, 63, v0\nv_lshl_add_u32 v100, v101, 7, v100')
        k.e('v_min_u32 v100, CODE_FROM-CODE_BEGIN-4, v100')
        k.e('global_load_dword v101, v100, s[44:45]'); k.vm_issued -= 1
        k.label(lp)
    wave_id(k)
    k.e('s_waitcnt lgkmcnt(0)')
    stamp_begin(k)
    k.e('s_cmp_lt_u32 s2, 256'); k.e(f's_cbranch_scc1 {lk}')
    if CFGAB['tlb'] or CFGAB['code']:
        lp = k.newlabel('pre')
        k.e(f's_cmp_eq_u32 {s(S_WAVE)}, 0'); k.e(f's_cbranch_scc0 {lp}')
        k.e(f's_cmp_ge_u32 s2, {256+224}'); k.e(f's_cbranch_scc0 {lp}')
        k.e('v_and_b32 v100, 63, v0')
        if CFGAB['tlb']:
            srd(k, 48, P_WS, 0, 40 * MB)
            k.e('v_lshlrev_b32 v101, 20, v100')
            k.e('buffer_load_dword v102, v101, s[48:51], 0 offen'); k.vm_issued -= 1
            srd(k, 48, P_OUT, 0, 2 * MB)
            k.e('v_lshlrev_b32 v101, 15, v100')
            k.e('buffer_load_dword v103, v101, s[48:51], 0 offen'); k.vm_issued -= 1
        if CFGAB['code']:
            lh = k.newlabel('pc')
            k.e('s_getpc_b64 s[44:45]')
            k.label(lh)
            k.e(f's_add_u32 s44, s44, CODE_FROM-{lh}\ns_addc_u32 s45, s45, 0')
            k.e(f's_sub_u32 s46, s2, {256+224}\ns_lshr_b32 s46, s46, 3\ns_cmp_lt_u32 s46, (CODE_TO-CODE_FROM+8191)/8192'); k.e(f's_cbranch_scc0 {lp}')
            k.e('s_lshl_b32 s46, s46, 13\nv_lshlrev_b32 v101, 7, v100\nv_add_u32 v101, s46, v101')
            k.e('v_min_u32 v101, CODE_TO-CODE_FROM-4, v101')
            k.e('global_load_dword v104, v101, s[44:45]'); k.vm_issued -= 1
        k.label(lp)
    k.e(f's_cmp_ge_u32 s2, {256+220}'); k.e(f's_cbranch_scc1 {lend}')
    k.e(f's_cmp_ge_u32 s2, {256+204}'); k.e(f's_cbranch_scc1 {lz}')
    k.e(f's_cmp_eq_u32 s2, {256+200}'); k.e(f's_cbranch_scc1 {ln}')
    k.e(f's_cmp_ge_u32 s2, {256+200}'); k.e(f's_cbranch_scc1 {lend}')
    k.e(f's_cmp_ge_u32 s2, {256+128}'); k.e(f's_cbranch_scc1 {lm}')
    for lab, fn in ((lx, lambda kk: role_X(kk, lw)), (lw, role_W), (lm, role_M), (lk, role_KC)):
        k.label(lab)
        k.vm_done = k.vm_issued; k.lg_done = k.lg_issued
        fn(k)
    k.label(ln)
    k.e(f's_cmp_eq_u32 {s(S_WAVE)}, 0'); k.e(f's_cbranch_scc0 {lend}')
    srd(k, 48, P_WS, EPOCH, 64)
    srd(k, 52, P_DBG, 0, 256)
    k.e('v_mov_b32 v2, 0')
    k.e(f'buffer_load_dword v3, v2, s[48:51], 0 offen{SC}')
    k.e('s_waitcnt vmcnt(0)')
    k.e('v_add_u32 v3, 1, v3\nv_max_u32 v3, 1, v3')
    k.e(f'v_and_b32 v4, 63, v0\nv_cmp_eq_u32 vcc, 0, v4\nv_mov_b32 v4, {hex(OOB)}\nv_cndmask_b32 v4, v4, 0, vcc')
    k.e(f'buffer_store_dword v3, v4, s[48:51], 0 offen{SC}')
    k.e(f'buffer_store_dword v3, v4, s[52:55], 0 offen{SC}')
    k.e('s_endpgm')
    k.label(lz)
    srd(k, 48, P_WS, FLG, 4 * 16384)
    k.e(f's_sub_u32 s44, s2, {256+204}\ns_lshl_b32 s44, s44, 12\nv_lshlrev_b32 v2, 4, v0')
    for i in range(4): k.e(f'v_mov_b32 {v(4+i)}, 0')
    k.e('buffer_store_dwordx4 v[4:7], v2, s[48:51], s44 offen')
    k.label(lend)
    k.e('s_endpgm')
    return k
```

```python
import sys
from common import *
import phaseA, phaseB, phaseC, phaseD, phaseE, phaseF, persist, phaseAB
MAIN = 'adaLN_cond__ssm_conv_s4__mixer_s_mlp__prompt_kernel'
def assemble(kerns, path):
    out = []
    for k, g, b, lds in kerns:
        out.append(f'; @launch kernel={k.name} grid=({g},1,1) block=({b},1,1) lds={lds}')
    out.append('.amdgcn_target "amdgcn-amd-amdhsa--gfx950"')
    out.append('.text')
    seen = set()
    for k, g, b, lds in kerns:
        if k.name in seen: continue
        seen.add(k.name)
        if len(seen) == 1: out.append('.p2align 8\nCODE_BEGIN:')
        if len(seen) == 2: out.append('.p2align 8\nCODE_FROM:')
        out.append(k.header()); out.append(k.text())
    out.append('CODE_TO:')
    out.append('.section .rodata,"a"')
    seen = set()
    for k, g, b, lds in kerns:
        if k.name in seen: continue
        seen.add(k.name)
        out.append('.p2align 6'); out.append(k.descriptor())
    open(path, 'w').write('\n'.join(out) + '\n')
if __name__ == '__main__':
    which = sys.argv[2] if len(sys.argv) > 2 else 'A'
    import common
    if 'P' in which: common.PROF = True
    if 'G' in which: common.DBG = True
    if 'L' in which: common.PROF = True; common.LIGHT = True
    for kv in sys.argv[3:]:
        kk, vv = kv.split('=')
        if kk == 'WARM_B': phaseB.WARM_B = bool(int(vv))
        elif kk.startswith('ab_'): phaseAB.CFGAB[kk[3:]] = int(vv)
        elif kk == 'TLB': phaseA.PRE_TLB = bool(int(vv))
        elif kk == 'CODE': phaseA.PRE_CODE = bool(int(vv))
        elif kk == 'WR': phaseB.WARM_ROUNDS = [(W1F, -1), (W3F, 6), (W3F + MB, 16), (W4F + 640*KB, 24)][:int(vv)]
        elif kk == 'WARM_N': phaseB.WARM_LIST = phaseB.WARM_LIST[:int(vv)]
        else: persist.CFG[kk] = int(vv)
    ks = []
    if 'M' in which: ks.append((phaseAB.build_AB(MAIN), 512, 256, phaseAB.LDS_AB))
    if 'A' in which: ks.append((phaseA.build_A(MAIN), 512, 256, phaseA.LDS_A))
    if 'B' in which: ks.append((phaseB.build_B('conv_kernel'), 512 if phaseB.WARM_B else 256, 256, phaseB.LDS_B))
    if 'C' in which: ks.append((phaseC.build_C('gemm1_kernel'), 256, 256, phaseC.LDS_C))
    if 'D' in which: ks.append((phaseD.build_D('gemm2_kernel'), 256, 256, phaseD.LDS_D))
    if 'E' in which: ks.append((phaseE.build_E('gemm3_kernel'), 256, 256, phaseE.LDS_E))
    if 'F' in which: ks.append((phaseF.build_F('gemm4_kernel'), 256, 256, phaseF.LDS_F))
    if 'Q' in which: ks.append((persist.build_P('mlp_kernel'), 256, 256, persist.LDS_P))
    assemble(ks, sys.argv[1])
    for k, g, b, lds in ks: print(k.name[:12], 'v', k.maxv, 'a', k.maxa, 's', k.maxs, 'lds', lds, 'instrs', sum(1 for i in k.items if not isinstance(i, str)))
```

```python
from common import *
from phaseA import wave_id, OOB, S_WAVE
from phaseC import (wg_map, S_RB64, S_J, S_RB32, S_G, S_R32, S_R64, gelu_consts, gelu_steps, reduce_q, mean_rstd)
from collections import deque

P_WS, P_OUT = 40, 36
SW1, SW2, SW3, SW4, SFL = 4, 8, 12, 16, 20
S_NONCE, S_LID, S_BG, S_BG2 = 24, 25, 100, 101
SC = ' sc1'
VL, VI, VQ, VL16 = 2, 3, 4, 5
VT, VU = 6, 7

class BG:
    def __init__(self, k): self.k = k; self.q = {}; self.tok = {}
    def add(self, key, instrs): self.q.setdefault(key[0], deque()).append((key, instrs))
    def tick(self, name, n=1):
        q = self.q.get(name)
        for _ in range(n):
            if not q: return
            key, instrs = q.popleft()
            for i in instrs[:-1]: self.k.e(i)
            self.tok[key] = self.k.vm(instrs[-1])
    def drain(self, name): self.tick(name, len(self.q.get(name, ())))
    def need(self, *keys):
        for key in keys:
            while key not in self.tok: self.tick(key[0], 1)
        return [self.tok[key] for key in keys]

def phantom(k, text):
    k.e(text); k.vm_issued -= 1

S_O1, S_O2, S_O3, S_O4 = 26, 27, 28, 29
S_OFC, S_OFD, S_OFE, S_OFF = 30, 31, 32, 33
def q_W12(k, bg, name, srdq, areg0):
    so, of = (S_O1, S_OFC) if name == 'W1' else (S_O2, S_OFD)
    for f in range(32):
        pre = []
        if f == 0: pre = [f's_lshl_b32 {s(so)}, {s(of)}, 11']
        elif f % 2 == 0: pre = [f's_add_u32 {s(so)}, {s(so)}, 2048', f's_and_b32 {s(so)}, {s(so)}, 0x7fff']
        bg.add((name, f), pre + [f'buffer_load_dwordx4 {a(areg0+4*f,4)}, {v(VL16)}, {s(srdq,4)}, {s(so)} offen offset:{1024*(f%2)}'])

def w3reg(i, st): return a(4*(16*i+st), 4)
def q_W3(k, bg, tiles):
    for i in tiles:
        for st in range(16):
            if st == 0:
                pre = [f's_lshl_b32 {s(S_O3)}, {s(S_OFE)}, 10']
                if i: pre += [f's_add_u32 {s(SW3)}, {s(SW3)}, 16384', f's_addc_u32 {s(SW3+1)}, {s(SW3+1)}, 0',
                              f's_sub_i32 {s(SW3+2)}, {s(SW3+2)}, 16384', f's_max_i32 {s(SW3+2)}, {s(SW3+2)}, 0']
            else: pre = [f's_add_u32 {s(S_O3)}, {s(S_O3)}, 1024', f's_and_b32 {s(S_O3)}, {s(S_O3)}, 0x3fff']
            bg.add(('W3', i, st), pre + [f'buffer_load_dwordx4 {w3reg(i, st)}, {v(VL16)}, {s(SW3,4)}, {s(S_O3)} offen'])

def w4reg(st, t):
    f = 4*st + t
    return a(192 + 4*f, 4) if f < 16 else v(144 + 4*(f-16), 4)
def step11(so): return [f's_add_u32 {s(so)}, {s(so)}, 4096', f's_cmp_eq_u32 {s(so)}, {11*4096}', f's_cselect_b32 {s(so)}, 0, {s(so)}']
S_O4B = 34
SPL = 8
def q_W4(k, bg):
    if CFG['f2'] == 3:
        for st in range(11):
            for t in range(4):
                pre = []
                if t == 0: pre = [f's_mov_b32 {s(S_O4)}, 0'] if st == 0 else [f's_add_u32 {s(S_O4)}, {s(S_O4)}, 4096']
                bg.add(('W4', st, t), pre + [f'buffer_load_dwordx4 {w4reg(st, t)}, {v(VL16)}, {s(SW4,4)}, {s(S_O4)} offen offset:{1024*t}'])
        return
    if CFG['f2'] >= 1:
        for st in range(11):
            for t in range(4):
                pre = []
                if t == 0:
                    if st == 0: pre = [f's_and_b32 {s(S_O4)}, {s(S_WAVE)}, 1', f's_lshl_b32 {s(S_O4)}, {s(S_O4)}, 11', f's_xor_b32 {s(S_O4B)}, {s(S_O4)}, 2048']
                    else: pre = [f's_add_u32 {s(S_O4)}, {s(S_O4)}, 4096', f's_add_u32 {s(S_O4B)}, {s(S_O4B)}, 4096']
                so = S_O4 if t < 2 else S_O4B
                bg.add(('W4', st, t), pre + [f'buffer_load_dwordx4 {w4reg(st, t)}, {v(VL16)}, {s(SW4,4)}, {s(so)} offen offset:{1024*(t&1)}'])
        return
    for st in range(11):
        for t in range(4):
            pre = []
            if t == 0: pre = [f's_lshl_b32 {s(S_O4)}, {s(S_OFF)}, 12'] if st == 0 else step11(S_O4)
            bg.add(('W4', st, t), pre + [f'buffer_load_dwordx4 {w4reg(st, t)}, {v(VL16)}, {s(SW4,4)}, {s(S_O4)} offen offset:{1024*t}'])

def srd_dyn(k, sd, off_const, s_off, size_total):
    k.e(f's_add_u32 {s(sd)}, {s(P_WS)}, {hex(off_const)}\ns_addc_u32 {s(sd+1)}, {s(P_WS+1)}, 0')
    k.e(f's_add_u32 {s(sd)}, {s(sd)}, {s(s_off)}\ns_addc_u32 {s(sd+1)}, {s(sd+1)}, 0')
    k.e(f's_sub_i32 {s(sd+2)}, {hex(size_total)}, {s(s_off)}\ns_max_i32 {s(sd+2)}, {s(sd+2)}, 0\ns_mov_b32 {s(sd+3)}, 0x20000')

def rotations(k):
    rot = CFG['rot']
    k.e(f's_lshr_b32 s44, s2, 6\ns_lshr_b32 s45, {s(S_J)}, 2\ns_lshl_b32 s46, s44, 1\ns_add_u32 s46, s46, s45')
    k.e(f's_lshl_b32 {s(S_OFC)}, s46, 1')
    k.e(f's_add_u32 {s(S_OFD)}, s46, {s(S_G)}\ns_and_b32 {s(S_OFD)}, {s(S_OFD)}, 3\ns_lshl_b32 {s(S_OFD)}, {s(S_OFD)}, 2')
    k.e(f's_lshl_b32 {s(S_OFE)}, s44, 1\ns_add_u32 {s(S_OFE)}, {s(S_OFE)}, {s(S_J)}\ns_lshl_b32 {s(S_OFE)}, {s(S_OFE)}, 1\ns_and_b32 {s(S_OFE)}, {s(S_OFE)}, 15')
    k.e(f's_mul_i32 {s(S_OFF)}, s44, 3\ns_add_u32 {s(S_OFF)}, {s(S_OFF)}, {s(S_J)}\ns_cmp_ge_u32 {s(S_OFF)}, 11\ns_cselect_b32 s45, 11, 0\ns_sub_u32 {s(S_OFF)}, {s(S_OFF)}, s45')
    if not rot:
        for r in (S_OFC, S_OFD, S_OFE, S_OFF): k.e(f's_mov_b32 {s(r)}, 0')

def mean_var(k, sm, sq, t):
    k.e(f'v_mul_f32 {v(sm)}, {hexf(-1/512)}, {v(sm)}')
    k.e(f'v_mul_f32 {v(t)}, {v(sm)}, {v(sm)}')
    k.e(f'v_mul_f32 {v(sq)}, {hexf(1/512)}, {v(sq)}')
    k.e(f'v_sub_f32 {v(sq)}, {v(sq)}, {v(t)}')
    k.e(f'v_max_f32 {v(sq)}, 0, {v(sq)}\nv_add_f32 {v(sq)}, {hexf(1e-5)}, {v(sq)}')
GC0_ = -2.0 * LOG2E * 0.7978845608028654
GC1_ = GC0_ * 0.044715
def gelu_row_consts(k, nm, ve, out, t):
    NM_, A_, B_, IR_ = out
    k.e(f'v_rsq_f32 {v(t)}, {v(ve)}')
    k.e(f'v_mov_b32 {v(NM_)}, {v(nm)}')
    k.e(f'v_mul_f32 {v(IR_)}, {v(ve)}, {v(t)}')
    k.e(f'v_mul_f32 {v(A_)}, {hexf(GC0_)}, {v(t)}')
    k.e(f'v_mul_f32 {v(B_)}, {v(t)}, {v(t)}\nv_mul_f32 {v(B_)}, {v(B_)}, {v(t)}\nv_mul_f32 {v(B_)}, {hexf(GC1_)}, {v(B_)}')
def gelu_pk(prs, css, tmps, NM_, A_, B_, IR_):
    o = []
    for x, c in zip(prs, css): o.append(f'v_pk_fma_f32 {v(x,2)}, {v(c,2)}, {v(NM_,2)}, {v(x,2)} op_sel_hi:[1,0,1]')
    for x, t in zip(prs, tmps): o.append(f'v_pk_mul_f32 {v(t,2)}, {v(x,2)}, {v(x,2)}')
    for x, t in zip(prs, tmps): o.append(f'v_pk_fma_f32 {v(t,2)}, {v(t,2)}, {v(B_,2)}, {v(A_,2)} op_sel_hi:[1,0,0]')
    for x, t in zip(prs, tmps): o.append(f'v_pk_mul_f32 {v(t,2)}, {v(t,2)}, {v(x,2)}')
    for x, t in zip(prs, tmps): o += [f'v_exp_f32 {v(t)}, {v(t)}', f'v_exp_f32 {v(t+1)}, {v(t+1)}']
    for x, t in zip(prs, tmps): o.append(f'v_pk_fma_f32 {v(t,2)}, {v(t,2)}, {v(IR_,2)}, {v(IR_,2)} op_sel_hi:[1,0,0]')
    for x, t in zip(prs, tmps): o += [f'v_rcp_f32 {v(t)}, {v(t)}', f'v_rcp_f32 {v(t+1)}, {v(t+1)}']
    for x, t in zip(prs, tmps): o.append(f'v_pk_mul_f32 {v(x,2)}, {v(x,2)}, {v(t,2)}')
    return o
def gelu_plain(regs, css, tmps, NM_, A_, B_, IR_):
    o = []
    for x, c in zip(regs, css): o.append(f'v_fma_f32 {v(x)}, {v(c)}, {v(NM_)}, {v(x)}')
    for x, t in zip(regs, tmps): o.append(f'v_mul_f32 {v(t)}, {v(x)}, {v(x)}')
    for x, t in zip(regs, tmps): o.append(f'v_fma_f32 {v(t)}, {v(t)}, {v(B_)}, {v(A_)}')
    for x, t in zip(regs, tmps): o.append(f'v_mul_f32 {v(t)}, {v(t)}, {v(x)}')
    for x, t in zip(regs, tmps): o.append(f'v_exp_f32 {v(t)}, {v(t)}')
    for x, t in zip(regs, tmps): o.append(f'v_fma_f32 {v(t)}, {v(t)}, {v(IR_)}, {v(IR_)}')
    for x, t in zip(regs, tmps): o.append(f'v_rcp_f32 {v(t)}, {v(t)}')
    for x, t in zip(regs, tmps): o.append(f'v_mul_f32 {v(x)}, {v(x)}, {v(t)}')
    return o

VWM = 137
def warm(k, off, nbytes):
    n8 = -(-nbytes // 8192); per = -(-n8 // 128)
    k.e(f's_add_u32 s84, {s(P_WS)}, {hex(off)}\ns_addc_u32 s85, {s(P_WS+1)}, 0\ns_mov_b32 s86, {hex(nbytes)}\ns_mov_b32 s87, 0x20000')
    k.e(f's_lshr_b32 s83, s2, 3\ns_lshl_b32 s83, s83, 2\ns_add_u32 s83, s83, {s(S_WAVE)}\ns_mul_i32 s83, s83, {per*8192}')
    for i in range(per):
        if i: k.e('s_add_u32 s83, s83, 8192')
        k.vm(f'buffer_load_dword v0, {v(VWM)}, s[84:87], s83 offen')

def publish(k, phase, reread=None):
    k.e('s_waitcnt vmcnt(0)')
    k.barrier()
    lab = k.newlabel('pub')
    k.e(f's_cmp_eq_u32 {s(S_WAVE)}, 0'); k.e(f's_cbranch_scc0 {lab}')
    if CFG['spoll']: k.e(f's_lshr_b32 s44, {s(S_LID)}, 2\ns_lshl_b32 s44, s44, 6\ns_and_b32 s45, {s(S_LID)}, 3\ns_lshl_b32 s45, s45, 2\ns_add_u32 s44, s44, s45\ns_add_u32 s44, s44, {phase*16384}')
    else: k.e(f's_lshl_b32 s44, {s(S_LID)}, 6\ns_add_u32 s44, s44, {phase*16384}')
    k.e(f'v_mov_b32 {v(VT)}, {s(S_NONCE)}\nv_mov_b32 {v(VU)}, {hex(OOB)}\nv_cmp_eq_u32 vcc, 0, {v(VL)}\nv_cndmask_b32 {v(VU)}, {v(VU)}, {v(VL)}, vcc')
    phantom(k, f'buffer_store_dword {v(VT)}, {v(VU)}, {s(SFL,4)}, s44 offen{SC}')
    k.label(lab)
    if reread and CFG['reread']: reread()

def await_flags_scalar(k, phase, s_first, count):
    n = count // 4
    lab, lp, lo = k.newlabel('aw'), k.newlabel('poll'), k.newlabel('pout')
    k.e(f's_cmp_eq_u32 {s(S_WAVE)}, 0'); k.e(f's_cbranch_scc0 {lab}')
    k.e(f's_ashr_i32 s44, {s(s_first)}, 2')
    for i in range(n):
        k.e(f's_add_i32 s45, s44, {i}\ns_max_i32 s45, s45, 0\ns_min_i32 s45, s45, 63\ns_lshl_b32 s45, s45, 6\ns_add_u32 s45, s45, {hex(FLG + phase*16384)}')
        k.e(f's_add_u32 s{SPA+2*i}, {s(P_WS)}, s45\ns_addc_u32 s{SPA+2*i+1}, {s(P_WS+1)}, 0')
    k.e('s_mov_b32 s44, 0')
    k.label(lp)
    for i in range(n): k.e(f's_load_dwordx4 s[{SPQ[i]}:{SPQ[i]+3}], s[{SPA+2*i}:{SPA+2*i+1}], 0 glc')
    k.e('s_waitcnt lgkmcnt(0)')
    for i in range(n):
        b = SPQ[i]
        k.e(f's_and_b32 s{b}, s{b}, s{b+1}\ns_and_b32 s{b+2}, s{b+2}, s{b+3}\ns_and_b32 s{b}, s{b}, s{b+2}')
        if i: k.e(f's_and_b32 s{SPQ[0]}, s{SPQ[0]}, s{b}')
    k.e(f's_cmp_eq_u32 s{SPQ[0]}, {s(S_NONCE)}'); k.e(f's_cbranch_scc1 {lo}')
    k.e('s_add_u32 s44, s44, 1\ns_cmp_lt_u32 s44, 0x40000'); k.e(f's_cbranch_scc1 {lp}')
    k.label(lo)
    k.label(lab)
    k.barrier()
SPA = 80
SPQ = [4, 96, 76]

def await_flags(k, phase, s_first, count):
    if CFG['spoll']: return await_flags_scalar(k, phase, s_first, count)
    lab, lp, lo = k.newlabel('aw'), k.newlabel('poll'), k.newlabel('pout')
    k.e(f's_cmp_eq_u32 {s(S_WAVE)}, 0'); k.e(f's_cbranch_scc0 {lab}')
    k.e(f'v_add_u32 {v(VT)}, {s(s_first)}, {v(VL)}')
    k.e(f'v_cmp_gt_u32 vcc, 256, {v(VT)}\nv_cmp_gt_u32 s[46:47], {count}, {v(VL)}\ns_and_b64 vcc, vcc, s[46:47]')
    k.e(f'v_lshlrev_b32 {v(VT)}, 6, {v(VT)}\nv_add_u32 {v(VT)}, {phase*16384}, {v(VT)}')
    k.e('s_mov_b64 exec, vcc')
    k.e('s_mov_b32 s44, 0')
    k.label(lp)
    done = k.vm_done
    phantom(k, f'buffer_load_dword {v(VU)}, {v(VT)}, {s(SFL,4)}, 0 offen{SC}')
    k.e('s_waitcnt vmcnt(0)')
    k.vm_done = done
    k.e(f'v_cmp_ne_u32 vcc, {s(S_NONCE)}, {v(VU)}')
    k.e(f's_add_u32 s44, s44, 1\ns_cmp_ge_u32 s44, 0x40000'); k.e(f's_cbranch_scc1 {lo}')
    k.e(f's_cbranch_vccnz {lp}')
    k.label(lo)
    k.e('s_mov_b64 exec, -1')
    k.label(lab)
    k.barrier()

C_XT, C_HB, C_PAR, C_ST = 0, 32768, 65536, 69632
LDS_P = 70656

def phase_C(k, bg):
    S_T0, S_T1, S_T2, S_RT, S_KH = 44, 45, 46, 47, 60
    SX, SMOD, SCS, SH1, SX2 = 48, 52, 64, 68, 76
    k.c('phase C : x2 -> LN -> modulate -> LN -> GEMM1 -> gelu')
    srd(k, SX, P_WS, X2B, 64 * XBS)
    srd(k, SMOD, P_WS, MOD, 3072 * 4)
    srd(k, SCS, P_WS, CS1, 4096)
    srd(k, SH1, P_WS, H1C, 2 * MB)
    srd(k, SX2, P_WS, X2C, 2 * MB)
    k.e(f's_and_b32 {s(S_RT)}, {s(S_WAVE)}, 1\ns_lshr_b32 {s(S_KH)}, {s(S_WAVE)}, 1')
    k.e(f'v_lshrrev_b32 {v(VT)}, 2, {v(VL)}')
    k.e(f'v_lshrrev_b32 {v(VU)}, 4, {v(VL)}\nv_and_b32 {v(VU)}, 2, {v(VU)}')
    k.e(f'v_and_b32 {v(8)}, 3, {v(VL)}\nv_xor_b32 {v(VU)}, {v(VU)}, {v(8)}')
    k.e(f'v_lshlrev_b32 {v(VT)}, 6, {v(VT)}\nv_lshl_add_u32 {v(VT)}, {v(VU)}, 4, {v(VT)}')
    k.e(f's_lshl_b32 {s(S_T2)}, {s(S_WAVE)}, 13\ns_mul_i32 {s(S_T1)}, {s(S_RB32)}, {XBS}\ns_add_u32 {s(S_T1)}, {s(S_T1)}, {s(S_T2)}')
    k.e(f's_lshl_b32 s61, {s(S_G)}, 11') if CFG['rot'] else k.e('s_mov_b32 s61, 0')
    for i in range(8):
        if i: k.e('s_add_u32 s61, s61, 1024\ns_and_b32 s61, s61, 0x1fff')
        k.e(f's_add_u32 m0, {s(S_T2)}, s61') if C_XT == 0 else None
        k.e(f's_add_u32 {s(S_T0)}, {s(S_T1)}, s61')
        k.vm(f'buffer_load_dwordx4 {v(VT)}, {s(SX,4)}, {s(S_T0)} offen{SC} lds')
    k.e(f's_lshl_b32 {s(S_T0)}, {s(S_WAVE)}, 10\ns_add_u32 m0, {s(S_T0)}, {C_PAR}\ns_add_u32 {s(S_T0)}, {s(S_T0)}, {3*2048}')
    tdma = k.vm(f'buffer_load_dwordx4 {v(VL16)}, {s(SMOD,4)}, {s(S_T0)} offen{SC} lds')
    CS = 8
    k.e(f's_lshl_b32 {s(S_T0)}, {s(S_G)}, 2\ns_add_u32 {s(S_T0)}, {s(S_T0)}, {s(S_WAVE)}\ns_lshl_b32 {s(S_T0)}, {s(S_T0)}, 7')
    k.e(f'v_lshlrev_b32 {v(VT)}, 5, {v(VQ)}')
    k.vm(f'buffer_load_dwordx4 {v(CS,4)}, {v(VT)}, {s(SCS,4)}, {s(S_T0)} offen{SC}')
    k.vm(f'buffer_load_dwordx4 {v(CS+4,4)}, {v(VT)}, {s(SCS,4)}, {s(S_T0)} offen offset:16{SC}')
    k.vm(f'buffer_load_dwordx4 {v(CS+8,4)}, {v(VT)}, {s(SCS,4)}, {s(S_T0)} offen offset:2048{SC}')
    tcs = k.vm(f'buffer_load_dwordx4 {v(CS+12,4)}, {v(VT)}, {s(SCS,4)}, {s(S_T0)} offen offset:2064{SC}')
    q_W12(k, bg, 'W1', SW1, 0)
    bg.tick('W1', CFG['c_w1_first'])
    VTR, VPA, VHW, VST, VHR, VGO = 24, 25, 26, 27, 28, 29
    k.e(f'v_bfe_u32 {v(VT)}, {v(VL)}, 2, 2\nv_lshl_add_u32 {v(VT)}, {v(VQ)}, 3, {v(VT)}\nv_lshlrev_b32 {v(VTR)}, 6, {v(VT)}')
    k.e(f'v_bfe_u32 {v(VT)}, {v(VL)}, 1, 1\ns_lshl_b32 {s(S_T0)}, {s(S_RT)}, 1\nv_add_u32 {v(VT)}, {s(S_T0)}, {v(VT)}')
    k.e(f'v_and_b32 {v(VU)}, 1, {v(VQ)}\nv_lshlrev_b32 {v(VU)}, 1, {v(VU)}\nv_xor_b32 {v(VT)}, {v(VT)}, {v(VU)}')
    k.e(f'v_lshl_add_u32 {v(VTR)}, {v(VT)}, 4, {v(VTR)}\nv_and_b32 {v(VT)}, 1, {v(VL)}\nv_lshl_add_u32 {v(VTR)}, {v(VT)}, 3, {v(VTR)}')
    k.e(f's_lshl_b32 {s(S_T0)}, {s(S_KH)}, 14\nv_add_u32 {v(VTR)}, {s(S_T0)}, {v(VTR)}')
    k.e(f's_lshl_b32 {s(S_T0)}, {s(S_KH)}, 10\ns_add_u32 {s(S_T0)}, {s(S_T0)}, {C_PAR}\nv_lshl_add_u32 {v(VPA)}, {v(VQ)}, 5, {s(S_T0)}')
    k.e(f's_lshl_b32 {s(S_T1)}, {s(S_RT)}, 8\ns_add_u32 {s(S_T0)}, {s(S_T1)}, {C_HB}')
    k.e(f'v_lshlrev_b32 {v(VHW)}, 9, {v(VQ)}\nv_lshl_add_u32 {v(VHW)}, {v(VI)}, 4, {v(VHW)}\nv_add_u32 {v(VHW)}, {s(S_T0)}, {v(VHW)}')
    k.e(f's_lshl_b32 s62, {s(S_KH)}, 3\ns_sub_u32 s62, s62, {s(S_OFC)}\ns_and_b32 s62, s62, 15\ns_lshl_b32 s62, s62, 11')
    k.e(f'v_lshlrev_b32 {v(VHR)}, 9, {v(VQ)}\nv_lshl_add_u32 {v(VHR)}, {v(VI)}, 4, {v(VHR)}\nv_add_u32 {v(VHR)}, {C_HB}, {v(VHR)}')
    k.e(f's_lshl_b32 {s(S_T0)}, {s(S_WAVE)}, 7\ns_add_u32 {s(S_T0)}, {s(S_T0)}, {C_ST}\nv_lshl_add_u32 {v(VST)}, {v(VI)}, 3, {s(S_T0)}')
    X = 32; H = 64
    ONE = 30; S1, S2, S3, S4 = 96, 97, 98, 99; TM = 100
    k.e(f'v_mov_b32 {v(ONE)}, 0x3f803f80')
    for r in (S1, S2, S3, S4): k.e(f'v_mov_b32 {v(r)}, 0')
    stamp(k, 1)
    k.wait(tdma); k.e('s_barrier')
    stamp(k, 2)
    if CFG['warm2'] == 1: warm(k, W2F, 512 * KB)
    if CFG['warm3'] == 1: warm(k, W3F, W3F_BYTES)
    if CFG['warm4'] == 1: warm(k, W4F, W4F_BYTES)
    toks = []
    for st in range(8):
        k.ds(f'ds_read_b64_tr_b16 {v(X+4*st,2)}, {v(VTR)} offset:{2048*st}')
        toks.append(k.ds(f'ds_read_b64_tr_b16 {v(X+4*st+2,2)}, {v(VTR)} offset:{2048*st+256}'))
    for st in range(8):
        k.wait(toks[st])
        for i in range(4):
            k.e(f'v_dot2_f32_bf16 {v(S1 + (i&1))}, {v(X+4*st+i)}, {v(ONE)}, {v(S1 + (i&1))}')
            k.e(f'v_dot2_f32_bf16 {v(S3 + (i&1))}, {v(X+4*st+i)}, {v(X+4*st+i)}, {v(S3 + (i&1))}')
        if st % CFG['c_st_every'] == CFG['c_st_every'] - 1: bg.tick('W1', 1)
    q_W12(k, bg, 'W2', SW2, 128)
    k.e(f'v_add_f32 {v(S1)}, {v(S1)}, {v(S2)}\nv_add_f32 {v(S2)}, {v(S3)}, {v(S4)}')
    reduce_q(k, [S1, S2], TM)
    k.ds(f'ds_write_b64 {v(VST)}, {v(S1,2)}')
    k.barrier()
    k.e(f'v_xor_b32 {v(VT)}, 256, {v(VST)}')
    t = k.ds(f'ds_read_b64 {v(S3,2)}, {v(VT)}')
    PA = 156; NP = 3
    def read_par(st):
        b = PA + 16 * (st % NP)
        k.ds(f'ds_read_b128 {v(b,4)}, {v(VPA)} offset:{128*st}')
        k.ds(f'ds_read_b128 {v(b+4,4)}, {v(VPA)} offset:{128*st+16}')
        k.ds(f'ds_read_b128 {v(b+8,4)}, {v(VPA)} offset:{128*st+2048}')
        return k.ds(f'ds_read_b128 {v(b+12,4)}, {v(VPA)} offset:{128*st+2064}')
    tp = {0: read_par(0)}
    k.wait(t)
    tp[1] = read_par(1)
    k.e(f'v_add_f32 {v(S1)}, {v(S1)}, {v(S3)}\nv_add_f32 {v(S2)}, {v(S2)}, {v(S4)}')
    mean_rstd(k, S1, S2, TM)
    RS, NMR = 204, 206
    k.e(f'v_mov_b32 {v(RS)}, {v(S2)}\nv_mov_b32 {v(NMR)}, {v(S1)}')
    for r in (S1, S2, S3, S4): k.e(f'v_mov_b32 {v(r)}, 0')
    U = 140
    if CFG['warm2'] == 2: warm(k, W2F, 512 * KB)
    if CFG['warm3'] == 2: warm(k, W3F, W3F_BYTES)
    if CFG['warm4'] == 2: warm(k, W4F, W4F_BYTES)
    for st in range(8):
        if st + 2 < 8: tp[st+2] = read_par(st + 2)
        b = PA + 16 * (st % NP)
        for i in range(4):
            k.e(f'v_lshlrev_b32 {v(U+2*i)}, 16, {v(X+4*st+i)}\nv_and_b32 {v(U+2*i+1)}, 0xffff0000, {v(X+4*st+i)}')
        bg.tick('W1', 1)
        for i in range(4):
            k.e(f'v_pk_fma_f32 {v(U+2*i,2)}, {v(U+2*i,2)}, {v(RS,2)}, {v(NMR,2)} op_sel_hi:[1,0,0]')
        k.wait(tp[st])
        for i in range(4):
            k.e(f'v_pk_fma_f32 {v(U+2*i,2)}, {v(U+2*i,2)}, {v(b+8+2*i,2)}, {v(b+2*i,2)}')
        for i in range(4):
            k.e(f'v_cvt_pk_bf16_f32 {v(H+4*st+i)}, {v(U+2*i)}, {v(U+2*i+1)}')
        k.e(f'v_add_u32 {v(VT)}, s62, {v(VHW)}')
        k.ds(f'ds_write_b128 {v(VT)}, {v(H+4*st,4)}')
        if st < 7: k.e('s_add_u32 s62, s62, 2048\ns_and_b32 s62, s62, 0x7fff')
        bg.tick('W1', 1)
        if CFG['c_ln_w2'] and not bg.q.get('W1'): bg.tick('W2', CFG['c_ln_w2'])
        for i in range(4):
            k.e(f'v_dot2_f32_bf16 {v(S1 + (i&1))}, {v(H+4*st+i)}, {v(ONE)}, {v(S1 + (i&1))}')
            k.e(f'v_dot2_f32_bf16 {v(S3 + (i&1))}, {v(H+4*st+i)}, {v(H+4*st+i)}, {v(S3 + (i&1))}')
    k.e(f'v_add_f32 {v(S1)}, {v(S1)}, {v(S2)}\nv_add_f32 {v(S2)}, {v(S3)}, {v(S4)}')
    reduce_q(k, [S1, S2], TM)
    k.ds(f'ds_write_b64 {v(VST)}, {v(S1,2)} offset:512')
    stamp(k, 3)
    bg.drain('W1')
    lodd, ldone = k.newlabel('odd'), k.newlabel('sdone')
    k.wait(tcs, bg.tok[('W1', 31)])
    k.e(f's_lshr_b32 {s(S_T0)}, {s(S_G)}, 1\ns_cmp_eq_u32 {s(S_T0)}, {s(S_KH)}'); k.e(f's_cbranch_scc0 {ldone}')
    k.e(f's_lshl_b32 {s(S_T0)}, {s(S_RB64)}, 16\ns_lshl_b32 {s(S_T1)}, {s(S_G)}, 14\ns_add_u32 {s(S_T0)}, {s(S_T0)}, {s(S_T1)}')
    k.e(f's_and_b32 {s(S_T1)}, {s(S_RB32)}, 1\ns_lshl_b32 {s(S_T1)}, {s(S_T1)}, 1\ns_add_u32 {s(S_T1)}, {s(S_T1)}, {s(S_RT)}\ns_lshl_b32 {s(S_T1)}, {s(S_T1)}, 10\ns_add_u32 {s(S_T0)}, {s(S_T0)}, {s(S_T1)}')
    k.e(f's_bitcmp1_b32 {s(S_G)}, 0'); k.e(f's_cbranch_scc1 {lodd}')
    for base, lab in ((0, None), (4, lodd)):
        if lab: k.label(lab)
        for i in range(4):
            phantom(k, f'buffer_store_dwordx4 {v(X+4*(base+i),4)}, {v(VL16)}, {s(SX2,4)}, {s(S_T0)} offen{SC}')
            if i < 3: k.e(f's_add_u32 {s(S_T0)}, {s(S_T0)}, 4096')
        if not lab: k.e(f's_branch {ldone}')
    k.label(ldone)
    k.barrier()
    stamp(k, 4)
    k.e(f'v_lshlrev_b32 {v(VT)}, 3, {v(VI)}\nv_add_u32 {v(VT)}, {C_ST + 512}, {v(VT)}')
    ST = 96
    ts = [k.ds(f'ds_read_b64 {v(ST+2*w,2)}, {v(VT)} offset:{128*w}') for w in range(4)]
    ACC = 140; BF = 104; NB = 4
    def readB(st):
        b = BF + 8 * (st % NB)
        k.ds(f'ds_read_b128 {v(b,4)}, {v(VHR)} offset:{2048*st}')
        return k.ds(f'ds_read_b128 {v(b+4,4)}, {v(VHR)} offset:{2048*st+256}')
    if CFG['warm3'] == 3: warm(k, W3F, W3F_BYTES)
    if CFG['warm4'] == 3: warm(k, W4F, W4F_BYTES)
    PD = CFG['c_pd']
    tb = {n: readB(n) for n in range(PD)}
    k.wait(ts[3])
    k.e(f'v_pk_add_f32 {v(ST,2)}, {v(ST,2)}, {v(ST+4,2)}\nv_pk_add_f32 {v(ST+2,2)}, {v(ST+2,2)}, {v(ST+6,2)}')
    for st in range(16):
        if st + PD < 16: tb[st+PD] = readB(st + PD)
        k.wait(tb[st])
        b = BF + 8 * (st % NB)
        for rt in range(2):
            for tau in range(2):
                acc = v(ACC+8*rt+4*tau,4)
                mfma16(k, acc, a(8*st+4*tau,4), v(b+4*rt,4), '0' if st == 0 else acc)
        if st % CFG['c_g_every'] == CFG['c_g_every'] - 1: bg.tick('W2', CFG['c_g_n'])
        if st == 0:
            mean_var(k, ST, ST+1, TM); mean_var(k, ST+2, ST+3, TM)
        if st == 2:
            for i in range(8): k.e(f'v_add_f32 {v(CS+i)}, {v(CS+i)}, {v(CS+8+i)}')
    stamp(k, 5)
    q_W3(k, bg, (0, 1))
    KC = [[100, 102, 104, 106], [108, 110, 112, 114]]
    for rt in range(2): gelu_row_consts(k, ST + 2*rt, ST + 2*rt + 1, KC[rt], 116)
    k.e(f's_lshl_b32 {s(S_T0)}, {s(S_G)}, 2\ns_add_u32 {s(S_T0)}, {s(S_T0)}, {s(S_WAVE)}\ns_lshl_b32 {s(S_T0)}, {s(S_T0)}, 11')
    k.e(f's_lshl_b32 {s(S_T1)}, {s(S_RB32)}, 15\ns_add_u32 {s(S_T0)}, {s(S_T0)}, {s(S_T1)}\ns_mov_b32 s61, {s(S_T0)}')
    TP = 120; O = 32
    for rt in range(2):
        prs = [ACC + 8*rt + 2*i for i in range(4)]
        NM_, A_, B_, IR_ = KC[rt]
        for n, ins in enumerate(gelu_pk(prs, [CS + 2*i for i in range(4)], [TP + 2*i for i in range(4)], NM_, A_, B_, IR_)):
            k.e(ins)
            if n % CFG['c_epi_bg'] == CFG['c_epi_bg'] - 1: bg.tick('W3', 1)
        for i, p in enumerate(prs): k.e(f'v_cvt_pk_bf16_f32 {v(O+4*rt+i)}, {v(p)}, {v(p+1)}')
        k.vm(f'buffer_store_dwordx4 {v(O+4*rt,4)}, {v(VL16)}, {s(SH1,4)}, {s(S_T0)} offen offset:{1024*rt}{SC}')
    def rr():
        k.e(f'v_lshlrev_b32 {v(VT)}, 7, {v(VL)}\nv_mov_b32 {v(VU)}, {hex(OOB)}\nv_cmp_gt_u32 vcc, 16, {v(VL)}\nv_cndmask_b32 {v(VT)}, {v(VU)}, {v(VT)}, vcc')
        k.vm(f'buffer_load_dword v0, {v(VT)}, {s(SH1,4)}, s61 offen{SC}')
    publish(k, 0, rr)
    stamp(k, 6)

D_HB = 0; D_ST = C_ST
def phase_D(k, bg):
    S_T0, S_T1, S_T2, S_SG, S_PO = 44, 45, 46, 47, 60
    SH1, SX1, SST = 48, 64, 68
    k.c('phase D : shifted h1 @ w2 + h2 -> x1, row statistics')
    bg.tick('W2', CFG['d_pre'])
    srd(k, SH1, P_WS, H1C, 2 * MB)
    srd(k, SX1, P_WS, X1C, 2 * MB)
    srd(k, SST, P_WS, ST4, 2048 * 32)
    S_GWD = 62
    k.e(f's_lshr_b32 {s(S_GWD)}, {s(S_OFD)}, 2\ns_add_u32 {s(S_GWD)}, {s(S_GWD)}, {s(S_WAVE)}\ns_and_b32 {s(S_GWD)}, {s(S_GWD)}, 3')
    k.e(f's_lshr_b32 {s(S_T0)}, {s(S_GWD)}, 1\ns_add_u32 {s(S_T0)}, {s(S_T0)}, 1')
    k.e(f's_sub_u32 {s(S_T1)}, 0, {s(S_T0)}\ns_bitcmp1_b32 {s(S_GWD)}, 0\ns_cselect_b32 {s(S_SG)}, {s(S_T0)}, {s(S_T1)}')
    k.e(f's_add_u32 {s(S_T0)}, {s(S_R32)}, {s(S_SG)}')
    VO0, VO1 = 8, 9
    for rt, vo in ((0, VO0), (1, VO1)):
        k.e(f'v_add_u32 {v(VT)}, {s(S_T0)}, {v(VI)}')
        if rt: k.e(f'v_add_u32 {v(VT)}, 16, {v(VT)}')
        k.e(f'v_lshrrev_b32 {v(vo)}, 5, {v(VT)}\nv_lshlrev_b32 {v(vo)}, 15, {v(vo)}')
        k.e(f'v_bfe_u32 {v(VU)}, {v(VT)}, 4, 1\nv_lshl_add_u32 {v(vo)}, {v(VU)}, 10, {v(vo)}')
        k.e(f'v_and_b32 {v(VU)}, 15, {v(VT)}\nv_lshl_add_u32 {v(vo)}, {v(VU)}, 4, {v(vo)}\nv_lshl_add_u32 {v(vo)}, {v(VQ)}, 8, {v(vo)}')
        k.e(f'v_mov_b32 {v(VU)}, {hex(OOB)}\nv_cmp_gt_u32 vcc, 2048, {v(VT)}\nv_cndmask_b32 {v(vo)}, {v(VU)}, {v(vo)}, vcc')
    VGO, VH2 = 10, 11
    k.e(f's_lshl_b32 {s(S_PO)}, {s(S_G)}, 2\ns_add_u32 {s(S_PO)}, {s(S_PO)}, {s(S_WAVE)}')
    k.e(f's_sub_u32 {s(S_T0)}, {s(S_PO)}, {s(S_OFC)}\ns_and_b32 {s(S_T0)}, {s(S_T0)}, 15\ns_lshl_b32 {s(S_T0)}, {s(S_T0)}, 11\ns_add_u32 {s(S_T0)}, {s(S_T0)}, {C_HB}')
    k.e(f'v_lshlrev_b32 {v(VH2)}, 9, {v(VQ)}\nv_lshl_add_u32 {v(VH2)}, {v(VI)}, 4, {v(VH2)}\nv_add_u32 {v(VH2)}, {s(S_T0)}, {v(VH2)}')
    k.e(f's_lshl_b32 {s(S_PO)}, {s(S_PO)}, 12\ns_lshl_b32 {s(S_T0)}, {s(S_RB64)}, 16\ns_add_u32 {s(S_PO)}, {s(S_PO)}, {s(S_T0)}')
    k.e(f's_and_b32 {s(S_T0)}, {s(S_RB32)}, 1\ns_lshl_b32 {s(S_T0)}, {s(S_T0)}, 11\ns_add_u32 {s(S_PO)}, {s(S_PO)}, {s(S_T0)}')
    H2 = 12
    k.ds(f'ds_read_b128 {v(H2,4)}, {v(VH2)}')
    th2 = k.ds(f'ds_read_b128 {v(H2+4,4)}, {v(VH2)} offset:256')
    k.e(f's_lshl_b32 s43, {s(S_RB32)}, 2\ns_sub_u32 s43, s43, 4')
    await_flags(k, 0, 43, 12)
    stamp(k, 11)
    k.e(f's_lshl_b32 {s(S_T2)}, {s(S_WAVE)}, 13\ns_lshl_b32 {s(S_T1)}, {s(S_GWD)}, 13')
    for i in range(4):
        for rt, vo in ((0, VO0), (1, VO1)):
            k.e(f's_add_u32 m0, {s(S_T2)}, {D_HB + 2048*i + 1024*rt}')
            tdma = k.vm(f'buffer_load_dwordx4 {v(vo)}, {s(SH1,4)}, {s(S_T1)} offen{SC} lds')
        if i < 3: k.e(f's_add_u32 {s(S_T1)}, {s(S_T1)}, 2048')
    bg.tick('W2', CFG['d_dma_bg'])
    if CFG['warm4'] == 4: warm(k, W4F, W4F_BYTES)
    bg.tick('W3', CFG['d_dma_w3'])
    ACC = 20; BF = 36; NB = 4
    k.wait(tdma); k.e('s_barrier')
    stamp(k, 12)
    def readB(st):
        b = BF + 8 * (st % NB)
        k.ds(f'ds_read_b128 {v(b,4)}, {v(VL16)} offset:{D_HB + 2048*st}')
        return k.ds(f'ds_read_b128 {v(b+4,4)}, {v(VL16)} offset:{D_HB + 2048*st + 1024}')
    PD = CFG['d_pd']
    tb = {n: readB(n) for n in range(PD)}
    for st in range(16):
        if st + PD < 16: tb[st+PD] = readB(st + PD)
        k.wait(tb[st], *bg.need(('W2', 2*st), ('W2', 2*st+1)))
        b = BF + 8 * (st % NB)
        for rt in range(2):
            for tau in range(2):
                acc = v(ACC+8*rt+4*tau,4)
                mfma16(k, acc, a(128+8*st+4*tau,4), v(b+4*rt,4), '0' if st == 0 else acc)
        if st % CFG['d_g_every'] == CFG['d_g_every'] - 1: bg.tick('W3', CFG['d_g_n'])
    stamp(k, 13)
    q_W3(k, bg, (2,))
    U = 36; SM = 52; O = 60; TM = 68
    k.wait(th2)
    ne = [CFG['d_epi_bg']]
    def etick():
        if ne[0] > 0: bg.tick('W3', 1); ne[0] -= 1
    for rt in range(2):
        for i in range(4):
            k.e(f'v_lshlrev_b32 {v(U+8*rt+2*i)}, 16, {v(H2+4*rt+i)}\nv_and_b32 {v(U+8*rt+2*i+1)}, 0xffff0000, {v(H2+4*rt+i)}')
            if i & 1: etick()
    for rt in range(2):
        for i in range(4):
            p = ACC + 8*rt + 2*i
            k.e(f'v_pk_add_f32 {v(p,2)}, {v(p,2)}, {v(U+8*rt+2*i,2)}')
    for rt in range(2):
        for i in range(4):
            p = ACC + 8*rt + 2*i
            k.e(f'v_cvt_pk_bf16_f32 {v(O+4*rt+i)}, {v(p)}, {v(p+1)}')
        k.vm(f'buffer_store_dwordx4 {v(O+4*rt,4)}, {v(VL16)}, {s(SX1,4)}, {s(S_PO)} offen offset:{1024*rt}{SC}')
    for rt in range(2):
        p = ACC + 8*rt; sm = SM + 4*rt
        etick(); etick()
        k.e(f'v_pk_add_f32 {v(sm,2)}, {v(p,2)}, {v(p+2,2)}\nv_pk_mul_f32 {v(sm+2,2)}, {v(p,2)}, {v(p,2)}')
        k.e(f'v_pk_add_f32 {v(sm,2)}, {v(sm,2)}, {v(p+4,2)}\nv_pk_fma_f32 {v(sm+2,2)}, {v(p+2,2)}, {v(p+2,2)}, {v(sm+2,2)}')
        k.e(f'v_pk_add_f32 {v(sm,2)}, {v(sm,2)}, {v(p+6,2)}\nv_pk_fma_f32 {v(sm+2,2)}, {v(p+4,2)}, {v(p+4,2)}, {v(sm+2,2)}')
        k.e(f'v_pk_fma_f32 {v(sm+2,2)}, {v(p+6,2)}, {v(p+6,2)}, {v(sm+2,2)}')
    for rt in range(2):
        sm = SM + 4*rt
        k.e(f'v_add_f32 {v(sm)}, {v(sm)}, {v(sm+1)}\nv_add_f32 {v(sm+1)}, {v(sm+2)}, {v(sm+3)}')
    reduce_q(k, [SM, SM+1, SM+4, SM+5], TM)
    k.e(f's_lshl_b32 {s(S_T0)}, {s(S_WAVE)}, 8\ns_add_u32 {s(S_T0)}, {s(S_T0)}, {D_ST}\nv_lshl_add_u32 {v(VT)}, {v(VI)}, 3, {s(S_T0)}')
    k.ds(f'ds_write_b64 {v(VT)}, {v(SM,2)}')
    k.ds(f'ds_write_b64 {v(VT)}, {v(SM+4,2)} offset:128')
    k.barrier()
    lend = k.newlabel('dend')
    k.e(f's_cmp_eq_u32 {s(S_WAVE)}, 0'); k.e(f's_cbranch_scc0 {lend}')
    k.e(f'v_and_b32 {v(VT)}, 31, {v(VL)}\nv_lshlrev_b32 {v(VU)}, 3, {v(VT)}\nv_add_u32 {v(VU)}, {D_ST}, {v(VU)}')
    ts = [k.ds(f'ds_read_b64 {v(U+2*w,2)}, {v(VU)} offset:{256*w}') for w in range(4)]
    k.e(f'v_add_u32 {v(VT)}, {s(S_R32)}, {v(VT)}\nv_lshlrev_b32 {v(VT)}, 5, {v(VT)}')
    k.e(f'v_mov_b32 {v(VU)}, {hex(OOB)}\nv_cmp_gt_u32 vcc, 32, {v(VL)}\nv_cndmask_b32 {v(VT)}, {v(VU)}, {v(VT)}, vcc')
    k.e(f's_lshl_b32 {s(S_T0)}, {s(S_G)}, 3')
    k.wait(ts[3])
    k.e(f'v_pk_add_f32 {v(U,2)}, {v(U,2)}, {v(U+2,2)}\nv_pk_add_f32 {v(U+4,2)}, {v(U+4,2)}, {v(U+6,2)}\nv_pk_add_f32 {v(U,2)}, {v(U,2)}, {v(U+4,2)}')
    phantom(k, f'buffer_store_dwordx2 {v(U,2)}, {v(VT)}, {s(SST,4)}, {s(S_T0)} offen{SC}')
    k.label(lend)
    def rr():
        k.e(f'v_lshlrev_b32 {v(VT)}, 7, {v(VL)}\nv_mov_b32 {v(VU)}, {hex(OOB)}\nv_cmp_gt_u32 vcc, 16, {v(VL)}\nv_cndmask_b32 {v(VT)}, {v(VU)}, {v(VT)}, vcc')
        k.vm(f'buffer_load_dword v0, {v(VT)}, {s(SX1,4)}, {s(S_PO)} offen{SC}')
    publish(k, 1, rr)
    stamp(k, 14)

E_XB = 0
def phase_E(k, bg):
    S_T0, S_T1, S_T2, S_GW = 44, 45, 46, 47
    SX1, SST, SCS, SH = 48, 52, 64, 68
    k.c('phase E : LN(x1) @ w3 -> gelu -> H')
    srd(k, SX1, P_WS, X1C, 2 * MB)
    srd(k, SST, P_WS, ST4, 2048 * 32)
    srd(k, SCS, P_WS, CS3, 2 * 1408 * 4)
    k.e(f's_mul_i32 {s(S_T0)}, {s(S_RB64)}, {HB_BLK}\ns_add_u32 {s(S_T0)}, {s(S_T0)}, {hex(HC)}')
    srd(k, SH, P_WS, s(S_T0), HB_BLK)
    k.e(f's_lshl_b32 {s(S_GW)}, {s(S_J)}, 2\ns_add_u32 {s(S_GW)}, {s(S_GW)}, {s(S_WAVE)}')
    CS = 48
    k.e(f's_mul_i32 {s(S_T0)}, {s(S_GW)}, {3*64}\nv_lshlrev_b32 {v(VT)}, 4, {v(VQ)}')
    for i in range(3):
        k.vm(f'buffer_load_dwordx4 {v(CS+4*i,4)}, {v(VT)}, {s(SCS,4)}, {s(S_T0)} offen offset:{64*i}{SC}')
    k.e(f's_add_u32 {s(S_T0)}, {s(S_T0)}, {1408*4}')
    for i in range(3):
        tcs = k.vm(f'buffer_load_dwordx4 {v(CS+12+4*i,4)}, {v(VT)}, {s(SCS,4)}, {s(S_T0)} offen offset:{64*i}{SC}')
    bg.tick('W3', CFG['e_pre'])
    VHO = 9
    k.e(f'v_lshrrev_b32 {v(VT)}, 1, {v(VQ)}\nv_lshlrev_b32 {v(VHO)}, 8, {v(VT)}\nv_lshl_add_u32 {v(VHO)}, {v(VI)}, 4, {v(VHO)}')
    k.e(f'v_and_b32 {v(VT)}, 1, {v(VQ)}\nv_lshl_add_u32 {v(VHO)}, {v(VT)}, 3, {v(VHO)}')
    S_HO = 61
    for i in range(3):
        k.e(f's_mul_i32 {s(S_T0)}, {s(S_GW)}, 3\ns_add_u32 {s(S_T0)}, {s(S_T0)}, {i}')
        k.e(f's_lshr_b32 {s(S_HO+i)}, {s(S_T0)}, 1\ns_lshl_b32 {s(S_HO+i)}, {s(S_HO+i)}, 12\ns_and_b32 {s(S_T0)}, {s(S_T0)}, 1\ns_lshl_b32 {s(S_T0)}, {s(S_T0)}, 9\ns_add_u32 {s(S_HO+i)}, {s(S_HO+i)}, {s(S_T0)}')
    k.e(f's_lshl_b32 s43, {s(S_RB64)}, 3')
    await_flags(k, 1, 43, 8)
    stamp(k, 21)
    STR = 16
    k.e(f'v_add_u32 {v(VT)}, {s(S_R64)}, {v(VI)}\nv_lshlrev_b32 {v(VT)}, 5, {v(VT)}')
    for rt in range(4):
        k.vm(f'buffer_load_dwordx4 {v(STR+8*rt,4)}, {v(VT)}, {s(SST,4)}, 0 offen offset:{512*rt}{SC}')
        tst = k.vm(f'buffer_load_dwordx4 {v(STR+8*rt+4,4)}, {v(VT)}, {s(SST,4)}, 0 offen offset:{512*rt+16}{SC}')
    k.e(f's_lshl_b32 {s(S_T2)}, {s(S_WAVE)}, 14\ns_lshl_b32 {s(S_T1)}, {s(S_RB64)}, 16')
    k.e(f's_lshl_b32 s60, {s(S_WAVE)}, 2\ns_add_u32 s60, s60, {s(S_OFE)}')
    tdma = {}
    def dma_x1(rt, n):
        k.e(f's_add_u32 m0, {s(S_T2)}, {E_XB + 4096*n + 1024*rt}')
        k.e(f's_add_u32 {s(S_T0)}, s60, {n}\ns_and_b32 {s(S_T0)}, {s(S_T0)}, 15\ns_lshl_b32 {s(S_T0)}, {s(S_T0)}, 12\ns_add_u32 {s(S_T0)}, {s(S_T0)}, {s(64+8)}')
        if rt: k.e(f's_add_u32 {s(S_T0)}, {s(S_T0)}, {1024*rt}')
        tdma[rt] = k.vm(f'buffer_load_dwordx4 {v(VL16)}, {s(SX1,4)}, {s(S_T0)} offen{SC} lds')
    k.e(f's_mov_b32 {s(64+8)}, {s(S_T1)}')
    pend_dma = [(rt, n) for rt in range(4) for n in range(4)]
    for _ in range(CFG['e_dma_first']): dma_x1(*pend_dma.pop(0))
    bg.drain('W3')
    k.wait(tst, tcs)
    for i in range(12): k.e(f'v_add_f32 {v(CS+i)}, {v(CS+i)}, {v(CS+12+i)}')
    KC = [[72 + 4*rt + j for j in range(4)] for rt in range(4)]
    KP = [[64 + 8*rt + 2*j for j in range(4)] for rt in range(4)]
    for rt in range(4):
        b = STR + 8*rt
        k.e(f'v_pk_add_f32 {v(b,2)}, {v(b,2)}, {v(b+2,2)}\nv_pk_add_f32 {v(b+4,2)}, {v(b+4,2)}, {v(b+6,2)}\nv_pk_add_f32 {v(b,2)}, {v(b,2)}, {v(b+4,2)}')
    for rt in range(4):
        b = STR + 8*rt
        mean_var(k, b, b+1, b+2)
        gelu_row_consts(k, b, b+1, KP[rt], b+2)
    k.wait(tdma[0]); k.e('s_barrier')
    stamp(k, 22)
    q_W4(k, bg)
    ACC = [96, 108]; BF = 120; NB = 4; TP = 16; O = 28
    def readB(rt, st):
        return k.ds(f'ds_read_b128 {v(BF+4*((16*rt+st) % NB),4)}, {v(VL16)} offset:{E_XB + 4096*st + 1024*rt}')
    TPP = 16
    def epi_pk(rt):
        A_ = ACC[rt & 1]; NM_, AA, BB, IR_ = KP[rt]; o = []
        prs = [A_ + 2*i for i in range(6)]
        for i, x in enumerate(prs): o.append(f'v_pk_fma_f32 {v(x,2)}, {v(CS+2*i,2)}, {v(NM_,2)}, {v(x,2)} op_sel_hi:[1,0,1]')
        for i, x in enumerate(prs): o.append(f'v_pk_mul_f32 {v(TPP+2*i,2)}, {v(x,2)}, {v(x,2)}')
        for i, x in enumerate(prs): o.append(f'v_pk_fma_f32 {v(TPP+2*i,2)}, {v(TPP+2*i,2)}, {v(BB,2)}, {v(AA,2)} op_sel_hi:[1,0,0]')
        for i, x in enumerate(prs): o.append(f'v_pk_mul_f32 {v(TPP+2*i,2)}, {v(TPP+2*i,2)}, {v(x,2)}')
        return o
    def epi_rest(rt):
        A_ = ACC[rt & 1]; NM_, AA, BB, IR_ = KP[rt]; o = []
        for j in range(12): o.append(f'v_exp_f32 {v(TPP+j)}, {v(TPP+j)}')
        for j in range(12): o.append(f'v_fma_f32 {v(TPP+j)}, {v(TPP+j)}, {v(IR_)}, {v(IR_)}')
        for j in range(12): o.append(f'v_rcp_f32 {v(TPP+j)}, {v(TPP+j)}')
        for j in range(12): o.append(f'v_mul_f32 {v(A_+j)}, {v(A_+j)}, {v(TPP+j)}')
        for i in range(6): o.append(f'v_cvt_pk_bf16_f32 {v(O+i+8*(rt&1))}, {v(A_+2*i)}, {v(A_+2*i+1)}')
        for i in range(3):
            if CFG['e_store']: o.append(f'buffer_store_dwordx2 {v(O+2*i+8*(rt&1),2)}, {v(VHO)}, {s(SH,4)}, {s(S_HO+i)} offen offset:{1024*rt}{SC}')
        return o
    def weight(ins): return 2 if ins.startswith(('v_exp', 'v_rcp')) else 1
    seq = [(rt, st) for rt in range(4) for st in range(16)]
    tb = {}
    PD = CFG['e_pd']
    for n in range(PD): tb[seq[n]] = readB(*seq[n])
    pend = []
    F2 = CFG['f2'] == 1; tst_ = {}
    VFA, VF = 136, 138
    def emit(ins, rt_prev):
        if ins.startswith('buffer_store'): tst_[rt_prev] = k.vm(ins)
        else: k.e(ins)
    def raise_flag(word):
        lab = k.newlabel('rf')
        k.e(f's_cmp_eq_u32 {s(S_WAVE)}, 0'); k.e(f's_cbranch_scc0 {lab}')
        k.e(f's_lshl_b32 s43, {s(S_RB64)}, 5\ns_add_u32 s43, s43, {s(S_J)}\ns_lshl_b32 s43, s43, 2\ns_add_u32 s43, s43, {2*16384 + 32*word}')
        k.e(f'v_mov_b32 {v(VT)}, {s(S_NONCE)}\nv_mov_b32 {v(VU)}, {hex(OOB)}\nv_cmp_eq_u32 vcc, 0, {v(VL)}\nv_cndmask_b32 {v(VU)}, {v(VU)}, {v(VL)}, vcc')
        phantom(k, f'buffer_store_dword {v(VT)}, {v(VU)}, {s(SFL,4)}, s43 offen{SC}')
        k.label(lab)
    def flags_fetch(): return None
    def flags_check(word, tok):
        ok, lp = k.newlabel('fok'), k.newlabel('flp')
        k.e('s_mov_b32 s43, 0')
        k.label(lp)
        k.e(f's_load_dwordx8 s[84:91], s[82:83], {32*word} glc') if False else k.e(f's_load_dwordx8 s[{SPL}:{SPL+7}], s[82:83], {32*word} glc')
        k.e('s_waitcnt lgkmcnt(0)')
        k.e(f's_and_b32 s{SPL}, s{SPL}, s{SPL+1}\ns_and_b32 s{SPL+2}, s{SPL+2}, s{SPL+3}\ns_and_b32 s{SPL+4}, s{SPL+4}, s{SPL+5}\ns_and_b32 s{SPL+6}, s{SPL+6}, s{SPL+7}')
        k.e(f's_and_b32 s{SPL}, s{SPL}, s{SPL+2}\ns_and_b32 s{SPL+4}, s{SPL+4}, s{SPL+6}\ns_and_b32 s{SPL}, s{SPL}, s{SPL+4}')
        k.e(f's_cmp_eq_u32 s{SPL}, {s(S_NONCE)}'); k.e(f's_cbranch_scc1 {ok}')
        k.e('s_add_u32 s43, s43, 1\ns_cmp_lt_u32 s43, 0x40000'); k.e(f's_cbranch_scc1 {lp}')
        k.label(ok)
    if F2:
        k.e(f's_lshl_b32 s43, {s(S_RB64)}, 7\ns_add_u32 s43, s43, {hex(FLG + 2*16384)}\ns_add_u32 s82, {s(P_WS)}, s43\ns_addc_u32 s83, {s(P_WS+1)}, 0')
    for n, (rt, st) in enumerate(seq):
        if st == 16 - PD - 1 and (rt < 3 or F2):
            if rt < 3: k.wait(tdma[rt+1])
            if F2 and rt >= 2: k.wait(tst_[rt-2])
            k.e('s_barrier')
            if F2 and rt >= 2: raise_flag(rt - 2)
        if F2 and rt == 3 and st == 11:
            bg.drain('W4')
            hs = f2_stream(k)
            flags_check(0, None)
        if F2 and rt == 3 and st >= 11:
            for s2_ in range(11):
                if (0, s2_) not in hs['tok'] and s2_ < 3 * (st - 10): hs['load'](0, s2_)
        if n + PD < len(seq): tb[seq[n+PD]] = readB(*seq[n+PD])
        k.wait(tb[(rt, st)])
        if rt == 0: k.wait(*bg.need(*[('W3', i, st) for i in range(3)]))
        b = BF + 4 * ((16*rt+st) % NB)
        for i in range(3):
            acc = v(ACC[rt & 1] + 4*i, 4)
            mfma16(k, acc, w3reg(i, st), v(b,4), '0' if st == 0 else acc)
            budget = CFG['e_budget']
            while pend and budget >= weight(pend[0]):
                budget -= weight(pend[0]); emit(pend.pop(0), rt - 1)
        if st == CFG['e_pk_at'] and rt > 0 and CFG['e_epi']:
            for ins in epi_pk(rt - 1): k.e(ins)
            pend = epi_rest(rt - 1)
        if pend_dma: dma_x1(*pend_dma.pop(0))
        elif CFG['e_bg'] and (rt < 3 or st < 11): bg.tick('W4', 1)
        if st == 15:
            for ins in pend: emit(ins, rt - 1)
            pend = []
            stamp(k, 26 + rt)
    stamp(k, 23)
    if F2:
        phase_F2(k, bg, hs, epi_pk(3) + epi_rest(3), emit, tst_, raise_flag, flags_fetch, flags_check)
        return
    if CFG['f2'] == 3:
        for ins in epi_pk(3) + epi_rest(3): k.e(ins)
        stamp(k, 24)
        publish(k, 2, rr3(k, S_HO, SH))
        stamp(k, 25)
        bg.drain('W4')
        phase_F3(k, f2_stream(k))
        return
    if CFG['f2'] == 2:
        for ins in epi_pk(3) + epi_rest(3): k.e(ins)
        stamp(k, 24)
        publish(k, 2, rr3(k, S_HO, SH))
        stamp(k, 25)
        bg.drain('W4')
        phase_F2(k, bg, f2_stream(k), None, None, None, None, None, None)
        return
    for ins in epi_pk(3) + epi_rest(3): k.e(ins)
    stamp(k, 24)
    def rr():
        k.e(f'v_mov_b32 {v(VT)}, {s(S_HO)}\nv_mov_b32 {v(VU)}, {s(S_HO+1)}\nv_cmp_eq_u32 vcc, 1, {v(VQ)}\nv_cndmask_b32 {v(VT)}, {v(VT)}, {v(VU)}, vcc')
        k.e(f'v_mov_b32 {v(VU)}, {s(S_HO+2)}\nv_cmp_eq_u32 vcc, 2, {v(VQ)}\nv_cndmask_b32 {v(VT)}, {v(VT)}, {v(VU)}, vcc')
        k.e(f'v_mov_b32 {v(VU)}, {hex(OOB)}\nv_cmp_eq_u32 vcc, 3, {v(VQ)}\nv_cndmask_b32 {v(VT)}, {v(VT)}, {v(VU)}, vcc')
        k.e(f'v_bfe_u32 {v(VU)}, {v(VL)}, 2, 2\nv_lshl_add_u32 {v(VT)}, {v(VU)}, 10, {v(VT)}\nv_and_b32 {v(VU)}, 3, {v(VL)}\nv_lshl_add_u32 {v(VT)}, {v(VU)}, 7, {v(VT)}')
        k.vm(f'buffer_load_dword v0, {v(VT)}, {s(SH,4)}, 0 offen{SC}')
    publish(k, 2, rr)
    stamp(k, 25)

def rr3(k, S_HO, SH):
    def rr():
        k.e(f'v_mov_b32 {v(VT)}, {s(S_HO)}\nv_mov_b32 {v(VU)}, {s(S_HO+1)}\nv_cmp_eq_u32 vcc, 1, {v(VQ)}\nv_cndmask_b32 {v(VT)}, {v(VT)}, {v(VU)}, vcc')
        k.e(f'v_mov_b32 {v(VU)}, {s(S_HO+2)}\nv_cmp_eq_u32 vcc, 2, {v(VQ)}\nv_cndmask_b32 {v(VT)}, {v(VT)}, {v(VU)}, vcc')
        k.e(f'v_mov_b32 {v(VU)}, {hex(OOB)}\nv_cmp_eq_u32 vcc, 3, {v(VQ)}\nv_cndmask_b32 {v(VT)}, {v(VT)}, {v(VU)}, vcc')
        k.e(f'v_bfe_u32 {v(VU)}, {v(VL)}, 2, 2\nv_lshl_add_u32 {v(VT)}, {v(VU)}, 10, {v(VT)}\nv_and_b32 {v(VU)}, 3, {v(VL)}\nv_lshl_add_u32 {v(VT)}, {v(VU)}, 7, {v(VT)}')
        k.vm(f'buffer_load_dword v0, {v(VT)}, {s(SH,4)}, 0 offen{SC}')
    return rr

def phase_F3(k, hs):
    S_T0, S_T1, S_OUT, S_XO = 44, 45, 74, 75
    SX1, SX2, SMOD, SO = 48, 52, 64, 76
    tH, loadH, slot = hs['tok'], hs['load'], hs['slot']
    k.c('phase F : H @ w4 by row tile; wave w finalises feature tile w (pair p = w>>1, half tau = w&1) of every row tile')
    srd(k, SX2, P_WS, X2C, 2 * MB)
    srd(k, SMOD, P_WS, MOD, 3072 * 4)
    srd(k, SO, P_OUT, 0, 2 * MB)
    EX1, EX2, GB = 96, 104, 12
    VE = 20
    k.e(f's_and_b32 {s(S_T0)}, {s(S_WAVE)}, 1\ns_lshl_b32 {s(S_T0)}, {s(S_T0)}, 3\nv_add_u32 {v(VE)}, {s(S_T0)}, {v(VL16)}')
    k.e(f's_lshl_b32 {s(S_XO)}, {s(S_RB64)}, 16\ns_lshl_b32 {s(S_T0)}, {s(S_J)}, 13\ns_add_u32 {s(S_XO)}, {s(S_XO)}, {s(S_T0)}')
    k.e(f's_lshr_b32 {s(S_T0)}, {s(S_WAVE)}, 1\ns_lshl_b32 {s(S_T0)}, {s(S_T0)}, 12\ns_add_u32 {s(S_XO)}, {s(S_XO)}, {s(S_T0)}')
    for rt in range(4):
        k.vm(f'buffer_load_dwordx2 {v(EX1+2*rt,2)}, {v(VE)}, {s(SX1,4)}, {s(S_XO)} offen offset:{1024*rt}{SC}')
        k.vm(f'buffer_load_dwordx2 {v(EX2+2*rt,2)}, {v(VE)}, {s(SX2,4)}, {s(S_XO)} offen offset:{1024*rt}{SC}')
    k.e(f's_lshl_b32 {s(S_T1)}, {s(S_J)}, 8\ns_add_u32 {s(S_T1)}, {s(S_T1)}, {5*2048}')
    k.e(f's_lshr_b32 {s(S_T0)}, {s(S_WAVE)}, 1\ns_lshl_b32 {s(S_T0)}, {s(S_T0)}, 7\ns_add_u32 {s(S_T1)}, {s(S_T1)}, {s(S_T0)}')
    k.e(f's_and_b32 {s(S_T0)}, {s(S_WAVE)}, 1\ns_lshl_b32 {s(S_T0)}, {s(S_T0)}, 4\ns_add_u32 {s(S_T1)}, {s(S_T1)}, {s(S_T0)}')
    k.e(f'v_lshlrev_b32 {v(VT)}, 5, {v(VQ)}')
    tep = k.vm(f'buffer_load_dwordx4 {v(GB,4)}, {v(VT)}, {s(SMOD,4)}, {s(S_T1)} offen{SC}')
    VXW, VXR, VOUT = 21, 22, 23
    k.e(f's_lshl_b32 {s(S_T0)}, {s(S_WAVE)}, 12\nv_add_u32 {v(VXW)}, {s(S_T0)}, {v(VL16)}')
    k.e(f's_lshl_b32 {s(S_T0)}, {s(S_WAVE)}, 10\nv_add_u32 {v(VXR)}, {s(S_T0)}, {v(VL16)}')
    k.e(f'v_add_u32 {v(VOUT)}, {s(S_R64)}, {v(VI)}\nv_lshlrev_b32 {v(VOUT)}, 10, {v(VOUT)}\nv_lshl_add_u32 {v(VOUT)}, {v(VQ)}, 4, {v(VOUT)}')
    k.e(f's_lshl_b32 {s(S_OUT)}, {s(S_J)}, 7\ns_lshr_b32 {s(S_T0)}, {s(S_WAVE)}, 1\ns_lshl_b32 {s(S_T0)}, {s(S_T0)}, 6\ns_add_u32 {s(S_OUT)}, {s(S_OUT)}, {s(S_T0)}')
    k.e(f's_and_b32 {s(S_T0)}, {s(S_WAVE)}, 1\ns_lshl_b32 {s(S_T0)}, {s(S_T0)}, 3\ns_add_u32 {s(S_OUT)}, {s(S_OUT)}, {s(S_T0)}')
    order = [(rt, st) for rt in range(4) for st in range(11)]
    k.e(f's_lshl_b32 s43, {s(S_RB64)}, 3')
    await_flags(k, 2, 43, 8)
    nxt = 0
    while nxt < CFG['f_depth2']: loadH(*order[nxt]); nxt += 1
    stamp(k, 31)
    ACC = 128; PR = 32; U = 48; O = 56
    def acc(rt, t): return a(ACC + 16*(rt & 1) + 4*t, 4)
    def fin_reads(rt):
        return [k.ds(f'ds_read_b128 {v(PR+4*n,4)}, {v(VXR)} offset:{4096*n + 16384*(rt & 1)}') for n in range(4)]
    def fin_ins(rt):
        o = []
        for i in range(4): o.append(f'v_add_f32 {v(PR+i)}, {v(PR+i)}, {v(PR+4+i)}')
        for i in range(4): o.append(f'v_add_f32 {v(PR+8+i)}, {v(PR+8+i)}, {v(PR+12+i)}')
        for i in range(2): o += [f'v_lshlrev_b32 {v(U+2*i)}, 16, {v(EX1+2*rt+i)}', f'v_and_b32 {v(U+2*i+1)}, 0xffff0000, {v(EX1+2*rt+i)}']
        for i in range(4): o.append(f'v_add_f32 {v(PR+i)}, {v(PR+i)}, {v(PR+8+i)}')
        for i in range(2): o += [f'v_lshlrev_b32 {v(U+4+2*i)}, 16, {v(EX2+2*rt+i)}', f'v_and_b32 {v(U+4+2*i+1)}, 0xffff0000, {v(EX2+2*rt+i)}']
        for i in range(4): o.append(f'v_add_f32 {v(PR+i)}, {v(PR+i)}, {v(U+i)}')
        for i in range(4): o.append(f'v_fma_f32 {v(PR+i)}, {v(PR+i)}, {v(GB+i)}, {v(U+4+i)}')
        for i in range(2): o.append(f'v_cvt_pk_bf16_f32 {v(O+i)}, {v(PR+2*i)}, {v(PR+2*i+1)}')
        o.append(f's_add_u32 s43, {s(S_OUT)}, {16384*rt}')
        o.append(f'buffer_store_dwordx2 {v(O,2)}, {v(VOUT)}, {s(SO,4)}, s43 offen')
        return o
    pend = []; tr = None
    for rt in range(4):
        for st in range(11):
            k.wait(tH[(rt, st)])
            for t in range(4):
                mfma16(k, acc(rt, t), w4reg(st, t), slot(rt, st), '0' if st == 0 else acc(rt, t))
                for _ in range(2):
                    if pend: k.e(pend.pop(0))
            if nxt < 44 and nxt - (11*rt + st) <= 32: loadH(*order[nxt]); nxt += 1
            if rt >= 1 and st == 1:
                k.e('s_waitcnt lgkmcnt(0)'); k.e('s_barrier')
                tr = fin_reads(rt - 1)
            if rt >= 1 and st == 3:
                k.wait(tr[3])
                if rt == 1: k.wait(tep)
                pend = fin_ins(rt - 1)
        for ins in pend: k.e(ins)
        pend = []
        for t in range(4): k.ds(f'ds_write_b128 {v(VXW)}, {acc(rt, t)} offset:{1024*t + 16384*(rt & 1)}')
        if rt < 3: stamp(k, 32 + rt)
    k.e('s_waitcnt lgkmcnt(0)'); k.e('s_barrier')
    stamp(k, 35)
    tr = fin_reads(3); k.wait(tr[3])
    for ins in fin_ins(3): k.e(ins)

def f2_stream(k):
    S_T0, S_T1, S_HF, SHF = 44, 45, 73, 56
    k.e(f's_mul_i32 {s(S_T0)}, {s(S_RB64)}, {HB_BLK}\ns_mul_i32 {s(S_T1)}, {s(S_WAVE)}, {11*4096}\ns_add_u32 {s(S_T0)}, {s(S_T0)}, {s(S_T1)}')
    k.e(f's_add_u32 {s(SHF)}, {s(P_WS)}, {hex(HC)}\ns_addc_u32 {s(SHF+1)}, {s(P_WS+1)}, 0\ns_add_u32 {s(SHF)}, {s(SHF)}, {s(S_T0)}\ns_addc_u32 {s(SHF+1)}, {s(SHF+1)}, 0')
    k.e(f's_sub_u32 {s(SHF+2)}, {HB_BLK}, {s(S_T1)}\ns_mov_b32 {s(SHF+3)}, 0x20000')
    tH = {}
    def slot(rt, st): return a(4 * ((11*rt + st) % 32), 4)
    def loadH(rt, st):
        k.e(f's_movk_i32 {s(S_HF)}, {4096*st}') if 4096*st < 32768 else k.e(f's_mov_b32 {s(S_HF)}, {4096*st}')
        tH[(rt, st)] = k.vm(f'buffer_load_dwordx4 {slot(rt, st)}, {v(VL16)}, {s(SHF,4)}, {s(S_HF)} offen offset:{1024*rt}{SC}')
    return dict(tok=tH, load=loadH, slot=slot)

def phase_F2(k, bg, hs, epi3, emit, tst_, raise_flag, flags_fetch, flags_check):
    S_T0, S_T1, S_OUT = 44, 45, 47
    SX1, SX2, SMOD, SO = 48, 52, 64, 76
    k.c('phase F : H @ w4 by row tile, final residual')
    tH, loadH, slot = hs['tok'], hs['load'], hs['slot']
    simple = CFG['f2'] == 2
    if simple:
        srd(k, SX2, P_WS, X2C, 2 * MB)
        srd(k, SMOD, P_WS, MOD, 3072 * 4)
        srd(k, SO, P_OUT, 0, 2 * MB)
    else:
        f2_front(k, hs, epi3, emit, tst_, raise_flag, flags_check, SX2, SMOD, SO)
    f2_main(k, hs, flags_check, simple, SX1, SX2, SMOD, SO)

def f2_front(k, hs, epi3, emit, tst_, raise_flag, flags_check, SX2, SMOD, SO):
    tH, loadH, slot = hs['tok'], hs['load'], hs['slot']
    for st in range(11):
        if (0, st) not in tH: loadH(0, st)
    tfl = None
    k.wait(tst_[2]); k.e('s_barrier')
    raise_flag(2)
    half = len(epi3) // 2
    for ins in epi3[:CFG['f_h1_at']]: emit(ins, 3)
    flags_check(1, tfl)
    for st in range(11): loadH(1, st)
    for ins in epi3[CFG['f_h1_at']:]: emit(ins, 3)
    stamp(k, 24)
    srd(k, SX2, P_WS, X2C, 2 * MB)
    srd(k, SMOD, P_WS, MOD, 3072 * 4)
    srd(k, SO, P_OUT, 0, 2 * MB)
    if CFG['f_h2_early']:
        flags_check(2, tfl)
        for st in range(10): loadH(2, st)
    k.wait(tst_[3]); k.e('s_barrier')
    raise_flag(3)
    stamp(k, 25)

def f2_main(k, hs, flags_check, simple, SX1, SX2, SMOD, SO):
    S_T0, S_T1, S_OUT = 44, 45, 74
    tH, loadH, slot = hs['tok'], hs['load'], hs['slot']
    tfl = None
    EX1, EX2, GB = 96, 104, 12
    k.e(f's_lshl_b32 {s(S_T1)}, {s(S_RB64)}, 16\ns_lshl_b32 {s(S_T0)}, {s(S_J)}, 13\ns_add_u32 {s(S_T1)}, {s(S_T1)}, {s(S_T0)}')
    k.e(f's_and_b32 {s(S_T0)}, {s(S_WAVE)}, 1\ns_lshl_b32 {s(S_T0)}, {s(S_T0)}, 12\ns_add_u32 {s(S_T1)}, {s(S_T1)}, {s(S_T0)}')
    k.e(f's_lshr_b32 {s(S_T0)}, {s(S_WAVE)}, 1\ns_lshl_b32 {s(S_T0)}, {s(S_T0)}, 10\ns_add_u32 {s(S_T1)}, {s(S_T1)}, {s(S_T0)}')
    for h in range(2):
        k.vm(f'buffer_load_dwordx4 {v(EX1+4*h,4)}, {v(VL16)}, {s(SX1,4)}, {s(S_T1)} offen offset:{2048*h}{SC}')
        k.vm(f'buffer_load_dwordx4 {v(EX2+4*h,4)}, {v(VL16)}, {s(SX2,4)}, {s(S_T1)} offen offset:{2048*h}{SC}')
    k.e(f's_lshl_b32 {s(S_T1)}, {s(S_J)}, 8\ns_add_u32 {s(S_T1)}, {s(S_T1)}, {5*2048}\ns_and_b32 {s(S_T0)}, {s(S_WAVE)}, 1\ns_lshl_b32 {s(S_T0)}, {s(S_T0)}, 7\ns_add_u32 {s(S_T1)}, {s(S_T1)}, {s(S_T0)}')
    k.e(f'v_lshlrev_b32 {v(VT)}, 5, {v(VQ)}')
    k.vm(f'buffer_load_dwordx4 {v(GB,4)}, {v(VT)}, {s(SMOD,4)}, {s(S_T1)} offen{SC}')
    tep = k.vm(f'buffer_load_dwordx4 {v(GB+4,4)}, {v(VT)}, {s(SMOD,4)}, {s(S_T1)} offen offset:16{SC}')
    VXL, VXH, VR, VOUT = 20, 21, 22, 25
    k.e(f's_and_b32 {s(S_T0)}, {s(S_WAVE)}, 1\ns_lshl_b32 {s(S_T0)}, {s(S_T0)}, 11\ns_lshl_b32 {s(S_T1)}, {s(S_WAVE)}, 12')
    k.e(f's_add_u32 s43, {s(S_T1)}, {s(S_T0)}\nv_add_u32 {v(VXL)}, s43, {v(VL16)}\nv_xor_b32 {v(VXH)}, 2048, {v(VXL)}')
    for n in range(1, 4):
        k.e(f's_add_u32 s43, {s(S_WAVE)}, {n}\ns_and_b32 s43, s43, 3\ns_lshl_b32 s43, s43, 12\ns_add_u32 s43, s43, {s(S_T0)}\nv_add_u32 {v(VR+n-1)}, s43, {v(VL16)}')
    k.e(f'v_add_u32 {v(VOUT)}, {s(S_R64)}, {v(VI)}\nv_lshlrev_b32 {v(VOUT)}, 10, {v(VOUT)}\nv_lshl_add_u32 {v(VOUT)}, {v(VQ)}, 4, {v(VOUT)}')
    k.e(f's_lshr_b32 {s(S_T0)}, {s(S_T0)}, 5\ns_lshl_b32 {s(S_OUT)}, {s(S_J)}, 7\ns_add_u32 {s(S_OUT)}, {s(S_OUT)}, {s(S_T0)}')
    ACC = 128
    KEEP, PR, U, O = 32, 40, 64, 80
    def acc(rt, t): return a(ACC + 16*(rt & 1) + 4*t, 4)
    def owner_reads(rt):
        lab = k.newlabel('ord')
        k.e(f's_lshr_b32 s43, {s(S_WAVE)}, 1\ns_cmp_eq_u32 s43, {rt & 1}'); k.e(f's_cbranch_scc0 {lab}')
        saved = (k.lg_issued, k.lg_done)
        for n in range(3):
            for tau in range(2): k.ds(f'ds_read_b128 {v(PR+8*n+4*tau,4)}, {v(VR+n)} offset:{1024*tau + 16384*(rt & 1)}')
        for i in range(8): k.e(f'v_accvgpr_read_b32 {v(KEEP+i)}, {a(ACC + 16*(rt & 1) + i)}')
        k.lg_issued, k.lg_done = saved
        k.label(lab)
    def owner_final(rt):
        lab = k.newlabel('ofi'); h = rt >> 1
        k.e(f's_lshr_b32 s43, {s(S_WAVE)}, 1\ns_cmp_eq_u32 s43, {rt & 1}'); k.e(f's_cbranch_scc0 {lab}')
        saved = (k.lg_issued, k.lg_done)
        for i in range(4):
            k.e(f'v_lshlrev_b32 {v(U+2*i)}, 16, {v(EX1+4*h+i)}\nv_and_b32 {v(U+2*i+1)}, 0xffff0000, {v(EX1+4*h+i)}')
            k.e(f'v_lshlrev_b32 {v(U+8+2*i)}, 16, {v(EX2+4*h+i)}\nv_and_b32 {v(U+8+2*i+1)}, 0xffff0000, {v(EX2+4*h+i)}')
        k.e('s_waitcnt lgkmcnt(0)')
        for n in range(3):
            for i in range(4): k.e(f'v_pk_add_f32 {v(KEEP+2*i,2)}, {v(KEEP+2*i,2)}, {v(PR+8*n+2*i,2)}')
        for i in range(4): k.e(f'v_pk_add_f32 {v(KEEP+2*i,2)}, {v(KEEP+2*i,2)}, {v(U+2*i,2)}')
        for i in range(4): k.e(f'v_pk_fma_f32 {v(KEEP+2*i,2)}, {v(KEEP+2*i,2)}, {v(GB+2*i,2)}, {v(U+8+2*i,2)}')
        for i in range(4): k.e(f'v_cvt_pk_bf16_f32 {v(O+i)}, {v(KEEP+2*i)}, {v(KEEP+2*i+1)}')
        k.e(f's_add_u32 s43, {s(S_OUT)}, {16384*rt}')
        phantom(k, f'buffer_store_dwordx4 {v(O,4)}, {v(VOUT)}, {s(SO,4)}, s43 offen')
        k.lg_issued, k.lg_done = saved
        k.label(lab)
        k.flush_hazards(2)
    order = [(rt, st) for rt in range(4) for st in range(11)]
    if simple:
        k.e(f's_lshl_b32 s43, {s(S_RB64)}, 3')
        await_flags(k, 2, 43, 8)
        nxt = 0
        while nxt < CFG['f_depth2']: loadH(*order[nxt]); nxt += 1
    stamp(k, 31)
    for rt in range(4):
        for st in range(11):
            k.wait(tH[(rt, st)])
            for t in range(4):
                mfma16(k, acc(rt, t), w4reg(st, t), slot(rt, st), '0' if st == 0 else acc(rt, t))
            if simple:
                if nxt < 44 and nxt - (11*rt + st) <= 32: loadH(*order[nxt]); nxt += 1
            elif rt == 1 and st >= 1: loadH(3, st - 1)
            if rt >= 1:
                if st == 2:
                    k.e('s_waitcnt lgkmcnt(0)'); k.e('s_barrier'); k.lg_done = k.lg_issued
                    owner_reads(rt - 1)
                if st == 5:
                    if rt == 1: k.wait(tep)
                    owner_final(rt - 1)
        if rt == 0 and not simple:
            if not CFG['f_h2_early']: flags_check(2, tfl)
            for st in range(11):
                if (2, st) not in tH: loadH(2, st)
            flags_check(3, tfl)
        if rt == 1 and not simple: loadH(3, 10)
        for t in range(4):
            vx = VXL if t < 2 else VXH
            k.ds(f'ds_write_b128 {v(vx)}, {acc(rt, t)} offset:{1024*(t & 1) + 16384*(rt & 1)}')
        if rt < 3: stamp(k, 32 + rt)
    k.e('s_waitcnt lgkmcnt(0)'); k.e('s_barrier'); k.lg_done = k.lg_issued
    stamp(k, 35)
    owner_reads(3)
    owner_final(3)

def phase_F(k, bg):
    S_T0, S_T1, S_T2, S_HO = 44, 45, 46, 47
    SH, SX1, SX2, SMOD, SO = 48, 56, 64, 68, 72
    k.c('phase F : H @ w4, final residual')
    k.e(f's_mul_i32 {s(S_T0)}, {s(S_RB64)}, {HB_BLK}\ns_mul_i32 {s(S_T1)}, {s(S_WAVE)}, {11*4096}\ns_add_u32 {s(S_T0)}, {s(S_T0)}, {s(S_T1)}')
    k.e(f's_add_u32 {s(SH)}, {s(P_WS)}, {hex(HC)}\ns_addc_u32 {s(SH+1)}, {s(P_WS+1)}, 0\ns_add_u32 {s(SH)}, {s(SH)}, {s(S_T0)}\ns_addc_u32 {s(SH+1)}, {s(SH+1)}, 0')
    k.e(f's_sub_u32 {s(SH+2)}, {HB_BLK}, {s(S_T1)}\ns_mov_b32 {s(SH+3)}, 0x20000')
    srd(k, SX1, P_WS, X1C, 2 * MB)
    srd(k, SX2, P_WS, X2C, 2 * MB)
    srd(k, SMOD, P_WS, MOD, 3072 * 4)
    srd(k, SO, P_OUT, 0, 2 * MB)
    EX1, EX2, GB = 112, 120, 12
    k.e(f's_lshl_b32 {s(S_T1)}, {s(S_RB64)}, 16\ns_lshl_b32 {s(S_T0)}, {s(S_J)}, 13\ns_add_u32 {s(S_T1)}, {s(S_T1)}, {s(S_T0)}')
    k.e(f's_lshl_b32 {s(S_T0)}, {s(S_WAVE)}, 10\ns_add_u32 {s(S_T1)}, {s(S_T1)}, {s(S_T0)}')
    for p in range(2):
        k.vm(f'buffer_load_dwordx4 {v(EX1+4*p,4)}, {v(VL16)}, {s(SX1,4)}, {s(S_T1)} offen{SC}')
        k.vm(f'buffer_load_dwordx4 {v(EX2+4*p,4)}, {v(VL16)}, {s(SX2,4)}, {s(S_T1)} offen{SC}')
        if p == 0: k.e(f's_add_u32 {s(S_T1)}, {s(S_T1)}, 4096')
    k.e(f's_lshl_b32 {s(S_T1)}, {s(S_J)}, 8\ns_add_u32 {s(S_T1)}, {s(S_T1)}, {5*2048}\nv_lshlrev_b32 {v(VT)}, 5, {v(VQ)}')
    for p in range(2):
        k.vm(f'buffer_load_dwordx4 {v(GB+8*p,4)}, {v(VT)}, {s(SMOD,4)}, {s(S_T1)} offen offset:{128*p}{SC}')
        tep = k.vm(f'buffer_load_dwordx4 {v(GB+8*p+4,4)}, {v(VT)}, {s(SMOD,4)}, {s(S_T1)} offen offset:{128*p+16}{SC}')
    bg.drain('W4')
    k.e(f's_lshl_b32 s43, {s(S_RB64)}, 3')
    await_flags(k, 2, 43, 8)
    stamp(k, 31)
    ND = 8
    k.e(f's_lshl_b32 {s(S_HO)}, {s(S_OFF)}, 12')
    tH = {}
    def loadH(st):
        if st:
            for i_ in step11(S_HO): k.e(i_)
        for rt in range(4):
            tH[(st, rt)] = k.vm(f'buffer_load_dwordx4 {a(16*(st % ND)+4*rt,4)}, {v(VL16)}, {s(SH,4)}, {s(S_HO)} offen offset:{1024*rt}{SC}')
    for st in range(CFG['f_depth']): loadH(st)
    nxt = CFG['f_depth']
    ACC = 128
    for st in range(11):
        for rt in range(4):
            k.wait(tH[(st, rt)])
            for t in range(4):
                acc = a(ACC + 16*rt + 4*t, 4)
                mfma16(k, acc, w4reg(st, t), a(16*(st % ND)+4*rt,4), '0' if st == 0 else acc)
        if nxt < 11: loadH(nxt); nxt += 1
    stamp(k, 32)
    labs = [k.newlabel(f'r{w}') for w in range(4)]; lj = k.newlabel('rj')
    for w in range(1, 4):
        k.e(f's_cmp_eq_u32 {s(S_WAVE)}, {w}'); k.e(f's_cbranch_scc1 {labs[w]}')
    KEEP = 32
    for w in range(4):
        k.label(labs[w])
        k.flush_hazards(8)
        for rt in range(4):
            if rt == w: continue
            idx = rt - (1 if rt > w else 0)
            base = (w*3 + idx) * 4096
            for t in range(4): k.ds(f'ds_write_b128 {v(VL16)}, {a(ACC+16*rt+4*t,4)} offset:{base + 1024*t}')
        for i in range(16): k.e(f'v_accvgpr_read_b32 {v(KEEP+i)}, {a(ACC+16*w+i)}')
        if w < 3: k.e(f's_branch {lj}')
    k.label(lj)
    k.unknown_counters()
    k.e('s_waitcnt lgkmcnt(0)'); k.e('s_barrier')
    stamp(k, 33)
    PR = 48
    for n in range(3):
        k.e(f's_cmp_ge_u32 {n}, {s(S_WAVE)}\ns_cselect_b32 {s(S_T0)}, 1, 0\ns_add_u32 {s(S_T1)}, {s(S_T0)}, {n}')
        k.e(f's_mul_i32 {s(S_T1)}, {s(S_T1)}, 3\ns_add_u32 {s(S_T1)}, {s(S_T1)}, {s(S_WAVE)}\ns_sub_u32 {s(S_T1)}, {s(S_T1)}, 1\ns_add_u32 {s(S_T1)}, {s(S_T1)}, {s(S_T0)}')
        k.e(f's_lshl_b32 {s(S_T1)}, {s(S_T1)}, 12\nv_add_u32 {v(VT)}, {s(S_T1)}, {v(VL16)}')
        for t in range(4): tr = k.ds(f'ds_read_b128 {v(PR+16*n+4*t,4)}, {v(VT)} offset:{1024*t}')
    k.e(f's_lshl_b32 {s(S_T0)}, {s(S_WAVE)}, 4\ns_add_u32 {s(S_T0)}, {s(S_T0)}, {s(S_R64)}\nv_add_u32 {v(VU)}, {s(S_T0)}, {v(VI)}')
    k.e(f'v_lshlrev_b32 {v(VU)}, 10, {v(VU)}\nv_lshl_add_u32 {v(VU)}, {v(VQ)}, 4, {v(VU)}\ns_lshl_b32 {s(S_T1)}, {s(S_J)}, 7')
    k.wait(tr)
    for n in range(3):
        for i in range(8): k.e(f'v_pk_add_f32 {v(KEEP+2*i,2)}, {v(KEEP+2*i,2)}, {v(PR+16*n+2*i,2)}')
    U = 96; O = 48
    for p in range(2):
        for i in range(4):
            k.e(f'v_lshlrev_b32 {v(U+2*i)}, 16, {v(EX1+4*p+i)}\nv_and_b32 {v(U+2*i+1)}, 0xffff0000, {v(EX1+4*p+i)}')
            k.e(f'v_lshlrev_b32 {v(U+8+2*i)}, 16, {v(EX2+4*p+i)}\nv_and_b32 {v(U+8+2*i+1)}, 0xffff0000, {v(EX2+4*p+i)}')
        for i in range(4):
            x = KEEP + 8*p + 2*i
            k.e(f'v_pk_add_f32 {v(x,2)}, {v(x,2)}, {v(U+2*i,2)}')
        for i in range(4):
            x = KEEP + 8*p + 2*i
            k.e(f'v_pk_fma_f32 {v(x,2)}, {v(x,2)}, {v(GB+8*p+2*i,2)}, {v(U+8+2*i,2)}')
        for i in range(4):
            x = KEEP + 8*p + 2*i
            k.e(f'v_cvt_pk_bf16_f32 {v(O+4*p+i)}, {v(x)}, {v(x+1)}')
        k.vm(f'buffer_store_dwordx4 {v(O+4*p,4)}, {v(VU)}, {s(SO,4)}, {s(S_T1)} offen offset:{64*p}')

HB_BLK = 43 * 4096
CFG = dict(c_g_n=1, d_g_n=1, c_ln_w2=0, spoll=1, f_depth2=12, f_h1_at=24, f_h2_early=1, f_fetch0=6, f_fetch2=6, f2=3, e_budget=2, e_pk_at=0, warm2=0, warm3=0, warm4=0, d_dma_w3=0, rot=0, reread=0, c_w1_first=12, c_st_every=2, c_g_every=1, c_epi_bg=1000, c_pd=2, d_pre=8, d_dma_bg=8, d_g_every=1, d_epi_bg=12, d_pd=2, e_pre=8, e_dma_first=4, e_bg=1, e_store=1, e_pd=2, e_epi=1, f_depth=6)

def build_P(name):
    k = Kern(name)
    lend = k.newlabel('end')
    k.e(f's_cmp_ge_u32 s2, 256'); k.e(f's_cbranch_scc1 {lend}')
    k.e('s_load_dwordx2 s[36:37], s[0:1], 128'); k.e('s_load_dwordx2 s[40:41], s[0:1], 144')
    wave_id(k); wg_map(k)
    k.e(f's_lshl_b32 {s(S_LID)}, {s(S_RB64)}, 3\ns_add_u32 {s(S_LID)}, {s(S_LID)}, {s(S_J)}')
    k.e(f's_mov_b32 {s(S_NONCE)}, 1')
    k.e(f'v_and_b32 {v(VL)}, 63, v0\nv_and_b32 {v(VI)}, 15, {v(VL)}\nv_lshrrev_b32 {v(VQ)}, 4, {v(VL)}\nv_lshlrev_b32 {v(VL16)}, 4, {v(VL)}\nv_lshlrev_b32 {v(VWM)}, 7, {v(VL)}')
    k.e('s_waitcnt lgkmcnt(0)')
    dbg_stamp(k, 6, 2, va=200)
    stamp_begin(k)
    rotations(k)
    k.e(f's_lshl_b32 s44, {s(S_G)}, 2\ns_add_u32 s44, s44, {s(S_WAVE)}\ns_lshl_b32 s44, s44, 15')
    srd_dyn(k, SW1, W1F, 44, 512 * KB); srd_dyn(k, SW2, W2F, 44, 512 * KB)
    k.e(f's_lshl_b32 s44, {s(S_J)}, 2\ns_add_u32 s44, s44, {s(S_WAVE)}\ns_mul_i32 s44, s44, {3*16384}')
    srd_dyn(k, SW3, W3F, 44, W3F_BYTES)
    k.e(f's_mul_i32 s44, {s(S_J)}, 176128\ns_mul_i32 s45, {s(S_WAVE)}, {11*4096}\ns_add_u32 s44, s44, s45')
    srd_dyn(k, SW4, W4F, 44, W4F_BYTES)
    srd(k, SFL, P_WS, FLG, 4 * 16384)
    bg = BG(k)
    phase_C(k, bg); dbg_stamp(k, 7, 2, va=204); phase_D(k, bg); dbg_stamp(k, 8, 2, va=204); phase_E(k, bg)
    if not CFG['f2']: phase_F(k, bg)
    if __import__('common').DBG: k.e('s_waitcnt vmcnt(0)')
    dbg_stamp(k, 10, 2)
    stamp_end(k, 2)
    k.label(lend)
    k.e('s_endpgm')
    return k
```

```python
from common import *
from phaseA import wave_id, OOB, S_WAVE
from phaseC import (wg_map, S_RB64, S_J, S_RB32, S_G, S_R32, S_R64, gelu_consts, gelu_steps, reduce_q, mean_rstd)
from collections import deque

P_WS, P_OUT = 40, 36
SW1, SW2, SW3, SW4, SFL = 4, 8, 12, 16, 20
S_NONCE, S_LID, S_BG, S_BG2 = 24, 25, 100, 101
SC = ' sc1'
VL, VI, VQ, VL16 = 2, 3, 4, 5
VT, VU = 6, 7

class BG:
    def __init__(self, k): self.k = k; self.q = {}; self.tok = {}
    def add(self, key, instrs): self.q.setdefault(key[0], deque()).append((key, instrs))
    def tick(self, name, n=1):
        q = self.q.get(name)
        for _ in range(n):
            if not q: return
            key, instrs = q.popleft()
            for i in instrs[:-1]: self.k.e(i)
            self.tok[key] = self.k.vm(instrs[-1])
    def drain(self, name): self.tick(name, len(self.q.get(name, ())))
    def need(self, *keys):
        for key in keys:
            while key not in self.tok: self.tick(key[0], 1)
        return [self.tok[key] for key in keys]

def phantom(k, text):
    k.e(text); k.vm_issued -= 1

S_O1, S_O2, S_O3, S_O4 = 26, 27, 28, 29
S_OFC, S_OFD, S_OFE, S_OFF = 30, 31, 32, 33
def q_W12(k, bg, name, srdq, areg0):
    so, of = (S_O1, S_OFC) if name == 'W1' else (S_O2, S_OFD)
    for f in range(32):
        pre = []
        if f == 0: pre = [f's_lshl_b32 {s(so)}, {s(of)}, 11']
        elif f % 2 == 0: pre = [f's_add_u32 {s(so)}, {s(so)}, 2048', f's_and_b32 {s(so)}, {s(so)}, 0x7fff']
        bg.add((name, f), pre + [f'buffer_load_dwordx4 {a(areg0+4*f,4)}, {v(VL16)}, {s(srdq,4)}, {s(so)} offen offset:{1024*(f%2)}'])

def w3reg(i, st): return a(4*(16*i+st), 4)
def q_W3(k, bg, tiles):
    for i in tiles:
        for st in range(16):
            if st == 0:
                pre = [f's_lshl_b32 {s(S_O3)}, {s(S_OFE)}, 10']
                if i: pre += [f's_add_u32 {s(SW3)}, {s(SW3)}, 16384', f's_addc_u32 {s(SW3+1)}, {s(SW3+1)}, 0',
                              f's_sub_i32 {s(SW3+2)}, {s(SW3+2)}, 16384', f's_max_i32 {s(SW3+2)}, {s(SW3+2)}, 0']
            else: pre = [f's_add_u32 {s(S_O3)}, {s(S_O3)}, 1024', f's_and_b32 {s(S_O3)}, {s(S_O3)}, 0x3fff']
            bg.add(('W3', i, st), pre + [f'buffer_load_dwordx4 {w3reg(i, st)}, {v(VL16)}, {s(SW3,4)}, {s(S_O3)} offen'])

def w4reg(st, t):
    f = 4*st + t
    return a(192 + 4*f, 4) if f < 16 else v(144 + 4*(f-16), 4)
def step11(so): return [f's_add_u32 {s(so)}, {s(so)}, 4096', f's_cmp_eq_u32 {s(so)}, {11*4096}', f's_cselect_b32 {s(so)}, 0, {s(so)}']
S_O4B = 34
SPL = 8
def q_W4(k, bg):
    if CFG['f2'] == 3:
        for st in range(11):
            for t in range(4):
                pre = []
                if t == 0: pre = [f's_mov_b32 {s(S_O4)}, 0'] if st == 0 else [f's_add_u32 {s(S_O4)}, {s(S_O4)}, 4096']
                bg.add(('W4', st, t), pre + [f'buffer_load_dwordx4 {w4reg(st, t)}, {v(VL16)}, {s(SW4,4)}, {s(S_O4)} offen offset:{1024*t}'])
        return
    if CFG['f2'] >= 1:
        for st in range(11):
            for t in range(4):
                pre = []
                if t == 0:
                    if st == 0: pre = [f's_and_b32 {s(S_O4)}, {s(S_WAVE)}, 1', f's_lshl_b32 {s(S_O4)}, {s(S_O4)}, 11', f's_xor_b32 {s(S_O4B)}, {s(S_O4)}, 2048']
                    else: pre = [f's_add_u32 {s(S_O4)}, {s(S_O4)}, 4096', f's_add_u32 {s(S_O4B)}, {s(S_O4B)}, 4096']
                so = S_O4 if t < 2 else S_O4B
                bg.add(('W4', st, t), pre + [f'buffer_load_dwordx4 {w4reg(st, t)}, {v(VL16)}, {s(SW4,4)}, {s(so)} offen offset:{1024*(t&1)}'])
        return
    for st in range(11):
        for t in range(4):
            pre = []
            if t == 0: pre = [f's_lshl_b32 {s(S_O4)}, {s(S_OFF)}, 12'] if st == 0 else step11(S_O4)
            bg.add(('W4', st, t), pre + [f'buffer_load_dwordx4 {w4reg(st, t)}, {v(VL16)}, {s(SW4,4)}, {s(S_O4)} offen offset:{1024*t}'])

def srd_dyn(k, sd, off_const, s_off, size_total):
    k.e(f's_add_u32 {s(sd)}, {s(P_WS)}, {hex(off_const)}\ns_addc_u32 {s(sd+1)}, {s(P_WS+1)}, 0')
    k.e(f's_add_u32 {s(sd)}, {s(sd)}, {s(s_off)}\ns_addc_u32 {s(sd+1)}, {s(sd+1)}, 0')
    k.e(f's_sub_i32 {s(sd+2)}, {hex(size_total)}, {s(s_off)}\ns_max_i32 {s(sd+2)}, {s(sd+2)}, 0\ns_mov_b32 {s(sd+3)}, 0x20000')

def rotations(k):
    rot = CFG['rot']
    k.e(f's_lshr_b32 s44, s2, 6\ns_lshr_b32 s45, {s(S_J)}, 2\ns_lshl_b32 s46, s44, 1\ns_add_u32 s46, s46, s45')
    k.e(f's_lshl_b32 {s(S_OFC)}, s46, 1')
    k.e(f's_add_u32 {s(S_OFD)}, s46, {s(S_G)}\ns_and_b32 {s(S_OFD)}, {s(S_OFD)}, 3\ns_lshl_b32 {s(S_OFD)}, {s(S_OFD)}, 2')
    k.e(f's_lshl_b32 {s(S_OFE)}, s44, 1\ns_add_u32 {s(S_OFE)}, {s(S_OFE)}, {s(S_J)}\ns_lshl_b32 {s(S_OFE)}, {s(S_OFE)}, 1\ns_and_b32 {s(S_OFE)}, {s(S_OFE)}, 15')
    k.e(f's_mul_i32 {s(S_OFF)}, s44, 3\ns_add_u32 {s(S_OFF)}, {s(S_OFF)}, {s(S_J)}\ns_cmp_ge_u32 {s(S_OFF)}, 11\ns_cselect_b32 s45, 11, 0\ns_sub_u32 {s(S_OFF)}, {s(S_OFF)}, s45')
    if not rot:
        for r in (S_OFC, S_OFD, S_OFE, S_OFF): k.e(f's_mov_b32 {s(r)}, 0')

def mean_var(k, sm, sq, t):
    k.e(f'v_mul_f32 {v(sm)}, {hexf(-1/512)}, {v(sm)}')
    k.e(f'v_mul_f32 {v(t)}, {v(sm)}, {v(sm)}')
    k.e(f'v_mul_f32 {v(sq)}, {hexf(1/512)}, {v(sq)}')
    k.e(f'v_sub_f32 {v(sq)}, {v(sq)}, {v(t)}')
    k.e(f'v_max_f32 {v(sq)}, 0, {v(sq)}\nv_add_f32 {v(sq)}, {hexf(1e-5)}, {v(sq)}')
GC0_ = -2.0 * LOG2E * 0.7978845608028654
GC1_ = GC0_ * 0.044715
def gelu_row_consts(k, nm, ve, out, t):
    NM_, A_, B_, IR_ = out
    k.e(f'v_rsq_f32 {v(t)}, {v(ve)}')
    k.e(f'v_mov_b32 {v(NM_)}, {v(nm)}')
    k.e(f'v_mul_f32 {v(IR_)}, {v(ve)}, {v(t)}')
    k.e(f'v_mul_f32 {v(A_)}, {hexf(GC0_)}, {v(t)}')
    k.e(f'v_mul_f32 {v(B_)}, {v(t)}, {v(t)}\nv_mul_f32 {v(B_)}, {v(B_)}, {v(t)}\nv_mul_f32 {v(B_)}, {hexf(GC1_)}, {v(B_)}')
def gelu_pk(prs, css, tmps, NM_, A_, B_, IR_):
    o = []
    for x, c in zip(prs, css): o.append(f'v_pk_fma_f32 {v(x,2)}, {v(c,2)}, {v(NM_,2)}, {v(x,2)} op_sel_hi:[1,0,1]')
    for x, t in zip(prs, tmps): o.append(f'v_pk_mul_f32 {v(t,2)}, {v(x,2)}, {v(x,2)}')
    for x, t in zip(prs, tmps): o.append(f'v_pk_fma_f32 {v(t,2)}, {v(t,2)}, {v(B_,2)}, {v(A_,2)} op_sel_hi:[1,0,0]')
    for x, t in zip(prs, tmps): o.append(f'v_pk_mul_f32 {v(t,2)}, {v(t,2)}, {v(x,2)}')
    for x, t in zip(prs, tmps): o += [f'v_exp_f32 {v(t)}, {v(t)}', f'v_exp_f32 {v(t+1)}, {v(t+1)}']
    for x, t in zip(prs, tmps): o.append(f'v_pk_fma_f32 {v(t,2)}, {v(t,2)}, {v(IR_,2)}, {v(IR_,2)} op_sel_hi:[1,0,0]')
    for x, t in zip(prs, tmps): o += [f'v_rcp_f32 {v(t)}, {v(t)}', f'v_rcp_f32 {v(t+1)}, {v(t+1)}']
    for x, t in zip(prs, tmps): o.append(f'v_pk_mul_f32 {v(x,2)}, {v(x,2)}, {v(t,2)}')
    return o
def gelu_plain(regs, css, tmps, NM_, A_, B_, IR_):
    o = []
    for x, c in zip(regs, css): o.append(f'v_fma_f32 {v(x)}, {v(c)}, {v(NM_)}, {v(x)}')
    for x, t in zip(regs, tmps): o.append(f'v_mul_f32 {v(t)}, {v(x)}, {v(x)}')
    for x, t in zip(regs, tmps): o.append(f'v_fma_f32 {v(t)}, {v(t)}, {v(B_)}, {v(A_)}')
    for x, t in zip(regs, tmps): o.append(f'v_mul_f32 {v(t)}, {v(t)}, {v(x)}')
    for x, t in zip(regs, tmps): o.append(f'v_exp_f32 {v(t)}, {v(t)}')
    for x, t in zip(regs, tmps): o.append(f'v_fma_f32 {v(t)}, {v(t)}, {v(IR_)}, {v(IR_)}')
    for x, t in zip(regs, tmps): o.append(f'v_rcp_f32 {v(t)}, {v(t)}')
    for x, t in zip(regs, tmps): o.append(f'v_mul_f32 {v(x)}, {v(x)}, {v(t)}')
    return o

VWM = 137
def warm(k, off, nbytes):
    n8 = -(-nbytes // 8192); per = -(-n8 // 128)
    k.e(f's_add_u32 s84, {s(P_WS)}, {hex(off)}\ns_addc_u32 s85, {s(P_WS+1)}, 0\ns_mov_b32 s86, {hex(nbytes)}\ns_mov_b32 s87, 0x20000')
    k.e(f's_lshr_b32 s83, s2, 3\ns_lshl_b32 s83, s83, 2\ns_add_u32 s83, s83, {s(S_WAVE)}\ns_mul_i32 s83, s83, {per*8192}')
    for i in range(per):
        if i: k.e('s_add_u32 s83, s83, 8192')
        k.vm(f'buffer_load_dword v0, {v(VWM)}, s[84:87], s83 offen')

def publish(k, phase, reread=None):
    k.e('s_waitcnt vmcnt(0)')
    k.barrier()
    lab = k.newlabel('pub')
    k.e(f's_cmp_eq_u32 {s(S_WAVE)}, 0'); k.e(f's_cbranch_scc0 {lab}')
    if CFG['spoll']: k.e(f's_lshr_b32 s44, {s(S_LID)}, 2\ns_lshl_b32 s44, s44, 6\ns_and_b32 s45, {s(S_LID)}, 3\ns_lshl_b32 s45, s45, 2\ns_add_u32 s44, s44, s45\ns_add_u32 s44, s44, {phase*16384}')
    else: k.e(f's_lshl_b32 s44, {s(S_LID)}, 6\ns_add_u32 s44, s44, {phase*16384}')
    k.e(f'v_mov_b32 {v(VT)}, {s(S_NONCE)}\nv_mov_b32 {v(VU)}, {hex(OOB)}\nv_cmp_eq_u32 vcc, 0, {v(VL)}\nv_cndmask_b32 {v(VU)}, {v(VU)}, {v(VL)}, vcc')
    phantom(k, f'buffer_store_dword {v(VT)}, {v(VU)}, {s(SFL,4)}, s44 offen{SC}')
    k.label(lab)
    if reread and CFG['reread']: reread()

def await_flags_scalar(k, phase, s_first, count):
    n = count // 4
    lab, lp, lo = k.newlabel('aw'), k.newlabel('poll'), k.newlabel('pout')
    k.e(f's_cmp_eq_u32 {s(S_WAVE)}, 0'); k.e(f's_cbranch_scc0 {lab}')
    k.e(f's_ashr_i32 s44, {s(s_first)}, 2')
    for i in range(n):
        k.e(f's_add_i32 s45, s44, {i}\ns_max_i32 s45, s45, 0\ns_min_i32 s45, s45, 63\ns_lshl_b32 s45, s45, 6\ns_add_u32 s45, s45, {hex(FLG + phase*16384)}')
        k.e(f's_add_u32 s{SPA+2*i}, {s(P_WS)}, s45\ns_addc_u32 s{SPA+2*i+1}, {s(P_WS+1)}, 0')
    k.e('s_mov_b32 s44, 0')
    k.label(lp)
    for i in range(n): k.e(f's_load_dwordx4 s[{SPQ[i]}:{SPQ[i]+3}], s[{SPA+2*i}:{SPA+2*i+1}], 0 glc')
    k.e('s_waitcnt lgkmcnt(0)')
    for i in range(n):
        b = SPQ[i]
        k.e(f's_and_b32 s{b}, s{b}, s{b+1}\ns_and_b32 s{b+2}, s{b+2}, s{b+3}\ns_and_b32 s{b}, s{b}, s{b+2}')
        if i: k.e(f's_and_b32 s{SPQ[0]}, s{SPQ[0]}, s{b}')
    k.e(f's_cmp_eq_u32 s{SPQ[0]}, {s(S_NONCE)}'); k.e(f's_cbranch_scc1 {lo}')
    k.e('s_add_u32 s44, s44, 1\ns_cmp_lt_u32 s44, 0x40000'); k.e(f's_cbranch_scc1 {lp}')
    k.label(lo)
    k.label(lab)
    k.barrier()
SPA = 80
SPQ = [4, 96, 76]

def await_flags(k, phase, s_first, count):
    if CFG['spoll']: return await_flags_scalar(k, phase, s_first, count)
    lab, lp, lo = k.newlabel('aw'), k.newlabel('poll'), k.newlabel('pout')
    k.e(f's_cmp_eq_u32 {s(S_WAVE)}, 0'); k.e(f's_cbranch_scc0 {lab}')
    k.e(f'v_add_u32 {v(VT)}, {s(s_first)}, {v(VL)}')
    k.e(f'v_cmp_gt_u32 vcc, 256, {v(VT)}\nv_cmp_gt_u32 s[46:47], {count}, {v(VL)}\ns_and_b64 vcc, vcc, s[46:47]')
    k.e(f'v_lshlrev_b32 {v(VT)}, 6, {v(VT)}\nv_add_u32 {v(VT)}, {phase*16384}, {v(VT)}')
    k.e('s_mov_b64 exec, vcc')
    k.e('s_mov_b32 s44, 0')
    k.label(lp)
    done = k.vm_done
    phantom(k, f'buffer_load_dword {v(VU)}, {v(VT)}, {s(SFL,4)}, 0 offen{SC}')
    k.e('s_waitcnt vmcnt(0)')
    k.vm_done = done
    k.e(f'v_cmp_ne_u32 vcc, {s(S_NONCE)}, {v(VU)}')
    k.e(f's_add_u32 s44, s44, 1\ns_cmp_ge_u32 s44, 0x40000'); k.e(f's_cbranch_scc1 {lo}')
    k.e(f's_cbranch_vccnz {lp}')
    k.label(lo)
    k.e('s_mov_b64 exec, -1')
    k.label(lab)
    k.barrier()

C_XT, C_HB, C_PAR, C_ST = 0, 32768, 65536, 69632
LDS_P = 70656

def phase_C(k, bg):
    S_T0, S_T1, S_T2, S_RT, S_KH = 44, 45, 46, 47, 60
    SX, SMOD, SCS, SH1, SX2 = 48, 52, 64, 68, 76
    k.c('phase C : x2 -> LN -> modulate -> LN -> GEMM1 -> gelu')
    srd(k, SX, P_WS, X2B, 64 * XBS)
    srd(k, SMOD, P_WS, MOD, 3072 * 4)
    srd(k, SCS, P_WS, CS1, 4096)
    srd(k, SH1, P_WS, H1C, 2 * MB)
    srd(k, SX2, P_WS, X2C, 2 * MB)
    k.e(f's_and_b32 {s(S_RT)}, {s(S_WAVE)}, 1\ns_lshr_b32 {s(S_KH)}, {s(S_WAVE)}, 1')
    k.e(f'v_lshrrev_b32 {v(VT)}, 2, {v(VL)}')
    k.e(f'v_lshrrev_b32 {v(VU)}, 4, {v(VL)}\nv_and_b32 {v(VU)}, 2, {v(VU)}')
    k.e(f'v_and_b32 {v(8)}, 3, {v(VL)}\nv_xor_b32 {v(VU)}, {v(VU)}, {v(8)}')
    k.e(f'v_lshlrev_b32 {v(VT)}, 6, {v(VT)}\nv_lshl_add_u32 {v(VT)}, {v(VU)}, 4, {v(VT)}')
    k.e(f's_lshl_b32 {s(S_T2)}, {s(S_WAVE)}, 13\ns_mul_i32 {s(S_T1)}, {s(S_RB32)}, {XBS}\ns_add_u32 {s(S_T1)}, {s(S_T1)}, {s(S_T2)}')
    k.e(f's_lshl_b32 s61, {s(S_G)}, 11') if CFG['rot'] else k.e('s_mov_b32 s61, 0')
    for i in range(8):
        if i: k.e('s_add_u32 s61, s61, 1024\ns_and_b32 s61, s61, 0x1fff')
        k.e(f's_add_u32 m0, {s(S_T2)}, s61') if C_XT == 0 else None
        k.e(f's_add_u32 {s(S_T0)}, {s(S_T1)}, s61')
        k.vm(f'buffer_load_dwordx4 {v(VT)}, {s(SX,4)}, {s(S_T0)} offen{SC} lds')
    k.e(f's_lshl_b32 {s(S_T0)}, {s(S_WAVE)}, 10\ns_add_u32 m0, {s(S_T0)}, {C_PAR}\ns_add_u32 {s(S_T0)}, {s(S_T0)}, {3*2048}')
    tdma = k.vm(f'buffer_load_dwordx4 {v(VL16)}, {s(SMOD,4)}, {s(S_T0)} offen{SC} lds')
    CS = 8
    k.e(f's_lshl_b32 {s(S_T0)}, {s(S_G)}, 2\ns_add_u32 {s(S_T0)}, {s(S_T0)}, {s(S_WAVE)}\ns_lshl_b32 {s(S_T0)}, {s(S_T0)}, 7')
    k.e(f'v_lshlrev_b32 {v(VT)}, 5, {v(VQ)}')
    k.vm(f'buffer_load_dwordx4 {v(CS,4)}, {v(VT)}, {s(SCS,4)}, {s(S_T0)} offen{SC}')
    k.vm(f'buffer_load_dwordx4 {v(CS+4,4)}, {v(VT)}, {s(SCS,4)}, {s(S_T0)} offen offset:16{SC}')
    k.vm(f'buffer_load_dwordx4 {v(CS+8,4)}, {v(VT)}, {s(SCS,4)}, {s(S_T0)} offen offset:2048{SC}')
    tcs = k.vm(f'buffer_load_dwordx4 {v(CS+12,4)}, {v(VT)}, {s(SCS,4)}, {s(S_T0)} offen offset:2064{SC}')
    if CFG['self_code']:
        lp, lh = k.newlabel('sc'), k.newlabel('sch')
        k.e(f's_cmp_eq_u32 {s(S_WAVE)}, 3'); k.e(f's_cbranch_scc0 {lp}')
        k.e('s_getpc_b64 s[84:85]')
        k.label(lh)
        k.e(f's_sub_u32 s84, s84, {lh}-CODE_FROM\ns_subb_u32 s85, s85, 0')
        k.e('s_lshr_b32 s83, s2, 3\ns_cmp_lt_u32 s83, (CODE_TO-CODE_FROM+8191)/8192'); k.e(f's_cbranch_scc0 {lp}')
        k.e(f's_lshl_b32 s83, s83, 13\nv_add_u32 {v(VU)}, s83, {v(VWM)}\nv_min_u32 {v(VU)}, CODE_TO-CODE_FROM-4, {v(VU)}')
        phantom(k, f'global_load_dword v0, {v(VU)}, s[84:85]')
        k.label(lp)
    q_W12(k, bg, 'W1', SW1, 0)
    bg.tick('W1', CFG['c_w1_first'])
    VTR, VPA, VHW, VST, VHR, VGO = 24, 25, 26, 27, 28, 29
    k.e(f'v_bfe_u32 {v(VT)}, {v(VL)}, 2, 2\nv_lshl_add_u32 {v(VT)}, {v(VQ)}, 3, {v(VT)}\nv_lshlrev_b32 {v(VTR)}, 6, {v(VT)}')
    k.e(f'v_bfe_u32 {v(VT)}, {v(VL)}, 1, 1\ns_lshl_b32 {s(S_T0)}, {s(S_RT)}, 1\nv_add_u32 {v(VT)}, {s(S_T0)}, {v(VT)}')
    k.e(f'v_and_b32 {v(VU)}, 1, {v(VQ)}\nv_lshlrev_b32 {v(VU)}, 1, {v(VU)}\nv_xor_b32 {v(VT)}, {v(VT)}, {v(VU)}')
    k.e(f'v_lshl_add_u32 {v(VTR)}, {v(VT)}, 4, {v(VTR)}\nv_and_b32 {v(VT)}, 1, {v(VL)}\nv_lshl_add_u32 {v(VTR)}, {v(VT)}, 3, {v(VTR)}')
    k.e(f's_lshl_b32 {s(S_T0)}, {s(S_KH)}, 14\nv_add_u32 {v(VTR)}, {s(S_T0)}, {v(VTR)}')
    k.e(f's_lshl_b32 {s(S_T0)}, {s(S_KH)}, 10\ns_add_u32 {s(S_T0)}, {s(S_T0)}, {C_PAR}\nv_lshl_add_u32 {v(VPA)}, {v(VQ)}, 5, {s(S_T0)}')
    k.e(f's_lshl_b32 {s(S_T1)}, {s(S_RT)}, 8\ns_add_u32 {s(S_T0)}, {s(S_T1)}, {C_HB}')
    k.e(f'v_lshlrev_b32 {v(VHW)}, 9, {v(VQ)}\nv_lshl_add_u32 {v(VHW)}, {v(VI)}, 4, {v(VHW)}\nv_add_u32 {v(VHW)}, {s(S_T0)}, {v(VHW)}')
    k.e(f's_lshl_b32 s62, {s(S_KH)}, 3\ns_sub_u32 s62, s62, {s(S_OFC)}\ns_and_b32 s62, s62, 15\ns_lshl_b32 s62, s62, 11')
    k.e(f'v_lshlrev_b32 {v(VHR)}, 9, {v(VQ)}\nv_lshl_add_u32 {v(VHR)}, {v(VI)}, 4, {v(VHR)}\nv_add_u32 {v(VHR)}, {C_HB}, {v(VHR)}')
    k.e(f's_lshl_b32 {s(S_T0)}, {s(S_WAVE)}, 7\ns_add_u32 {s(S_T0)}, {s(S_T0)}, {C_ST}\nv_lshl_add_u32 {v(VST)}, {v(VI)}, 3, {s(S_T0)}')
    X = 32; H = 64
    ONE = 30; S1, S2, S3, S4 = 96, 97, 98, 99; TM = 100
    k.e(f'v_mov_b32 {v(ONE)}, 0x3f803f80')
    for r in (S1, S2, S3, S4): k.e(f'v_mov_b32 {v(r)}, 0')
    stamp(k, 1)
    k.wait(tdma); k.e('s_barrier')
    stamp(k, 2)
    if CFG['warm2'] == 1: warm(k, W2F, 512 * KB)
    if CFG['warm3'] == 1: warm(k, W3F, W3F_BYTES)
    if CFG['warm4'] == 1: warm(k, W4F, W4F_BYTES)
    toks = []
    for st in range(8):
        k.ds(f'ds_read_b64_tr_b16 {v(X+4*st,2)}, {v(VTR)} offset:{2048*st}')
        toks.append(k.ds(f'ds_read_b64_tr_b16 {v(X+4*st+2,2)}, {v(VTR)} offset:{2048*st+256}'))
    for st in range(8):
        k.wait(toks[st])
        for i in range(4):
            k.e(f'v_dot2_f32_bf16 {v(S1 + (i&1))}, {v(X+4*st+i)}, {v(ONE)}, {v(S1 + (i&1))}')
            k.e(f'v_dot2_f32_bf16 {v(S3 + (i&1))}, {v(X+4*st+i)}, {v(X+4*st+i)}, {v(S3 + (i&1))}')
        if st % CFG['c_st_every'] == CFG['c_st_every'] - 1: bg.tick('W1', 1)
    q_W12(k, bg, 'W2', SW2, 128)
    k.e(f'v_add_f32 {v(S1)}, {v(S1)}, {v(S2)}\nv_add_f32 {v(S2)}, {v(S3)}, {v(S4)}')
    reduce_q(k, [S1, S2], TM)
    k.ds(f'ds_write_b64 {v(VST)}, {v(S1,2)}')
    k.barrier()
    k.e(f'v_xor_b32 {v(VT)}, 256, {v(VST)}')
    t = k.ds(f'ds_read_b64 {v(S3,2)}, {v(VT)}')
    PA = 156; NP = 3
    def read_par(st):
        b = PA + 16 * (st % NP)
        k.ds(f'ds_read_b128 {v(b,4)}, {v(VPA)} offset:{128*st}')
        k.ds(f'ds_read_b128 {v(b+4,4)}, {v(VPA)} offset:{128*st+16}')
        k.ds(f'ds_read_b128 {v(b+8,4)}, {v(VPA)} offset:{128*st+2048}')
        return k.ds(f'ds_read_b128 {v(b+12,4)}, {v(VPA)} offset:{128*st+2064}')
    tp = {0: read_par(0)}
    k.wait(t)
    tp[1] = read_par(1)
    k.e(f'v_add_f32 {v(S1)}, {v(S1)}, {v(S3)}\nv_add_f32 {v(S2)}, {v(S2)}, {v(S4)}')
    mean_rstd(k, S1, S2, TM)
    RS, NMR = 204, 206
    k.e(f'v_mov_b32 {v(RS)}, {v(S2)}\nv_mov_b32 {v(NMR)}, {v(S1)}')
    for r in (S1, S2, S3, S4): k.e(f'v_mov_b32 {v(r)}, 0')
    U = 140
    if CFG['warm2'] == 2: warm(k, W2F, 512 * KB)
    if CFG['warm3'] == 2: warm(k, W3F, W3F_BYTES)
    if CFG['warm4'] == 2: warm(k, W4F, W4F_BYTES)
    for st in range(8):
        if st + 2 < 8: tp[st+2] = read_par(st + 2)
        b = PA + 16 * (st % NP)
        for i in range(4):
            k.e(f'v_lshlrev_b32 {v(U+2*i)}, 16, {v(X+4*st+i)}\nv_and_b32 {v(U+2*i+1)}, 0xffff0000, {v(X+4*st+i)}')
        bg.tick('W1', 1)
        for i in range(4):
            k.e(f'v_pk_fma_f32 {v(U+2*i,2)}, {v(U+2*i,2)}, {v(RS,2)}, {v(NMR,2)} op_sel_hi:[1,0,0]')
        k.wait(tp[st])
        for i in range(4):
            k.e(f'v_pk_fma_f32 {v(U+2*i,2)}, {v(U+2*i,2)}, {v(b+8+2*i,2)}, {v(b+2*i,2)}')
        for i in range(4):
            k.e(f'v_cvt_pk_bf16_f32 {v(H+4*st+i)}, {v(U+2*i)}, {v(U+2*i+1)}')
        k.e(f'v_add_u32 {v(VT)}, s62, {v(VHW)}')
        k.ds(f'ds_write_b128 {v(VT)}, {v(H+4*st,4)}')
        if st < 7: k.e('s_add_u32 s62, s62, 2048\ns_and_b32 s62, s62, 0x7fff')
        bg.tick('W1', 1)
        if CFG['c_ln_w2'] and not bg.q.get('W1'): bg.tick('W2', CFG['c_ln_w2'])
        for i in range(4):
            k.e(f'v_dot2_f32_bf16 {v(S1 + (i&1))}, {v(H+4*st+i)}, {v(ONE)}, {v(S1 + (i&1))}')
            k.e(f'v_dot2_f32_bf16 {v(S3 + (i&1))}, {v(H+4*st+i)}, {v(H+4*st+i)}, {v(S3 + (i&1))}')
    k.e(f'v_add_f32 {v(S1)}, {v(S1)}, {v(S2)}\nv_add_f32 {v(S2)}, {v(S3)}, {v(S4)}')
    reduce_q(k, [S1, S2], TM)
    k.ds(f'ds_write_b64 {v(VST)}, {v(S1,2)} offset:512')
    stamp(k, 3)
    bg.drain('W1')
    lodd, ldone = k.newlabel('odd'), k.newlabel('sdone')
    k.wait(tcs, bg.tok[('W1', 31)])
    k.e(f's_lshr_b32 {s(S_T0)}, {s(S_G)}, 1\ns_cmp_eq_u32 {s(S_T0)}, {s(S_KH)}'); k.e(f's_cbranch_scc0 {ldone}')
    k.e(f's_lshl_b32 {s(S_T0)}, {s(S_RB64)}, 16\ns_lshl_b32 {s(S_T1)}, {s(S_G)}, 14\ns_add_u32 {s(S_T0)}, {s(S_T0)}, {s(S_T1)}')
    k.e(f's_and_b32 {s(S_T1)}, {s(S_RB32)}, 1\ns_lshl_b32 {s(S_T1)}, {s(S_T1)}, 1\ns_add_u32 {s(S_T1)}, {s(S_T1)}, {s(S_RT)}\ns_lshl_b32 {s(S_T1)}, {s(S_T1)}, 10\ns_add_u32 {s(S_T0)}, {s(S_T0)}, {s(S_T1)}')
    k.e(f's_bitcmp1_b32 {s(S_G)}, 0'); k.e(f's_cbranch_scc1 {lodd}')
    for base, lab in ((0, None), (4, lodd)):
        if lab: k.label(lab)
        for i in range(4):
            phantom(k, f'buffer_store_dwordx4 {v(X+4*(base+i),4)}, {v(VL16)}, {s(SX2,4)}, {s(S_T0)} offen{SC}')
            if i < 3: k.e(f's_add_u32 {s(S_T0)}, {s(S_T0)}, 4096')
        if not lab: k.e(f's_branch {ldone}')
    k.label(ldone)
    k.barrier()
    stamp(k, 4)
    k.e(f'v_lshlrev_b32 {v(VT)}, 3, {v(VI)}\nv_add_u32 {v(VT)}, {C_ST + 512}, {v(VT)}')
    ST = 96
    ts = [k.ds(f'ds_read_b64 {v(ST+2*w,2)}, {v(VT)} offset:{128*w}') for w in range(4)]
    ACC = 140; BF = 104; NB = 4
    def readB(st):
        b = BF + 8 * (st % NB)
        k.ds(f'ds_read_b128 {v(b,4)}, {v(VHR)} offset:{2048*st}')
        return k.ds(f'ds_read_b128 {v(b+4,4)}, {v(VHR)} offset:{2048*st+256}')
    if CFG['warm3'] == 3: warm(k, W3F, W3F_BYTES)
    if CFG['warm4'] == 3: warm(k, W4F, W4F_BYTES)
    PD = CFG['c_pd']
    tb = {n: readB(n) for n in range(PD)}
    k.wait(ts[3])
    k.e(f'v_pk_add_f32 {v(ST,2)}, {v(ST,2)}, {v(ST+4,2)}\nv_pk_add_f32 {v(ST+2,2)}, {v(ST+2,2)}, {v(ST+6,2)}')
    for st in range(16):
        if st + PD < 16: tb[st+PD] = readB(st + PD)
        k.wait(tb[st])
        b = BF + 8 * (st % NB)
        for rt in range(2):
            for tau in range(2):
                acc = v(ACC+8*rt+4*tau,4)
                mfma16(k, acc, a(8*st+4*tau,4), v(b+4*rt,4), '0' if st == 0 else acc)
        if st % CFG['c_g_every'] == CFG['c_g_every'] - 1: bg.tick('W2', CFG['c_g_n'])
        if st == 0:
            mean_var(k, ST, ST+1, TM); mean_var(k, ST+2, ST+3, TM)
        if st == 2:
            for i in range(8): k.e(f'v_add_f32 {v(CS+i)}, {v(CS+i)}, {v(CS+8+i)}')
    stamp(k, 5)
    q_W3(k, bg, (0, 1))
    KC = [[100, 102, 104, 106], [108, 110, 112, 114]]
    for rt in range(2): gelu_row_consts(k, ST + 2*rt, ST + 2*rt + 1, KC[rt], 116)
    k.e(f's_lshl_b32 {s(S_T0)}, {s(S_G)}, 2\ns_add_u32 {s(S_T0)}, {s(S_T0)}, {s(S_WAVE)}\ns_lshl_b32 {s(S_T0)}, {s(S_T0)}, 11')
    k.e(f's_lshl_b32 {s(S_T1)}, {s(S_RB32)}, 15\ns_add_u32 {s(S_T0)}, {s(S_T0)}, {s(S_T1)}\ns_mov_b32 s61, {s(S_T0)}')
    TP = 120; O = 32
    for rt in range(2):
        prs = [ACC + 8*rt + 2*i for i in range(4)]
        NM_, A_, B_, IR_ = KC[rt]
        for n, ins in enumerate(gelu_pk(prs, [CS + 2*i for i in range(4)], [TP + 2*i for i in range(4)], NM_, A_, B_, IR_)):
            k.e(ins)
            if n % CFG['c_epi_bg'] == CFG['c_epi_bg'] - 1: bg.tick('W3', 1)
        for i, p in enumerate(prs): k.e(f'v_cvt_pk_bf16_f32 {v(O+4*rt+i)}, {v(p)}, {v(p+1)}')
        k.vm(f'buffer_store_dwordx4 {v(O+4*rt,4)}, {v(VL16)}, {s(SH1,4)}, {s(S_T0)} offen offset:{1024*rt}{SC}')
    def rr():
        k.e(f'v_lshlrev_b32 {v(VT)}, 7, {v(VL)}\nv_mov_b32 {v(VU)}, {hex(OOB)}\nv_cmp_gt_u32 vcc, 16, {v(VL)}\nv_cndmask_b32 {v(VT)}, {v(VU)}, {v(VT)}, vcc')
        k.vm(f'buffer_load_dword v0, {v(VT)}, {s(SH1,4)}, s61 offen{SC}')
    publish(k, 0, rr)
    stamp(k, 6)

D_HB = 0; D_ST = C_ST
def phase_D(k, bg):
    S_T0, S_T1, S_T2, S_SG, S_PO = 44, 45, 46, 47, 60
    SH1, SX1, SST = 48, 64, 68
    k.c('phase D : shifted h1 @ w2 + h2 -> x1, row statistics')
    bg.tick('W2', CFG['d_pre'])
    srd(k, SH1, P_WS, H1C, 2 * MB)
    srd(k, SX1, P_WS, X1C, 2 * MB)
    srd(k, SST, P_WS, ST4, 2048 * 32)
    S_GWD = 62
    k.e(f's_lshr_b32 {s(S_GWD)}, {s(S_OFD)}, 2\ns_add_u32 {s(S_GWD)}, {s(S_GWD)}, {s(S_WAVE)}\ns_and_b32 {s(S_GWD)}, {s(S_GWD)}, 3')
    k.e(f's_lshr_b32 {s(S_T0)}, {s(S_GWD)}, 1\ns_add_u32 {s(S_T0)}, {s(S_T0)}, 1')
    k.e(f's_sub_u32 {s(S_T1)}, 0, {s(S_T0)}\ns_bitcmp1_b32 {s(S_GWD)}, 0\ns_cselect_b32 {s(S_SG)}, {s(S_T0)}, {s(S_T1)}')
    k.e(f's_add_u32 {s(S_T0)}, {s(S_R32)}, {s(S_SG)}')
    VO0, VO1 = 8, 9
    for rt, vo in ((0, VO0), (1, VO1)):
        k.e(f'v_add_u32 {v(VT)}, {s(S_T0)}, {v(VI)}')
        if rt: k.e(f'v_add_u32 {v(VT)}, 16, {v(VT)}')
        k.e(f'v_lshrrev_b32 {v(vo)}, 5, {v(VT)}\nv_lshlrev_b32 {v(vo)}, 15, {v(vo)}')
        k.e(f'v_bfe_u32 {v(VU)}, {v(VT)}, 4, 1\nv_lshl_add_u32 {v(vo)}, {v(VU)}, 10, {v(vo)}')
        k.e(f'v_and_b32 {v(VU)}, 15, {v(VT)}\nv_lshl_add_u32 {v(vo)}, {v(VU)}, 4, {v(vo)}\nv_lshl_add_u32 {v(vo)}, {v(VQ)}, 8, {v(vo)}')
        k.e(f'v_mov_b32 {v(VU)}, {hex(OOB)}\nv_cmp_gt_u32 vcc, 2048, {v(VT)}\nv_cndmask_b32 {v(vo)}, {v(VU)}, {v(vo)}, vcc')
    VGO, VH2 = 10, 11
    k.e(f's_lshl_b32 {s(S_PO)}, {s(S_G)}, 2\ns_add_u32 {s(S_PO)}, {s(S_PO)}, {s(S_WAVE)}')
    k.e(f's_sub_u32 {s(S_T0)}, {s(S_PO)}, {s(S_OFC)}\ns_and_b32 {s(S_T0)}, {s(S_T0)}, 15\ns_lshl_b32 {s(S_T0)}, {s(S_T0)}, 11\ns_add_u32 {s(S_T0)}, {s(S_T0)}, {C_HB}')
    k.e(f'v_lshlrev_b32 {v(VH2)}, 9, {v(VQ)}\nv_lshl_add_u32 {v(VH2)}, {v(VI)}, 4, {v(VH2)}\nv_add_u32 {v(VH2)}, {s(S_T0)}, {v(VH2)}')
    k.e(f's_lshl_b32 {s(S_PO)}, {s(S_PO)}, 12\ns_lshl_b32 {s(S_T0)}, {s(S_RB64)}, 16\ns_add_u32 {s(S_PO)}, {s(S_PO)}, {s(S_T0)}')
    k.e(f's_and_b32 {s(S_T0)}, {s(S_RB32)}, 1\ns_lshl_b32 {s(S_T0)}, {s(S_T0)}, 11\ns_add_u32 {s(S_PO)}, {s(S_PO)}, {s(S_T0)}')
    H2 = 12
    k.ds(f'ds_read_b128 {v(H2,4)}, {v(VH2)}')
    th2 = k.ds(f'ds_read_b128 {v(H2+4,4)}, {v(VH2)} offset:256')
    k.e(f's_lshl_b32 s43, {s(S_RB32)}, 2\ns_sub_u32 s43, s43, 4')
    await_flags(k, 0, 43, 12)
    stamp(k, 11)
    k.e(f's_lshl_b32 {s(S_T2)}, {s(S_WAVE)}, 13\ns_lshl_b32 {s(S_T1)}, {s(S_GWD)}, 13')
    for i in range(4):
        for rt, vo in ((0, VO0), (1, VO1)):
            k.e(f's_add_u32 m0, {s(S_T2)}, {D_HB + 2048*i + 1024*rt}')
            tdma = k.vm(f'buffer_load_dwordx4 {v(vo)}, {s(SH1,4)}, {s(S_T1)} offen{SC} lds')
        if i < 3: k.e(f's_add_u32 {s(S_T1)}, {s(S_T1)}, 2048')
    bg.tick('W2', CFG['d_dma_bg'])
    if CFG['warm4'] == 4: warm(k, W4F, W4F_BYTES)
    bg.tick('W3', CFG['d_dma_w3'])
    ACC = 20; BF = 36; NB = 4
    k.wait(tdma); k.e('s_barrier')
    stamp(k, 12)
    def readB(st):
        b = BF + 8 * (st % NB)
        k.ds(f'ds_read_b128 {v(b,4)}, {v(VL16)} offset:{D_HB + 2048*st}')
        return k.ds(f'ds_read_b128 {v(b+4,4)}, {v(VL16)} offset:{D_HB + 2048*st + 1024}')
    PD = CFG['d_pd']
    tb = {n: readB(n) for n in range(PD)}
    for st in range(16):
        if st + PD < 16: tb[st+PD] = readB(st + PD)
        k.wait(tb[st], *bg.need(('W2', 2*st), ('W2', 2*st+1)))
        b = BF + 8 * (st % NB)
        for rt in range(2):
            for tau in range(2):
                acc = v(ACC+8*rt+4*tau,4)
                mfma16(k, acc, a(128+8*st+4*tau,4), v(b+4*rt,4), '0' if st == 0 else acc)
        if st % CFG['d_g_every'] == CFG['d_g_every'] - 1: bg.tick('W3', CFG['d_g_n'])
    stamp(k, 13)
    q_W3(k, bg, (2,))
    U = 36; SM = 52; O = 60; TM = 68
    k.wait(th2)
    ne = [CFG['d_epi_bg']]
    def etick():
        if ne[0] > 0: bg.tick('W3', 1); ne[0] -= 1
    for rt in range(2):
        for i in range(4):
            k.e(f'v_lshlrev_b32 {v(U+8*rt+2*i)}, 16, {v(H2+4*rt+i)}\nv_and_b32 {v(U+8*rt+2*i+1)}, 0xffff0000, {v(H2+4*rt+i)}')
            if i & 1: etick()
    for rt in range(2):
        for i in range(4):
            p = ACC + 8*rt + 2*i
            k.e(f'v_pk_add_f32 {v(p,2)}, {v(p,2)}, {v(U+8*rt+2*i,2)}')
    for rt in range(2):
        for i in range(4):
            p = ACC + 8*rt + 2*i
            k.e(f'v_cvt_pk_bf16_f32 {v(O+4*rt+i)}, {v(p)}, {v(p+1)}')
        k.vm(f'buffer_store_dwordx4 {v(O+4*rt,4)}, {v(VL16)}, {s(SX1,4)}, {s(S_PO)} offen offset:{1024*rt}{SC}')
    for rt in range(2):
        p = ACC + 8*rt; sm = SM + 4*rt
        etick(); etick()
        k.e(f'v_pk_add_f32 {v(sm,2)}, {v(p,2)}, {v(p+2,2)}\nv_pk_mul_f32 {v(sm+2,2)}, {v(p,2)}, {v(p,2)}')
        k.e(f'v_pk_add_f32 {v(sm,2)}, {v(sm,2)}, {v(p+4,2)}\nv_pk_fma_f32 {v(sm+2,2)}, {v(p+2,2)}, {v(p+2,2)}, {v(sm+2,2)}')
        k.e(f'v_pk_add_f32 {v(sm,2)}, {v(sm,2)}, {v(p+6,2)}\nv_pk_fma_f32 {v(sm+2,2)}, {v(p+4,2)}, {v(p+4,2)}, {v(sm+2,2)}')
        k.e(f'v_pk_fma_f32 {v(sm+2,2)}, {v(p+6,2)}, {v(p+6,2)}, {v(sm+2,2)}')
    for rt in range(2):
        sm = SM + 4*rt
        k.e(f'v_add_f32 {v(sm)}, {v(sm)}, {v(sm+1)}\nv_add_f32 {v(sm+1)}, {v(sm+2)}, {v(sm+3)}')
    reduce_q(k, [SM, SM+1, SM+4, SM+5], TM)
    k.e(f's_lshl_b32 {s(S_T0)}, {s(S_WAVE)}, 8\ns_add_u32 {s(S_T0)}, {s(S_T0)}, {D_ST}\nv_lshl_add_u32 {v(VT)}, {v(VI)}, 3, {s(S_T0)}')
    k.ds(f'ds_write_b64 {v(VT)}, {v(SM,2)}')
    k.ds(f'ds_write_b64 {v(VT)}, {v(SM+4,2)} offset:128')
    k.barrier()
    lend = k.newlabel('dend')
    k.e(f's_cmp_eq_u32 {s(S_WAVE)}, 0'); k.e(f's_cbranch_scc0 {lend}')
    k.e(f'v_and_b32 {v(VT)}, 31, {v(VL)}\nv_lshlrev_b32 {v(VU)}, 3, {v(VT)}\nv_add_u32 {v(VU)}, {D_ST}, {v(VU)}')
    ts = [k.ds(f'ds_read_b64 {v(U+2*w,2)}, {v(VU)} offset:{256*w}') for w in range(4)]
    k.e(f'v_add_u32 {v(VT)}, {s(S_R32)}, {v(VT)}\nv_lshlrev_b32 {v(VT)}, 5, {v(VT)}')
    k.e(f'v_mov_b32 {v(VU)}, {hex(OOB)}\nv_cmp_gt_u32 vcc, 32, {v(VL)}\nv_cndmask_b32 {v(VT)}, {v(VU)}, {v(VT)}, vcc')
    k.e(f's_lshl_b32 {s(S_T0)}, {s(S_G)}, 3')
    k.wait(ts[3])
    k.e(f'v_pk_add_f32 {v(U,2)}, {v(U,2)}, {v(U+2,2)}\nv_pk_add_f32 {v(U+4,2)}, {v(U+4,2)}, {v(U+6,2)}\nv_pk_add_f32 {v(U,2)}, {v(U,2)}, {v(U+4,2)}')
    phantom(k, f'buffer_store_dwordx2 {v(U,2)}, {v(VT)}, {s(SST,4)}, {s(S_T0)} offen{SC}')
    k.label(lend)
    def rr():
        k.e(f'v_lshlrev_b32 {v(VT)}, 7, {v(VL)}\nv_mov_b32 {v(VU)}, {hex(OOB)}\nv_cmp_gt_u32 vcc, 16, {v(VL)}\nv_cndmask_b32 {v(VT)}, {v(VU)}, {v(VT)}, vcc')
        k.vm(f'buffer_load_dword v0, {v(VT)}, {s(SX1,4)}, {s(S_PO)} offen{SC}')
    publish(k, 1, rr)
    stamp(k, 14)

E_XB = 0
def phase_E(k, bg):
    S_T0, S_T1, S_T2, S_GW = 44, 45, 46, 47
    SX1, SST, SCS, SH = 48, 52, 64, 68
    k.c('phase E : LN(x1) @ w3 -> gelu -> H')
    srd(k, SX1, P_WS, X1C, 2 * MB)
    srd(k, SST, P_WS, ST4, 2048 * 32)
    srd(k, SCS, P_WS, CS3, 2 * 1408 * 4)
    k.e(f's_mul_i32 {s(S_T0)}, {s(S_RB64)}, {HB_BLK}\ns_add_u32 {s(S_T0)}, {s(S_T0)}, {hex(HC)}')
    srd(k, SH, P_WS, s(S_T0), HB_BLK)
    k.e(f's_lshl_b32 {s(S_GW)}, {s(S_J)}, 2\ns_add_u32 {s(S_GW)}, {s(S_GW)}, {s(S_WAVE)}')
    CS = 48
    k.e(f's_mul_i32 {s(S_T0)}, {s(S_GW)}, {3*64}\nv_lshlrev_b32 {v(VT)}, 4, {v(VQ)}')
    for i in range(3):
        k.vm(f'buffer_load_dwordx4 {v(CS+4*i,4)}, {v(VT)}, {s(SCS,4)}, {s(S_T0)} offen offset:{64*i}{SC}')
    k.e(f's_add_u32 {s(S_T0)}, {s(S_T0)}, {1408*4}')
    for i in range(3):
        tcs = k.vm(f'buffer_load_dwordx4 {v(CS+12+4*i,4)}, {v(VT)}, {s(SCS,4)}, {s(S_T0)} offen offset:{64*i}{SC}')
    bg.tick('W3', CFG['e_pre'])
    VHO = 9
    k.e(f'v_lshrrev_b32 {v(VT)}, 1, {v(VQ)}\nv_lshlrev_b32 {v(VHO)}, 8, {v(VT)}\nv_lshl_add_u32 {v(VHO)}, {v(VI)}, 4, {v(VHO)}')
    k.e(f'v_and_b32 {v(VT)}, 1, {v(VQ)}\nv_lshl_add_u32 {v(VHO)}, {v(VT)}, 3, {v(VHO)}')
    S_HO = 61
    for i in range(3):
        k.e(f's_mul_i32 {s(S_T0)}, {s(S_GW)}, 3\ns_add_u32 {s(S_T0)}, {s(S_T0)}, {i}')
        k.e(f's_lshr_b32 {s(S_HO+i)}, {s(S_T0)}, 1\ns_lshl_b32 {s(S_HO+i)}, {s(S_HO+i)}, 12\ns_and_b32 {s(S_T0)}, {s(S_T0)}, 1\ns_lshl_b32 {s(S_T0)}, {s(S_T0)}, 9\ns_add_u32 {s(S_HO+i)}, {s(S_HO+i)}, {s(S_T0)}')
    k.e(f's_lshl_b32 s43, {s(S_RB64)}, 3')
    await_flags(k, 1, 43, 8)
    stamp(k, 21)
    STR = 16
    k.e(f'v_add_u32 {v(VT)}, {s(S_R64)}, {v(VI)}\nv_lshlrev_b32 {v(VT)}, 5, {v(VT)}')
    for rt in range(4):
        k.vm(f'buffer_load_dwordx4 {v(STR+8*rt,4)}, {v(VT)}, {s(SST,4)}, 0 offen offset:{512*rt}{SC}')
        tst = k.vm(f'buffer_load_dwordx4 {v(STR+8*rt+4,4)}, {v(VT)}, {s(SST,4)}, 0 offen offset:{512*rt+16}{SC}')
    k.e(f's_lshl_b32 {s(S_T2)}, {s(S_WAVE)}, 14\ns_lshl_b32 {s(S_T1)}, {s(S_RB64)}, 16')
    k.e(f's_lshl_b32 s60, {s(S_WAVE)}, 2\ns_add_u32 s60, s60, {s(S_OFE)}')
    tdma = {}
    def dma_x1(rt, n):
        k.e(f's_add_u32 m0, {s(S_T2)}, {E_XB + 4096*n + 1024*rt}')
        k.e(f's_add_u32 {s(S_T0)}, s60, {n}\ns_and_b32 {s(S_T0)}, {s(S_T0)}, 15\ns_lshl_b32 {s(S_T0)}, {s(S_T0)}, 12\ns_add_u32 {s(S_T0)}, {s(S_T0)}, {s(64+8)}')
        if rt: k.e(f's_add_u32 {s(S_T0)}, {s(S_T0)}, {1024*rt}')
        tdma[rt] = k.vm(f'buffer_load_dwordx4 {v(VL16)}, {s(SX1,4)}, {s(S_T0)} offen{SC} lds')
    k.e(f's_mov_b32 {s(64+8)}, {s(S_T1)}')
    pend_dma = [(rt, n) for rt in range(4) for n in range(4)]
    for _ in range(CFG['e_dma_first']): dma_x1(*pend_dma.pop(0))
    bg.drain('W3')
    k.wait(tst, tcs)
    for i in range(12): k.e(f'v_add_f32 {v(CS+i)}, {v(CS+i)}, {v(CS+12+i)}')
    KC = [[72 + 4*rt + j for j in range(4)] for rt in range(4)]
    KP = [[64 + 8*rt + 2*j for j in range(4)] for rt in range(4)]
    for rt in range(4):
        b = STR + 8*rt
        k.e(f'v_pk_add_f32 {v(b,2)}, {v(b,2)}, {v(b+2,2)}\nv_pk_add_f32 {v(b+4,2)}, {v(b+4,2)}, {v(b+6,2)}\nv_pk_add_f32 {v(b,2)}, {v(b,2)}, {v(b+4,2)}')
    for rt in range(4):
        b = STR + 8*rt
        mean_var(k, b, b+1, b+2)
        gelu_row_consts(k, b, b+1, KP[rt], b+2)
    k.wait(tdma[0]); k.e('s_barrier')
    stamp(k, 22)
    q_W4(k, bg)
    ACC = [96, 108]; BF = 120; NB = 4; TP = 16; O = 28
    def readB(rt, st):
        return k.ds(f'ds_read_b128 {v(BF+4*((16*rt+st) % NB),4)}, {v(VL16)} offset:{E_XB + 4096*st + 1024*rt}')
    TPP = 16
    def epi_pk(rt):
        A_ = ACC[rt & 1]; NM_, AA, BB, IR_ = KP[rt]; o = []
        prs = [A_ + 2*i for i in range(6)]
        for i, x in enumerate(prs): o.append(f'v_pk_fma_f32 {v(x,2)}, {v(CS+2*i,2)}, {v(NM_,2)}, {v(x,2)} op_sel_hi:[1,0,1]')
        for i, x in enumerate(prs): o.append(f'v_pk_mul_f32 {v(TPP+2*i,2)}, {v(x,2)}, {v(x,2)}')
        for i, x in enumerate(prs): o.append(f'v_pk_fma_f32 {v(TPP+2*i,2)}, {v(TPP+2*i,2)}, {v(BB,2)}, {v(AA,2)} op_sel_hi:[1,0,0]')
        for i, x in enumerate(prs): o.append(f'v_pk_mul_f32 {v(TPP+2*i,2)}, {v(TPP+2*i,2)}, {v(x,2)}')
        return o
    def epi_rest(rt):
        A_ = ACC[rt & 1]; NM_, AA, BB, IR_ = KP[rt]; o = []
        for j in range(12): o.append(f'v_exp_f32 {v(TPP+j)}, {v(TPP+j)}')
        for j in range(12): o.append(f'v_fma_f32 {v(TPP+j)}, {v(TPP+j)}, {v(IR_)}, {v(IR_)}')
        for j in range(12): o.append(f'v_rcp_f32 {v(TPP+j)}, {v(TPP+j)}')
        for j in range(12): o.append(f'v_mul_f32 {v(A_+j)}, {v(A_+j)}, {v(TPP+j)}')
        for i in range(6): o.append(f'v_cvt_pk_bf16_f32 {v(O+i+8*(rt&1))}, {v(A_+2*i)}, {v(A_+2*i+1)}')
        for i in range(3):
            if CFG['e_store']: o.append(f'buffer_store_dwordx2 {v(O+2*i+8*(rt&1),2)}, {v(VHO)}, {s(SH,4)}, {s(S_HO+i)} offen offset:{1024*rt}{SC}')
        return o
    def weight(ins): return 2 if ins.startswith(('v_exp', 'v_rcp')) else 1
    seq = [(rt, st) for rt in range(4) for st in range(16)]
    tb = {}
    PD = CFG['e_pd']
    for n in range(PD): tb[seq[n]] = readB(*seq[n])
    pend = []
    F2 = CFG['f2'] == 1; tst_ = {}
    VFA, VF = 136, 138
    def emit(ins, rt_prev):
        if ins.startswith('buffer_store'): tst_[rt_prev] = k.vm(ins)
        else: k.e(ins)
    def raise_flag(word):
        lab = k.newlabel('rf')
        k.e(f's_cmp_eq_u32 {s(S_WAVE)}, 0'); k.e(f's_cbranch_scc0 {lab}')
        k.e(f's_lshl_b32 s43, {s(S_RB64)}, 5\ns_add_u32 s43, s43, {s(S_J)}\ns_lshl_b32 s43, s43, 2\ns_add_u32 s43, s43, {2*16384 + 32*word}')
        k.e(f'v_mov_b32 {v(VT)}, {s(S_NONCE)}\nv_mov_b32 {v(VU)}, {hex(OOB)}\nv_cmp_eq_u32 vcc, 0, {v(VL)}\nv_cndmask_b32 {v(VU)}, {v(VU)}, {v(VL)}, vcc')
        phantom(k, f'buffer_store_dword {v(VT)}, {v(VU)}, {s(SFL,4)}, s43 offen{SC}')
        k.label(lab)
    def flags_fetch(): return None
    def flags_check(word, tok):
        ok, lp = k.newlabel('fok'), k.newlabel('flp')
        k.e('s_mov_b32 s43, 0')
        k.label(lp)
        k.e(f's_load_dwordx8 s[84:91], s[82:83], {32*word} glc') if False else k.e(f's_load_dwordx8 s[{SPL}:{SPL+7}], s[82:83], {32*word} glc')
        k.e('s_waitcnt lgkmcnt(0)')
        k.e(f's_and_b32 s{SPL}, s{SPL}, s{SPL+1}\ns_and_b32 s{SPL+2}, s{SPL+2}, s{SPL+3}\ns_and_b32 s{SPL+4}, s{SPL+4}, s{SPL+5}\ns_and_b32 s{SPL+6}, s{SPL+6}, s{SPL+7}')
        k.e(f's_and_b32 s{SPL}, s{SPL}, s{SPL+2}\ns_and_b32 s{SPL+4}, s{SPL+4}, s{SPL+6}\ns_and_b32 s{SPL}, s{SPL}, s{SPL+4}')
        k.e(f's_cmp_eq_u32 s{SPL}, {s(S_NONCE)}'); k.e(f's_cbranch_scc1 {ok}')
        k.e('s_add_u32 s43, s43, 1\ns_cmp_lt_u32 s43, 0x40000'); k.e(f's_cbranch_scc1 {lp}')
        k.label(ok)
    if F2:
        k.e(f's_lshl_b32 s43, {s(S_RB64)}, 7\ns_add_u32 s43, s43, {hex(FLG + 2*16384)}\ns_add_u32 s82, {s(P_WS)}, s43\ns_addc_u32 s83, {s(P_WS+1)}, 0')
    for n, (rt, st) in enumerate(seq):
        if st == 16 - PD - 1 and (rt < 3 or F2):
            if rt < 3: k.wait(tdma[rt+1])
            if F2 and rt >= 2: k.wait(tst_[rt-2])
            k.e('s_barrier')
            if F2 and rt >= 2: raise_flag(rt - 2)
        if F2 and rt == 3 and st == 11:
            bg.drain('W4')
            hs = f2_stream(k)
            flags_check(0, None)
        if F2 and rt == 3 and st >= 11:
            for s2_ in range(11):
                if (0, s2_) not in hs['tok'] and s2_ < 3 * (st - 10): hs['load'](0, s2_)
        if n + PD < len(seq): tb[seq[n+PD]] = readB(*seq[n+PD])
        k.wait(tb[(rt, st)])
        if rt == 0: k.wait(*bg.need(*[('W3', i, st) for i in range(3)]))
        b = BF + 4 * ((16*rt+st) % NB)
        for i in range(3):
            acc = v(ACC[rt & 1] + 4*i, 4)
            mfma16(k, acc, w3reg(i, st), v(b,4), '0' if st == 0 else acc)
            budget = CFG['e_budget']
            while pend and budget >= weight(pend[0]):
                budget -= weight(pend[0]); emit(pend.pop(0), rt - 1)
        if st == CFG['e_pk_at'] and rt > 0 and CFG['e_epi']:
            for ins in epi_pk(rt - 1): k.e(ins)
            pend = epi_rest(rt - 1)
        if pend_dma: dma_x1(*pend_dma.pop(0))
        elif CFG['e_bg'] and (rt < 3 or st < 11): bg.tick('W4', 1)
        if st == 15:
            for ins in pend: emit(ins, rt - 1)
            pend = []
            stamp(k, 26 + rt)
    stamp(k, 23)
    if F2:
        phase_F2(k, bg, hs, epi_pk(3) + epi_rest(3), emit, tst_, raise_flag, flags_fetch, flags_check)
        return
    if CFG['f2'] == 3:
        for ins in epi_pk(3) + epi_rest(3): k.e(ins)
        stamp(k, 24)
        publish(k, 2, rr3(k, S_HO, SH))
        stamp(k, 25)
        bg.drain('W4')
        phase_F3(k, f2_stream(k))
        return
    if CFG['f2'] == 2:
        for ins in epi_pk(3) + epi_rest(3): k.e(ins)
        stamp(k, 24)
        publish(k, 2, rr3(k, S_HO, SH))
        stamp(k, 25)
        bg.drain('W4')
        phase_F2(k, bg, f2_stream(k), None, None, None, None, None, None)
        return
    for ins in epi_pk(3) + epi_rest(3): k.e(ins)
    stamp(k, 24)
    def rr():
        k.e(f'v_mov_b32 {v(VT)}, {s(S_HO)}\nv_mov_b32 {v(VU)}, {s(S_HO+1)}\nv_cmp_eq_u32 vcc, 1, {v(VQ)}\nv_cndmask_b32 {v(VT)}, {v(VT)}, {v(VU)}, vcc')
        k.e(f'v_mov_b32 {v(VU)}, {s(S_HO+2)}\nv_cmp_eq_u32 vcc, 2, {v(VQ)}\nv_cndmask_b32 {v(VT)}, {v(VT)}, {v(VU)}, vcc')
        k.e(f'v_mov_b32 {v(VU)}, {hex(OOB)}\nv_cmp_eq_u32 vcc, 3, {v(VQ)}\nv_cndmask_b32 {v(VT)}, {v(VT)}, {v(VU)}, vcc')
        k.e(f'v_bfe_u32 {v(VU)}, {v(VL)}, 2, 2\nv_lshl_add_u32 {v(VT)}, {v(VU)}, 10, {v(VT)}\nv_and_b32 {v(VU)}, 3, {v(VL)}\nv_lshl_add_u32 {v(VT)}, {v(VU)}, 7, {v(VT)}')
        k.vm(f'buffer_load_dword v0, {v(VT)}, {s(SH,4)}, 0 offen{SC}')
    publish(k, 2, rr)
    stamp(k, 25)

def rr3(k, S_HO, SH):
    def rr():
        k.e(f'v_mov_b32 {v(VT)}, {s(S_HO)}\nv_mov_b32 {v(VU)}, {s(S_HO+1)}\nv_cmp_eq_u32 vcc, 1, {v(VQ)}\nv_cndmask_b32 {v(VT)}, {v(VT)}, {v(VU)}, vcc')
        k.e(f'v_mov_b32 {v(VU)}, {s(S_HO+2)}\nv_cmp_eq_u32 vcc, 2, {v(VQ)}\nv_cndmask_b32 {v(VT)}, {v(VT)}, {v(VU)}, vcc')
        k.e(f'v_mov_b32 {v(VU)}, {hex(OOB)}\nv_cmp_eq_u32 vcc, 3, {v(VQ)}\nv_cndmask_b32 {v(VT)}, {v(VT)}, {v(VU)}, vcc')
        k.e(f'v_bfe_u32 {v(VU)}, {v(VL)}, 2, 2\nv_lshl_add_u32 {v(VT)}, {v(VU)}, 10, {v(VT)}\nv_and_b32 {v(VU)}, 3, {v(VL)}\nv_lshl_add_u32 {v(VT)}, {v(VU)}, 7, {v(VT)}')
        k.vm(f'buffer_load_dword v0, {v(VT)}, {s(SH,4)}, 0 offen{SC}')
    return rr

def phase_F3(k, hs):
    S_T0, S_T1, S_OUT, S_XO = 44, 45, 74, 75
    SX1, SX2, SMOD, SO = 48, 52, 64, 76
    tH, loadH, slot = hs['tok'], hs['load'], hs['slot']
    k.c('phase F : H @ w4 by row tile; wave w finalises feature tile w (pair p = w>>1, half tau = w&1) of every row tile')
    srd(k, SX2, P_WS, X2C, 2 * MB)
    srd(k, SMOD, P_WS, MOD, 3072 * 4)
    srd(k, SO, P_OUT, 0, 2 * MB)
    EX1, EX2, GB = 96, 104, 12
    VE = 20
    k.e(f's_and_b32 {s(S_T0)}, {s(S_WAVE)}, 1\ns_lshl_b32 {s(S_T0)}, {s(S_T0)}, 3\nv_add_u32 {v(VE)}, {s(S_T0)}, {v(VL16)}')
    k.e(f's_lshl_b32 {s(S_XO)}, {s(S_RB64)}, 16\ns_lshl_b32 {s(S_T0)}, {s(S_J)}, 13\ns_add_u32 {s(S_XO)}, {s(S_XO)}, {s(S_T0)}')
    k.e(f's_lshr_b32 {s(S_T0)}, {s(S_WAVE)}, 1\ns_lshl_b32 {s(S_T0)}, {s(S_T0)}, 12\ns_add_u32 {s(S_XO)}, {s(S_XO)}, {s(S_T0)}')
    for rt in range(4):
        k.vm(f'buffer_load_dwordx2 {v(EX1+2*rt,2)}, {v(VE)}, {s(SX1,4)}, {s(S_XO)} offen offset:{1024*rt}{SC}')
        k.vm(f'buffer_load_dwordx2 {v(EX2+2*rt,2)}, {v(VE)}, {s(SX2,4)}, {s(S_XO)} offen offset:{1024*rt}{SC}')
    k.e(f's_lshl_b32 {s(S_T1)}, {s(S_J)}, 8\ns_add_u32 {s(S_T1)}, {s(S_T1)}, {5*2048}')
    k.e(f's_lshr_b32 {s(S_T0)}, {s(S_WAVE)}, 1\ns_lshl_b32 {s(S_T0)}, {s(S_T0)}, 7\ns_add_u32 {s(S_T1)}, {s(S_T1)}, {s(S_T0)}')
    k.e(f's_and_b32 {s(S_T0)}, {s(S_WAVE)}, 1\ns_lshl_b32 {s(S_T0)}, {s(S_T0)}, 4\ns_add_u32 {s(S_T1)}, {s(S_T1)}, {s(S_T0)}')
    k.e(f'v_lshlrev_b32 {v(VT)}, 5, {v(VQ)}')
    tep = k.vm(f'buffer_load_dwordx4 {v(GB,4)}, {v(VT)}, {s(SMOD,4)}, {s(S_T1)} offen{SC}')
    VXW, VXR, VOUT = 21, 22, 23
    k.e(f's_lshl_b32 {s(S_T0)}, {s(S_WAVE)}, 12\nv_add_u32 {v(VXW)}, {s(S_T0)}, {v(VL16)}')
    k.e(f's_lshl_b32 {s(S_T0)}, {s(S_WAVE)}, 10\nv_add_u32 {v(VXR)}, {s(S_T0)}, {v(VL16)}')
    k.e(f'v_add_u32 {v(VOUT)}, {s(S_R64)}, {v(VI)}\nv_lshlrev_b32 {v(VOUT)}, 10, {v(VOUT)}\nv_lshl_add_u32 {v(VOUT)}, {v(VQ)}, 4, {v(VOUT)}')
    k.e(f's_lshl_b32 {s(S_OUT)}, {s(S_J)}, 7\ns_lshr_b32 {s(S_T0)}, {s(S_WAVE)}, 1\ns_lshl_b32 {s(S_T0)}, {s(S_T0)}, 6\ns_add_u32 {s(S_OUT)}, {s(S_OUT)}, {s(S_T0)}')
    k.e(f's_and_b32 {s(S_T0)}, {s(S_WAVE)}, 1\ns_lshl_b32 {s(S_T0)}, {s(S_T0)}, 3\ns_add_u32 {s(S_OUT)}, {s(S_OUT)}, {s(S_T0)}')
    order = [(rt, st) for rt in range(4) for st in range(11)]
    k.e(f's_lshl_b32 s43, {s(S_RB64)}, 3')
    await_flags(k, 2, 43, 8)
    nxt = 0
    while nxt < CFG['f_depth2']: loadH(*order[nxt]); nxt += 1
    stamp(k, 31)
    ACC = 128; PR = 32; U = 48; O = 56
    def acc(rt, t): return a(ACC + 16*(rt & 1) + 4*t, 4)
    def fin_reads(rt):
        return [k.ds(f'ds_read_b128 {v(PR+4*n,4)}, {v(VXR)} offset:{4096*n + 16384*(rt & 1)}') for n in range(4)]
    def fin_ins(rt):
        o = []
        for i in range(4): o.append(f'v_add_f32 {v(PR+i)}, {v(PR+i)}, {v(PR+4+i)}')
        for i in range(4): o.append(f'v_add_f32 {v(PR+8+i)}, {v(PR+8+i)}, {v(PR+12+i)}')
        for i in range(2): o += [f'v_lshlrev_b32 {v(U+2*i)}, 16, {v(EX1+2*rt+i)}', f'v_and_b32 {v(U+2*i+1)}, 0xffff0000, {v(EX1+2*rt+i)}']
        for i in range(4): o.append(f'v_add_f32 {v(PR+i)}, {v(PR+i)}, {v(PR+8+i)}')
        for i in range(2): o += [f'v_lshlrev_b32 {v(U+4+2*i)}, 16, {v(EX2+2*rt+i)}', f'v_and_b32 {v(U+4+2*i+1)}, 0xffff0000, {v(EX2+2*rt+i)}']
        for i in range(4): o.append(f'v_add_f32 {v(PR+i)}, {v(PR+i)}, {v(U+i)}')
        for i in range(4): o.append(f'v_fma_f32 {v(PR+i)}, {v(PR+i)}, {v(GB+i)}, {v(U+4+i)}')
        for i in range(2): o.append(f'v_cvt_pk_bf16_f32 {v(O+i)}, {v(PR+2*i)}, {v(PR+2*i+1)}')
        o.append(f's_add_u32 s43, {s(S_OUT)}, {16384*rt}')
        o.append(f'buffer_store_dwordx2 {v(O,2)}, {v(VOUT)}, {s(SO,4)}, s43 offen')
        return o
    pend = []; tr = None
    for rt in range(4):
        for st in range(11):
            k.wait(tH[(rt, st)])
            for t in range(4):
                mfma16(k, acc(rt, t), w4reg(st, t), slot(rt, st), '0' if st == 0 else acc(rt, t))
                for _ in range(2):
                    if pend: k.e(pend.pop(0))
            if nxt < 44 and nxt - (11*rt + st) <= 32: loadH(*order[nxt]); nxt += 1
            if rt >= 1 and st == 1:
                k.e('s_waitcnt lgkmcnt(0)'); k.e('s_barrier')
                tr = fin_reads(rt - 1)
            if rt >= 1 and st == 3:
                k.wait(tr[3])
                if rt == 1: k.wait(tep)
                pend = fin_ins(rt - 1)
        for ins in pend: k.e(ins)
        pend = []
        for t in range(4): k.ds(f'ds_write_b128 {v(VXW)}, {acc(rt, t)} offset:{1024*t + 16384*(rt & 1)}')
        if rt < 3: stamp(k, 32 + rt)
    k.e('s_waitcnt lgkmcnt(0)'); k.e('s_barrier')
    stamp(k, 35)
    tr = fin_reads(3); k.wait(tr[3])
    for ins in fin_ins(3): k.e(ins)

def f2_stream(k):
    S_T0, S_T1, S_HF, SHF = 44, 45, 73, 56
    k.e(f's_mul_i32 {s(S_T0)}, {s(S_RB64)}, {HB_BLK}\ns_mul_i32 {s(S_T1)}, {s(S_WAVE)}, {11*4096}\ns_add_u32 {s(S_T0)}, {s(S_T0)}, {s(S_T1)}')
    k.e(f's_add_u32 {s(SHF)}, {s(P_WS)}, {hex(HC)}\ns_addc_u32 {s(SHF+1)}, {s(P_WS+1)}, 0\ns_add_u32 {s(SHF)}, {s(SHF)}, {s(S_T0)}\ns_addc_u32 {s(SHF+1)}, {s(SHF+1)}, 0')
    k.e(f's_sub_u32 {s(SHF+2)}, {HB_BLK}, {s(S_T1)}\ns_mov_b32 {s(SHF+3)}, 0x20000')
    tH = {}
    def slot(rt, st): return a(4 * ((11*rt + st) % 32), 4)
    def loadH(rt, st):
        k.e(f's_movk_i32 {s(S_HF)}, {4096*st}') if 4096*st < 32768 else k.e(f's_mov_b32 {s(S_HF)}, {4096*st}')
        tH[(rt, st)] = k.vm(f'buffer_load_dwordx4 {slot(rt, st)}, {v(VL16)}, {s(SHF,4)}, {s(S_HF)} offen offset:{1024*rt}{SC}')
    return dict(tok=tH, load=loadH, slot=slot)

def phase_F2(k, bg, hs, epi3, emit, tst_, raise_flag, flags_fetch, flags_check):
    S_T0, S_T1, S_OUT = 44, 45, 47
    SX1, SX2, SMOD, SO = 48, 52, 64, 76
    k.c('phase F : H @ w4 by row tile, final residual')
    tH, loadH, slot = hs['tok'], hs['load'], hs['slot']
    simple = CFG['f2'] == 2
    if simple:
        srd(k, SX2, P_WS, X2C, 2 * MB)
        srd(k, SMOD, P_WS, MOD, 3072 * 4)
        srd(k, SO, P_OUT, 0, 2 * MB)
    else:
        f2_front(k, hs, epi3, emit, tst_, raise_flag, flags_check, SX2, SMOD, SO)
    f2_main(k, hs, flags_check, simple, SX1, SX2, SMOD, SO)

def f2_front(k, hs, epi3, emit, tst_, raise_flag, flags_check, SX2, SMOD, SO):
    tH, loadH, slot = hs['tok'], hs['load'], hs['slot']
    for st in range(11):
        if (0, st) not in tH: loadH(0, st)
    tfl = None
    k.wait(tst_[2]); k.e('s_barrier')
    raise_flag(2)
    half = len(epi3) // 2
    for ins in epi3[:CFG['f_h1_at']]: emit(ins, 3)
    flags_check(1, tfl)
    for st in range(11): loadH(1, st)
    for ins in epi3[CFG['f_h1_at']:]: emit(ins, 3)
    stamp(k, 24)
    srd(k, SX2, P_WS, X2C, 2 * MB)
    srd(k, SMOD, P_WS, MOD, 3072 * 4)
    srd(k, SO, P_OUT, 0, 2 * MB)
    if CFG['f_h2_early']:
        flags_check(2, tfl)
        for st in range(10): loadH(2, st)
    k.wait(tst_[3]); k.e('s_barrier')
    raise_flag(3)
    stamp(k, 25)

def f2_main(k, hs, flags_check, simple, SX1, SX2, SMOD, SO):
    S_T0, S_T1, S_OUT = 44, 45, 74
    tH, loadH, slot = hs['tok'], hs['load'], hs['slot']
    tfl = None
    EX1, EX2, GB = 96, 104, 12
    k.e(f's_lshl_b32 {s(S_T1)}, {s(S_RB64)}, 16\ns_lshl_b32 {s(S_T0)}, {s(S_J)}, 13\ns_add_u32 {s(S_T1)}, {s(S_T1)}, {s(S_T0)}')
    k.e(f's_and_b32 {s(S_T0)}, {s(S_WAVE)}, 1\ns_lshl_b32 {s(S_T0)}, {s(S_T0)}, 12\ns_add_u32 {s(S_T1)}, {s(S_T1)}, {s(S_T0)}')
    k.e(f's_lshr_b32 {s(S_T0)}, {s(S_WAVE)}, 1\ns_lshl_b32 {s(S_T0)}, {s(S_T0)}, 10\ns_add_u32 {s(S_T1)}, {s(S_T1)}, {s(S_T0)}')
    for h in range(2):
        k.vm(f'buffer_load_dwordx4 {v(EX1+4*h,4)}, {v(VL16)}, {s(SX1,4)}, {s(S_T1)} offen offset:{2048*h}{SC}')
        k.vm(f'buffer_load_dwordx4 {v(EX2+4*h,4)}, {v(VL16)}, {s(SX2,4)}, {s(S_T1)} offen offset:{2048*h}{SC}')
    k.e(f's_lshl_b32 {s(S_T1)}, {s(S_J)}, 8\ns_add_u32 {s(S_T1)}, {s(S_T1)}, {5*2048}\ns_and_b32 {s(S_T0)}, {s(S_WAVE)}, 1\ns_lshl_b32 {s(S_T0)}, {s(S_T0)}, 7\ns_add_u32 {s(S_T1)}, {s(S_T1)}, {s(S_T0)}')
    k.e(f'v_lshlrev_b32 {v(VT)}, 5, {v(VQ)}')
    k.vm(f'buffer_load_dwordx4 {v(GB,4)}, {v(VT)}, {s(SMOD,4)}, {s(S_T1)} offen{SC}')
    tep = k.vm(f'buffer_load_dwordx4 {v(GB+4,4)}, {v(VT)}, {s(SMOD,4)}, {s(S_T1)} offen offset:16{SC}')
    VXL, VXH, VR, VOUT = 20, 21, 22, 25
    k.e(f's_and_b32 {s(S_T0)}, {s(S_WAVE)}, 1\ns_lshl_b32 {s(S_T0)}, {s(S_T0)}, 11\ns_lshl_b32 {s(S_T1)}, {s(S_WAVE)}, 12')
    k.e(f's_add_u32 s43, {s(S_T1)}, {s(S_T0)}\nv_add_u32 {v(VXL)}, s43, {v(VL16)}\nv_xor_b32 {v(VXH)}, 2048, {v(VXL)}')
    for n in range(1, 4):
        k.e(f's_add_u32 s43, {s(S_WAVE)}, {n}\ns_and_b32 s43, s43, 3\ns_lshl_b32 s43, s43, 12\ns_add_u32 s43, s43, {s(S_T0)}\nv_add_u32 {v(VR+n-1)}, s43, {v(VL16)}')
    k.e(f'v_add_u32 {v(VOUT)}, {s(S_R64)}, {v(VI)}\nv_lshlrev_b32 {v(VOUT)}, 10, {v(VOUT)}\nv_lshl_add_u32 {v(VOUT)}, {v(VQ)}, 4, {v(VOUT)}')
    k.e(f's_lshr_b32 {s(S_T0)}, {s(S_T0)}, 5\ns_lshl_b32 {s(S_OUT)}, {s(S_J)}, 7\ns_add_u32 {s(S_OUT)}, {s(S_OUT)}, {s(S_T0)}')
    ACC = 128
    KEEP, PR, U, O = 32, 40, 64, 80
    def acc(rt, t): return a(ACC + 16*(rt & 1) + 4*t, 4)
    def owner_reads(rt):
        lab = k.newlabel('ord')
        k.e(f's_lshr_b32 s43, {s(S_WAVE)}, 1\ns_cmp_eq_u32 s43, {rt & 1}'); k.e(f's_cbranch_scc0 {lab}')
        saved = (k.lg_issued, k.lg_done)
        for n in range(3):
            for tau in range(2): k.ds(f'ds_read_b128 {v(PR+8*n+4*tau,4)}, {v(VR+n)} offset:{1024*tau + 16384*(rt & 1)}')
        for i in range(8): k.e(f'v_accvgpr_read_b32 {v(KEEP+i)}, {a(ACC + 16*(rt & 1) + i)}')
        k.lg_issued, k.lg_done = saved
        k.label(lab)
    def owner_final(rt):
        lab = k.newlabel('ofi'); h = rt >> 1
        k.e(f's_lshr_b32 s43, {s(S_WAVE)}, 1\ns_cmp_eq_u32 s43, {rt & 1}'); k.e(f's_cbranch_scc0 {lab}')
        saved = (k.lg_issued, k.lg_done)
        for i in range(4):
            k.e(f'v_lshlrev_b32 {v(U+2*i)}, 16, {v(EX1+4*h+i)}\nv_and_b32 {v(U+2*i+1)}, 0xffff0000, {v(EX1+4*h+i)}')
            k.e(f'v_lshlrev_b32 {v(U+8+2*i)}, 16, {v(EX2+4*h+i)}\nv_and_b32 {v(U+8+2*i+1)}, 0xffff0000, {v(EX2+4*h+i)}')
        k.e('s_waitcnt lgkmcnt(0)')
        for n in range(3):
            for i in range(4): k.e(f'v_pk_add_f32 {v(KEEP+2*i,2)}, {v(KEEP+2*i,2)}, {v(PR+8*n+2*i,2)}')
        for i in range(4): k.e(f'v_pk_add_f32 {v(KEEP+2*i,2)}, {v(KEEP+2*i,2)}, {v(U+2*i,2)}')
        for i in range(4): k.e(f'v_pk_fma_f32 {v(KEEP+2*i,2)}, {v(KEEP+2*i,2)}, {v(GB+2*i,2)}, {v(U+8+2*i,2)}')
        for i in range(4): k.e(f'v_cvt_pk_bf16_f32 {v(O+i)}, {v(KEEP+2*i)}, {v(KEEP+2*i+1)}')
        k.e(f's_add_u32 s43, {s(S_OUT)}, {16384*rt}')
        phantom(k, f'buffer_store_dwordx4 {v(O,4)}, {v(VOUT)}, {s(SO,4)}, s43 offen')
        k.lg_issued, k.lg_done = saved
        k.label(lab)
        k.flush_hazards(2)
    order = [(rt, st) for rt in range(4) for st in range(11)]
    if simple:
        k.e(f's_lshl_b32 s43, {s(S_RB64)}, 3')
        await_flags(k, 2, 43, 8)
        nxt = 0
        while nxt < CFG['f_depth2']: loadH(*order[nxt]); nxt += 1
    stamp(k, 31)
    for rt in range(4):
        for st in range(11):
            k.wait(tH[(rt, st)])
            for t in range(4):
                mfma16(k, acc(rt, t), w4reg(st, t), slot(rt, st), '0' if st == 0 else acc(rt, t))
            if simple:
                if nxt < 44 and nxt - (11*rt + st) <= 32: loadH(*order[nxt]); nxt += 1
            elif rt == 1 and st >= 1: loadH(3, st - 1)
            if rt >= 1:
                if st == 2:
                    k.e('s_waitcnt lgkmcnt(0)'); k.e('s_barrier'); k.lg_done = k.lg_issued
                    owner_reads(rt - 1)
                if st == 5:
                    if rt == 1: k.wait(tep)
                    owner_final(rt - 1)
        if rt == 0 and not simple:
            if not CFG['f_h2_early']: flags_check(2, tfl)
            for st in range(11):
                if (2, st) not in tH: loadH(2, st)
            flags_check(3, tfl)
        if rt == 1 and not simple: loadH(3, 10)
        for t in range(4):
            vx = VXL if t < 2 else VXH
            k.ds(f'ds_write_b128 {v(vx)}, {acc(rt, t)} offset:{1024*(t & 1) + 16384*(rt & 1)}')
        if rt < 3: stamp(k, 32 + rt)
    k.e('s_waitcnt lgkmcnt(0)'); k.e('s_barrier'); k.lg_done = k.lg_issued
    stamp(k, 35)
    owner_reads(3)
    owner_final(3)

def phase_F(k, bg):
    S_T0, S_T1, S_T2, S_HO = 44, 45, 46, 47
    SH, SX1, SX2, SMOD, SO = 48, 56, 64, 68, 72
    k.c('phase F : H @ w4, final residual')
    k.e(f's_mul_i32 {s(S_T0)}, {s(S_RB64)}, {HB_BLK}\ns_mul_i32 {s(S_T1)}, {s(S_WAVE)}, {11*4096}\ns_add_u32 {s(S_T0)}, {s(S_T0)}, {s(S_T1)}')
    k.e(f's_add_u32 {s(SH)}, {s(P_WS)}, {hex(HC)}\ns_addc_u32 {s(SH+1)}, {s(P_WS+1)}, 0\ns_add_u32 {s(SH)}, {s(SH)}, {s(S_T0)}\ns_addc_u32 {s(SH+1)}, {s(SH+1)}, 0')
    k.e(f's_sub_u32 {s(SH+2)}, {HB_BLK}, {s(S_T1)}\ns_mov_b32 {s(SH+3)}, 0x20000')
    srd(k, SX1, P_WS, X1C, 2 * MB)
    srd(k, SX2, P_WS, X2C, 2 * MB)
    srd(k, SMOD, P_WS, MOD, 3072 * 4)
    srd(k, SO, P_OUT, 0, 2 * MB)
    EX1, EX2, GB = 112, 120, 12
    k.e(f's_lshl_b32 {s(S_T1)}, {s(S_RB64)}, 16\ns_lshl_b32 {s(S_T0)}, {s(S_J)}, 13\ns_add_u32 {s(S_T1)}, {s(S_T1)}, {s(S_T0)}')
    k.e(f's_lshl_b32 {s(S_T0)}, {s(S_WAVE)}, 10\ns_add_u32 {s(S_T1)}, {s(S_T1)}, {s(S_T0)}')
    for p in range(2):
        k.vm(f'buffer_load_dwordx4 {v(EX1+4*p,4)}, {v(VL16)}, {s(SX1,4)}, {s(S_T1)} offen{SC}')
        k.vm(f'buffer_load_dwordx4 {v(EX2+4*p,4)}, {v(VL16)}, {s(SX2,4)}, {s(S_T1)} offen{SC}')
        if p == 0: k.e(f's_add_u32 {s(S_T1)}, {s(S_T1)}, 4096')
    k.e(f's_lshl_b32 {s(S_T1)}, {s(S_J)}, 8\ns_add_u32 {s(S_T1)}, {s(S_T1)}, {5*2048}\nv_lshlrev_b32 {v(VT)}, 5, {v(VQ)}')
    for p in range(2):
        k.vm(f'buffer_load_dwordx4 {v(GB+8*p,4)}, {v(VT)}, {s(SMOD,4)}, {s(S_T1)} offen offset:{128*p}{SC}')
        tep = k.vm(f'buffer_load_dwordx4 {v(GB+8*p+4,4)}, {v(VT)}, {s(SMOD,4)}, {s(S_T1)} offen offset:{128*p+16}{SC}')
    bg.drain('W4')
    k.e(f's_lshl_b32 s43, {s(S_RB64)}, 3')
    await_flags(k, 2, 43, 8)
    stamp(k, 31)
    ND = 8
    k.e(f's_lshl_b32 {s(S_HO)}, {s(S_OFF)}, 12')
    tH = {}
    def loadH(st):
        if st:
            for i_ in step11(S_HO): k.e(i_)
        for rt in range(4):
            tH[(st, rt)] = k.vm(f'buffer_load_dwordx4 {a(16*(st % ND)+4*rt,4)}, {v(VL16)}, {s(SH,4)}, {s(S_HO)} offen offset:{1024*rt}{SC}')
    for st in range(CFG['f_depth']): loadH(st)
    nxt = CFG['f_depth']
    ACC = 128
    for st in range(11):
        for rt in range(4):
            k.wait(tH[(st, rt)])
            for t in range(4):
                acc = a(ACC + 16*rt + 4*t, 4)
                mfma16(k, acc, w4reg(st, t), a(16*(st % ND)+4*rt,4), '0' if st == 0 else acc)
        if nxt < 11: loadH(nxt); nxt += 1
    stamp(k, 32)
    labs = [k.newlabel(f'r{w}') for w in range(4)]; lj = k.newlabel('rj')
    for w in range(1, 4):
        k.e(f's_cmp_eq_u32 {s(S_WAVE)}, {w}'); k.e(f's_cbranch_scc1 {labs[w]}')
    KEEP = 32
    for w in range(4):
        k.label(labs[w])
        k.flush_hazards(8)
        for rt in range(4):
            if rt == w: continue
            idx = rt - (1 if rt > w else 0)
            base = (w*3 + idx) * 4096
            for t in range(4): k.ds(f'ds_write_b128 {v(VL16)}, {a(ACC+16*rt+4*t,4)} offset:{base + 1024*t}')
        for i in range(16): k.e(f'v_accvgpr_read_b32 {v(KEEP+i)}, {a(ACC+16*w+i)}')
        if w < 3: k.e(f's_branch {lj}')
    k.label(lj)
    k.unknown_counters()
    k.e('s_waitcnt lgkmcnt(0)'); k.e('s_barrier')
    stamp(k, 33)
    PR = 48
    for n in range(3):
        k.e(f's_cmp_ge_u32 {n}, {s(S_WAVE)}\ns_cselect_b32 {s(S_T0)}, 1, 0\ns_add_u32 {s(S_T1)}, {s(S_T0)}, {n}')
        k.e(f's_mul_i32 {s(S_T1)}, {s(S_T1)}, 3\ns_add_u32 {s(S_T1)}, {s(S_T1)}, {s(S_WAVE)}\ns_sub_u32 {s(S_T1)}, {s(S_T1)}, 1\ns_add_u32 {s(S_T1)}, {s(S_T1)}, {s(S_T0)}')
        k.e(f's_lshl_b32 {s(S_T1)}, {s(S_T1)}, 12\nv_add_u32 {v(VT)}, {s(S_T1)}, {v(VL16)}')
        for t in range(4): tr = k.ds(f'ds_read_b128 {v(PR+16*n+4*t,4)}, {v(VT)} offset:{1024*t}')
    k.e(f's_lshl_b32 {s(S_T0)}, {s(S_WAVE)}, 4\ns_add_u32 {s(S_T0)}, {s(S_T0)}, {s(S_R64)}\nv_add_u32 {v(VU)}, {s(S_T0)}, {v(VI)}')
    k.e(f'v_lshlrev_b32 {v(VU)}, 10, {v(VU)}\nv_lshl_add_u32 {v(VU)}, {v(VQ)}, 4, {v(VU)}\ns_lshl_b32 {s(S_T1)}, {s(S_J)}, 7')
    k.wait(tr)
    for n in range(3):
        for i in range(8): k.e(f'v_pk_add_f32 {v(KEEP+2*i,2)}, {v(KEEP+2*i,2)}, {v(PR+16*n+2*i,2)}')
    U = 96; O = 48
    for p in range(2):
        for i in range(4):
            k.e(f'v_lshlrev_b32 {v(U+2*i)}, 16, {v(EX1+4*p+i)}\nv_and_b32 {v(U+2*i+1)}, 0xffff0000, {v(EX1+4*p+i)}')
            k.e(f'v_lshlrev_b32 {v(U+8+2*i)}, 16, {v(EX2+4*p+i)}\nv_and_b32 {v(U+8+2*i+1)}, 0xffff0000, {v(EX2+4*p+i)}')
        for i in range(4):
            x = KEEP + 8*p + 2*i
            k.e(f'v_pk_add_f32 {v(x,2)}, {v(x,2)}, {v(U+2*i,2)}')
        for i in range(4):
            x = KEEP + 8*p + 2*i
            k.e(f'v_pk_fma_f32 {v(x,2)}, {v(x,2)}, {v(GB+8*p+2*i,2)}, {v(U+8+2*i,2)}')
        for i in range(4):
            x = KEEP + 8*p + 2*i
            k.e(f'v_cvt_pk_bf16_f32 {v(O+4*p+i)}, {v(x)}, {v(x+1)}')
        k.vm(f'buffer_store_dwordx4 {v(O+4*p,4)}, {v(VU)}, {s(SO,4)}, {s(S_T1)} offen offset:{64*p}')

HB_BLK = 43 * 4096
CFG = dict(self_code=0, c_g_n=1, d_g_n=1, c_ln_w2=0, spoll=1, f_depth2=12, f_h1_at=24, f_h2_early=1, f_fetch0=6, f_fetch2=6, f2=3, e_budget=2, e_pk_at=0, warm2=0, warm3=0, warm4=0, d_dma_w3=0, rot=0, reread=0, c_w1_first=12, c_st_every=2, c_g_every=1, c_epi_bg=1000, c_pd=2, d_pre=8, d_dma_bg=8, d_g_every=1, d_epi_bg=12, d_pd=2, e_pre=8, e_dma_first=4, e_bg=1, e_store=1, e_pd=2, e_epi=1, f_depth=6)

def build_P(name):
    k = Kern(name)
    lend = k.newlabel('end')
    k.e(f's_cmp_ge_u32 s2, 256'); k.e(f's_cbranch_scc1 {lend}')
    k.e('s_load_dwordx2 s[36:37], s[0:1], 128'); k.e('s_load_dwordx2 s[40:41], s[0:1], 144')
    wave_id(k); wg_map(k)
    k.e(f's_lshl_b32 {s(S_LID)}, {s(S_RB64)}, 3\ns_add_u32 {s(S_LID)}, {s(S_LID)}, {s(S_J)}')
    k.e(f's_mov_b32 {s(S_NONCE)}, 1')
    k.e(f'v_and_b32 {v(VL)}, 63, v0\nv_and_b32 {v(VI)}, 15, {v(VL)}\nv_lshrrev_b32 {v(VQ)}, 4, {v(VL)}\nv_lshlrev_b32 {v(VL16)}, 4, {v(VL)}\nv_lshlrev_b32 {v(VWM)}, 7, {v(VL)}')
    k.e('s_waitcnt lgkmcnt(0)')
    dbg_stamp(k, 6, 2, va=200)
    stamp_begin(k)
    rotations(k)
    k.e(f's_lshl_b32 s44, {s(S_G)}, 2\ns_add_u32 s44, s44, {s(S_WAVE)}\ns_lshl_b32 s44, s44, 15')
    srd_dyn(k, SW1, W1F, 44, 512 * KB); srd_dyn(k, SW2, W2F, 44, 512 * KB)
    k.e(f's_lshl_b32 s44, {s(S_J)}, 2\ns_add_u32 s44, s44, {s(S_WAVE)}\ns_mul_i32 s44, s44, {3*16384}')
    srd_dyn(k, SW3, W3F, 44, W3F_BYTES)
    k.e(f's_mul_i32 s44, {s(S_J)}, 176128\ns_mul_i32 s45, {s(S_WAVE)}, {11*4096}\ns_add_u32 s44, s44, s45')
    srd_dyn(k, SW4, W4F, 44, W4F_BYTES)
    srd(k, SFL, P_WS, FLG, 4 * 16384)
    bg = BG(k)
    phase_C(k, bg); dbg_stamp(k, 7, 2, va=204); phase_D(k, bg); dbg_stamp(k, 8, 2, va=204); phase_E(k, bg)
    if not CFG['f2']: phase_F(k, bg)
    if __import__('common').DBG: k.e('s_waitcnt vmcnt(0)')
    dbg_stamp(k, 10, 2)
    stamp_end(k, 2)
    k.label(lend)
    k.e('s_endpgm')
    return k
```

```python
from common import *
from phaseA import (PRE_TLB, OOB, P_U, P_ARE, P_AIM, P_BRE, P_BIM, P_CRE, P_CIM, P_LDT, P_DSK, P_W1, P_W2, P_W3, P_W4, P_C, P_WMOD,
                    P_OUT, P_DBG, P_WS, S_WAVE, S_ID, load_all_ptrs, wave_id, dma_tile, dma_voffsets, tr_addr, cexp_direct)
SC = ' sc1'
AFL = FLG + 4 * 16384
EPOCH = AFL + 16384
FSH = 6
S_NONCE = 3
CFGAB = dict(code_end=0, wt_w=0, wt_x=0, prio=1, late=0, late_m=0, tlb=1, code=1)

def nonce_fetch(k, vn, vt):
    srd(k, 76, P_DBG, 0, 256)
    k.e(f'v_mov_b32 {v(vt)}, 0')
    return k.vm(f'buffer_load_dword {v(vn)}, {v(vt)}, s[76:79], 0 offen{SC}')

def get_nonce(k, vn, vt):
    lp, lo = k.newlabel('nl'), k.newlabel('no')
    k.e(f'v_readfirstlane_b32 {s(S_NONCE)}, {v(vn)}')
    k.e(f's_cmp_lg_u32 {s(S_NONCE)}, 0'); k.e(f's_cbranch_scc1 {lo}')
    srd(k, 76, P_DBG, 0, 256)
    k.e(f'v_mov_b32 {v(vt)}, 0\ns_mov_b32 s44, 0')
    k.label(lp)
    done = (k.vm_done, k.lg_done)
    k.e(f'buffer_load_dword {v(vn)}, {v(vt)}, s[76:79], 0 offen{SC}'); k.vm_issued -= 1
    k.e('s_waitcnt vmcnt(0)')
    k.e(f'v_readfirstlane_b32 {s(S_NONCE)}, {v(vn)}')
    k.e('s_add_u32 s44, s44, 1\ns_cmp_ge_u32 s44, 0x40000'); k.e(f's_cbranch_scc1 {lo}')
    k.e(f's_cmp_eq_u32 {s(S_NONCE)}, 0'); k.e(f's_cbranch_scc1 {lp}')
    k.label(lo)
    k.vm_done, k.lg_done = done

def publish_job(k, s_idx, vt, vu, vn):
    k.e('s_waitcnt vmcnt(0)'); k.barrier()
    lab = k.newlabel('pj')
    k.e(f's_cmp_eq_u32 {s(S_WAVE)}, 0'); k.e(f's_cbranch_scc0 {lab}')
    get_nonce(k, vn, vt)
    srd(k, 76, P_WS, AFL, 16384)
    k.e(f's_lshl_b32 s44, {s(s_idx)}, {FSH}')
    k.e(f'v_mov_b32 {v(vt)}, {s(S_NONCE)}\nv_and_b32 {v(vu)}, 63, v0\nv_cmp_eq_u32 vcc, 0, {v(vu)}\nv_mov_b32 {v(vu)}, {hex(OOB)}\nv_cndmask_b32 {v(vu)}, {v(vu)}, 0, vcc')
    k.e(f'buffer_store_dword {v(vt)}, {v(vu)}, s[76:79], s44 offen{SC}'); k.vm_issued -= 1
    k.label(lab)

def await_jobs(k, vn, tn, vt, vu, vw, s_blk):
    lab, lp, lo = k.newlabel('aw'), k.newlabel('ap'), k.newlabel('ao')
    k.wait(tn)
    k.e(f's_cmp_eq_u32 {s(S_WAVE)}, 0'); k.e(f's_cbranch_scc0 {lab}')
    get_nonce(k, vn, vt)
    srd(k, 76, P_WS, AFL, 16384)
    k.e(f'v_and_b32 {v(vt)}, 63, v0\nv_lshlrev_b32 {v(vt)}, {FSH}, {v(vt)}')
    k.e(f'v_and_b32 {v(vw)}, 63, v0\nv_min_u32 {v(vw)}, 5, {v(vw)}\nv_and_b32 {v(vu)}, 1, {v(vw)}\nv_lshrrev_b32 {v(vw)}, 1, {v(vw)}\nv_lshlrev_b32 {v(vw)}, 3, {v(vw)}')
    k.e(f'v_add_u32 {v(vw)}, {s(s_blk)}, {v(vw)}\nv_lshl_add_u32 {v(vw)}, {v(vw)}, 1, {v(vu)}\nv_add_u32 {v(vw)}, 128, {v(vw)}\nv_lshlrev_b32 {v(vw)}, {FSH}, {v(vw)}')
    k.e(f's_mov_b32 s44, 0\ns_movk_i32 s45, {64 << FSH}')
    k.label(lp)
    done = (k.vm_done, k.lg_done)
    k.e(f'buffer_load_dword {v(vu)}, {v(vt)}, s[76:79], 0 offen{SC}')
    k.e(f'buffer_load_dword {v(vu+1)}, {v(vt)}, s[76:79], s45 offen{SC}')
    k.e(f'buffer_load_dword {v(vw+1)}, {v(vw)}, s[76:79], 0 offen{SC}')
    k.vm_issued -= 3
    k.e('s_waitcnt vmcnt(0)')
    k.e(f'v_cmp_ne_u32 vcc, {s(S_NONCE)}, {v(vu)}')
    k.e(f'v_cmp_ne_u32 s[80:81], {s(S_NONCE)}, {v(vu+1)}\ns_or_b64 vcc, vcc, s[80:81]')
    k.e(f'v_cmp_ne_u32 s[80:81], {s(S_NONCE)}, {v(vw+1)}\ns_or_b64 vcc, vcc, s[80:81]')
    k.e('s_add_u32 s44, s44, 1\ns_cmp_ge_u32 s44, 0x40000'); k.e(f's_cbranch_scc1 {lo}')
    k.e(f's_cbranch_vccnz {lp}')
    k.label(lo)
    k.vm_done, k.lg_done = done
    k.label(lab)
    k.barrier()

GO = 192
def raise_go(k, vt, vu):
    lab = k.newlabel('go')
    k.e('s_and_b32 s44, s2, 31\ns_cmp_eq_u32 s44, 0'); k.e(f's_cbranch_scc0 {lab}')
    k.e(f's_cmp_eq_u32 {s(S_WAVE)}, 0'); k.e(f's_cbranch_scc0 {lab}')
    srd(k, 76, P_WS, AFL, 16384)
    k.e(f's_movk_i32 s44, {GO << FSH}')
    k.e(f'v_mov_b32 {v(vt)}, {s(S_NONCE)}\nv_and_b32 {v(vu)}, 63, v0\nv_cmp_eq_u32 vcc, 0, {v(vu)}\nv_mov_b32 {v(vu)}, {hex(OOB)}\nv_cndmask_b32 {v(vu)}, {v(vu)}, 0, vcc')
    k.e(f'buffer_store_dword {v(vt)}, {v(vu)}, s[76:79], s44 offen{SC}'); k.vm_issued -= 1
    k.label(lab)
def await_go(k, vt, vu):
    lab, lp, lo = k.newlabel('gw'), k.newlabel('gp'), k.newlabel('gq')
    k.e(f's_cmp_eq_u32 {s(S_WAVE)}, 0'); k.e(f's_cbranch_scc0 {lab}')
    srd(k, 76, P_WS, AFL, 16384)
    k.e(f'v_mov_b32 {v(vt)}, {GO << FSH}\ns_mov_b32 s44, 0')
    k.label(lp)
    done = (k.vm_done, k.lg_done)
    k.e(f'buffer_load_dword {v(vu)}, {v(vt)}, s[76:79], 0 offen{SC}'); k.vm_issued -= 1
    k.e('s_waitcnt vmcnt(0)')
    k.e(f'v_cmp_ne_u32 vcc, {s(S_NONCE)}, {v(vu)}')
    k.e('s_add_u32 s44, s44, 1\ns_cmp_ge_u32 s44, 0x8000'); k.e(f's_cbranch_scc1 {lo}')
    k.e(f's_cbranch_vccnz {lp}')
    k.label(lo)
    k.vm_done, k.lg_done = done
    k.label(lab)
    k.barrier()

def role_W(k):
    S_STR, S_ROW, S_T0, S_T1 = 44, 45, 46, 47
    SRC, DST, CS = 48, 52, 56
    S_FB, S_KB, S_NAT, S_CSF, S_DOFF, S_DSTEP, S_CH, S_HALF, S_NST, S_CSO = 60, 61, 62, 63, 64, 65, 66, 67, 68, 69
    lw1, lw2, lw3, lw4, lgo = [k.newlabel(x) for x in ('w1', 'w2', 'w3', 'w4', 'wgo')]
    k.c('role W : weight shuffle into MFMA A-fragment order')
    k.e(f's_sub_u32 {s(S_ID)}, s2, 256')
    if CFGAB['late']: await_go(k, 2, 3)
    k.e(f's_cmp_ge_u32 {s(S_ID)}, 76'); k.e(f's_cbranch_scc1 {lw4}')
    k.e(f's_cmp_ge_u32 {s(S_ID)}, 32'); k.e(f's_cbranch_scc1 {lw3}')
    k.e(f's_cmp_ge_u32 {s(S_ID)}, 16'); k.e(f's_cbranch_scc1 {lw2}')
    def perm_setup(stride_tiles):
        k.e(f's_lshr_b32 {s(S_T0)}, {s(S_WAVE)}, 1')
        k.e(f's_lshl_b32 {s(S_CH)}, {s(S_T0)}, 2')
        k.e(f's_and_b32 {s(S_HALF)}, {s(S_WAVE)}, 1')
        k.e(f's_lshl_b32 {s(S_HALF)}, {s(S_HALF)}, 3')
        k.e(f's_mov_b32 {s(S_NAT)}, 0')
    for which, lab in ((1, lw1), (2, lw2)):
        k.label(lab)
        if which == 2: k.e(f's_sub_u32 {s(S_ID)}, {s(S_ID)}, 16')
        srd(k, SRC, P_W1 if which == 1 else P_W2, 0, 512 * 1024)
        srd(k, DST, P_WS, W1F if which == 1 else W2F, 512 * 1024)
        srd(k, CS, P_WS, CS1, 4096)
        k.e(f's_lshr_b32 {s(S_FB)}, {s(S_ID)}, 1\ns_and_b32 {s(S_KB)}, {s(S_ID)}, 1')
        k.e(f's_mov_b32 {s(S_STR)}, 1024')
        perm_setup(0)
        k.e(f's_lshl_b32 {s(S_DOFF)}, {s(S_FB)}, 1\ns_add_u32 {s(S_DOFF)}, {s(S_DOFF)}, {s(S_T0)}\ns_lshl_b32 {s(S_DOFF)}, {s(S_DOFF)}, 15')
        k.e(f's_lshl_b32 {s(S_T1)}, {s(S_KB)}, 14\ns_add_u32 {s(S_DOFF)}, {s(S_DOFF)}, {s(S_T1)}')
        k.e(f's_lshl_b32 {s(S_T1)}, {s(S_HALF)}, 7\ns_add_u32 {s(S_DOFF)}, {s(S_DOFF)}, {s(S_T1)}')
        k.e(f's_mov_b32 {s(S_DSTEP)}, 2048\ns_mov_b32 {s(S_NST)}, 8')
        k.e(f's_mov_b32 {s(S_CSF)}, {1 if which == 1 else 0}')
        k.e(f's_lshl_b32 {s(S_CSO)}, {s(S_KB)}, 11\ns_lshl_b32 {s(S_T1)}, {s(S_FB)}, 8\ns_add_u32 {s(S_CSO)}, {s(S_CSO)}, {s(S_T1)}')
        k.e(f's_lshl_b32 {s(S_T1)}, {s(S_T0)}, 7\ns_add_u32 {s(S_CSO)}, {s(S_CSO)}, {s(S_T1)}')
        k.e(f's_lshl_b32 {s(S_T1)}, {s(S_HALF)}, 1\ns_add_u32 {s(S_CSO)}, {s(S_CSO)}, {s(S_T1)}')
        k.e(f's_branch {lgo}')
    k.label(lw3)
    k.e(f's_sub_u32 {s(S_ID)}, {s(S_ID)}, 32')
    srd(k, SRC, P_W3, 0, 512 * 2752)
    srd(k, DST, P_WS, W3F, W3F_BYTES)
    srd(k, CS, P_WS, CS3, 2 * 1408 * 4)
    k.e(f's_lshr_b32 {s(S_FB)}, {s(S_ID)}, 1\ns_and_b32 {s(S_KB)}, {s(S_ID)}, 1')
    k.e(f's_mov_b32 {s(S_STR)}, 2752')
    k.e(f's_lshl_b32 {s(S_CH)}, {s(S_WAVE)}, 1\ns_mov_b32 {s(S_HALF)}, 0\ns_mov_b32 {s(S_NAT)}, 1')
    k.e(f's_lshl_b32 {s(S_DOFF)}, {s(S_FB)}, 2\ns_add_u32 {s(S_DOFF)}, {s(S_DOFF)}, {s(S_WAVE)}')
    k.e(f's_lshl_b32 {s(S_T0)}, {s(S_DOFF)}, 6')
    k.e(f's_lshl_b32 {s(S_DOFF)}, {s(S_DOFF)}, 14')
    k.e(f's_lshl_b32 {s(S_T1)}, {s(S_KB)}, 13\ns_add_u32 {s(S_DOFF)}, {s(S_DOFF)}, {s(S_T1)}')
    k.e(f's_mov_b32 {s(S_DSTEP)}, 1024\ns_mov_b32 {s(S_NST)}, 8\ns_mov_b32 {s(S_CSF)}, 2')
    k.e(f's_mul_i32 {s(S_CSO)}, {s(S_KB)}, {1408*4}\ns_add_u32 {s(S_CSO)}, {s(S_CSO)}, {s(S_T0)}')
    k.e(f's_branch {lgo}')
    k.label(lw4)
    k.e(f's_sub_u32 {s(S_ID)}, {s(S_ID)}, 76')
    srd(k, SRC, P_W4, 0, 1376 * 1024)
    srd(k, DST, P_WS, W4F, W4F_BYTES)
    srd(k, CS, P_WS, CS1, 4096)
    k.e(f's_mul_i32 {s(S_FB)}, {s(S_ID)}, 43\ns_lshr_b32 {s(S_FB)}, {s(S_FB)}, 8')
    k.e(f's_mul_i32 {s(S_T0)}, {s(S_FB)}, 6\ns_sub_u32 {s(S_KB)}, {s(S_ID)}, {s(S_T0)}')
    k.e(f's_mov_b32 {s(S_STR)}, 1024')
    perm_setup(0)
    k.e(f's_mul_i32 {s(S_DOFF)}, {s(S_FB)}, 176128')
    k.e(f's_lshl_b32 {s(S_T1)}, {s(S_KB)}, 15\ns_add_u32 {s(S_DOFF)}, {s(S_DOFF)}, {s(S_T1)}')
    k.e(f's_lshl_b32 {s(S_T1)}, {s(S_WAVE)}, 10\ns_add_u32 {s(S_DOFF)}, {s(S_DOFF)}, {s(S_T1)}')
    k.e(f's_lshl_b32 {s(S_T1)}, {s(S_KB)}, 3\ns_sub_u32 {s(S_NST)}, 43, {s(S_T1)}')
    k.e(f's_mov_b32 {s(S_DSTEP)}, 4096\ns_mov_b32 {s(S_CSF)}, 0\ns_mov_b32 {s(S_CSO)}, 0')
    k.label(lgo)
    k.e(f's_lshl_b32 {s(S_T0)}, {s(S_KB)}, 8\ns_lshl_b32 {s(S_T1)}, {s(S_WAVE)}, 6\ns_add_u32 {s(S_T0)}, {s(S_T0)}, {s(S_T1)}')
    k.e(f's_mul_i32 {s(S_ROW)}, {s(S_T0)}, {s(S_STR)}\ns_lshl_b32 {s(S_T1)}, {s(S_FB)}, 7\ns_add_u32 {s(S_ROW)}, {s(S_ROW)}, {s(S_T1)}')
    VA, VB, VT, VU, VR = 2, 3, 4, 5, 6
    dma_voffsets(k, S_STR, VA, VB, VT)
    dma_tile(k, SRC, S_STR, S_ROW, 0, VA, VB, S_T0)
    lnat, ljoin = k.newlabel('nat'), k.newlabel('trj')
    k.e(f's_cmp_eq_u32 {s(S_NAT)}, 1'); k.e(f's_cbranch_scc1 {lnat}')
    tr_addr(k, VR, VT, VU, S_CH, S_HALF, False)
    k.e(f's_branch {ljoin}')
    k.label(lnat)
    tr_addr(k, VR, VT, VU, S_CH, S_HALF, True)
    k.label(ljoin)
    VO = 8; ONES = 12; ACC = 16; FR = 20
    k.e(f'v_and_b32 {v(VO)}, 63, v0\nv_lshlrev_b32 {v(VO)}, 4, {v(VO)}')
    for i in range(4): k.e(f'v_mov_b32 {v(ONES+i)}, 0x3f803f80')
    for i in range(4): k.e(f'v_mov_b32 {v(ACC+i)}, 0')
    stamp(k, 1)
    k.wait_vm0(); k.e('s_barrier')
    stamp(k, 2)
    toks = []
    for st in range(8):
        k.ds(f'ds_read_b64_tr_b16 {v(FR+4*st,2)}, {v(VR)} offset:{4096*st}')
        toks.append(k.ds(f'ds_read_b64_tr_b16 {v(FR+4*st+2,2)}, {v(VR)} offset:{4096*st+512}'))
    for st in range(8):
        k.wait(toks[st])
        k.e(f's_cmp_gt_u32 {s(S_NST)}, {st}')
        k.e(f's_cselect_b32 {s(S_T0)}, {s(S_DOFF)}, {hex(OOB)}')
        k.vm(f'buffer_store_dwordx4 {v(FR+4*st,4)}, {v(VO)}, {s(DST,4)}, {s(S_T0)} offen' + (SC if CFGAB['wt_w'] else ''))
        k.e(f's_add_u32 {s(S_DOFF)}, {s(S_DOFF)}, {s(S_DSTEP)}')
        mfma16(k, v(ACC,4), v(FR+4*st,4), v(ONES,4))
    ldone = k.newlabel('wdone')
    k.e(f's_cmp_eq_u32 {s(S_CSF)}, 0'); k.e(f's_cbranch_scc1 {ldone}')
    k.e(f'v_and_b32 {v(VT)}, 63, v0\nv_lshrrev_b32 {v(VU)}, 4, {v(VT)}')
    k.e(f's_cmp_eq_u32 {s(S_CSF)}, 1\ns_cselect_b32 {s(S_T0)}, 5, 4')
    k.e(f'v_lshlrev_b32 {v(VU)}, {s(S_T0)}, {v(VU)}')
    k.e(f'v_and_b32 {v(VT)}, 15, {v(VT)}\nv_cmp_eq_u32 vcc, 0, {v(VT)}')
    k.e(f'v_mov_b32 {v(VT)}, {hex(OOB)}\nv_cndmask_b32 {v(VU)}, {v(VT)}, {v(VU)}, vcc')
    k.vm(f'buffer_store_dwordx4 {v(ACC,4)}, {v(VU)}, {s(CS,4)}, {s(S_CSO)} offen')
    k.label(ldone)
    stamp_end(k, 0)
    k.e('s_endpgm')

def role_M(k):
    S_STR, S_ROW, S_T0, S_T1 = 44, 45, 46, 47
    SRC, CSRD, DST = 48, 52, 56
    S_CH, S_HALF, S_SEG, S_JB, S_KH = 60, 61, 62, 63, 64
    k.c('role M : mod = silu(c) @ w_mod ; first the K halves of the three vectors the convolution needs, then the other three')
    if CFGAB['prio']: k.e('s_setprio 3')
    lfull = k.newlabel('mfull'); lset = k.newlabel('mset')
    k.e(f's_sub_u32 {s(S_ID)}, s2, {256+128}\ns_lshr_b32 {s(S_JB)}, {s(S_ID)}, 1\ns_and_b32 {s(S_KH)}, {s(S_ID)}, 1')
    k.e(f's_cmp_ge_u32 {s(S_ID)}, 48'); k.e(f's_cbranch_scc0 {lset}')
    k.e(f's_sub_u32 {s(S_JB)}, {s(S_ID)}, 24\ns_mov_b32 {s(S_KH)}, 2')
    k.label(lset)
    srd(k, SRC, P_WMOD, 0, 512 * 6144)
    srd(k, CSRD, P_C, 0, 1024)
    k.e(f's_mov_b32 {s(S_STR)}, 6144')
    VA, VB, VT, VU, VR = 2, 3, 4, 5, 6
    VC = 8; VN = 110
    k.e(f'v_lshlrev_b32 {v(VT)}, 2, v0')
    tc = k.vm(f'buffer_load_dword {v(VC)}, {v(VT)}, {s(CSRD,4)}, 0 offen')
    dma_voffsets(k, S_STR, VA, VB, VT)
    def stage(kb_sgpr_or_int, lds):
        if isinstance(kb_sgpr_or_int, int): k.e(f's_lshl_b32 {s(S_T0)}, {s(S_WAVE)}, 6\ns_add_u32 {s(S_T0)}, {s(S_T0)}, {256*kb_sgpr_or_int}')
        else: k.e(f's_lshl_b32 {s(S_T0)}, {s(S_WAVE)}, 6\ns_lshl_b32 {s(S_T1)}, {kb_sgpr_or_int}, 8\ns_add_u32 {s(S_T0)}, {s(S_T0)}, {s(S_T1)}')
        k.e(f's_mul_i32 {s(S_ROW)}, {s(S_T0)}, {s(S_STR)}\ns_lshl_b32 {s(S_T1)}, {s(S_JB)}, 7\ns_add_u32 {s(S_ROW)}, {s(S_ROW)}, {s(S_T1)}')
        dma_tile(k, SRC, S_STR, S_ROW, lds, VA, VB, S_T0)
    lst1, lst2 = k.newlabel('ms1'), k.newlabel('ms2')
    k.e(f's_cmp_eq_u32 {s(S_KH)}, 2'); k.e(f's_cbranch_scc1 {lst1}')
    stage(s(S_KH), 0)
    k.e(f's_branch {lst2}')
    k.label(lst1)
    stage(0, 0); stage(1, 32768)
    k.label(lst2)
    k.e(f's_lshl_b32 {s(S_CH)}, {s(S_WAVE)}, 1\ns_mov_b32 {s(S_HALF)}, 0')
    tr_addr(k, VR, VT, VU, S_CH, S_HALF, True)
    k.e('s_waitcnt vmcnt(8)')
    X0, X1, E0, E1 = 10, 11, 12, 13
    k.e(f'v_lshlrev_b32 {v(X0)}, 16, {v(VC)}\nv_and_b32 {v(X1)}, 0xffff0000, {v(VC)}')
    k.e(f'v_mul_f32 {v(E0)}, {hexf(-LOG2E)}, {v(X0)}\nv_mul_f32 {v(E1)}, {hexf(-LOG2E)}, {v(X1)}')
    k.e(f'v_exp_f32 {v(E0)}, {v(E0)}\nv_exp_f32 {v(E1)}, {v(E1)}')
    k.e(f'v_add_f32 {v(E0)}, 1.0, {v(E0)}\nv_add_f32 {v(E1)}, 1.0, {v(E1)}')
    k.e(f'v_rcp_f32 {v(E0)}, {v(E0)}\nv_rcp_f32 {v(E1)}, {v(E1)}')
    k.e(f'v_mul_f32 {v(X0)}, {v(X0)}, {v(E0)}\nv_mul_f32 {v(X1)}, {v(X1)}, {v(E1)}')
    k.e(f'v_cvt_pk_bf16_f32 {v(X0)}, {v(X0)}, {v(X1)}')
    k.e(f'v_lshlrev_b32 {v(VT)}, 2, v0\nv_add_u32 {v(VT)}, 0x10000, {v(VT)}')
    k.ds(f'ds_write_b32 {v(VT)}, {v(X0)}')
    VS, VS2 = 14, 15
    k.e(f'v_and_b32 {v(VS)}, 63, v0\nv_lshrrev_b32 {v(VS)}, 4, {v(VS)}\nv_lshlrev_b32 {v(VS)}, 4, {v(VS)}\nv_add_u32 {v(VS)}, 0x10000, {v(VS)}')
    k.e(f's_lshl_b32 {s(S_T0)}, {s(S_KH)}, 9\nv_add_u32 {v(VS2)}, {s(S_T0)}, {v(VS)}')
    ACC = 16; FR = 20; BF = 52
    def gemv(tiles, vs):
        for i in range(4): k.e(f'v_mov_b32 {v(ACC+i)}, 0')
        for n, lds in enumerate(tiles):
            toks = []
            for st in range(8):
                k.ds(f'ds_read_b64_tr_b16 {v(FR+4*st,2)}, {v(VR)} offset:{lds + 4096*st}')
                k.ds(f'ds_read_b64_tr_b16 {v(FR+4*st+2,2)}, {v(VR)} offset:{lds + 4096*st+512}')
                toks.append(k.ds(f'ds_read_b128 {v(BF+4*st,4)}, {v(vs)} offset:{64*(8*n+st)}'))
            for st in range(8):
                k.wait(toks[st])
                mfma16(k, v(ACC,4), v(FR+4*st,4), v(BF+4*st,4))
    def out_offset():
        k.e(f'v_and_b32 {v(VT)}, 63, v0\nv_lshrrev_b32 {v(VU)}, 4, {v(VT)}\nv_lshlrev_b32 {v(VU)}, 4, {v(VU)}')
        k.e(f'v_and_b32 {v(VT)}, 15, {v(VT)}\nv_cmp_eq_u32 vcc, 0, {v(VT)}')
        k.e(f'v_mov_b32 {v(VT)}, {hex(OOB)}\nv_cndmask_b32 {v(VU)}, {v(VT)}, {v(VU)}, vcc')
        k.e(f's_lshl_b32 {s(S_T0)}, {s(S_JB)}, 8\ns_lshl_b32 {s(S_T1)}, {s(S_WAVE)}, 6\ns_add_u32 {s(S_T0)}, {s(S_T0)}, {s(S_T1)}')
    stamp(k, 1)
    k.e('s_waitcnt vmcnt(0) lgkmcnt(0)'); k.e('s_barrier')
    stamp(k, 2)
    k.e(f's_cmp_eq_u32 {s(S_KH)}, 2'); k.e(f's_cbranch_scc1 {lfull}')
    nonce_fetch(k, VN, VT)
    gemv([0], VS2)
    srd(k, DST, P_WS, MODP, 2 * 1536 * 4)
    out_offset()
    k.e(f's_mul_i32 {s(S_T1)}, {s(S_KH)}, {1536*4}\ns_add_u32 {s(S_T0)}, {s(S_T0)}, {s(S_T1)}')
    k.vm(f'buffer_store_dwordx4 {v(ACC,4)}, {v(VU)}, {s(DST,4)}, {s(S_T0)} offen{SC}')
    k.e(f's_add_u32 {s(S_SEG)}, {s(S_ID)}, 128')
    publish_job(k, S_SEG, 102, 103, VN)
    stamp(k, 3)
    lend = k.newlabel('mend')
    k.e(f's_branch {lend}')
    k.label(lfull)
    k.vm_done = k.vm_issued; k.lg_done = k.lg_issued
    gemv([0, 32768], VS)
    k.e(f's_lshr_b32 {s(S_SEG)}, {s(S_JB)}, 3')
    def rnd():
        k.e(f'v_cvt_pk_bf16_f32 {v(FR)}, {v(ACC)}, {v(ACC+1)}\nv_cvt_pk_bf16_f32 {v(FR+1)}, {v(ACC+2)}, {v(ACC+3)}')
        k.e(f'v_lshlrev_b32 {v(ACC)}, 16, {v(FR)}\nv_and_b32 {v(ACC+1)}, 0xffff0000, {v(FR)}')
        k.e(f'v_lshlrev_b32 {v(ACC+2)}, 16, {v(FR+1)}\nv_and_b32 {v(ACC+3)}, 0xffff0000, {v(FR+1)}')
    rnd()
    lst = k.newlabel('mst')
    k.e(f's_cmp_eq_u32 {s(S_SEG)}, 4'); k.e(f's_cbranch_scc0 {lst}')
    for i in range(4): k.e(f'v_add_f32 {v(ACC+i)}, 1.0, {v(ACC+i)}')
    rnd()
    k.label(lst)
    srd(k, DST, P_WS, MOD, 3072 * 4)
    out_offset()
    k.vm(f'buffer_store_dwordx4 {v(ACC,4)}, {v(VU)}, {s(DST,4)}, {s(S_T0)} offen')
    k.label(lend)
    stamp_end(k, 0)
    k.e('s_endpgm')

def role_X(k, lw):
    S_T0, S_T1, S_R0 = 44, 45, 46
    SRC, DXT, DXN = 48, 52, 56
    k.c('role X : LN statistics of 16 rows of x, writes x^T and LN(x)^T')
    if CFGAB['prio']: k.e('s_setprio 3')
    srd(k, SRC, P_U, 0, 2 * MB)
    srd(k, DXT, P_WS, XTB, 128 * XBS16)
    srd(k, DXN, P_WS, XNB, 128 * XBS16)
    k.e(f's_sub_u32 {s(S_ID)}, s2, 256\ns_lshl_b32 {s(S_R0)}, {s(S_ID)}, 4')
    VL, VO, VT, VW = 2, 3, 4, 5
    X = 8
    k.e(f'v_and_b32 {v(VL)}, 63, v0\nv_lshrrev_b32 {v(VT)}, 4, {v(VL)}')
    k.e(f's_lshl_b32 {s(S_T0)}, {s(S_WAVE)}, 2\nv_add_u32 {v(VW)}, {s(S_T0)}, {v(VT)}')
    k.e(f'v_add_u32 {v(VT)}, {s(S_R0)}, {v(VW)}\nv_lshlrev_b32 {v(VO)}, 10, {v(VT)}')
    k.e(f'v_and_b32 {v(VT)}, 15, {v(VL)}\nv_lshl_add_u32 {v(VO)}, {v(VT)}, 4, {v(VO)}')
    toks = [k.vm(f'buffer_load_dwordx4 {v(X+4*j,4)}, {v(VO)}, {s(SRC,4)}, 0 offen offset:{256*j}') for j in range(4)]
    VA = 6; VST = 7
    k.e(f'v_mul_u32_u24 {v(VA)}, 1056, {v(VW)}\nv_lshlrev_b32 {v(VST)}, 2, {v(VW)}')
    k.e(f'v_and_b32 {v(VW)}, 8, {v(VW)}\nv_add_u32 {v(VT)}, {v(VT)}, {v(VW)}\nv_lshl_add_u32 {v(VA)}, {v(VT)}, 4, {v(VA)}')
    S1, S2, S3, S4, ONE = 40, 41, 42, 43, 44
    VN = 110
    k.e(f'v_mov_b32 {v(ONE)}, 0x3f803f80')
    for r in (S1, S2, S3, S4): k.e(f'v_mov_b32 {v(r)}, 0')
    stamp(k, 1)
    for j in range(4):
        k.wait(toks[j])
        if j == 0: stamp(k, 2)
        for i in range(4):
            k.e(f'v_dot2_f32_bf16 {v(S1 + (i&1))}, {v(X+4*j+i)}, {v(ONE)}, {v(S1 + (i&1))}')
            k.e(f'v_dot2_f32_bf16 {v(S3 + (i&1))}, {v(X+4*j+i)}, {v(X+4*j+i)}, {v(S3 + (i&1))}')
        k.ds(f'ds_write_b128 {v(VA)}, {v(X+4*j,4)} offset:{256*j}')
    nonce_fetch(k, VN, VT)
    k.e(f'v_add_f32 {v(S1)}, {v(S1)}, {v(S2)}\nv_add_f32 {v(S3)}, {v(S3)}, {v(S4)}')
    for m in ('quad_perm:[1,0,3,2]', 'quad_perm:[2,3,0,1]', 'row_half_mirror', 'row_mirror'):
        k.e(f'v_add_f32_dpp {v(S1)}, {v(S1)}, {v(S1)} {m} row_mask:0xf bank_mask:0xf')
        k.e(f'v_add_f32_dpp {v(S3)}, {v(S3)}, {v(S3)} {m} row_mask:0xf bank_mask:0xf')
    k.e(f'v_mul_f32 {v(S1)}, {hexf(1/512)}, {v(S1)}')
    k.e(f'v_mul_f32 {v(S2)}, {v(S1)}, {v(S1)}')
    k.e(f'v_mov_b32 {v(S4)}, {hexf(1/512)}')
    k.e(f'v_fma_f32 {v(S3)}, {v(S3)}, {v(S4)}, -{v(S2)}')
    k.e(f'v_max_f32 {v(S3)}, 0, {v(S3)}\nv_add_f32 {v(S3)}, {hexf(1e-5)}, {v(S3)}')
    k.e(f'v_rsq_f32 {v(S3)}, {v(S3)}')
    k.e(f'v_mul_f32 {v(S1)}, {v(S1)}, {v(S3)}\nv_sub_f32 {v(S1)}, 0, {v(S1)}')
    STAT = 17408
    k.ds(f'ds_write_b32 {v(VST)}, {v(S3)} offset:{STAT}')
    k.ds(f'ds_write_b32 {v(VST)}, {v(S1)} offset:{STAT+128}')
    k.barrier()
    stamp(k, 3)
    RS, NMR = 48, 56
    k.e(f'v_bfe_u32 {v(VT)}, {v(VL)}, 4, 1\nv_lshlrev_b32 {v(VW)}, 5, {v(VT)}')
    k.ds(f'ds_read_b128 {v(RS,4)}, {v(VW)} offset:{STAT}')
    k.ds(f'ds_read_b128 {v(RS+4,4)}, {v(VW)} offset:{STAT+16}')
    k.ds(f'ds_read_b128 {v(NMR,4)}, {v(VW)} offset:{STAT+128}')
    t2 = k.ds(f'ds_read_b128 {v(NMR+4,4)}, {v(VW)} offset:{STAT+144}')
    VR = 6
    k.e(f'v_bfe_u32 {v(VW)}, {v(VL)}, 2, 2\nv_lshl_add_u32 {v(VW)}, {v(VT)}, 3, {v(VW)}')
    k.e(f'v_mul_u32_u24 {v(VR)}, 1056, {v(VW)}\nv_lshl_add_u32 {v(VR)}, {v(VT)}, 7, {v(VR)}')
    k.e(f'v_and_b32 {v(VW)}, 3, {v(VL)}\nv_lshl_add_u32 {v(VR)}, {v(VW)}, 3, {v(VR)}')
    k.e(f'v_lshrrev_b32 {v(VW)}, 5, {v(VL)}\nv_lshl_add_u32 {v(VR)}, {v(VW)}, 5, {v(VR)}')
    k.e(f's_lshl_b32 {s(S_T0)}, {s(S_WAVE)}, 8\nv_add_u32 {v(VR)}, {s(S_T0)}, {v(VR)}')
    k.e(f'v_and_b32 {v(VO)}, 15, {v(VL)}\nv_lshl_add_u32 {v(VO)}, {v(VW)}, 4, {v(VO)}\ns_lshl_b32 {s(S_T0)}, {s(S_WAVE)}, 7\nv_add_u32 {v(VO)}, {s(S_T0)}, {v(VO)}')
    k.e(f'v_lshlrev_b32 {v(VO)}, 5, {v(VO)}\nv_lshl_add_u32 {v(VO)}, {v(VT)}, 4, {v(VO)}')
    k.e(f's_mul_i32 {s(S_T1)}, {s(S_ID)}, {XBS16}')
    FR = 8; U = 64; O = 72
    toks = []
    for u in range(4):
        k.ds(f'ds_read_b64_tr_b16 {v(FR+4*u,2)}, {v(VR)} offset:{64*u}')
        toks.append(k.ds(f'ds_read_b64_tr_b16 {v(FR+4*u+2,2)}, {v(VR)} offset:{64*u + 4*1056}'))
    k.wait(t2)
    for u in range(4):
        k.wait(toks[u])
        for i in range(4):
            k.e(f'v_lshlrev_b32 {v(U+2*i)}, 16, {v(FR+4*u+i)}\nv_and_b32 {v(U+2*i+1)}, 0xffff0000, {v(FR+4*u+i)}')
        for i in range(4):
            k.e(f'v_pk_fma_f32 {v(U+2*i,2)}, {v(U+2*i,2)}, {v(RS+2*i,2)}, {v(NMR+2*i,2)}')
        oo = O + 4 * (u & 1)
        for i in range(4):
            k.e(f'v_cvt_pk_bf16_f32 {v(oo+i)}, {v(U+2*i)}, {v(U+2*i+1)}')
        k.vm(f'buffer_store_dwordx4 {v(oo,4)}, {v(VO)}, {s(DXN,4)}, {s(S_T1)} offen{SC}')
        k.vm(f'buffer_store_dwordx4 {v(FR+4*u,4)}, {v(VO)}, {s(DXT,4)}, {s(S_T1)} offen{SC}')
        k.e(f's_add_u32 {s(S_T1)}, {s(S_T1)}, 1024')
    stamp(k, 4)
    publish_job(k, S_ID, 102, 103, VN)
    if CFGAB['prio']: k.e('s_setprio 0')
    stamp(k, 5)
    lend = k.newlabel('xend')
    k.e(f's_cmp_lt_u32 {s(S_ID)}, 124'); k.e(f's_cbranch_scc1 {lw}')
    stamp_end(k, 0)
    k.e('s_endpgm')

KC0 = 0; KCS = 4160; KCH = 4 * KCS
HP0 = 2 * KCH; HPS = 4608
RED = HP0 + 2 * HPS
XP0 = RED + 4 * 4096

def conv_part(k, tnonce, wg='s2'):
    S_T0, S_T1, S_D, S_P, S_CH = 44, 45, 46, 47, 60
    SK, SXN, SXT, SMOD, SDS, SO = 48, 52, 56, 64, 68, 72
    k.c('phase B : causal convolution of two channels')
    srd(k, SXN, P_WS, XNB, 128 * XBS16)
    srd(k, SXT, P_WS, XTB, 128 * XBS16)
    srd(k, SMOD, P_WS, MODP, 2 * 1536 * 4)
    srd(k, SDS, P_DSK, 0, 1024)
    srd(k, SO, P_WS, X2B, 64 * XBS)
    k.e(f's_lshr_b32 {s(S_CH)}, {s(S_WAVE)}, 1\ns_and_b32 {s(S_P)}, {s(S_WAVE)}, 1')
    k.e(f's_lshl_b32 {s(S_D)}, {wg}, 1\ns_add_u32 {s(S_D)}, {s(S_D)}, {s(S_CH)}')
    VL, VC, VT, VU = 2, 3, 4, 5
    k.e(f'v_and_b32 {v(VL)}, 63, v0')
    k.e(f's_lshl_b32 {s(S_T0)}, {s(S_P)}, 11\nv_lshl_add_u32 {v(VC)}, {v(VL)}, 4, {s(S_T0)}')
    SA, C1, GA, DS = 40, 42, 44, 46
    k.e(f's_lshl_b32 {s(S_T0)}, {s(S_D)}, 1\nv_mov_b32 {v(VU)}, {s(S_T0)}')
    td = k.vm(f'buffer_load_ushort {v(DS)}, {v(VU)}, {s(SDS,4)}, 0 offen')
    VE = 6; XE = 48
    k.e(f'v_and_b32 {v(VT)}, 15, {v(VL)}\nv_lshrrev_b32 {v(VU)}, 4, {v(VL)}')
    k.e(f'v_lshlrev_b32 {v(VE)}, 5, {v(VT)}\nv_lshl_add_u32 {v(VE)}, {v(VU)}, 3, {v(VE)}')
    k.e(f's_lshl_b32 {s(S_T0)}, {s(S_P)}, 11\nv_add_u32 {v(VE)}, {s(S_T0)}, {v(VE)}')
    VKW, VHW, VTA, VHA, VHE = 56, 57, 58, 59, 60
    k.e(f's_mul_i32 {s(S_T0)}, {s(S_CH)}, {KCH}\nv_add_u32 {v(VKW)}, {s(S_T0)}, {v(VC)}')
    k.e(f's_mul_i32 {s(61)}, {s(S_CH)}, {HPS}\ns_add_u32 {s(61)}, {s(61)}, {HP0}')
    k.e(f'v_add_u32 {v(VHW)}, {s(61)}, {v(VC)}')
    k.e(f'v_sub_u32 {v(VTA)}, 3, {v(VT)}\nv_and_b32 {v(VTA)}, 3, {v(VTA)}\nv_mul_u32_u24 {v(VTA)}, {KCS}, {v(VTA)}')
    k.e(f'v_lshrrev_b32 {v(VHA)}, 2, {v(VT)}\nv_lshlrev_b32 {v(VHA)}, 3, {v(VHA)}\nv_sub_u32 {v(VTA)}, {v(VTA)}, {v(VHA)}')
    k.e(f'v_lshl_add_u32 {v(VTA)}, {v(VU)}, 4, {v(VTA)}')
    k.e(f's_lshl_b32 {s(S_T1)}, {s(S_P)}, 6\ns_sub_u32 {s(S_T1)}, 88, {s(S_T1)}\ns_add_u32 {s(S_T0)}, {s(S_T0)}, {s(S_T1)}')
    k.e(f'v_add_u32 {v(VTA)}, {s(S_T0)}, {v(VTA)}')
    k.e(f'v_lshlrev_b32 {v(VHA)}, 5, {v(VT)}\nv_lshl_add_u32 {v(VHA)}, {v(VU)}, 4, {v(VHA)}')
    k.e(f's_lshl_b32 {s(S_T1)}, {s(S_P)}, 6\ns_sub_u32 {s(S_T1)}, 64, {s(S_T1)}\ns_add_u32 {s(S_T1)}, {s(S_T1)}, {s(61)}')
    k.e(f'v_add_u32 {v(VHA)}, {s(S_T1)}, {v(VHA)}')
    k.e(f'v_add_u32 {v(VHE)}, {s(61)}, {v(VE)}')
    Z = 64
    for i in range(4): k.e(f'v_mov_b32 {v(Z+i)}, 0')
    lz1, lz2 = k.newlabel('z1'), k.newlabel('z2')
    k.e(f's_cmp_eq_u32 {s(S_P)}, 0'); k.e(f's_cbranch_scc0 {lz1}')
    k.e(f'v_lshrrev_b32 {v(Z+4)}, 1, {v(VL)}\nv_mul_u32_u24 {v(Z+4)}, {KCS}, {v(Z+4)}\nv_and_b32 {v(Z+5)}, 1, {v(VL)}\nv_lshl_add_u32 {v(Z+4)}, {v(Z+5)}, 4, {v(Z+4)}')
    k.e(f's_mul_i32 {s(S_T0)}, {s(S_CH)}, {KCH}\nv_add_u32 {v(Z+4)}, {s(S_T0)}, {v(Z+4)}')
    k.e('s_mov_b64 exec, 0xff')
    k.ds(f'ds_write_b128 {v(Z+4)}, {v(Z,4)} offset:4096')
    k.e('s_mov_b64 exec, -1')
    k.e(f's_branch {lz2}')
    k.label(lz1)
    k.e(f'v_lshlrev_b32 {v(Z+4)}, 4, {v(VL)}\nv_add_u32 {v(Z+4)}, {s(61)}, {v(Z+4)}')
    k.e('s_mov_b64 exec, 0x3fffffff')
    k.ds(f'ds_write_b128 {v(Z+4)}, {v(Z,4)}')
    k.e('s_mov_b64 exec, -1')
    k.label(lz2)
    VG, VXO, VXI = 61, 62, 63
    k.e(f'v_lshrrev_b32 {v(VG)}, 2, {v(VL)}\ns_lshl_b32 {s(S_T0)}, {s(S_WAVE)}, 5\nv_add_u32 {v(VG)}, {s(S_T0)}, {v(VG)}')
    k.e(f'v_and_b32 {v(Z)}, 1, {v(VL)}\nv_lshl_add_u32 {v(VXI)}, {v(VG)}, 1, {v(Z)}\nv_lshlrev_b32 {v(VXI)}, 4, {v(VXI)}')
    k.e(f'v_bfe_u32 {v(Z)}, {v(VL)}, 1, 1\nv_mul_u32_u24 {v(VHW)}, {HPS}, {v(Z)}\nv_add_u32 {v(VHW)}, {HP0}, {v(VHW)}\nv_add_u32 {v(VHW)}, {v(VXI)}, {v(VHW)}')
    k.e(f'v_lshl_add_u32 {v(VXI)}, {v(Z)}, 12, {v(VXI)}\nv_add_u32 {v(VXI)}, {XP0}, {v(VXI)}')
    k.e(f'v_mul_u32_u24 {v(VG)}, {XBS16}, {v(VG)}\nv_and_b32 {v(Z+1)}, 3, {v(VL)}\nv_lshl_add_u32 {v(VG)}, {v(Z+1)}, 4, {v(VG)}')
    VM = 65
    k.e(f's_lshl_b32 {s(S_T0)}, {wg}, 3\nv_lshl_add_u32 {v(VM)}, {v(Z)}, 2, {s(S_T0)}')
    VM2 = 66
    k.e(f's_lshl_b32 {s(S_T0)}, {s(S_D)}, 2\nv_mov_b32 {v(VM2)}, {s(S_T0)}')
    VXE = 67
    k.e(f's_lshl_b32 {s(S_T0)}, {s(S_CH)}, 12\ns_add_u32 {s(S_T0)}, {s(S_T0)}, {XP0}\nv_add_u32 {v(VXE)}, {s(S_T0)}, {v(VE)}')
    k.e(f'v_and_b32 {v(VXO)}, 15, {v(VL)}\nv_lshrrev_b32 {v(VXO)}, 1, {v(VXO)}\ns_lshl_b32 {s(S_T0)}, {s(S_P)}, 5\nv_add_u32 {v(VXO)}, {s(S_T0)}, {v(VXO)}\nv_mul_u32_u24 {v(VXO)}, {XBS}, {v(VXO)}')
    k.e(f'v_and_b32 {v(Z)}, 1, {v(VL)}\nv_lshl_add_u32 {v(VXO)}, {v(Z)}, 5, {v(VXO)}\nv_lshrrev_b32 {v(Z)}, 4, {v(VL)}\nv_lshl_add_u32 {v(VXO)}, {v(Z)}, 3, {v(VXO)}')
    k.e(f's_lshr_b32 s63, {wg}, 5')
    stamp(k, 6)
    await_jobs(k, 127, tnonce, 7, 8, 10, 63)
    stamp(k, 7)
    XN = 32; XR = 48
    k.e(f's_lshl_b32 {s(S_T1)}, {wg}, 6\ns_add_u32 s62, {s(S_T1)}, {16*XBS16}')
    tx = [k.vm(f'buffer_load_dwordx4 {v(XN+4*i,4)}, {v(VG)}, {s(SXN,4)}, {s(S_T1) if i == 0 else "s62"} offen{SC}') for i in range(2)]
    MP = 16
    k.e(f'v_add_u32 {v(VU)}, {1536*4}, {v(VM)}')
    for kh, vv in ((0, VM), (1, VU)):
        k.vm(f'buffer_load_dword {v(MP+2*kh)}, {v(vv)}, {s(SMOD,4)}, 0 offen{SC}')
        tm = k.vm(f'buffer_load_dword {v(MP+2*kh+1)}, {v(vv)}, {s(SMOD,4)}, 0 offen offset:2048{SC}')
    k.e(f'v_add_u32 {v(VM2)}, 4096, {v(VM2)}\nv_add_u32 {v(VU)}, {1536*4}, {v(VM2)}')
    MG = 68
    k.vm(f'buffer_load_dword {v(MG)}, {v(VM2)}, {s(SMOD,4)}, 0 offen{SC}')
    tg = k.vm(f'buffer_load_dword {v(MG+1)}, {v(VU)}, {s(SMOD,4)}, 0 offen{SC}')
    te = [k.vm(f'buffer_load_dwordx4 {v(XR+4*i,4)}, {v(VG)}, {s(SXT,4)}, {s(S_T1) if i == 0 else "s62"} offen{SC}') for i in range(2)]
    U = 72; O = 88
    if CFGAB['late'] == 1: raise_go(k, 7, 8)
    k.wait(tm, tx[1])
    stamp(k, 8)
    k.e(f'v_add_f32 {v(MP)}, {v(MP)}, {v(MP+2)}\nv_add_f32 {v(MP+1)}, {v(MP+1)}, {v(MP+3)}')
    k.e(f'v_cvt_pk_bf16_f32 {v(MP)}, {v(MP)}, {v(MP+1)}')
    k.e(f'v_lshlrev_b32 {v(SA)}, 16, {v(MP)}\nv_and_b32 {v(C1)}, 0xffff0000, {v(MP)}')
    k.e(f'v_add_f32 {v(C1)}, 1.0, {v(C1)}\nv_cvt_pk_bf16_f32 {v(C1)}, {v(C1)}, {v(C1)}\nv_lshlrev_b32 {v(C1)}, 16, {v(C1)}')
    for i in range(2):
        for j in range(4):
            k.e(f'v_lshlrev_b32 {v(U+2*j)}, 16, {v(XN+4*i+j)}\nv_and_b32 {v(U+2*j+1)}, 0xffff0000, {v(XN+4*i+j)}')
        for j in range(4):
            k.e(f'v_pk_fma_f32 {v(U+2*j,2)}, {v(U+2*j,2)}, {v(C1,2)}, {v(SA,2)} op_sel_hi:[1,0,0]')
        for j in range(4):
            k.e(f'v_cvt_pk_bf16_f32 {v(O+4*i+j)}, {v(U+2*j)}, {v(U+2*j+1)}')
        k.ds(f'ds_write_b128 {v(VHW)}, {v(O+4*i,4)} offset:{480+512*i}')
    ACC = 96; TR = 8; NT = 4
    for i in range(32): k.e(f'v_mov_b32 {v(ACC+i)}, 0')
    stamp(k, 9)
    k.barrier()
    stamp(k, 10)
    def readT(m):
        r = TR + 4 * (m % NT)
        k.ds(f'ds_read_b64 {v(r,2)}, {v(VTA)} offset:{128*(31-m)}')
        return k.ds(f'ds_read_b64 {v(r+2,2)}, {v(VTA)} offset:{128*(31-m)+8}')
    def readH(hi): return k.ds(f'ds_read_b128 {a(4*hi,4)}, {v(VHA)} offset:{128*hi}')
    tT, tH = {}, {}
    tT[0] = readT(0)
    for t in range(8): tH[4*t+3] = readH(4*t+3)
    tT[1] = readT(1)
    for m in range(32):
        dl = m >> 2
        if m + 2 < 32: tT[m+2] = readT(m + 2)
        ts = list(range(dl, 8))
        for n, t in enumerate(ts):
            hi = 4 * t + 3 - m
            if m < 3:
                tH[hi - 1] = readH(hi - 1)
            k.wait(tT[m], tH[hi])
            mfma16(k, v(ACC+4*t,4), v(TR+4*(m % NT),4), a(4*hi,4))
    stamp(k, 11)
    k.wait(tg, te[1])
    k.e(f'v_add_f32 {v(MG)}, {v(MG)}, {v(MG+1)}\nv_cvt_pk_bf16_f32 {v(MG)}, {v(MG)}, {v(MG)}\nv_lshlrev_b32 {v(GA)}, 16, {v(MG)}')
    for i in range(2): k.ds(f'ds_write_b128 {v(VXI)}, {v(XR+4*i,4)} offset:{512*i}')
    lp1, lpj = k.newlabel('p1'), k.newlabel('pj')
    VR = 4
    k.e(f's_lshl_b32 {s(S_T0)}, {s(S_WAVE)}, 12\ns_add_u32 {s(S_T0)}, {s(S_T0)}, {RED}\nv_lshl_add_u32 {v(VR)}, {v(VL)}, 4, {s(S_T0)}')
    k.e(f's_cmp_eq_u32 {s(S_P)}, 0'); k.e(f's_cbranch_scc0 {lp1}')
    for i in range(4): k.ds(f'ds_write_b128 {v(VR)}, {v(ACC+16+4*i,4)} offset:{1024*i}')
    k.e(f's_branch {lpj}')
    k.label(lp1)
    k.flush_hazards(8)
    for i in range(4): k.ds(f'ds_write_b128 {v(VR)}, {v(ACC+4*i,4)} offset:{1024*i}')
    k.e('s_nop 1')
    for i in range(16): k.e(f'v_mov_b32 {v(ACC+i)}, {v(ACC+16+i)}')
    k.label(lpj)
    k.unknown_counters()
    k.e('s_waitcnt lgkmcnt(0)'); k.e('s_barrier')
    k.e(f'v_xor_b32 {v(VR)}, 4096, {v(VR)}') if RED % 8192 == 0 else None
    if RED % 8192 != 0:
        k.e(f's_xor_b32 {s(S_T0)}, {s(S_WAVE)}, 1\ns_lshl_b32 {s(S_T0)}, {s(S_T0)}, 12\ns_add_u32 {s(S_T0)}, {s(S_T0)}, {RED}\nv_lshl_add_u32 {v(VR)}, {v(VL)}, 4, {s(S_T0)}')
    stamp(k, 12)
    PR = 8; HE = 24
    tp = [k.ds(f'ds_read_b128 {v(PR+4*i,4)}, {v(VR)} offset:{1024*i}') for i in range(4)]
    th = [k.ds(f'ds_read_b64 {v(HE+2*i,2)}, {v(VHE)} offset:{480+512*i}') for i in range(4)]
    XE = 48
    tx_ = [k.ds(f'ds_read_b64 {v(XE+2*i,2)}, {v(VXE)} offset:{512*i}') for i in range(4)]
    k.wait(td)
    k.e(f'v_lshlrev_b32 {v(DS)}, 16, {v(DS)}')
    k.e(f's_lshl_b32 {s(S_T1)}, {s(S_D)}, 6')
    for i in range(4):
        k.wait(tp[i], th[i], tx_[i])
        A_ = ACC + 4 * i
        k.e(f'v_pk_add_f32 {v(A_,2)}, {v(A_,2)}, {v(PR+4*i,2)}\nv_pk_add_f32 {v(A_+2,2)}, {v(A_+2,2)}, {v(PR+4*i+2,2)}')
        for j in range(2):
            k.e(f'v_lshlrev_b32 {v(U+2*j)}, 16, {v(HE+2*i+j)}\nv_and_b32 {v(U+2*j+1)}, 0xffff0000, {v(HE+2*i+j)}')
            k.e(f'v_lshlrev_b32 {v(U+4+2*j)}, 16, {v(XE+2*i+j)}\nv_and_b32 {v(U+4+2*j+1)}, 0xffff0000, {v(XE+2*i+j)}')
        for j in range(2):
            k.e(f'v_pk_fma_f32 {v(A_+2*j,2)}, {v(U+2*j,2)}, {v(DS,2)}, {v(A_+2*j,2)} op_sel_hi:[1,0,1]')
        for j in range(2):
            k.e(f'v_pk_fma_f32 {v(A_+2*j,2)}, {v(A_+2*j,2)}, {v(GA,2)}, {v(U+4+2*j,2)} op_sel_hi:[1,0,1]')
        k.e(f'v_cvt_pk_bf16_f32 {v(O+2*i)}, {v(A_)}, {v(A_+1)}\nv_cvt_pk_bf16_f32 {v(O+2*i+1)}, {v(A_+2)}, {v(A_+3)}')
        k.vm(f'buffer_store_dwordx2 {v(O+2*i,2)}, {v(VXO)}, {s(SO,4)}, {s(S_T1)} offen' + (SC if CFGAB['wt_x'] else ''))
        if i < 3: k.e(f's_add_u32 {s(S_T1)}, {s(S_T1)}, {8*XBS}')

def role_KC(k):
    S_T0, S_T1, S_KG = 44, 45, 46
    SR = 48
    DK = 76
    CHB = 53 * 544
    TAB = 2 * CHB
    k.c('role K : K[d, l] generation')
    k.e(f's_mov_b32 {s(S_KG)}, s2')
    VO, VT, VU = 2, 3, 4
    k.e(f's_lshl_b32 {s(S_T0)}, {s(S_KG)}, 9\nv_lshlrev_b32 {v(VO)}, 1, v0\nv_add_u32 {v(VO)}, {s(S_T0)}, {v(VO)}')
    IN = 8
    toks = []
    for i, p in enumerate((P_ARE, P_AIM, P_BRE, P_BIM, P_CRE, P_CIM)):
        srd(k, SR + 4 * i, p, 0, 512 * 128 * 2)
        toks.append(k.vm(f'buffer_load_ushort {v(IN+i)}, {v(VO)}, {s(SR+4*i,4)}, 0 offen'))
    srd(k, SR + 24, P_LDT, 0, 1024)
    k.e(f'v_lshrrev_b32 {v(VT)}, 7, v0\ns_lshl_b32 {s(S_T0)}, {s(S_KG)}, 1\nv_add_u32 {v(VT)}, {s(S_T0)}, {v(VT)}\nv_lshlrev_b32 {v(VT)}, 1, {v(VT)}')
    tl = k.vm(f'buffer_load_ushort {v(IN+6)}, {v(VT)}, {s(SR+24,4)}, 0 offen')
    GA = 116
    NG = 11
    k.e(f'v_lshlrev_b32 {v(VT)}, 3, v0\nv_sub_u32 {v(VT)}, 2047, {v(VT)}')
    F0 = 16
    for j in range(NG): k.e(f'v_subrev_u32 {v(GA+j)}, {j}, {v(VT)}')
    for j in range(NG): k.e(f'v_max_i32 {v(F0+j)}, 0, {v(GA+j)}\nv_cvt_f32_u32 {v(F0+j)}, {v(F0+j)}')
    k.e(f'v_mov_b32 {v(F0+11)}, 0')
    for j in range(0, 12, 2): k.e(f'v_cvt_pk_bf16_f32 {v(F0+j)}, {v(F0+j)}, {v(F0+j+1)}')
    for j in range(0, 12, 2):
        k.e(f'v_lshrrev_b32 {v(F0+j+1)}, 16, {v(F0+j)}\nv_and_b32 {v(F0+j)}, 0xffff, {v(F0+j)}')
    for j in range(NG):
        k.e(f'v_subrev_u32 {v(F0+j)}, {17024}, {v(F0+j)}')
        if j >= 8: k.e(f'v_cmp_gt_i32 vcc, 0, {v(GA+j)}')
        k.e(f'v_min_i32 {v(GA+j)}, 127, {v(GA+j)}')
        k.e(f'v_max_i32 {v(GA+j)}, {v(GA+j)}, {v(F0+j)}')
        if j >= 8: k.e(f'v_mov_b32 {v(F0+j)}, 641\nv_cndmask_b32 {v(GA+j)}, {v(GA+j)}, {v(F0+j)}, vcc')
        k.e(f'v_lshlrev_b32 {v(GA+j)}, 1, {v(GA+j)}')
        k.e(f'v_add_u32 {v(GA+j)}, {TAB}, {v(GA+j)}')
    VW = 5
    k.e(f'v_lshrrev_b32 {v(VT)}, 7, v0\nv_mul_u32_u24 {v(VW)}, {CHB}, {v(VT)}')
    k.e(f'v_and_b32 {v(VT)}, 127, v0\nv_lshl_add_u32 {v(VW)}, {v(VT)}, 2, {v(VW)}')
    stamp(k, 1)
    k.wait(tl)
    stamp(k, 2)
    ARE, AIM, BRE, BIM, CRE, CIM, LDT = range(IN, IN + 7)
    for r in range(IN, IN + 7): k.e(f'v_lshlrev_b32 {v(r)}, 16, {v(r)}')
    DT = 6
    k.e(f'v_mul_f32 {v(LDT)}, {hexf(LOG2E)}, {v(LDT)}\nv_exp_f32 {v(LDT)}, {v(LDT)}')
    k.e(f'v_cvt_pk_bf16_f32 {v(LDT)}, {v(LDT)}, {v(LDT)}\nv_lshlrev_b32 {v(DT)}, 16, {v(LDT)}')
    ZR2, ZRV = 32, 33
    k.e(f'v_mul_f32 {v(ARE)}, {v(DT)}, {v(ARE)}\nv_mul_f32 {v(AIM)}, {v(DT)}, {v(AIM)}')
    k.e(f'v_mul_f32 {v(ZR2)}, {hexf(LOG2E)}, {v(ARE)}\nv_mul_f32 {v(ZRV)}, {hexf(INV2PI)}, {v(AIM)}')
    k.e(f'v_mul_f32 {v(BRE)}, {v(DT)}, {v(BRE)}\nv_mul_f32 {v(BIM)}, {v(DT)}, {v(BIM)}')
    R = Alloc(34, 115)
    pair = lambda: R.get(2, 2)
    W, DBp, CC, T = pair(), pair(), pair(), pair()
    k.e(f'v_mov_b32 {v(DBp)}, {v(BRE)}\nv_mov_b32 {v(DBp+1)}, {v(BIM)}\nv_mov_b32 {v(CC)}, {v(CRE)}\nv_mov_b32 {v(CC+1)}, {v(CIM)}')
    E1, E8, E256 = pair(), pair(), pair()
    cexp_direct(k, E1, ZR2, ZRV, 1.0, T)
    cexp_direct(k, E8, ZR2, ZRV, 8.0, T)
    cexp_direct(k, E256, ZR2, ZRV, 256.0, T)
    cmul(k, W, CC, DBp)
    R.put(DBp, 2); R.put(CC, 2); R.put(T, 2)
    cv = [R.get(1) for _ in range(4)]
    cvi = [0]
    def put(row, z, xside):
        c = cv[cvi[0] % 4]; cvi[0] += 1
        k.e(f'v_cvt_pk_bf16_f32 {v(c)}, {v(z)}, {"-" if xside else ""}{v(z+1)}')
        k.ds(f'ds_write_b32 {v(VW)}, {v(c)} offset:{row*544}')
    E2, E16, E512 = pair(), pair(), pair()
    cmul_many(k, [(E2, E1, E1), (E16, E8, E8), (E512, E256, E256)])
    WX = [W] + [pair() for _ in range(7)]
    E24, E32, E768, E1024 = pair(), pair(), pair(), pair()
    cmul_many(k, [(WX[1], W, E1), (WX[2], W, E2), (E24, E16, E8), (E32, E16, E16), (E768, E512, E256), (E1024, E512, E512)])
    put(0, W, True); put(1, WX[1], True); put(2, WX[2], True)
    E1280, E1536, E1792, E2048 = pair(), pair(), pair(), pair()
    cmul_many(k, [(WX[3], WX[1], E2), (WX[4], WX[2], E2), (E1280, E1024, E256), (E1536, E1024, E512), (E1792, E1024, E768), (E2048, E1024, E1024)])
    put(3, WX[3], True); put(4, WX[4], True)
    Y0 = pair()
    k.e(f'v_mov_b32 {v(Y0)}, 1.0\nv_mov_b32 {v(Y0+1)}, 0')
    Ya = [Y0, E8, E16, E24]
    for j in range(4): put(21 + j, Ya[j], False)
    cmul_many(k, [(WX[5], WX[3], E2), (WX[6], WX[4], E2)])
    Yb = [pair() for _ in range(4)]
    Yc = [pair() for _ in range(4)]
    cmul_many(k, [(Yb[j], Ya[j], E32) for j in range(4)])
    put(5, WX[5], True); put(6, WX[6], True)
    tmp = [pair() for _ in range(6)]
    cmul_many(k, [(WX[7], WX[5], E2), (tmp[0], W, E256), (tmp[1], WX[2], E256), (tmp[2], WX[4], E256), (tmp[3], WX[6], E256)])
    for j in range(4): put(25 + j, Yb[j], False)
    put(7, WX[7], True)
    for j in range(4): put(8 + j, tmp[j], True)
    cur, nxt = Yb, Yc
    xs = [[(12, W, E512), (13, WX[4], E512), (14, W, E768), (15, WX[4], E768)],
          [(16, W, E1024), (17, W, E1280), (18, W, E1536), (19, W, E1792)],
          [(20, W, E2048)]]
    for it in range(2, 8):
        trip = [(nxt[j], cur[j], E32) for j in range(4)]
        extra = xs[it-2] if it - 2 < len(xs) else []
        trip += [(tmp[i], x, y) for i, (_, x, y) in enumerate(extra)]
        cmul_many(k, trip)
        for j in range(4): put(21 + 4 * it + j, nxt[j], False)
        for i, (row, _, _) in enumerate(extra): put(row, tmp[i], True)
        cur, nxt = nxt, cur
    stamp(k, 3)
    k.barrier()
    stamp(k, 4)
    VA, VB = 2, 5
    k.e(f'v_and_b32 {v(VT)}, 63, v0\nv_and_b32 {v(VU)}, 15, {v(VT)}\nv_lshrrev_b32 {v(VT)}, 4, {v(VT)}')
    k.e(f's_lshr_b32 {s(S_T0)}, {s(S_WAVE)}, 1\ns_mul_i32 {s(S_T0)}, {s(S_T0)}, {CHB}')
    k.e(f'v_mul_u32_u24 {v(VA)}, 544, {v(VU)}\nv_lshl_add_u32 {v(VA)}, {v(VT)}, 4, {v(VA)}\nv_add_u32 {v(VA)}, {s(S_T0)}, {v(VA)}')
    k.e(f's_and_b32 {s(S_T1)}, {s(S_WAVE)}, 1\ns_mul_i32 {s(S_T1)}, {s(S_T1)}, {16*544}\ns_add_u32 {s(S_T1)}, {s(S_T1)}, {21*544}')
    k.e(f'v_add_u32 {v(VB)}, {s(S_T1)}, {v(VA)}')
    FA, FB, AC = 0, 64, 48
    toks = []
    for st in range(8):
        k.ds(f'ds_read_b128 {a(FA+8*st,4)}, {v(VA)} offset:{64*st}')
        k.ds(f'ds_read_b128 {a(FA+8*st+4,4)}, {v(VA)} offset:{64*st + 16*544}')
        toks.append(k.ds(f'ds_read_b128 {a(FB+4*st,4)}, {v(VB)} offset:{64*st}'))
    for i in range(8): k.e(f'v_mov_b32 {v(AC+i)}, 0')
    J = 6; MJ = 7; A0 = 32; A1 = 33; A2 = 34
    k.e(f's_and_b32 {s(S_T1)}, {s(S_WAVE)}, 1\ns_lshl_b32 {s(S_T1)}, {s(S_T1)}, 4\nv_add_u32 {v(J)}, {s(S_T1)}, {v(VU)}')
    k.e(f'v_sub_u32 {v(MJ)}, 4, {v(VT)}\nv_min_u32 {v(MJ)}, 3, {v(MJ)}')
    k.e(f'v_lshlrev_b32 {v(MJ)}, {v(MJ)}, {v(J)}')
    k.e(f'v_lshlrev_b32 {v(A0)}, 2, {v(VT)}')
    k.e(f'v_mov_b32 {v(A1)}, 256\nv_cmp_eq_u32 vcc, 2, {v(VT)}\nv_cndmask_b32 {v(A0)}, {v(A0)}, {v(A1)}, vcc')
    k.e(f'v_mov_b32 {v(A1)}, 384\nv_cmp_eq_u32 vcc, 3, {v(VT)}\nv_cndmask_b32 {v(A0)}, {v(A0)}, {v(A1)}, vcc')
    k.e(f'v_add_u32 {v(A0)}, {v(A0)}, {v(MJ)}')
    k.e(f'v_mov_b32 {v(A1)}, 0\nv_mov_b32 {v(A2)}, 62\nv_cndmask_b32 {v(A1)}, {v(A1)}, {v(A2)}, vcc\nv_add_u32 {v(A1)}, {v(A0)}, {v(A1)}')
    k.e(f'v_add_u32 {v(A2)}, 512, {v(J)}\nv_mov_b32 {v(MJ)}, 644\nv_cmp_eq_u32 vcc, 0, {v(VT)}\nv_cndmask_b32 {v(A2)}, {v(MJ)}, {v(A2)}, vcc')
    k.e(f'v_lshl_add_u32 {v(MJ)}, {v(VT)}, 5, {v(J)}\nv_cmp_eq_u32 vcc, 32, {v(MJ)}\nv_mov_b32 {v(MJ)}, 640\nv_cndmask_b32 {v(A2)}, {v(A2)}, {v(MJ)}, vcc')
    k.e(f's_lshr_b32 {s(S_T0)}, {s(S_WAVE)}, 1\ns_mul_i32 {s(S_T0)}, {s(S_T0)}, 1536\ns_add_u32 {s(S_T0)}, {s(S_T0)}, {TAB}')
    for r in (A0, A1, A2): k.e(f'v_lshl_add_u32 {v(r)}, {v(r)}, 1, {s(S_T0)}')
    for st in range(8):
        k.wait(toks[st])
        mfma16(k, v(AC,4), a(FA+8*st,4), a(FB+4*st,4))
        mfma16(k, v(AC+4,4), a(FA+8*st+4,4), a(FB+4*st,4))
    C0 = 40
    k.e(f'v_cvt_pk_bf16_f32 {v(C0)}, {v(AC)}, {v(AC+1)}\nv_cvt_pk_bf16_f32 {v(C0+1)}, {v(AC+2)}, {v(AC+3)}')
    k.e(f'v_cvt_pk_bf16_f32 {v(C0+2)}, {v(AC+4)}, {v(AC+5)}\nv_cvt_pk_bf16_f32 {v(C0+3)}, {v(AC+6)}, {v(AC+7)}')
    k.ds(f'ds_write_b16 {v(A0)}, {v(C0)}');              k.ds(f'ds_write_b16_d16_hi {v(A0)}, {v(C0)} offset:2')
    k.ds(f'ds_write_b16 {v(A1)}, {v(C0+1)} offset:4');   k.ds(f'ds_write_b16_d16_hi {v(A1)}, {v(C0+1)} offset:6')
    k.ds(f'ds_write_b16 {v(A2)}, {v(C0+2)}');            k.ds(f'ds_write_b16_d16_hi {v(A2)}, {v(C0+2)} offset:64')
    k.ds(f'ds_write_b16 {v(A2)}, {v(C0+3)} offset:128'); k.ds(f'ds_write_b16_d16_hi {v(A2)}, {v(C0+3)} offset:192')
    k.e(f's_add_u32 {s(S_T0)}, {s(S_T0)}, {641*2}\nv_mov_b32 {v(C0+4)}, {s(S_T0)}\nv_mov_b32 {v(C0+5)}, 0')
    k.ds(f'ds_write_b16 {v(C0+4)}, {v(C0+5)}')
    k.barrier()
    stamp(k, 5)
    tnonce = nonce_fetch(k, 127, 5)
    G = 16
    for ch in range(2):
        for j in range(NG): t = k.ds(f'ds_read_u16 {v(G+NG*ch+j)}, {v(GA+j)} offset:{1536*ch}')
    VKW = 6
    k.e(f'v_lshlrev_b32 {v(VKW)}, 4, v0')
    PK = 56
    k.wait(t)
    for ch in range(2):
        for sft in range(4):
            for i in range(4):
                e0 = G + NG*ch + sft + 2*i
                k.e(f'v_lshl_or_b32 {v(PK+16*ch+4*sft+i)}, {v(e0+1)}, 16, {v(e0)}')
            k.ds(f'ds_write_b128 {v(VKW)}, {v(PK+16*ch+4*sft,4)} offset:{ch*KCH + sft*KCS}')
    conv_part(k, tnonce)
    if CFGAB['code_end']:
        lp, lh = k.newlabel('pe'), k.newlabel('pch')
        k.e(f's_cmp_eq_u32 {s(S_WAVE)}, 0'); k.e(f's_cbranch_scc0 {lp}')
        k.e('s_getpc_b64 s[44:45]')
        k.label(lh)
        k.e(f's_add_u32 s44, s44, CODE_FROM-{lh}\ns_addc_u32 s45, s45, 0')
        k.e('s_lshr_b32 s46, s2, 3\ns_cmp_lt_u32 s46, (CODE_TO-CODE_FROM+8191)/8192'); k.e(f's_cbranch_scc0 {lp}')
        k.e('s_lshl_b32 s46, s46, 13\nv_and_b32 v100, 63, v0\nv_lshlrev_b32 v101, 7, v100\nv_add_u32 v101, s46, v101')
        k.e('v_min_u32 v101, CODE_TO-CODE_FROM-4, v101')
        k.e('global_load_dword v104, v101, s[44:45]'); k.vm_issued -= 1
        k.label(lp)
    stamp_end(k, 0)
    k.e('s_endpgm')

LDS_AB = 67584

def build_AB(name):
    k = Kern(name)
    lx, lm, lw, lk, lz, ln, lend = [k.newlabel(x) for x in ('X', 'M', 'W', 'K', 'Z', 'N', 'end')]
    k.e(f's_cmp_ge_u32 s2, 512'); k.e(f's_cbranch_scc1 {lend}')
    load_all_ptrs(k)
    if CFGAB['code']:
        lp, lh = k.newlabel('pre0'), k.newlabel('pc0')
        k.e('s_cmp_lt_u32 s2, 8'); k.e(f's_cbranch_scc0 {lp}')
        k.e('s_getpc_b64 s[44:45]')
        k.label(lh)
        k.e(f's_sub_u32 s44, s44, {lh}-CODE_BEGIN\ns_subb_u32 s45, s45, 0')
        k.e('v_lshrrev_b32 v100, 6, v0\nv_lshlrev_b32 v100, 13, v100\nv_and_b32 v101, 63, v0\nv_lshl_add_u32 v100, v101, 7, v100')
        k.e('v_min_u32 v100, CODE_FROM-CODE_BEGIN-4, v100')
        k.e('global_load_dword v101, v100, s[44:45]'); k.vm_issued -= 1
        k.label(lp)
    wave_id(k)
    k.e('s_waitcnt lgkmcnt(0)')
    stamp_begin(k)
    k.e('s_cmp_lt_u32 s2, 256'); k.e(f's_cbranch_scc1 {lk}')
    if CFGAB['tlb'] or CFGAB['code']:
        lp = k.newlabel('pre')
        k.e(f's_cmp_eq_u32 {s(S_WAVE)}, 0'); k.e(f's_cbranch_scc0 {lp}')
        k.e(f's_cmp_ge_u32 s2, {256+224}'); k.e(f's_cbranch_scc0 {lp}')
        k.e('v_and_b32 v100, 63, v0')
        if CFGAB['tlb']:
            srd(k, 48, P_WS, 0, 40 * MB)
            k.e('v_lshlrev_b32 v101, 20, v100')
            k.e('buffer_load_dword v102, v101, s[48:51], 0 offen'); k.vm_issued -= 1
            srd(k, 48, P_OUT, 0, 2 * MB)
            k.e('v_lshlrev_b32 v101, 15, v100')
            k.e('buffer_load_dword v103, v101, s[48:51], 0 offen'); k.vm_issued -= 1
        if CFGAB['code']:
            lh = k.newlabel('pc')
            k.e('s_getpc_b64 s[44:45]')
            k.label(lh)
            k.e(f's_add_u32 s44, s44, CODE_FROM-{lh}\ns_addc_u32 s45, s45, 0')
            k.e(f's_sub_u32 s46, s2, {256+224}\ns_lshr_b32 s46, s46, 3\ns_cmp_lt_u32 s46, (CODE_TO-CODE_FROM+8191)/8192'); k.e(f's_cbranch_scc0 {lp}')
            k.e('s_lshl_b32 s46, s46, 13\nv_lshlrev_b32 v101, 7, v100\nv_add_u32 v101, s46, v101')
            k.e('v_min_u32 v101, CODE_TO-CODE_FROM-4, v101')
            k.e('global_load_dword v104, v101, s[44:45]'); k.vm_issued -= 1
        k.label(lp)
    k.e(f's_cmp_ge_u32 s2, {256+220}'); k.e(f's_cbranch_scc1 {lend}')
    k.e(f's_cmp_ge_u32 s2, {256+204}'); k.e(f's_cbranch_scc1 {lz}')
    k.e(f's_cmp_eq_u32 s2, {256+200}'); k.e(f's_cbranch_scc1 {ln}')
    k.e(f's_cmp_ge_u32 s2, {256+200}'); k.e(f's_cbranch_scc1 {lend}')
    k.e(f's_cmp_ge_u32 s2, {256+128}'); k.e(f's_cbranch_scc1 {lm}')
    for lab, fn in ((lx, lambda kk: role_X(kk, lw)), (lw, role_W), (lm, role_M), (lk, role_KC)):
        k.label(lab)
        k.vm_done = k.vm_issued; k.lg_done = k.lg_issued
        fn(k)
    k.label(ln)
    k.e(f's_cmp_eq_u32 {s(S_WAVE)}, 0'); k.e(f's_cbranch_scc0 {lend}')
    srd(k, 48, P_WS, EPOCH, 64)
    srd(k, 52, P_DBG, 0, 256)
    k.e('v_mov_b32 v2, 0')
    k.e(f'buffer_load_dword v3, v2, s[48:51], 0 offen{SC}')
    k.e('s_waitcnt vmcnt(0)')
    k.e('v_add_u32 v3, 1, v3\nv_max_u32 v3, 1, v3')
    k.e(f'v_and_b32 v4, 63, v0\nv_cmp_eq_u32 vcc, 0, v4\nv_mov_b32 v4, {hex(OOB)}\nv_cndmask_b32 v4, v4, 0, vcc')
    k.e(f'buffer_store_dword v3, v4, s[48:51], 0 offen{SC}')
    k.e(f'buffer_store_dword v3, v4, s[52:55], 0 offen{SC}')
    k.e('s_endpgm')
    k.label(lz)
    srd(k, 48, P_WS, FLG, 4 * 16384)
    k.e(f's_sub_u32 s44, s2, {256+204}\ns_lshl_b32 s44, s44, 12\nv_lshlrev_b32 v2, 4, v0')
    for i in range(4): k.e(f'v_mov_b32 {v(4+i)}, 0')
    k.e('buffer_store_dwordx4 v[4:7], v2, s[48:51], s44 offen')
    k.label(lend)
    k.e('s_endpgm')
    return k
```
